```python
import torch

def _softmax(x, axis=-1):
    return torch.softmax(x, dim=axis)

def _gelu(x):
    return torch.nn.functional.gelu(x, approximate='tanh')

def _silu(x):
    return torch.nn.functional.silu(x)

def _sigmoid(x):
    return torch.sigmoid(x)

def _layernorm(x, axis=-1, eps=1e-05):
    m = x.mean(dim=axis, keepdim=True)
    v = x.var(dim=axis, keepdim=True, unbiased=False)
    return (x - m) / torch.sqrt(v + eps)

def _scatter_add(tgt, idx, src, axis=0):
    return tgt.clone().index_add_(axis, idx, src)

def _segment_sum(src, seg, n):
    out = torch.zeros((n,) + src.shape[1:], dtype=src.dtype)
    return out.index_add_(0, seg, src)

def _pad(x, pw):
    flat = tuple((v for pair in reversed(pw) for v in pair))
    return torch.nn.functional.pad(x, flat)
kernel_name = 'sequential_preLN__ssm_conv_h3__mixer_gmlp__prompt'

def setup_inputs():

    _w = lambda a: (lambda t: t.to(torch.bfloat16) if t.is_floating_point() else t)(torch.as_tensor(a))

    def _A_setup():
        B, S, D = (1, 2048, 512)
        ks = 4
        return {'q': _w((lambda *s: torch.randn(*s, dtype=torch.bfloat16) * 0.05)(B, S, D)), 'k': _w((lambda *s: torch.randn(*s, dtype=torch.bfloat16) * 0.4)(B, S, D)), 'v': _w((lambda *s: torch.randn(*s, dtype=torch.bfloat16) * 0.4)(B, S, D)), 'shift_k': _w((lambda *s: torch.randn(*s, dtype=torch.bfloat16) * 0.4)(D, ks) * 0.5), 'ssm_k': _w((lambda *s: torch.randn(*s, dtype=torch.bfloat16) * 0.4)(D, S) * (1.0 / S ** 0.5)), 'ssm_D': _w((lambda *s: torch.randn(*s, dtype=torch.bfloat16) * 0.4)(D))}
    _A_in = _A_setup()

    def _B_setup():
        B, S, D, F = (1, 2048, 512, 1792)
        Fh = F // 2
        return {'x': _w((lambda *s: torch.randn(*s, dtype=torch.bfloat16) * 0.05)(B, S, D)), 'w_in': _w((lambda *s: torch.randn(*s, dtype=torch.bfloat16) * 0.4)(D, 2 * Fh)), 'w_sp': _w(0.01 * (lambda *s: torch.randn(*s, dtype=torch.bfloat16) * 0.4)(S, S)), 'b_sp': _w(1.0 + 0.01 * (lambda *s: torch.randn(*s, dtype=torch.bfloat16) * 0.05)(S)), 'w_out': _w((lambda *s: torch.randn(*s, dtype=torch.bfloat16) * 0.05)(Fh, D))}
    _B_in = _B_setup()
    return {'A_q': _A_in['q'], 'A_k': _A_in['k'], 'A_v': _A_in['v'], 'A_shift_k': _A_in['shift_k'], 'A_ssm_k': _A_in['ssm_k'], 'A_ssm_D': _A_in['ssm_D'], 'B_x': _B_in['x'], 'B_w_in': _B_in['w_in'], 'B_w_sp': _B_in['w_sp'], 'B_b_sp': _B_in['b_sp'], 'B_w_out': _B_in['w_out']}

def reference(A_q, A_k, A_v, A_shift_k, A_ssm_k, A_ssm_D, B_x, B_w_in, B_w_sp, B_b_sp, B_w_out):

    def _A_ref(q, k, v, shift_k, ssm_k, ssm_D):
        B, S, D = q.shape
        ks = shift_k.shape[-1]
        k_pad = _pad(k, ((0, 0), (ks - 1, 0), (0, 0)))
        k_shift = torch.zeros_like(k)
        for t in range(ks):
            k_shift = k_shift + k_pad[:, t:t + S, :] * shift_k[:, ks - 1 - t][None, None, :]
        kv = k_shift * v
        L = 2 * S
        kv_pad = _pad(kv, ((0, 0), (0, S), (0, 0)))
        kf_pad = _pad(ssm_k, ((0, 0), (0, S)))
        kv_f = (lambda x, axes=(-2, -1): torch.fft.rfft2(x.float(), dim=axes))(kv_pad[:, None, :, :], axes=(1, 2))
        kf_f = (lambda x, axes=(-2, -1): torch.fft.rfft2(x.float(), dim=axes))(kf_pad[:, None, :], axes=(1, 2))
        kf_f = (lambda x, *d: x.permute(*d))(kf_f, 1, 2, 0)
        y_f = kv_f * kf_f[None, :, :, :]
        y = (lambda x, s, axes=(-2, -1): torch.fft.irfft2(x, s=s, dim=axes).to(torch.bfloat16))(y_f, (1, L), axes=(1, 2))[:, 0, :S, :]
        y = y + kv * ssm_D[None, None, :]
        return q * y

    def _B_ref(x, w_in, w_sp, b_sp, w_out):
        B, S, D = x.shape
        F = w_in.shape[-1]
        Fh = F // 2
        z = _gelu(torch.einsum('bsd,df->bsf', x, w_in))
        z1 = z[..., :Fh].clone()
        z2 = _layernorm(z[..., Fh:], axis=-1)
        g = torch.einsum('ts,bsf->btf', w_sp, z2) + b_sp[None, :, None]
        return torch.einsum('bsf,fd->bsd', z1 * g, w_out)
    x = A_q
    h = x + _A_ref(_layernorm(x, axis=-1), A_k, A_v, A_shift_k, A_ssm_k, A_ssm_D)
    h2 = h + _B_ref(_layernorm(h, axis=-1), B_w_in, B_w_sp, B_b_sp, B_w_out)
    return h2
```

```python
class Asm:
    def __init__(self):
        self.lines = []
        self.uid = 0
    def __call__(self, s=""):
        for ln in s.split("\n"):
            self.lines.append(ln)
    def e(self, fmt, *a):
        self.lines.append("    " + (fmt % a if a else fmt))
    def label(self, name):
        self.lines.append(name + ":")
    def newlabel(self, base="L"):
        self.uid += 1
        return "%s_%d" % (base, self.uid)
    def text(self):
        return "\n".join(self.lines) + "\n"

def vr(base, n=1):
    return "v%d" % base if n == 1 else "v[%d:%d]" % (base, base + n - 1)
def ar(base, n=1):
    return "a%d" % base if n == 1 else "a[%d:%d]" % (base, base + n - 1)
def sr(base, n=1):
    return "s%d" % base if n == 1 else "s[%d:%d]" % (base, base + n - 1)
def rr(idx, n=1):
    if idx < 256:
        assert idx + n <= 256, (idx, n)
        return vr(idx, n)
    return ar(idx - 256, n)

def kernel_begin(a, name):
    a(".globl %s" % name)
    a(".p2align 8")
    a(".type %s,@function" % name)
    a.label(name)

def kernel_desc(a, name, vgprs, sgprs=96, accum=None, ygrid=False):
    if accum is None:
        accum = min(256, (vgprs + 3) // 4 * 4)
    a(".amdhsa_kernel %s" % name)
    a("  .amdhsa_next_free_vgpr %d" % vgprs)
    a("  .amdhsa_next_free_sgpr %d" % sgprs)
    a("  .amdhsa_accum_offset %d" % accum)
    a("  .amdhsa_group_segment_fixed_size 0")
    a("  .amdhsa_kernarg_size 112")
    a("  .amdhsa_user_sgpr_count 2")
    a("  .amdhsa_user_sgpr_kernarg_segment_ptr 1")
    a("  .amdhsa_system_sgpr_workgroup_id_x 1")
    a("  .amdhsa_float_denorm_mode_32 3")
    a("  .amdhsa_float_denorm_mode_16_64 3")
    a(".end_amdhsa_kernel")


class Stamps:
    def __init__(self, a, base=40, on=False, maxn=24):
        self.a, self.base, self.on, self.n, self.maxn = a, base, on, 0, maxn
        self.names = []
    def stamp(self, name, real=False):
        if not self.on: return
        assert self.n < self.maxn
        r = self.base + 2 * self.n
        self.a.e("%s s[%d:%d]", "s_memrealtime" if real else "s_memtime", r, r + 1)
        self.a.e("s_waitcnt lgkmcnt(0)")
        self.n += 1
        self.names.append(name)
    def flush(self, s_ws, off, s_wg, vtmp, s_tmp):
        if not self.on: return
        a = self.a
        a.e("s_waitcnt vmcnt(0) lgkmcnt(0)")
        a.e("v_and_b32 v%d, 63, v0", vtmp)
        a.e("v_cmp_eq_u32 vcc, 0, v%d", vtmp)
        a.e("s_and_saveexec_b64 s[%d:%d], vcc", s_tmp + 2, s_tmp + 3)
        a.e("v_lshrrev_b32 v%d, 6, v0", vtmp)
        a.e("s_lshl_b32 s%d, s%d, 3", s_tmp, s_wg)
        a.e("v_add_u32 v%d, s%d, v%d", vtmp, s_tmp, vtmp)
        a.e("v_lshlrev_b32 v%d, 8, v%d", vtmp, vtmp)
        a.e("v_add_u32 v%d, 0x%x, v%d", vtmp, off, vtmp)
        for i in range(self.n):
            a.e("v_mov_b32 v%d, s%d", vtmp + 1, self.base + 2 * i)
            a.e("global_store_dword v%d, v%d, s[%d:%d] offset:%d", vtmp, vtmp + 1, s_ws, s_ws + 1, 4 * i)
            a.e("s_nop 1")
        a.e("s_waitcnt vmcnt(0)")
        a.e("s_mov_b64 exec, s[%d:%d]", s_tmp + 2, s_tmp + 3)
```

```python
from asmb import *
import layout as L

class VM:
    def __init__(self, a):
        self.a = a; self.q = []
    def issue(self, text, tag):
        self.a.e(text); self.q.append(tag)
        assert len(self.q) <= 63, "too many vmem in flight: %d" % len(self.q)
    def wait(self, *tags):
        idx = -1
        for i, t in enumerate(self.q):
            if t in tags: idx = i
        if idx < 0: return
        n = len(self.q) - 1 - idx
        self.a.e("s_waitcnt vmcnt(%d)", n)
        self.q = self.q[idx + 1:]
    def wait_all(self):
        self.a.e("s_waitcnt vmcnt(0)"); self.q = []
    def pending(self, tag):
        return tag in self.q

class LG:
    def __init__(self, a):
        self.a = a; self.q = []
    def issue(self, text, tag="x"):
        if len(self.q) >= 15:
            self.a.e("s_waitcnt lgkmcnt(14)"); self.q = self.q[len(self.q) - 14:]
        self.a.e(text); self.q.append(tag)
    def wait(self, *tags):
        idx = -1
        for i, t in enumerate(self.q):
            if t in tags: idx = i
        if idx < 0: return
        n = len(self.q) - 1 - idx
        self.a.e("s_waitcnt lgkmcnt(%d)", n)
        self.q = self.q[idx + 1:]
    def wait_all(self):
        self.a.e("s_waitcnt lgkmcnt(0)"); self.q = []

S_B = 2; S_W = 3
P_Q, P_K, P_V, P_SHK = 4, 6, 8, 10
P_SSM, P_D = 12, 14
P_WIN, P_WSP, P_BSP, P_WOUT = 16, 18, 20, 22
P_OUT, P_DBG = 24, 26
P_WS = 28
S_CG, S_J = 30, 31
R_WS = 32
R_A, R_B, R_C = 36, 40, 44
S_MB, S_NB = 48, 49
S_T = 50
S_STAMP = 64
V_TID, V_LANE = 0, 1
V_CS = 2
V_HRES = 18
V_BIAS = 26
V_L16 = 27
V_G = 28
V_P = 32

class Ctx:
    def __init__(self, a, stamps=False):
        self.a = a
        self.vm = VM(a); self.lg = LG(a)
        self.st = Stamps(a, S_STAMP, stamps, maxn=18)
        self.finestamps = False
    def fine(self, name):
        if self.finestamps: self.st.stamp(name)
    def e(self, fmt, *x): self.a.e(fmt, *x)
    def srd(self, r, ptr, nbytes, off_sreg=None, off_imm=0):
        e = self.e
        if off_sreg is None and off_imm == 0:
            e("s_mov_b32 s%d, s%d", r, ptr); e("s_mov_b32 s%d, s%d", r + 1, ptr + 1)
        else:
            if off_sreg is not None:
                e("s_add_u32 s%d, s%d, s%d", r, ptr, off_sreg)
            else:
                e("s_add_u32 s%d, s%d, 0x%x", r, ptr, off_imm)
            e("s_addc_u32 s%d, s%d, 0", r + 1, ptr + 1)
        e("s_mov_b32 s%d, 0x%x", r + 2, nbytes)
        e("s_mov_b32 s%d, 0x20000", r + 3)
    def dma(self, voff, srd, soff, lds_sreg, lds_imm, tag, flags=""):
        e = self.e
        if lds_sreg is None: e("s_mov_b32 m0, 0x%x", lds_imm)
        else: e("s_add_u32 m0, s%d, 0x%x", lds_sreg, lds_imm)
        e("s_nop 0")
        so = "s%d" % soff if soff is not None else "0"
        self.vm.issue("buffer_load_dwordx4 v%d, s[%d:%d], %s offen%s lds" % (voff, srd, srd + 3, so, (" " + flags) if flags else ""), tag)
    def bload(self, dst, n, voff, srd, soff, imm, tag, flags=""):
        assert 0 <= imm < 4096, imm
        op = {1: "dword", 2: "dwordx2", 4: "dwordx4"}[n]
        so = "s%d" % soff if soff is not None else "0"
        self.vm.issue("buffer_load_%s %s, v%d, s[%d:%d], %s offen offset:%d%s" % (op, rr(dst, n), voff, srd, srd + 3, so, imm, (" " + flags) if flags else ""), tag)
    def bstore(self, src, n, voff, srd, soff, imm, tag, flags=""):
        assert 0 <= imm < 4096, imm
        op = {1: "dword", 2: "dwordx2", 4: "dwordx4"}[n]
        so = "s%d" % soff if soff is not None else "0"
        self.vm.issue("buffer_store_%s %s, v%d, s[%d:%d], %s offen offset:%d%s" % (op, rr(src, n), voff, srd, srd + 3, so, imm, (" " + flags) if flags else ""), tag)
    def nop(self, n):
        while n > 0:
            k = min(n, 16); self.e("s_nop %d", k - 1); n -= k

    def arrive(self, line_sreg, line_imm):
        e = self.e; a = self.a
        skip = a.newlabel("arr")
        e("s_cmp_eq_u32 s%d, 0", S_W)
        e("s_cbranch_scc0 %s", skip)
        if line_sreg is not None:
            e("s_lshl_b32 s%d, s%d, 8", S_T, line_sreg)
            e("s_add_u32 s%d, s%d, 0x%x", S_T, S_T, L.FLAGS + line_imm * 256)
        else:
            e("s_mov_b32 s%d, 0x%x", S_T, L.FLAGS + line_imm * 256)
        e("s_mov_b64 s[%d:%d], exec", S_T + 2, S_T + 3)
        e("s_mov_b64 exec, 1")
        e("v_mov_b32 v29, s%d", S_T)
        e("v_mov_b32 v30, 1")
        e("global_atomic_add v29, v30, s[%d:%d] sc1", P_WS, P_WS + 1)
        e("s_mov_b64 exec, s[%d:%d]", S_T + 2, S_T + 3)
        a.label(skip)
    def poll(self, line_sreg, line_imm, nlines, target, all_waves=False):
        e = self.e; a = self.a
        skip = a.newlabel("pskip"); loop = a.newlabel("ploop"); done = a.newlabel("pdone")
        if not all_waves:
            e("s_cmp_eq_u32 s%d, 0", S_W)
            e("s_cbranch_scc0 %s", skip)
        if line_sreg is not None:
            e("s_lshl_b32 s%d, s%d, 8", S_T, line_sreg)
            e("s_add_u32 s%d, s%d, 0x%x", S_T, S_T, L.FLAGS + line_imm * 256)
        else:
            e("s_mov_b32 s%d, 0x%x", S_T, L.FLAGS + line_imm * 256)
        e("s_mov_b64 s[%d:%d], exec", S_T + 2, S_T + 3)
        e("v_lshlrev_b32 v29, 8, v%d", V_LANE)
        e("v_add_u32 v29, s%d, v29", S_T)
        e("s_mov_b64 exec, 0x%x", (1 << nlines) - 1)
        e("s_mov_b32 s%d, 0", S_T + 1)
        a.label(loop)
        e("global_load_dword v30, v29, s[%d:%d] sc1", P_WS, P_WS + 1)
        e("s_waitcnt vmcnt(0)")
        e("v_cmp_gt_u32 vcc, %d, v30", target)
        e("s_nop 1")
        e("s_cmp_eq_u64 vcc, 0")
        e("s_cbranch_scc1 %s", done)
        e("s_add_u32 s%d, s%d, 1", S_T + 1, S_T + 1)
        e("s_cmp_lt_u32 s%d, 0x200000", S_T + 1)
        e("s_cbranch_scc1 %s", loop)
        a.label(done)
        e("s_mov_b64 exec, s[%d:%d]", S_T + 2, S_T + 3)
        a.label(skip)
```

```python
MB = 1 << 20
UREV  = 0 * MB
XT    = 2 * MB
HT    = 4 * MB
Z1    = 6 * MB
Z2N   = 10 * MB
PF    = 14 * MB
WINF  = 18 * MB
WOUTF = 20 * MB
STAT1 = 21 * MB
ZST   = 21 * MB + 131072
FLAGS = 21 * MB + 327680
WS_USED = 22 * MB
STAMPS = 24 * MB
C1_LINE, C1B_LINE, C2_LINE, C3_LINE, C4_LINE = 0, 64, 128, 192, 200
```

```python
from core import *

LDS_COPY = 0
COPY_STRIDE = 4160
COPY_CH = 8 * COPY_STRIDE
LDS_T1, LDS_T2 = 0, 8192
LDS_UB = 66560
UB_CH = 4576
LDS_RAW = 75712
RAW_CH = 4128
LDS_WST = 83968

def setup(c):
    e = c.e; a = c.a
    e("s_cmp_ge_u32 s2, 256")
    e("s_cbranch_scc1 KEND")
    c.st.stamp("real0", real=True)
    c.st.stamp("start")
    e("s_load_dwordx8 s[4:11], s[0:1], 0")
    e("s_load_dwordx4 s[12:15], s[0:1], 32")
    e("s_load_dwordx8 s[16:23], s[0:1], 56")
    e("s_load_dwordx4 s[24:27], s[0:1], 88")
    e("s_load_dwordx2 s[28:29], s[0:1], 104")
    e("v_and_b32 v%d, 63, v0", V_LANE)
    e("v_lshrrev_b32 v29, 6, v0")
    e("v_and_b32 v%d, 15, v%d", V_L16, V_LANE)
    e("v_readfirstlane_b32 s%d, v29", S_W)
    e("v_lshrrev_b32 v%d, 4, v%d", V_G, V_LANE)
    e("s_and_b32 s%d, s2, 7", S_CG)
    e("s_lshr_b32 s%d, s2, 3", S_J)
    e("s_lshr_b32 s%d, s%d, 1", S_MB, S_CG)
    e("s_lshl_b32 s%d, s%d, 3", S_MB, S_MB)
    e("s_and_b32 s%d, s%d, 7", S_T, S_J)
    e("s_add_u32 s%d, s%d, s%d", S_MB, S_MB, S_T)
    e("s_and_b32 s%d, s%d, 1", S_NB, S_CG)
    e("s_lshl_b32 s%d, s%d, 2", S_NB, S_NB)
    e("s_lshr_b32 s%d, s%d, 3", S_T, S_J)
    e("s_add_u32 s%d, s%d, s%d", S_NB, S_NB, S_T)
    e("s_waitcnt lgkmcnt(0)")
    c.srd(R_WS, P_WS, L.WS_USED)

def bootstrap(c):
    e = c.e; a = c.a
    skip = a.newlabel("boot")
    e("s_cmp_eq_u32 s2, 0")
    e("s_cbranch_scc0 %s", skip)
    e("s_cmp_eq_u32 s%d, 3", S_W)
    e("s_cbranch_scc0 %s", skip)
    e("v_lshlrev_b32 v29, 8, v%d", V_LANE)
    e("v_add_u32 v29, 0x%x, v29", L.FLAGS)
    e("v_mov_b32 v30, 0")
    e("global_store_dword v29, v30, s[%d:%d] sc1", P_WS, P_WS + 1)
    e("s_waitcnt vmcnt(0)")
    e("v_mov_b32 v29, 0")
    e("v_mov_b32 v30, 1")
    e("s_mov_b64 s[%d:%d], exec", S_T + 2, S_T + 3)
    e("s_mov_b64 exec, 1")
    e("global_store_dword v29, v30, s[%d:%d] sc1", P_DBG, P_DBG + 1)
    e("s_mov_b64 exec, s[%d:%d]", S_T + 2, S_T + 3)
    a.label(skip)

def wait_boot(c):
    e = c.e; a = c.a
    skip = a.newlabel("wb"); loop = a.newlabel("wbl"); done = a.newlabel("wbd")
    e("s_cmp_eq_u32 s%d, 0", S_W)
    e("s_cbranch_scc0 %s", skip)
    e("v_mov_b32 v29, 0")
    e("s_mov_b32 s%d, 0", S_T + 1)
    a.label(loop)
    e("global_load_dword v30, v29, s[%d:%d] sc1", P_DBG, P_DBG + 1)
    e("s_waitcnt vmcnt(0)")
    e("v_readfirstlane_b32 s%d, v30", S_T)
    e("s_nop 3")
    e("s_cmp_lg_u32 s%d, 0", S_T)
    e("s_cbranch_scc1 %s", done)
    e("s_add_u32 s%d, s%d, 1", S_T + 1, S_T + 1)
    e("s_cmp_lt_u32 s%d, 0x200000", S_T + 1)
    e("s_cbranch_scc1 %s", loop)
    a.label(done)
    a.label(skip)

def p1_issue(c):
    e = c.e
    VK, VV, VX, VW, VS = 32, 52, 60, 68, 84
    VO = 92
    e("v_and_b32 v%d, 7, v0", VO)
    e("v_lshrrev_b32 v%d, 3, v0", VO + 1)
    e("s_lshl_b32 s%d, s%d, 16", S_T, S_J)
    e("s_lshl_b32 s%d, s%d, 7", S_T + 1, S_CG)
    e("s_add_u32 s%d, s%d, s%d", S_T, S_T, S_T + 1)
    e("v_lshlrev_b32 v%d, 11, v%d", VO + 2, VO + 1)
    e("v_lshl_add_u32 v%d, v%d, 4, v%d", VO + 2, VO, VO + 2)
    e("v_add_u32 v%d, s%d, v%d", VO + 2, S_T, VO + 2)
    c.srd(R_A, P_K, 2 << 20)
    c.srd(R_B, P_V, 2 << 20)
    c.srd(R_C, P_Q, 2 << 20)
    for i in range(3):
        e("v_subrev_u32 v%d, %d, v%d", VO + 3 + i, (3 - i) * 1024, VO + 2)
    for i in range(3):
        c.bload(VK + 4 * i, 4, VO + 3 + i, R_A, None, 0, "p1k")
    c.bload(VK + 12, 4, VO + 2, R_A, None, 0, "p1k")
    c.bload(VK + 16, 4, VO + 2, R_A, None, 1024, "p1k")
    c.bload(VV, 4, VO + 2, R_B, None, 0, "p1v")
    c.bload(VV + 4, 4, VO + 2, R_B, None, 1024, "p1v")
    c.bload(VX, 4, VO + 2, R_C, None, 0, "p1x")
    c.bload(VX + 4, 4, VO + 2, R_C, None, 1024, "p1x")
    c.srd(R_A, P_SHK, 4096)
    e("s_lshl_b32 s%d, s%d, 9", S_T, S_CG)
    e("v_lshlrev_b32 v%d, 6, v%d", VO + 6, VO)
    e("v_add_u32 v%d, s%d, v%d", VO + 6, S_T, VO + 6)
    for i in range(4):
        c.bload(VW + 4 * i, 4, VO + 6, R_A, None, 16 * i, "p1w")
    e("s_lshl_b32 s%d, s2, 3", S_T)
    e("s_lshl_b32 s%d, s%d, 1", S_T + 1, S_W)
    e("s_add_u32 s%d, s%d, s%d", S_T, S_T, S_T + 1)
    e("s_lshl_b32 s%d, s%d, 10", S_T, S_T)
    e("v_lshlrev_b32 v%d, 4, v%d", VO + 7, V_LANE)
    c.bload(VS, 4, VO + 7, R_C, S_T, 0, "p1s")
    c.bload(VS + 4, 4, VO + 7, R_C, S_T, 1024, "p1s")
    c.srd(R_B, P_SSM, 2 << 20)
    e("s_lshl_b32 s%d, s%d, 6", S_T, S_CG)
    e("s_lshl_b32 s%d, s%d, 1", S_T + 1, S_J)
    e("s_add_u32 s%d, s%d, s%d", S_T, S_T, S_T + 1)
    e("s_lshr_b32 s%d, s%d, 1", S_T + 1, S_W)
    e("s_add_u32 s%d, s%d, s%d", S_T, S_T, S_T + 1)
    e("s_lshl_b32 s%d, s%d, 12", S_T, S_T)
    e("s_and_b32 s%d, s%d, 1", S_T + 2, S_W)
    e("s_lshl_b32 s%d, s%d, 11", S_T + 2, S_T + 2)
    e("s_add_u32 s%d, s%d, s%d", S_T, S_T, S_T + 2)
    e("s_mul_i32 s%d, s%d, %d", S_T + 1, S_T + 1, RAW_CH)
    e("s_add_u32 s%d, s%d, s%d", S_T + 1, S_T + 1, S_T + 2)
    c.dma(VO + 7, R_B, S_T, S_T + 1, LDS_RAW + 32, "raw")
    e("s_add_u32 s%d, s%d, 1024", S_T, S_T)
    c.dma(VO + 7, R_B, S_T, S_T + 1, LDS_RAW + 32 + 1024, "raw")
    e("v_mov_b32 v%d, 0", VO + 8)
    e("v_mov_b32 v%d, 0", VO + 9)
    e("v_lshrrev_b32 v%d, 2, v0", VO + 10)
    e("v_mul_u32_u24 v%d, %d, v%d", VO + 10, RAW_CH, VO + 10)
    e("v_and_b32 v%d, 3, v0", VO + 11)
    e("v_lshl_add_u32 v%d, v%d, 3, v%d", VO + 10, VO + 11, VO + 10)
    e("v_add_u32 v%d, 0x%x, v%d", VO + 10, LDS_RAW, VO + 10)
    e("v_cmp_gt_u32 vcc, 8, v0")
    e("s_and_saveexec_b64 s[%d:%d], vcc", S_T + 2, S_T + 3)
    c.lg.issue("ds_write_b64 v%d, v[%d:%d]" % (VO + 10, VO + 8, VO + 9))
    e("s_mov_b64 exec, s[%d:%d]", S_T + 2, S_T + 3)
    skip = c.a.newlabel("ubz")
    e("s_cmp_lt_u32 s%d, 2", S_W)
    e("s_cbranch_scc0 %s", skip)
    e("s_mul_i32 s%d, s%d, %d", S_T, S_W, UB_CH)
    e("s_add_u32 s%d, s%d, 0x%x", S_T, S_T, LDS_UB + 4096)
    e("v_lshlrev_b32 v%d, 3, v%d", VO + 10, V_LANE)
    e("v_add_u32 v%d, s%d, v%d", VO + 10, S_T, VO + 10)
    e("v_cmp_gt_u32 vcc, 60, v%d", V_LANE)
    e("s_and_saveexec_b64 s[%d:%d], vcc", S_T + 2, S_T + 3)
    e("ds_write_b64 v%d, v[%d:%d]", VO + 10, VO + 8, VO + 9)
    e("s_mov_b64 exec, s[%d:%d]", S_T + 2, S_T + 3)
    c.a.label(skip)

def p1_compute(c):
    e = c.e
    VK, VV, VX, VW, VS = 32, 52, 60, 68, 84
    VO = 92
    KF = 104
    WF = 144
    KS = 176
    VF = 192
    PK = 208
    AD = 224
    c.vm.wait("p1w")
    c.fine("d_loaded")
    for i in range(5):
        for d in range(4):
            e("v_lshlrev_b32 v%d, 16, v%d", KF + 8 * i + 2 * d, VK + 4 * i + d)
            e("v_and_b32 v%d, 0xffff0000, v%d", KF + 8 * i + 2 * d + 1, VK + 4 * i + d)
    for ch in range(8):
        for jj in range(2):
            e("v_lshlrev_b32 v%d, 16, v%d", WF + 8 * (2 * jj) + ch, VW + 2 * ch + jj)
            e("v_and_b32 v%d, 0xffff0000, v%d", WF + 8 * (2 * jj + 1) + ch, VW + 2 * ch + jj)
    for i in range(2):
        for d in range(4):
            e("v_lshlrev_b32 v%d, 16, v%d", VF + 8 * i + 2 * d, VV + 4 * i + d)
            e("v_and_b32 v%d, 0xffff0000, v%d", VF + 8 * i + 2 * d + 1, VV + 4 * i + d)
    pr = lambda r: "v[%d:%d]" % (r, r + 1)
    for i in range(2):
        for j in range(4):
            for q in range(4):
                dst = KS + 8 * i + 2 * q
                ksrc = KF + 8 * (i + 3 - j) + 2 * q
                wsrc = WF + 8 * j + 2 * q
                if j == 0: e("v_pk_mul_f32 %s, %s, %s", pr(dst), pr(ksrc), pr(wsrc))
                else: e("v_pk_fma_f32 %s, %s, %s, %s", pr(dst), pr(ksrc), pr(wsrc), pr(dst))
    for i in range(2):
        for q in range(4):
            dst = KS + 8 * i + 2 * q
            e("v_pk_mul_f32 %s, %s, %s", pr(dst), pr(dst), pr(VF + 8 * i + 2 * q))
    for ch in range(8):
        e("v_cvt_pk_bf16_f32 v%d, v%d, v%d", PK + ch, KS + 8 + ch, KS + ch)
    e("s_mov_b32 s%d, 0x05040100", S_T)
    e("s_mov_b32 s%d, 0x07060302", S_T + 1)
    for ch in range(8):
        e("v_perm_b32 v%d, v%d, v%d, s%d", PK + 8 + ch, VX + 4 + ch // 2, VX + ch // 2, S_T + (ch & 1))
    e("v_lshlrev_b32 v%d, 2, v%d", AD + 2, VO)
    e("v_xor_b32 v%d, v%d, v%d", AD + 1, VO + 1, AD + 2)
    e("v_sub_u32 v%d, 31, v%d", AD, VO + 1)
    e("v_xor_b32 v%d, v%d, v%d", AD, AD, AD + 2)
    e("v_lshlrev_b32 v%d, 10, v%d", AD + 2, VO)
    e("v_lshl_add_u32 v%d, v%d, 2, v%d", AD, AD, AD + 2)
    e("v_lshl_add_u32 v%d, v%d, 2, v%d", AD + 1, AD + 1, AD + 2)
    for ch in range(8):
        c.lg.issue("ds_write_b32 v%d, v%d offset:%d" % (AD, PK + ch, LDS_T1 + ch * 128))
        c.lg.issue("ds_write_b32 v%d, v%d offset:%d" % (AD + 1, PK + 8 + ch, LDS_T2 + ch * 128))
    c.fine("d_kv")
    c.vm.wait("p1s")
    SF = 104
    SA = 120
    for i in range(2):
        for d in range(4):
            e("v_lshlrev_b32 v%d, 16, v%d", SF + 8 * i + 2 * d, VS + 4 * i + d)
            e("v_and_b32 v%d, 0xffff0000, v%d", SF + 8 * i + 2 * d + 1, VS + 4 * i + d)
    for i in range(2):
        e("v_pk_add_f32 %s, %s, %s", pr(SA + 4 * i), pr(SF + 8 * i), pr(SF + 8 * i + 2))
        e("v_pk_add_f32 %s, %s, %s", pr(SA + 4 * i + 2), pr(SF + 8 * i + 4), pr(SF + 8 * i + 6))
    for i in range(2):
        e("v_pk_add_f32 %s, %s, %s", pr(SA + 4 * i), pr(SA + 4 * i), pr(SA + 4 * i + 2))
    for i in range(2):
        e("v_add_f32 v%d, v%d, v%d", SA + 4 * i, SA + 4 * i, SA + 4 * i + 1)
    def wave_sum2(r0, r1, s0, s1):
        for dpp in ("row_shr:1", "row_shr:2", "row_shr:4", "row_shr:8"):
            c.nop(1)
            e("v_add_f32_dpp v%d, v%d, v%d %s row_mask:0xf bank_mask:0xf bound_ctrl:0", r0, r0, r0, dpp)
            e("v_add_f32_dpp v%d, v%d, v%d %s row_mask:0xf bank_mask:0xf bound_ctrl:0", r1, r1, r1, dpp)
        for dpp, m in (("row_bcast:15", "0xa"), ("row_bcast:31", "0xc")):
            c.nop(1)
            e("v_add_f32_dpp v%d, v%d, v%d %s row_mask:%s bank_mask:0xf", r0, r0, r0, dpp, m)
            e("v_add_f32_dpp v%d, v%d, v%d %s row_mask:%s bank_mask:0xf", r1, r1, r1, dpp, m)
        c.nop(1)
        e("v_readlane_b32 s%d, v%d, 63", s0, r0)
        e("v_readlane_b32 s%d, v%d, 63", s1, r1)
    wave_sum2(SA, SA + 4, S_T + 4, S_T + 5)
    c.nop(2)
    e("v_mov_b32 v%d, 0x3b000000", SA + 8)
    e("v_mul_f32 v%d, s%d, v%d", SA + 9, S_T + 4, SA + 8)
    e("v_mul_f32 v%d, s%d, v%d", SA + 10, S_T + 5, SA + 8)
    for i in range(2):
        for q in range(8):
            e("v_sub_f32 v%d, v%d, v%d", SF + 8 * i + q, SF + 8 * i + q, SA + 9 + i)
    for i in range(2):
        e("v_pk_mul_f32 %s, %s, %s", pr(SA + 4 * i), pr(SF + 8 * i), pr(SF + 8 * i))
        for q in range(1, 4):
            e("v_pk_fma_f32 %s, %s, %s, %s", pr(SA + 4 * i), pr(SF + 8 * i + 2 * q), pr(SF + 8 * i + 2 * q), pr(SA + 4 * i))
    for i in range(2):
        e("v_add_f32 v%d, v%d, v%d", SA + 4 * i, SA + 4 * i, SA + 4 * i + 1)
    wave_sum2(SA, SA + 4, S_T + 4, S_T + 5)
    c.nop(2)
    e("v_mov_b32 v%d, 0x3727c5ac", SA + 11)
    e("v_fma_f32 v%d, s%d, v%d, v%d", SA, S_T + 4, SA + 8, SA + 11)
    e("v_fma_f32 v%d, s%d, v%d, v%d", SA + 2, S_T + 5, SA + 8, SA + 11)
    e("v_rsq_f32 v%d, v%d", SA, SA)
    e("v_rsq_f32 v%d, v%d", SA + 2, SA + 2)
    c.nop(1)
    e("v_mul_f32 v%d, v%d, v%d", SA + 1, SA + 9, SA)
    e("v_mul_f32 v%d, v%d, v%d", SA + 3, SA + 10, SA + 2)
    e("v_sub_f32 v%d, 0, v%d", SA + 1, SA + 1)
    e("v_sub_f32 v%d, 0, v%d", SA + 3, SA + 3)
    e("s_lshl_b32 s%d, s2, 3", S_T)
    e("s_lshl_b32 s%d, s%d, 1", S_T + 1, S_W)
    e("s_add_u32 s%d, s%d, s%d", S_T, S_T, S_T + 1)
    e("s_lshl_b32 s%d, s%d, 3", S_T, S_T)
    e("s_add_u32 s%d, s%d, 0x%x", S_T, S_T, L.STAT1)
    e("v_mov_b32 v%d, 0", SA + 12)
    e("s_mov_b64 s[%d:%d], exec", S_T + 2, S_T + 3)
    e("s_mov_b64 exec, 1")
    c.bstore(SA, 4, SA + 12, R_WS, S_T, 0, "st", "sc1")
    e("s_mov_b64 exec, s[%d:%d]", S_T + 2, S_T + 3)
    skip = c.a.newlabel("zs")
    e("s_cmp_eq_u32 s%d, 1", S_W)
    e("s_cbranch_scc0 %s", skip)
    e("s_lshl_b32 s%d, s%d, 3", S_T, S_MB)
    e("s_add_u32 s%d, s%d, s%d", S_T, S_T, S_NB)
    e("s_lshl_b32 s%d, s%d, 9", S_T, S_T)
    e("s_add_u32 s%d, s%d, 0x%x", S_T, S_T, L.ZST)
    e("v_lshlrev_b32 v%d, 3, v%d", SA + 12, V_LANE)
    e("v_mov_b32 v%d, 0", SA + 14)
    e("v_mov_b32 v%d, -1.0", SA + 15)
    e("buffer_store_dwordx2 v[%d:%d], v%d, s[%d:%d], s%d offen sc1", SA + 14, SA + 15, SA + 12, R_WS, R_WS + 3, S_T)
    c.a.label(skip)
    c.fine("d_stats")
    c.lg.wait_all()
    e("s_barrier")
    c.fine("d_bar")
    RD = 128
    e("v_lshrrev_b32 v%d, 3, v0", AD)
    e("v_lshrrev_b32 v%d, 3, v%d", AD + 1, AD)
    e("v_and_b32 v%d, 7, v0", AD + 2)
    e("v_xor_b32 v%d, v%d, v%d", AD + 3, AD + 2, AD + 1)
    e("v_xor_b32 v%d, 4, v%d", AD + 4, AD + 3)
    e("v_lshlrev_b32 v%d, 7, v%d", AD + 5, AD)
    e("v_lshl_add_u32 v%d, v%d, 4, v%d", AD + 3, AD + 3, AD + 5)
    e("v_lshl_add_u32 v%d, v%d, 4, v%d", AD + 4, AD + 4, AD + 5)
    c.lg.issue("ds_read_b128 v[%d:%d], v%d offset:%d" % (RD, RD + 3, AD + 3, LDS_T1), "a")
    c.lg.issue("ds_read_b128 v[%d:%d], v%d offset:%d" % (RD + 4, RD + 7, AD + 4, LDS_T1 + 4096), "b")
    c.lg.issue("ds_read_b128 v[%d:%d], v%d offset:%d" % (RD + 8, RD + 11, AD + 3, LDS_T2), "c")
    c.lg.issue("ds_read_b128 v[%d:%d], v%d offset:%d" % (RD + 12, RD + 15, AD + 4, LDS_T2 + 4096), "d")
    e("v_lshlrev_b32 v%d, 12, v%d", AD + 6, AD)
    e("v_lshl_add_u32 v%d, v%d, 4, v%d", AD + 6, AD + 2, AD + 6)
    e("v_add_u32 v%d, 0x20000, v%d", AD + 7, AD + 6)
    e("s_lshl_b32 s%d, s%d, 18", S_T, S_CG)
    e("s_lshl_b32 s%d, s%d, 7", S_T + 1, S_J)
    e("s_sub_u32 s%d, %d, s%d", S_T + 2, 1984 * 2, S_T + 1)
    e("s_add_u32 s%d, s%d, s%d", S_T + 2, S_T + 2, S_T)
    e("s_add_u32 s%d, s%d, 0x%x", S_T + 2, S_T + 2, L.UREV)
    e("s_add_u32 s%d, s%d, s%d", S_T + 3, S_T, S_T + 1)
    e("s_add_u32 s%d, s%d, 0x%x", S_T + 3, S_T + 3, L.XT)
    c.lg.wait("a"); c.bstore(RD, 4, AD + 6, R_WS, S_T + 2, 0, "st", "sc1")
    c.lg.wait("b"); c.bstore(RD + 4, 4, AD + 7, R_WS, S_T + 2, 0, "st", "sc1")
    c.lg.wait("c"); c.bstore(RD + 8, 4, AD + 6, R_WS, S_T + 3, 0, "st", "sc1")
    c.lg.wait("d"); c.bstore(RD + 12, 4, AD + 7, R_WS, S_T + 3, 0, "st", "sc1")

def toeplitz(c):
    e = c.e
    R = 32; O = 40; AB = 48; AO = 56; AD = 64
    e("v_lshrrev_b32 v%d, 7, v0", AD)
    e("v_and_b32 v%d, 127, v0", AD + 1)
    e("v_mul_u32_u24 v%d, %d, v%d", AD + 2, RAW_CH, AD)
    e("v_lshl_add_u32 v%d, v%d, 4, v%d", AD + 2, AD + 1, AD + 2)
    e("v_add_u32 v%d, 0x%x, v%d", AD + 2, LDS_RAW, AD + 2)
    e("v_mul_u32_u24 v%d, %d, v%d", AD + 3, COPY_CH, AD)
    e("v_lshl_add_u32 v%d, v%d, 4, v%d", AD + 3, AD + 1, AD + 3)
    def one(roff, woff):
        c.lg.issue("ds_read_b128 v[%d:%d], v%d offset:%d" % (R, R + 3, AD + 2, roff), "r")
        c.lg.issue("ds_read_b128 v[%d:%d], v%d offset:%d" % (R + 4, R + 7, AD + 2, roff + 16), "r")
        c.lg.wait("r")
        for i in range(7):
            e("v_alignbit_b32 v%d, v%d, v%d, 16", AB + i, R + i + 1, R + i)
        for i in range(6):
            e("v_alignbit_b32 v%d, v%d, v%d, 16", AO + i, R + i + 2, R + i + 1)
        for i in range(6):
            e("v_mov_b32 v%d, v%d", O + i, R + i + 1)
        src = {0: AB, 1: O, 2: AO, 3: R + 2, 4: AB + 2, 5: O + 2, 6: AO + 2, 7: R + 4}
        for s in range(8):
            c.lg.issue("ds_write_b128 v%d, v[%d:%d] offset:%d" % (AD + 3, src[s], src[s] + 3, LDS_COPY + s * COPY_STRIDE + woff), "w")
    one(0, 0)
    c.lg.wait_all()
    one(2048, 2048)
    c.lg.wait_all()
    e("v_cmp_eq_u32 vcc, 0, v%d", AD + 1)
    e("s_and_saveexec_b64 s[%d:%d], vcc", S_T + 2, S_T + 3)
    skip = c.a.newlabel("tz")
    e("s_cbranch_execz %s", skip)
    one(4096, 4096)
    c.lg.wait_all()
    c.a.label(skip)
    e("s_mov_b64 exec, s[%d:%d]", S_T + 2, S_T + 3)

P2_X, P2_ST = 200, 208
S_D = 56
def p2_issue_u(c):
    e = c.e
    VO = 32
    e("s_lshl_b32 s%d, s%d, 6", S_T, S_CG)
    e("s_lshl_b32 s%d, s%d, 1", S_T + 1, S_J)
    e("s_add_u32 s%d, s%d, s%d", S_T, S_T, S_T + 1)
    e("s_lshr_b32 s%d, s%d, 1", S_T + 1, S_W)
    e("s_add_u32 s%d, s%d, s%d", S_T, S_T, S_T + 1)
    e("s_lshl_b32 s57, s%d, 12", S_T)
    e("s_and_b32 s%d, s%d, 1", S_T + 2, S_W)
    e("s_lshl_b32 s%d, s%d, 11", S_T + 2, S_T + 2)
    e("s_add_u32 s%d, s57, s%d", S_T + 3, S_T + 2)
    e("s_add_u32 s%d, s%d, 0x%x", S_T + 3, S_T + 3, L.UREV)
    e("s_mul_i32 s%d, s%d, %d", S_T + 1, S_T + 1, UB_CH)
    e("s_add_u32 s%d, s%d, s%d", S_T + 1, S_T + 1, S_T + 2)
    e("v_lshlrev_b32 v%d, 4, v%d", VO, V_LANE)
    c.dma(VO, R_WS, S_T + 3, S_T + 1, LDS_UB, "ub", "sc1")
    e("s_add_u32 s%d, s%d, 1024", S_T + 3, S_T + 3)
    c.dma(VO, R_WS, S_T + 3, S_T + 1, LDS_UB + 1024, "ub", "sc1")
    e("v_lshlrev_b32 v%d, 5, v%d", VO + 1, V_L16)
    e("v_lshl_add_u32 v%d, v%d, 3, v%d", VO + 1, V_G, VO + 1)
    e("s_and_b32 s%d, s%d, 1", S_T, S_W)
    e("s_lshl_b32 s%d, s%d, 11", S_T, S_T)
    e("s_add_u32 s%d, s%d, s57", S_T, S_T)
    e("s_add_u32 s%d, s%d, 0x%x", S_T, S_T, L.XT)
    for b in range(4):
        c.bload(P2_X + 2 * b, 2, VO + 1, R_WS, S_T, 512 * b, "x", "sc1")

def p2_load_D(c):
    e = c.e
    e("s_lshl_b32 s%d, s%d, 6", S_T, S_CG)
    e("s_lshl_b32 s%d, s%d, 1", S_T + 1, S_J)
    e("s_add_u32 s%d, s%d, s%d", S_T, S_T, S_T + 1)
    e("s_lshl_b32 s%d, s%d, 1", S_T, S_T)
    e("s_load_dword s%d, s[%d:%d], s%d", S_D, P_D, P_D + 1, S_T)
    e("s_waitcnt lgkmcnt(0)")
    c.lg.q = []
    e("s_lshl_b32 s%d, s%d, 16", S_T, S_D)
    e("s_and_b32 s%d, s%d, 0xffff0000", S_T + 1, S_D)
    e("s_cmp_lt_u32 s%d, 2", S_W)
    e("s_cselect_b32 s%d, s%d, s%d", S_D, S_T, S_T + 1)

def p2_issue_stats(c):
    e = c.e
    VO = 33
    e("v_lshlrev_b32 v%d, 7, v%d", VO, V_L16)
    e("v_lshl_add_u32 v%d, v%d, 5, v%d", VO, V_G, VO)
    e("s_and_b32 s%d, s%d, 1", S_T, S_W)
    e("s_lshl_b32 s%d, s%d, 13", S_T, S_T)
    e("s_add_u32 s%d, s%d, 0x%x", S_T, S_T, L.STAT1)
    for b in range(4):
        if b == 2: e("s_add_u32 s%d, s%d, 4096", S_T, S_T)
        c.bload(P2_ST + 8 * b, 4, VO, R_WS, S_T, 2048 * (b & 1), "stat", "sc1")
        c.bload(P2_ST + 8 * b + 4, 4, VO, R_WS, S_T, 2048 * (b & 1) + 16, "stat", "sc1")

def p2_main(c, hooks=None):
    e = c.e; hooks = hooks or {}
    FR = [40, 104]
    ACC = 168
    VA, VB = 34, 35
    e("v_and_b32 v%d, 7, v%d", VA, V_LANE)
    e("v_mul_u32_u24 v%d, %d, v%d", VA, COPY_STRIDE, VA)
    e("v_bfe_u32 v%d, v%d, 3, 1", VB, V_LANE)
    e("v_add_u32 v%d, v%d, v%d", VB, VB, V_G)
    e("v_lshl_add_u32 v%d, v%d, 4, v%d", VA, VB, VA)
    e("s_lshr_b32 s%d, s%d, 1", S_T, S_W)
    e("s_and_b32 s%d, s%d, 1", S_T + 1, S_W)
    e("s_mul_i32 s%d, s%d, %d", S_T + 2, S_T, COPY_CH)
    e("s_lshl_b32 s%d, s%d, 8", S_T + 3, S_T + 1)
    e("s_add_u32 s%d, s%d, s%d", S_T + 2, S_T + 2, S_T + 3)
    e("v_add_u32 v%d, s%d, v%d", VA, S_T + 2, VA)
    e("s_mul_i32 s%d, s%d, %d", S_T + 2, S_T, UB_CH)
    e("s_add_u32 s%d, s%d, s%d", S_T + 2, S_T + 2, S_T + 3)
    e("s_add_u32 s%d, s%d, %d", S_T + 2, S_T + 2, LDS_UB + 480)
    e("v_lshlrev_b32 v%d, 4, v%d", VB, V_G)
    e("v_lshlrev_b32 v36, 5, v%d", V_L16)
    e("v_sub_u32 v%d, v%d, v36", VB, VB)
    e("v_add_u32 v%d, s%d, v%d", VB, S_T + 2, VB)
    def reads(i):
        f = FR[i & 1]; out = []
        for x in range(8):
            out.append("ds_read_b128 v[%d:%d], v%d offset:%d" % (f + 4 * x, f + 4 * x + 3, VA, LDS_COPY + 64 * (i + 8 * x)))
            out.append("ds_read_b128 v[%d:%d], v%d offset:%d" % (f + 32 + 4 * x, f + 32 + 4 * x + 3, VB, 64 * i + 512 * (7 - x)))
        return out
    for r in reads(0): c.lg.issue(r)
    for i in range(4):
        c.lg.wait_all()
        f = FR[i & 1]
        nxt = reads(i + 1) if i < 3 else []
        m = 0
        for aa in range(8):
            for b in range(aa, 8):
                cc = "0" if (i == 0 and aa == 0) else "v[%d:%d]" % (ACC + 4 * b, ACC + 4 * b + 3)
                e("v_mfma_f32_16x16x32_bf16 v[%d:%d], v[%d:%d], v[%d:%d], %s", ACC + 4 * b, ACC + 4 * b + 3,
                  f + 4 * aa, f + 4 * aa + 3, f + 32 + 4 * (b - aa), f + 32 + 4 * (b - aa) + 3, cc)
                if m % 2 == 1 and nxt: c.lg.issue(nxt.pop(0))
                m += 1
        while nxt: c.lg.issue(nxt.pop(0))
        if i in hooks: hooks[i]()

def p2_epilogue(c):
    e = c.e; a = c.a
    ACC = 168; FIN = 40; TMP = 56; VO = 36
    LDS_RED = 0
    c.lg.wait_all()
    e("s_barrier")
    e("v_lshlrev_b32 v%d, 4, v%d", VO, V_LANE)
    e("s_lshl_b32 s%d, s%d, 12", S_T, S_W)
    e("v_add_u32 v%d, s%d, v%d", VO + 1, S_T, VO)
    e("s_xor_b32 s%d, s%d, 1", S_T + 1, S_W)
    e("s_lshl_b32 s%d, s%d, 12", S_T + 1, S_T + 1)
    e("v_add_u32 v%d, s%d, v%d", VO + 2, S_T + 1, VO)
    l1 = a.newlabel("hf1"); l2 = a.newlabel("hfd")
    e("s_and_b32 s%d, s%d, 1", S_T, S_W)
    e("s_cmp_eq_u32 s%d, 1", S_T)
    e("s_cbranch_scc1 %s", l1)
    for hf, lab in ((0, None), (1, l1)):
        if lab: a.label(lab)
        own = range(4 * hf, 4 * hf + 4); exp = range(4 * (1 - hf), 4 * (1 - hf) + 4)
        for x, b in enumerate(exp):
            e("ds_write_b128 v%d, v[%d:%d] offset:%d", VO + 1, ACC + 4 * b, ACC + 4 * b + 3, LDS_RED + 1024 * x)
        for x, b in enumerate(own):
            for r in range(4):
                e("v_mov_b32 v%d, v%d", FIN + 4 * x + r, ACC + 4 * b + r)
        if hf == 0: e("s_branch %s", l2)
    a.label(l2)
    e("s_waitcnt lgkmcnt(0)")
    e("s_barrier")
    for x in range(4):
        c.lg.issue("ds_read_b128 v[%d:%d], v%d offset:%d" % (TMP + 4 * x, TMP + 4 * x + 3, VO + 2, LDS_RED + 1024 * x), "red")
    e("s_lshr_b32 s%d, s%d, 1", S_T, S_W)
    e("s_mul_i32 s%d, s%d, %d", S_T, S_T, UB_CH)
    e("s_and_b32 s%d, s%d, 1", S_T + 1, S_W)
    e("s_lshl_b32 s%d, s%d, 11", S_T + 1, S_T + 1)
    e("s_sub_u32 s%d, s%d, s%d", S_T, S_T, S_T + 1)
    e("s_add_u32 s%d, s%d, %d", S_T, S_T, LDS_UB + 4088 - 1536)
    e("v_lshlrev_b32 v%d, 5, v%d", VO + 3, V_L16)
    e("v_lshl_add_u32 v%d, v%d, 3, v%d", VO + 3, V_G, VO + 3)
    e("v_sub_u32 v%d, s%d, v%d", VO + 3, S_T, VO + 3)
    U = 72
    for b in range(4):
        c.lg.issue("ds_read_b64 v[%d:%d], v%d offset:%d" % (U + 2 * b, U + 2 * b + 1, VO + 3, 512 * (3 - b)), "u")
    c.lg.wait("red")
    pr = lambda r: "v[%d:%d]" % (r, r + 1)
    for x in range(4):
        for q in range(2):
            e("v_pk_add_f32 %s, %s, %s", pr(FIN + 4 * x + 2 * q), pr(FIN + 4 * x + 2 * q), pr(TMP + 4 * x + 2 * q))
    c.lg.wait("u")
    c.vm.wait("x", "stat")
    UF = 80; XF = 84; XN = 88; OUT = 96
    for b in range(4):
        e("v_and_b32 v%d, 0xffff0000, v%d", UF + 0, U + 2 * b + 1)
        e("v_lshlrev_b32 v%d, 16, v%d", UF + 1, U + 2 * b + 1)
        e("v_and_b32 v%d, 0xffff0000, v%d", UF + 2, U + 2 * b)
        e("v_lshlrev_b32 v%d, 16, v%d", UF + 3, U + 2 * b)
        e("v_lshlrev_b32 v%d, 16, v%d", XF + 0, P2_X + 2 * b)
        e("v_and_b32 v%d, 0xffff0000, v%d", XF + 1, P2_X + 2 * b)
        e("v_lshlrev_b32 v%d, 16, v%d", XF + 2, P2_X + 2 * b + 1)
        e("v_and_b32 v%d, 0xffff0000, v%d", XF + 3, P2_X + 2 * b + 1)
        for r in range(4):
            e("v_fma_f32 v%d, s%d, v%d, v%d", FIN + 4 * b + r, S_D, UF + r, FIN + 4 * b + r)
        for r in range(4):
            e("v_fma_f32 v%d, v%d, v%d, v%d", XN + r, P2_ST + 8 * b + 2 * r, XF + r, P2_ST + 8 * b + 2 * r + 1)
        for r in range(4):
            e("v_fma_f32 v%d, v%d, v%d, v%d", XN + r, XN + r, FIN + 4 * b + r, XF + r)
        e("v_cvt_pk_bf16_f32 v%d, v%d, v%d", OUT + 2 * b, XN, XN + 1)
        e("v_cvt_pk_bf16_f32 v%d, v%d, v%d", OUT + 2 * b + 1, XN + 2, XN + 3)
    e("v_and_b32 v%d, 1, v%d", VO, V_G)
    e("v_lshlrev_b32 v%d, 9, v%d", VO, VO)
    e("v_lshl_add_u32 v%d, v%d, 5, v%d", VO, V_L16, VO)
    e("v_lshrrev_b32 v%d, 1, v%d", VO + 1, V_G)
    e("v_lshl_add_u32 v%d, v%d, 4, v%d", VO, VO + 1, VO)
    e("s_and_b32 s%d, s%d, 1", S_T, S_W)
    e("s_lshl_b32 s%d, s%d, 11", S_T, S_T)
    e("s_add_u32 s%d, s%d, s57", S_T, S_T)
    e("s_add_u32 s%d, s%d, 0x%x", S_T, S_T, L.HT)
    for p in range(2):
        o = OUT + 4 * p
        c.nop(2)
        e("v_permlane16_swap_b32 v%d, v%d", o, o + 2)
        e("v_permlane16_swap_b32 v%d, v%d", o + 1, o + 3)
        c.bstore(o, 4, VO, R_WS, S_T, 1024 * p, "st", "sc1")
```

```python
from core import *
import ph12

pr = lambda r: "v[%d:%d]" % (r, r + 1)
A0 = 256

class WLoader:
    V_OFF, V_T0, V_T1 = 240, 241, 242
    S_LDS, S_Z = 58, 59
    def __init__(self, c):
        self.c = c; self.issued = 0; self.read = 0
    def setup(self):
        c = self.c; e = c.e
        V = self.V_OFF
        e("v_lshrrev_b32 v%d, 2, v%d", V, V_LANE)
        e("v_mul_u32_u24 v%d, 3584, v%d", V, V)
        e("v_and_b32 v%d, 1, v%d", V + 1, V_G)
        e("v_lshlrev_b32 v%d, 1, v%d", V + 1, V + 1)
        e("v_and_b32 v%d, 3, v%d", V + 2, V_LANE)
        e("v_xor_b32 v%d, v%d, v%d", V + 1, V + 1, V + 2)
        e("v_lshl_add_u32 v%d, v%d, 4, v%d", V, V + 1, V)
        skip = c.a.newlabel("wl")
        e("s_cmp_eq_u32 s%d, 3", S_W)
        e("s_cbranch_scc0 %s", skip)
        e("v_cmp_le_u32 vcc, 2, v%d", V + 1)
        e("v_mov_b32 v%d, 0x40000000", V + 2)
        e("s_nop 0")
        e("v_cndmask_b32 v%d, v%d, v%d, vcc", V, V, V + 2)
        c.a.label(skip)
        e("s_lshl_b32 s%d, s%d, 14", self.S_LDS, S_W)
        e("s_add_u32 s%d, s%d, 0x%x", self.S_LDS, self.S_LDS, ph12.LDS_WST)
        e("v_lshrrev_b32 v%d, 2, v%d", self.V_T0, V_L16)
        e("v_lshl_add_u32 v%d, v%d, 2, v%d", self.V_T0, V_G, self.V_T0)
        e("v_lshlrev_b32 v%d, 6, v%d", self.V_T0, self.V_T0)
        e("v_and_b32 v29, 1, v%d", V_LANE)
        e("v_lshl_add_u32 v%d, v29, 3, v%d", self.V_T0, self.V_T0)
        e("v_bfe_u32 v29, v%d, 1, 1", V_LANE)
        e("v_lshl_add_u32 v%d, v29, 4, v%d", self.V_T0, self.V_T0)
        e("v_add_u32 v%d, s%d, v%d", self.V_T0, self.S_LDS, self.V_T0)
        e("v_and_b32 v29, 1, v%d", V_G)
        e("v_lshlrev_b32 v29, 5, v29")
        e("v_xor_b32 v30, 32, v29")
        e("v_add_u32 v%d, v%d, v30", self.V_T1, self.V_T0)
        e("v_add_u32 v%d, v%d, v29", self.V_T0, self.V_T0)
        e("s_mul_i32 s%d, s%d, 224", self.S_Z, S_NB)
        e("s_lshl_b32 s%d, s%d, 6", S_T, S_W)
        e("s_add_u32 s%d, s%d, s%d", self.S_Z, self.S_Z, S_T)
    def issue(self, n=1):
        c = self.c; e = c.e
        c.srd(R_C, P_WIN, 512 * 3584)
        for _ in range(n):
            ks = self.issued
            if ks >= 16: return
            slot = ks & 3
            for part in range(2):
                for rh in range(2):
                    off = (32 * ks + 16 * rh) * 3584 + (1792 if part == 0 else 0)
                    e("s_add_u32 s%d, s%d, 0x%x", S_T, self.S_Z, off)
                    c.dma(self.V_OFF, R_C, S_T, self.S_LDS, slot * 4096 + part * 2048 + rh * 1024, "W%d" % ks)
            self.issued += 1
    def step(self, n=1, refill=True):
        c = self.c; e = c.e
        for _ in range(n):
            ks = self.read
            if ks >= 16: return
            c.vm.wait("W%d" % ks)
            slot = ks & 3
            for part in range(2):
                for ti in range(2):
                    for hh in range(2):
                        dst = A0 + (ks * 4 + part * 2 + ti) * 4 + 2 * hh
                        c.lg.issue("ds_read_b64_tr_b16 %s, v%d offset:%d" % (rr(dst, 2), self.V_T0 if ti == 0 else self.V_T1, slot * 4096 + part * 2048 + hh * 1024), "wl")
            self.read += 1
            if refill and self.issued < 16:
                c.lg.wait("wl")
                self.issue(1)
    def colsum(self):
        c = self.c; e = c.e
        assert self.read == 16
        c.lg.wait_all()
        for r in range(4): e("v_mov_b32 v%d, 0x3f803f80", 244 + r)
        c.nop(2)
        for ks in range(16):
            for slot in range(4):
                cc = "0" if ks == 0 else "v[%d:%d]" % (V_CS + 4 * slot, V_CS + 4 * slot + 3)
                e("v_mfma_f32_16x16x32_bf16 v[%d:%d], %s, v[244:247], %s", V_CS + 4 * slot, V_CS + 4 * slot + 3, rr(A0 + (ks * 4 + slot) * 4, 4), cc)
        c.nop(8)

LDS_H = 0
LDS_WSPST = 0
LDS_ZT = 98304
LDS_ZS = 118784
LDS_HST = 126976
LDS_ZROW = 127488
LDS_Z1 = 147456

P3_ACC = 32
P3_HF = 96
P3_AS, P3_AG = 128, 132
P3_RD = 136
P3_ONE = 140

def p3_issue_h(c):
    e = c.e
    V = 144
    e("v_lshrrev_b32 v%d, 3, v%d", V, V_LANE)
    e("v_lshlrev_b32 v%d, 12, v%d", V, V)
    e("v_and_b32 v%d, 7, v%d", V + 1, V_LANE)
    e("v_lshlrev_b32 v%d, 1, v%d", V + 2, V_G)
    e("v_xor_b32 v%d, v%d, v%d", V + 1, V + 1, V + 2)
    e("v_lshl_add_u32 v%d, v%d, 4, v%d", V, V + 1, V)
    e("s_lshl_b32 s%d, s%d, 7", S_T + 1, S_MB)
    e("s_lshl_b32 s%d, s%d, 17", S_T + 2, S_W)
    e("s_add_u32 s%d, s%d, s%d", S_T + 1, S_T + 1, S_T + 2)
    e("s_add_u32 s%d, s%d, 0x%x", S_T + 1, S_T + 1, L.HT)
    e("s_lshl_b32 s%d, s%d, 12", S_T + 3, S_W)
    for ch in range(4):
        for i in range(4):
            e("s_add_u32 s%d, s%d, 0x%x", S_T, S_T + 1, (128 * ch + 8 * i) * 4096)
            c.dma(V, R_WS, S_T, S_T + 3, LDS_H + ch * 16384 + i * 1024, "h%d" % ch, "sc1")

def h_addr(c, dst, jrot):
    pass

def p3_setup(c):
    e = c.e
    T = 144
    e("v_lshrrev_b32 v%d, 2, v%d", T, V_L16)
    e("v_lshl_add_u32 v%d, v%d, 2, v%d", T + 1, V_G, T)
    e("v_lshlrev_b32 v%d, 7, v%d", T + 1, T + 1)
    e("v_and_b32 v%d, 1, v%d", T + 2, V_LANE)
    e("v_lshl_add_u32 v%d, v%d, 3, v%d", T + 1, T + 2, T + 1)
    e("v_bfe_u32 v%d, v%d, 1, 1", T + 2, V_LANE)
    e("v_lshl_add_u32 v%d, v%d, 4, v%d", T + 1, T + 2, T + 1)
    e("v_and_b32 v%d, 1, v%d", T + 2, V_G)
    e("v_lshlrev_b32 v%d, 2, v%d", T + 2, T + 2)
    e("v_lshrrev_b32 v%d, 1, v%d", T + 3, T)
    e("v_lshl_add_u32 v%d, v%d, 1, v%d", T + 2, T + 3, T + 2)
    for j in range(4):
        e("s_add_u32 s%d, s%d, %d", S_T, S_W, j)
        e("s_and_b32 s%d, s%d, 3", S_T, S_T)
        e("s_lshl_b32 s%d, s%d, 1", S_T, S_T)
        e("v_xor_b32 v%d, s%d, v%d", T + 3, S_T, T + 2)
        e("v_lshl_add_u32 v%d, v%d, 4, v%d", P3_RD + j, T + 3, T + 1)
    for r in range(4): e("v_mov_b32 v%d, 0x3f803f80", P3_ONE + r)

def p3_main(c):
    e = c.e
    def reads(ks):
        f = P3_HF + 16 * (ks & 1); out = []
        for j in range(4):
            for hh in range(2):
                out.append("ds_read_b64_tr_b16 v[%d:%d], v%d offset:%d" % (f + 4 * j + 2 * hh, f + 4 * j + 2 * hh + 1, P3_RD + j, LDS_H + ks * 4096 + hh * 2048))
        return out
    for ks in range(16):
        if ks % 4 == 0:
            c.vm.wait("h%d" % (ks // 4))
            c.lg.wait_all()
            e("s_barrier")
            for r in reads(ks): c.lg.issue(r, "hf%d" % ks)
        c.lg.wait("hf%d" % ks)
        f = P3_HF + 16 * (ks & 1)
        nxt = reads(ks + 1) if (ks + 1) % 4 != 0 else []
        m = 0
        for slot in range(4):
            for j in range(4):
                acc = P3_ACC + (slot * 4 + j) * 4
                cc = "0" if ks == 0 else "v[%d:%d]" % (acc, acc + 3)
                e("v_mfma_f32_16x16x32_bf16 v[%d:%d], %s, v[%d:%d], %s", acc, acc + 3, rr(A0 + (ks * 4 + slot) * 4, 4), f + 4 * j, f + 4 * j + 3, cc)
                if m % 2 == 0 and nxt: c.lg.issue(nxt.pop(0), "hf%d" % (ks + 1))
                m += 1
        cs = "0" if ks == 0 else "v[%d:%d]" % (P3_AS, P3_AS + 3)
        cg = "0" if ks == 0 else "v[%d:%d]" % (P3_AG, P3_AG + 3)
        e("v_mfma_f32_16x16x32_bf16 v[%d:%d], v[%d:%d], v[%d:%d], %s", P3_AS, P3_AS + 3, P3_ONE, P3_ONE + 3, f, f + 3, cs)
        e("v_mfma_f32_16x16x32_bf16 v[%d:%d], v[%d:%d], v[%d:%d], %s", P3_AG, P3_AG + 3, f, f + 3, f, f + 3, cg)
    e("s_lshl_b32 s%d, s%d, 13", S_T, S_NB)
    e("v_add_u32 v144, s%d, v%d", S_T, P3_RD)
    for dt in range(4):
        c.lg.issue("ds_read_b64_tr_b16 v[%d:%d], v144 offset:%d" % (V_HRES + 2 * dt, V_HRES + 2 * dt + 1, LDS_H + (dt >> 1) * 4096 + (dt & 1) * 2048), "hres")

def p3_hstats(c):
    e = c.e
    T = 144
    c.nop(8)
    e("v_and_b32 v%d, 3, v%d", T, V_L16)
    e("v_cmp_eq_u32 vcc, 1, v%d", T)
    e("v_cmp_eq_u32 s[%d:%d], 2, v%d", S_T + 2, S_T + 3, T)
    e("v_cmp_eq_u32 s[%d:%d], 3, v%d", S_T + 4, S_T + 5, T)
    e("v_cndmask_b32 v%d, v%d, v%d, vcc", T + 1, P3_AG, P3_AG + 1)
    e("v_cndmask_b32 v%d, v%d, v%d, s[%d:%d]", T + 1, T + 1, P3_AG + 2, S_T + 2, S_T + 3)
    e("v_cndmask_b32 v%d, v%d, v%d, s[%d:%d]", T + 1, T + 1, P3_AG + 3, S_T + 4, S_T + 5)
    e("v_mul_f32 v%d, 0x3b000000, v%d", T + 2, P3_AS)
    e("v_mul_f32 v%d, 0x3b000000, v%d", T + 1, T + 1)
    e("v_fma_f32 v%d, -v%d, v%d, v%d", T + 1, T + 2, T + 2, T + 1)
    e("v_max_f32 v%d, 0, v%d", T + 1, T + 1)
    e("v_add_f32 v%d, 0x3727c5ac, v%d", T + 1, T + 1)
    e("v_rsq_f32 v%d, v%d", T + 4, T + 1)
    e("s_nop 0")
    e("v_mul_f32 v%d, v%d, v%d", T + 5, T + 4, T + 2)
    e("v_lshrrev_b32 v%d, 2, v%d", T + 2, V_L16)
    e("v_cmp_eq_u32 vcc, v%d, v%d", T + 2, V_G)
    e("s_lshl_b32 s%d, s%d, 7", S_T, S_W)
    e("s_add_u32 s%d, s%d, 0x%x", S_T, S_T, LDS_HST)
    e("v_lshlrev_b32 v%d, 3, v%d", T + 3, V_L16)
    e("v_add_u32 v%d, s%d, v%d", T + 3, S_T, T + 3)
    e("s_and_saveexec_b64 s[%d:%d], vcc", S_T + 2, S_T + 3)
    c.lg.issue("ds_write_b64 v%d, v[%d:%d]" % (T + 3, T + 4, T + 5))
    e("s_mov_b64 exec, s[%d:%d]", S_T + 2, S_T + 3)
    c.lg.wait_all()
    e("s_barrier")
    e("v_lshlrev_b32 v%d, 3, v%d", T + 3, V_L16)
    for j in range(4):
        e("s_add_u32 s%d, s%d, %d", S_T, S_W, j)
        e("s_and_b32 s%d, s%d, 3", S_T, S_T)
        e("s_lshl_b32 s%d, s%d, 7", S_T, S_T)
        e("s_add_u32 s%d, s%d, 0x%x", S_T, S_T, LDS_HST)
        e("v_add_u32 v%d, s%d, v%d", T + 4, S_T, T + 3)
        c.lg.issue("ds_read_b64 v[%d:%d], v%d" % (150 + 2 * j, 151 + 2 * j, T + 4), "hs")
    c.lg.wait_all()

GC0, GC1 = 60, 62
def gelu_consts(c):
    import struct
    f2u = lambda x: struct.unpack("<I", struct.pack("<f", x))[0]
    k = -2.0 * 0.7978845608028654 * 1.4426950408889634
    c.e("s_mov_b32 s60, 0x%x", f2u(k)); c.e("s_mov_b32 s61, 0x%x", f2u(k))
    c.e("s_mov_b32 s62, 0x%x", f2u(k * 0.044715)); c.e("s_mov_b32 s63, 0x%x", f2u(k * 0.044715))

def gelu_tile(c, acc, slot, j, T):
    e = c.e
    R = 150 + 2 * j
    for q in range(2):
        x = acc + 2 * q; cs = V_CS + 4 * slot + 2 * q; t = T + 8 * q
        e("v_pk_mul_f32 %s, %s, %s op_sel:[0,1] op_sel_hi:[1,1]", pr(t), pr(cs), pr(R))
        e("v_pk_fma_f32 %s, %s, %s, %s op_sel_hi:[1,0,1] neg_lo:[0,0,1] neg_hi:[0,0,1]", pr(x), pr(x), pr(R), pr(t))
    for q in range(2):
        x = acc + 2 * q; t = T + 8 * q
        e("v_pk_mul_f32 %s, %s, %s", pr(t), pr(x), pr(x))
    for q in range(2):
        x = acc + 2 * q; t = T + 8 * q
        e("v_pk_fma_f32 %s, %s, s[62:63], %s", pr(t), pr(t), pr(t + 2))
    for q in range(2):
        x = acc + 2 * q; t = T + 8 * q
        e("v_pk_mul_f32 %s, %s, %s", pr(t), pr(t), pr(x))
    for q in range(2):
        t = T + 8 * q
        e("v_exp_f32 v%d, v%d", t, t); e("v_exp_f32 v%d, v%d", t + 1, t + 1)
    e("s_nop 0")
    for q in range(2):
        t = T + 8 * q
        e("v_pk_add_f32 %s, %s, %s", pr(t), pr(t), pr(t + 4))
    for q in range(2):
        t = T + 8 * q
        e("v_rcp_f32 v%d, v%d", t, t); e("v_rcp_f32 v%d, v%d", t + 1, t + 1)
    e("s_nop 0")
    for q in range(2):
        x = acc + 2 * q; t = T + 8 * q
        e("v_pk_mul_f32 %s, %s, %s", pr(x), pr(x), pr(t))

def gelu_setup(c, T):
    e = c.e
    gelu_consts(c)
    for q in range(2):
        t = T + 8 * q
        e("v_mov_b32 v%d, s60", t + 2); e("v_mov_b32 v%d, s60", t + 3)
        e("v_mov_b32 v%d, 1.0", t + 4); e("v_mov_b32 v%d, 1.0", t + 5)

def p3_z2_gelu_publish(c):
    e = c.e
    T = 160
    gelu_setup(c, T)
    SUM = 176
    for j in range(4):
        for slot in range(2):
            acc = P3_ACC + (slot * 4 + j) * 4
            gelu_tile(c, acc, slot, j, T)
            s0, q0 = SUM + 4 * j, SUM + 4 * j + 2
            if slot == 0:
                e("v_pk_add_f32 %s, %s, %s", pr(s0), pr(acc), pr(acc + 2))
                e("v_pk_mul_f32 %s, %s, %s", pr(q0), pr(acc), pr(acc))
            else:
                e("v_pk_add_f32 %s, %s, %s", pr(s0), pr(s0), pr(acc))
                e("v_pk_add_f32 %s, %s, %s", pr(s0), pr(s0), pr(acc + 2))
                e("v_pk_fma_f32 %s, %s, %s, %s", pr(q0), pr(acc), pr(acc), pr(q0))
            e("v_pk_fma_f32 %s, %s, %s, %s", pr(q0), pr(acc + 2), pr(acc + 2), pr(q0))
    e("s_lshl_b32 s%d, s%d, 11", S_T + 1, S_W)
    e("s_add_u32 s%d, s%d, 0x%x", S_T + 1, S_T + 1, LDS_ZS)
    e("v_lshlrev_b32 v%d, 9, v%d", T, V_G)
    e("v_lshl_add_u32 v%d, v%d, 3, v%d", T, V_L16, T)
    e("v_add_u32 v%d, s%d, v%d", T, S_T + 1, T)
    for j in range(4):
        s0, q0 = SUM + 4 * j, SUM + 4 * j + 2
        e("v_add_f32 v%d, v%d, v%d", s0, s0, s0 + 1)
        e("v_add_f32 v%d, v%d, v%d", s0 + 1, q0, q0 + 1)
        e("s_add_u32 s%d, s%d, %d", S_T, S_W, j)
        e("s_and_b32 s%d, s%d, 3", S_T, S_T)
        e("s_lshl_b32 s%d, s%d, 7", S_T, S_T)
        e("v_add_u32 v%d, s%d, v%d", T + 1, S_T, T)
        c.lg.issue("ds_write_b64 v%d, v[%d:%d]" % (T + 1, s0, s0 + 1))
    c.lg.wait_all()
    e("s_barrier")
    e("s_lshl_b32 s%d, s%d, 7", S_T, S_W)
    e("s_add_u32 s%d, s%d, 0x%x", S_T, S_T, LDS_ZS)
    e("v_lshlrev_b32 v%d, 9, v%d", T, V_G)
    e("v_lshl_add_u32 v%d, v%d, 3, v%d", T, V_L16, T)
    e("v_add_u32 v%d, s%d, v%d", T, S_T, T)
    for w in range(4):
        c.lg.issue("ds_read_b64 v[%d:%d], v%d offset:%d" % (SUM + 2 * w, SUM + 2 * w + 1, T, w * 2048))
    c.lg.wait_all()
    e("v_pk_add_f32 %s, %s, %s", pr(SUM), pr(SUM), pr(SUM + 2))
    e("v_pk_add_f32 %s, %s, %s", pr(SUM + 4), pr(SUM + 4), pr(SUM + 6))
    e("v_pk_add_f32 %s, %s, %s", pr(SUM), pr(SUM), pr(SUM + 4))
    for swap in ("v_permlane16_swap_b32", "v_permlane32_swap_b32"):
        e("v_mov_b32 v%d, v%d", SUM + 2, SUM)
        e("v_mov_b32 v%d, v%d", SUM + 3, SUM + 1)
        c.nop(2)
        e("%s v%d, v%d", swap, SUM, SUM + 2)
        e("%s v%d, v%d", swap, SUM + 1, SUM + 3)
        c.nop(1)
        e("v_pk_add_f32 %s, %s, %s", pr(SUM), pr(SUM), pr(SUM + 2))
    e("s_lshl_b32 s%d, s%d, 3", S_T, S_MB)
    e("s_add_u32 s%d, s%d, s%d", S_T, S_T, S_NB)
    e("s_lshl_b32 s%d, s%d, 9", S_T, S_T)
    e("s_lshl_b32 s%d, s%d, 7", S_T + 1, S_W)
    e("s_add_u32 s%d, s%d, s%d", S_T, S_T, S_T + 1)
    e("s_add_u32 s%d, s%d, 0x%x", S_T, S_T, L.ZST)
    e("v_lshlrev_b32 v%d, 3, v%d", T, V_L16)
    e("s_mov_b64 s[%d:%d], exec", S_T + 2, S_T + 3)
    e("s_mov_b64 exec, 0xffff")
    c.bstore(SUM, 2, T, R_WS, S_T, 0, "zst", "sc1")
    e("s_mov_b64 exec, s[%d:%d]", S_T + 2, S_T + 3)

def p3_z1_gelu(c):
    e = c.e
    T = 160
    e("v_lshlrev_b32 v176, 3, v%d", V_LANE)
    e("s_lshl_b32 s%d, s%d, 10", S_T + 1, S_W)
    e("s_add_u32 s%d, s%d, 0x%x", S_T + 1, S_T + 1, LDS_Z1)
    e("v_add_u32 v176, s%d, v176", S_T + 1)
    for j in range(4):
        e("s_add_u32 s%d, s%d, %d", S_T, S_W, j)
        e("s_and_b32 s%d, s%d, 3", S_T, S_T)
        e("s_lshl_b32 s%d, s%d, 12", S_T, S_T)
        e("v_add_u32 v177, s%d, v176", S_T)
        for sl in range(2):
            slot = 2 + sl
            acc = P3_ACC + (slot * 4 + j) * 4
            gelu_tile(c, acc, slot, j, T)
            e("v_cvt_pk_bf16_f32 v%d, v%d, v%d", acc, acc, acc + 1)
            e("v_cvt_pk_bf16_f32 v%d, v%d, v%d", acc + 1, acc + 2, acc + 3)
            c.lg.issue("ds_write_b64 v177, v[%d:%d] offset:%d" % (acc, acc + 1, sl * 512))

def p3_z2_finish(c):
    e = c.e; a = c.a
    T = 160; G = 180
    e("s_lshl_b32 s%d, s%d, 12", S_T, S_MB)
    e("s_add_u32 s%d, s%d, 0x%x", S_T, S_T, L.ZST)
    e("v_lshlrev_b32 v%d, 3, v%d", T, V_LANE)
    loop = a.newlabel("zp"); done = a.newlabel("zpd")
    e("s_mov_b32 s%d, 0", S_T + 1)
    a.label(loop)
    for n in range(8):
        e("buffer_load_dwordx2 v[%d:%d], v%d, s[%d:%d], s%d offen offset:%d sc1", G + 2 * n, G + 2 * n + 1, T, R_WS, R_WS + 3, S_T, 512 * n)
    e("s_waitcnt vmcnt(0)")
    c.vm.q = []
    e("v_min_f32 v%d, v%d, v%d", T + 1, G + 1, G + 3)
    for n in range(2, 8):
        e("v_min_f32 v%d, v%d, v%d", T + 1, T + 1, G + 2 * n + 1)
    e("v_cmp_gt_f32 vcc, 0, v%d", T + 1)
    e("s_nop 1")
    e("s_cmp_eq_u64 vcc, 0")
    e("s_cbranch_scc1 %s", done)
    e("s_add_u32 s%d, s%d, 1", S_T + 1, S_T + 1)
    e("s_cmp_lt_u32 s%d, 0x100000", S_T + 1)
    e("s_cbranch_scc1 %s", loop)
    a.label(done)
    for n in range(1, 8):
        e("v_pk_add_f32 %s, %s, %s", pr(G), pr(G), pr(G + 2 * n))
    import struct
    inv = struct.unpack("<I", struct.pack("<f", 1.0 / 896))[0]
    e("v_mul_f32 v%d, 0x%x, v%d", G, inv, G)
    e("v_mul_f32 v%d, 0x%x, v%d", G + 1, inv, G + 1)
    e("v_fma_f32 v%d, -v%d, v%d, v%d", G + 1, G, G, G + 1)
    e("v_max_f32 v%d, 0, v%d", G + 1, G + 1)
    e("v_add_f32 v%d, 0x3727c5ac, v%d", G + 1, G + 1)
    e("v_rsq_f32 v%d, v%d", G + 2, G + 1)
    e("s_nop 0")
    e("v_mul_f32 v%d, v%d, v%d", G + 3, G, G + 2)
    e("v_sub_f32 v%d, 0, v%d", G + 3, G + 3)
    e("s_lshl_b32 s%d, s%d, 9", S_T, S_W)
    e("s_add_u32 s%d, s%d, 0x%x", S_T, S_T, LDS_ZROW)
    e("v_add_u32 v%d, s%d, v%d", T + 1, S_T, T)
    c.lg.issue("ds_write_b64 v%d, v[%d:%d]" % (T + 1, G + 2, G + 3))
    c.lg.wait_all()
    e("v_lshlrev_b32 v%d, 3, v%d", T + 2, V_L16)
    e("v_add_u32 v%d, s%d, v%d", T + 2, S_T, T + 2)
    for j in range(4):
        e("s_add_u32 s%d, s%d, %d", S_T + 1, S_W, j)
        e("s_and_b32 s%d, s%d, 3", S_T + 1, S_T + 1)
        e("s_lshl_b32 s%d, s%d, 7", S_T + 1, S_T + 1)
        e("v_add_u32 v%d, s%d, v%d", T + 3, S_T + 1, T + 2)
        c.lg.issue("ds_read_b64 v[%d:%d], v%d" % (150 + 2 * j, 151 + 2 * j, T + 3))
    c.lg.wait_all()
    e("s_mul_i32 s%d, s%d, 5120", S_T, S_W)
    e("s_add_u32 s%d, s%d, 0x%x", S_T, S_T, LDS_ZT)
    e("v_mul_u32_u24 v%d, 40, v%d", T + 4, V_L16)
    e("v_lshl_add_u32 v%d, v%d, 3, v%d", T + 4, V_G, T + 4)
    e("v_add_u32 v%d, s%d, v%d", T + 4, S_T, T + 4)
    for j in range(4):
        R = 150 + 2 * j
        e("s_add_u32 s%d, s%d, %d", S_T + 1, S_W, j)
        e("s_and_b32 s%d, s%d, 3", S_T + 1, S_T + 1)
        e("s_mul_i32 s%d, s%d, 640", S_T + 1, S_T + 1)
        e("v_add_u32 v%d, s%d, v%d", T + 5, S_T + 1, T + 4)
        for slot in range(2):
            acc = P3_ACC + (slot * 4 + j) * 4
            for q in range(2):
                x = acc + 2 * q
                e("v_pk_fma_f32 %s, %s, %s, %s op_sel:[0,0,1] op_sel_hi:[1,0,1]", pr(x), pr(x), pr(R), pr(R))
            e("v_cvt_pk_bf16_f32 v%d, v%d, v%d", acc, acc, acc + 1)
            e("v_cvt_pk_bf16_f32 v%d, v%d, v%d", acc + 1, acc + 2, acc + 3)
            c.lg.issue("ds_write_b64 v%d, v[%d:%d] offset:%d" % (T + 5, acc, acc + 1, slot * 2560))
    c.lg.wait_all()
    e("v_lshrrev_b32 v%d, 2, v%d", T + 4, V_L16)
    e("v_lshl_add_u32 v%d, v%d, 2, v%d", T + 4, V_G, T + 4)
    e("v_mul_u32_u24 v%d, 40, v%d", T + 4, T + 4)
    e("v_and_b32 v%d, 3, v%d", T + 5, V_LANE)
    e("v_lshl_add_u32 v%d, v%d, 3, v%d", T + 4, T + 5, T + 4)
    e("v_add_u32 v%d, s%d, v%d", T + 4, S_T, T + 4)
    O = 96
    for slot in range(2):
        for pp in range(2):
            for hh in range(2):
                d = O + (slot * 2 + pp) * 4 + 2 * hh
                c.lg.issue("ds_read_b64_tr_b16 v[%d:%d], v%d offset:%d" % (d, d + 1, T + 4, slot * 2560 + (32 * pp + 16 * hh) * 40), "o%d%d" % (slot, pp))
    e("s_lshl_b32 s%d, s%d, 6", S_T, S_NB)
    e("s_lshl_b32 s%d, s%d, 1", S_T + 1, S_MB)
    e("s_add_u32 s%d, s%d, s%d", S_T, S_T, S_T + 1)
    e("s_mul_i32 s%d, s%d, 7", S_T, S_T)
    e("s_lshl_b32 s%d, s%d, 1", S_T + 1, S_W)
    e("s_add_u32 s%d, s%d, s%d", S_T, S_T, S_T + 1)
    e("s_lshl_b32 s%d, s%d, 10", S_T, S_T)
    e("s_add_u32 s%d, s%d, 0x%x", S_T, S_T, L.Z2N)
    e("v_lshlrev_b32 v%d, 4, v%d", T + 5, V_LANE)
    e("v_add_u32 v%d, 0x40000000, v%d", T + 6, T + 5)
    e("s_cmp_eq_u32 s%d, 3", S_W)
    e("s_cselect_b64 vcc, -1, 0")
    e("v_cndmask_b32 v%d, v%d, v%d, vcc", T + 6, T + 5, T + 6)
    for slot in range(2):
        for pp in range(2):
            e("s_add_u32 s%d, s%d, %d", S_T + 1, S_T, (pp * 7 + slot) * 1024)
            c.lg.wait("o%d%d" % (slot, pp))
            c.bstore(O + (slot * 2 + pp) * 4, 4, T + 5 + slot, R_WS, S_T + 1, 0, "st", "sc1")

class SpLoader:
    NST = 3
    V_DMA = 200
    V_RD = 208
    S_LDS, S_K = 58, 59
    def __init__(self, c):
        self.c = c; self.issued = 0; self.read = 0
    def setup(self):
        c = self.c; e = c.e
        T = 212
        e("v_lshrrev_b32 v%d, 3, v%d", T, V_LANE)
        e("v_lshlrev_b32 v%d, 12, v%d", T, T)
        e("v_and_b32 v%d, 7, v%d", T + 1, V_LANE)
        e("v_xor_b32 v%d, v%d, v%d", T + 1, T + 1, V_G)
        e("v_xor_b32 v%d, 4, v%d", T + 2, T + 1)
        e("v_lshl_add_u32 v%d, v%d, 4, v%d", T + 1, T + 1, T)
        e("v_lshl_add_u32 v%d, v%d, 4, v%d", T + 2, T + 2, T)
        for i in range(8):
            jj = i // 2
            e("s_add_u32 s%d, s%d, %d", S_T, S_W, jj)
            e("s_and_b32 s%d, s%d, 3", S_T, S_T)
            e("s_lshl_b32 s%d, s%d, 16", S_T, S_T)
            e("s_add_u32 s%d, s%d, %d", S_T, S_T, (i % 2) * 8 * 4096)
            e("v_add_u32 v%d, s%d, v%d", self.V_DMA + i, S_T, T + 1 + (i % 2))
        e("s_mul_i32 s%d, s%d, %d", self.S_LDS, S_W, self.NST * 8192)
        e("s_add_u32 s%d, s%d, %d", self.S_LDS, self.S_LDS, LDS_WSPST)
        e("v_lshrrev_b32 v%d, 1, v%d", T + 1, V_L16)
        e("v_lshrrev_b32 v%d, 1, v%d", T + 2, V_G)
        e("v_xor_b32 v%d, v%d, v%d", T + 1, T + 1, T + 2)
        e("v_and_b32 v%d, 1, v%d", T + 2, V_G)
        e("v_lshlrev_b32 v%d, 3, v%d", T + 2, T + 2)
        e("v_lshl_add_u32 v%d, v%d, 7, v%d", T + 2, V_L16, T + 2)
        e("v_add_u32 v%d, s%d, v%d", T + 2, self.S_LDS, T + 2)
        for kk in range(2):
            for hh in range(2):
                e("v_xor_b32 v%d, %d, v%d", T + 3, 4 * kk + 2 * hh, T + 1)
                e("v_lshl_add_u32 v%d, v%d, 4, v%d", self.V_RD + 2 * kk + hh, T + 3, T + 2)
        e("s_lshl_b32 s%d, s%d, 10", self.S_K, S_W)
    def issue(self, n=1):
        c = self.c; e = c.e
        e("s_lshl_b32 s%d, s%d, 18", S_T, S_MB)
        c.srd(R_C, P_WSP, 0x40000, off_sreg=S_T)
        for _ in range(n):
            dd = self.issued
            if dd >= 8: return
            st = dd % self.NST
            e("s_add_u32 s%d, s%d, %d", S_T, self.S_K, dd * 128)
            for i in range(8):
                c.dma(self.V_DMA + i, R_C, S_T, self.S_LDS, st * 8192 + i * 1024, "S%d" % dd)
            self.issued += 1
    def step(self, n=1):
        c = self.c; e = c.e
        for _ in range(n):
            dd = self.read
            if dd >= 8: return
            c.vm.wait("S%d" % dd)
            st = dd % self.NST
            for kk in range(2):
                for j in range(4):
                    for hh in range(2):
                        dst = A0 + ((dd * 2 + kk) * 4 + j) * 4 + 2 * hh
                        c.lg.issue("ds_read_b64 %s, v%d offset:%d" % (rr(dst, 2), self.V_RD + 2 * kk + hh, st * 8192 + j * 2048), "sl")
            self.read += 1
            if self.issued < 8:
                c.lg.wait("sl")
                self.issue(1)

P4_ACC = 32
P4_ZB = 144
def p4_main(c):
    e = c.e
    NZ = 4
    VZ = 29
    e("v_lshlrev_b32 v29, 4, v%d", V_LANE)
    e("v_add_u32 v30, 0x1000, v29")
    e("s_lshl_b32 s%d, s%d, 6", S_T + 4, S_NB)
    e("s_lshl_b32 s%d, s%d, 4", S_T + 5, S_W)
    e("s_add_u32 s%d, s%d, s%d", S_T + 4, S_T + 4, S_T + 5)
    e("s_mul_i32 s%d, s%d, 7168", S_T + 4, S_T + 4)
    e("s_add_u32 s%d, s%d, 0x%x", S_T + 4, S_T + 4, L.Z2N)
    def zloads(ks):
        out = []
        for ft in range(7):
            out.append((P4_ZB + (ks % NZ) * 28 + 4 * ft, 29 + ft // 4, (ft % 4) * 1024))
        return out
    def issue_z(ks, ft):
        d, v, imm = zloads(ks)[ft]
        if ft == 0: e("s_add_u32 s%d, s%d, %d", S_T + 5, S_T + 4, ks * 7168)
        c.bload(d, 4, v, R_WS, S_T + 5, imm, "z%d" % ks, "sc1")
    for ks in range(NZ - 1):
        for ft in range(7): issue_z(ks, ft)
    for ks in range(16):
        c.vm.wait("z%d" % ks)
        nk = ks + NZ - 1
        m = 0; nf = 0
        for ft in range(7):
            for j in range(4):
                acc = P4_ACC + (ft * 4 + j) * 4
                cc = "0" if ks == 0 else "v[%d:%d]" % (acc, acc + 3)
                z = P4_ZB + (ks % NZ) * 28 + 4 * ft
                e("v_mfma_f32_16x16x32_bf16 v[%d:%d], v[%d:%d], %s, %s", acc, acc + 3, z, z + 3, rr(A0 + (ks * 4 + j) * 4, 4), cc)
                m += 1
                if nk < 16 and m % 4 == 0 and nf < 7:
                    issue_z(nk, nf); nf += 1

def p4_reduce_epilogue(c):
    e = c.e
    T = 144
    e("s_lshl_b32 s%d, s%d, 2", S_T, S_MB)
    e("s_add_u32 s%d, s%d, s%d", S_T, S_T, S_W)
    e("s_lshl_b32 s%d, s%d, 5", S_T + 1, S_T)
    e("v_lshlrev_b32 v%d, 1, v%d", T, V_L16)
    e("v_add_u32 v%d, s%d, v%d", T, S_T + 1, T)
    c.vm.issue("global_load_ushort v%d, v%d, s[%d:%d]" % (V_BIAS, T, P_BSP, P_BSP + 1), "bias")
    e("s_mul_i32 s%d, s%d, 24576", S_T + 2, S_W)
    e("v_lshlrev_b32 v%d, 4, v%d", T + 1, V_LANE)
    e("v_add_u32 v%d, s%d, v%d", T + 2, S_T + 2, T + 1)
    c.nop(8)
    for j in range(1, 4):
        for ft in range(7):
            acc = P4_ACC + (ft * 4 + j) * 4
            c.lg.issue("ds_write_b128 v%d, v[%d:%d] offset:%d" % (T + 2, acc, acc + 3, (j - 1) * 7168 + ft * 1024))
    for j in range(1, 4):
        e("s_sub_u32 s%d, s%d, %d", S_T + 2, S_W, j)
        e("s_and_b32 s%d, s%d, 3", S_T + 2, S_T + 2)
        e("s_mul_i32 s%d, s%d, 24576", S_T + 2, S_T + 2)
        e("v_add_u32 v%d, s%d, v%d", T + 2 + j, S_T + 2, T + 1)
    c.lg.wait_all()
    e("s_barrier")
    R = 152
    for j in range(1, 4):
        for ft in range(7):
            d = R + (j - 1) * 28 + 4 * ft
            c.lg.issue("ds_read_b128 v[%d:%d], v%d offset:%d" % (d, d + 3, T + 2 + j, (j - 1) * 7168 + ft * 1024), "r%d" % j)
    Z1 = 236
    e("s_lshl_b32 s%d, s%d, 12", S_T + 2, S_W)
    e("s_add_u32 s%d, s%d, 0x%x", S_T + 2, S_T + 2, LDS_Z1)
    e("v_lshlrev_b32 v%d, 3, v%d", T + 6, V_LANE)
    e("v_add_u32 v%d, s%d, v%d", T + 6, S_T + 2, T + 6)
    for ft in range(7):
        c.lg.issue("ds_read_b64 v[%d:%d], v%d offset:%d" % (Z1 + 2 * ft, Z1 + 2 * ft + 1, T + 6, ft * 512), "z1")
    for j in range(1, 4):
        c.lg.wait("r%d" % j)
        for ft in range(7):
            acc = P4_ACC + (ft * 4) * 4
            d = R + (j - 1) * 28 + 4 * ft
            for q in range(2):
                e("v_pk_add_f32 %s, %s, %s", pr(acc + 2 * q), pr(acc + 2 * q), pr(d + 2 * q))
    c.lg.wait_all()
    e("s_barrier")

def p4_finish(c):
    e = c.e
    T = 144; Z1 = 236
    c.vm.wait("bias")
    e("v_lshlrev_b32 v%d, 16, v%d", V_BIAS, V_BIAS)
    e("s_lshl_b32 s%d, s%d, 2", S_T, S_MB)
    e("s_add_u32 s%d, s%d, s%d", S_T, S_T, S_W)
    e("s_mul_i32 s%d, s%d, %d", S_T, S_T, 28 * 1024)
    e("s_add_u32 s%d, s%d, 0x%x", S_T, S_T, L.PF)
    e("s_mul_i32 s%d, s%d, 7", S_T + 1, S_NB)
    e("v_lshlrev_b32 v%d, 4, v%d", T + 1, V_LANE)
    for ft in range(7):
        x = P4_ACC + ft * 16
        z = Z1 + 2 * ft; t = T + 2
        e("v_lshlrev_b32 v%d, 16, v%d", t, z)
        e("v_and_b32 v%d, 0xffff0000, v%d", t + 1, z)
        e("v_lshlrev_b32 v%d, 16, v%d", t + 2, z + 1)
        e("v_and_b32 v%d, 0xffff0000, v%d", t + 3, z + 1)
        for r in range(4): e("v_add_f32 v%d, v%d, v%d", x + r, x + r, V_BIAS)
        for q in range(2): e("v_pk_mul_f32 %s, %s, %s", pr(x + 2 * q), pr(x + 2 * q), pr(t + 2 * q))
        e("v_cvt_pk_bf16_f32 v%d, v%d, v%d", x, x, x + 1)
        e("v_cvt_pk_bf16_f32 v%d, v%d, v%d", x + 1, x + 2, x + 3)
        e("s_add_u32 s%d, s%d, %d", S_T + 2, S_T + 1, ft)
        e("s_and_b32 s%d, s%d, 1", S_T + 3, S_T + 2)
        e("s_lshl_b32 s%d, s%d, 3", S_T + 3, S_T + 3)
        e("s_lshr_b32 s%d, s%d, 1", S_T + 2, S_T + 2)
        e("s_lshl_b32 s%d, s%d, 10", S_T + 2, S_T + 2)
        e("s_add_u32 s%d, s%d, s%d", S_T + 2, S_T + 2, S_T + 3)
        e("s_add_u32 s%d, s%d, s%d", S_T + 2, S_T + 2, S_T)
        c.bstore(x, 2, T + 1, R_WS, S_T + 2, 0, "st", "sc1")

LDS_WO = 0
def p5_issue_wout(c):
    e = c.e
    V = 250
    e("v_lshrrev_b32 v%d, 3, v%d", V, V_LANE)
    e("v_lshlrev_b32 v%d, 10, v%d", V, V)
    e("v_and_b32 v%d, 7, v%d", V + 1, V_LANE)
    e("v_lshlrev_b32 v%d, 1, v%d", V + 2, V_G)
    e("v_xor_b32 v%d, v%d, v%d", V + 1, V + 1, V + 2)
    e("v_lshl_add_u32 v%d, v%d, 4, v%d", V, V + 1, V)
    c.srd(R_C, P_WOUT, 896 * 1024)
    e("s_mul_i32 s%d, s%d, %d", S_T + 1, S_W, 224 * 1024)
    e("s_lshl_b32 s%d, s%d, 7", S_T + 2, S_NB)
    e("s_add_u32 s%d, s%d, s%d", S_T + 1, S_T + 1, S_T + 2)
    e("s_mul_i32 s%d, s%d, 28672", S_T + 3, S_W)
    for i in range(28):
        e("s_add_u32 s%d, s%d, %d", S_T, S_T + 1, i * 8192)
        c.dma(V, R_C, S_T, S_T + 3, LDS_WO + i * 1024, "wo%d" % (i // 4))

P5_ACC = 32
P5_PF = 96
P5_WF = 208
def p5_main(c):
    e = c.e
    T = 240
    e("v_lshlrev_b32 v%d, 4, v%d", T, V_LANE)
    e("v_add_u32 v%d, 0x1000, v%d", T + 1, T)
    for j in range(4):
        e("s_add_u32 s%d, s%d, %d", S_T, S_W, j)
        e("s_and_b32 s%d, s%d, 3", S_T, S_T)
        e("s_lshl_b32 s%d, s%d, 2", S_T + 1, S_MB)
        e("s_add_u32 s%d, s%d, s%d", S_T, S_T, S_T + 1)
        e("s_mul_i32 s%d, s%d, 28", S_T, S_T)
        e("s_mul_i32 s%d, s%d, 7", S_T + 1, S_W)
        e("s_add_u32 s%d, s%d, s%d", S_T, S_T, S_T + 1)
        e("s_lshl_b32 s%d, s%d, 10", S_T, S_T)
        e("s_add_u32 s%d, s%d, 0x%x", 52 + j, S_T, L.PF)
    for kl in range(7):
        for j in range(4):
            c.bload(P5_PF + (kl * 4 + j) * 4, 4, T + kl // 4, R_WS, 52 + j, (kl % 4) * 1024, "p%d" % kl, "sc1")
    T2 = 244
    e("v_lshrrev_b32 v%d, 2, v%d", T2, V_L16)
    e("v_lshl_add_u32 v%d, v%d, 2, v%d", T2 + 1, V_G, T2)
    e("v_lshlrev_b32 v%d, 7, v%d", T2 + 1, T2 + 1)
    e("v_and_b32 v%d, 1, v%d", T2 + 2, V_LANE)
    e("v_lshl_add_u32 v%d, v%d, 3, v%d", T2 + 1, T2 + 2, T2 + 1)
    e("v_bfe_u32 v%d, v%d, 1, 1", T2 + 2, V_LANE)
    e("v_lshl_add_u32 v%d, v%d, 4, v%d", T2 + 1, T2 + 2, T2 + 1)
    e("s_mul_i32 s%d, s%d, 28672", S_T, S_W)
    e("v_add_u32 v%d, s%d, v%d", T2 + 1, S_T, T2 + 1)
    e("v_and_b32 v%d, 1, v%d", T2 + 2, V_G)
    e("v_lshlrev_b32 v%d, 2, v%d", T2 + 2, T2 + 2)
    e("v_lshrrev_b32 v%d, 1, v%d", T2 + 3, T2)
    e("v_lshl_add_u32 v%d, v%d, 1, v%d", T2 + 2, T2 + 3, T2 + 2)
    RD = 248
    for dt in range(4):
        e("v_xor_b32 v%d, %d, v%d", T2 + 3, 2 * dt, T2 + 2)
        e("v_lshl_add_u32 v%d, v%d, 4, v%d", RD + dt, T2 + 3, T2 + 1)
    def reads(kl):
        f = P5_WF + 16 * (kl & 1); out = []
        for dt in range(4):
            for hh in range(2):
                out.append("ds_read_b64_tr_b16 v[%d:%d], v%d offset:%d" % (f + 4 * dt + 2 * hh, f + 4 * dt + 2 * hh + 1, RD + dt, LDS_WO + kl * 4096 + hh * 2048))
        return out
    c.vm.wait("wo6")
    for r in reads(0): c.lg.issue(r, "wf0")
    for kl in range(7):
        c.lg.wait("wf%d" % kl)
        c.vm.wait("p%d" % kl)
        f = P5_WF + 16 * (kl & 1)
        nxt = reads(kl + 1) if kl < 6 else []
        m = 0
        for dt in range(4):
            for j in range(4):
                acc = P5_ACC + (dt * 4 + j) * 4
                cc = "0" if kl == 0 else "v[%d:%d]" % (acc, acc + 3)
                p = P5_PF + (kl * 4 + j) * 4
                e("v_mfma_f32_16x16x32_bf16 v[%d:%d], v[%d:%d], v[%d:%d], %s", acc, acc + 3, f + 4 * dt, f + 4 * dt + 3, p, p + 3, cc)
                if m % 2 == 0 and nxt: c.lg.issue(nxt.pop(0), "wf%d" % (kl + 1))
                m += 1

def p5_epilogue(c):
    e = c.e
    T = 240
    c.lg.wait_all()
    e("s_mul_i32 s%d, s%d, 28672", S_T + 2, S_W)
    e("v_lshlrev_b32 v%d, 4, v%d", T + 1, V_LANE)
    e("v_add_u32 v%d, s%d, v%d", T + 2, S_T + 2, T + 1)
    c.nop(8)
    for j in range(1, 4):
        for dt in range(4):
            acc = P5_ACC + (dt * 4 + j) * 4
            c.lg.issue("ds_write_b128 v%d, v[%d:%d] offset:%d" % (T + 2, acc, acc + 3, LDS_WO + (j - 1) * 4096 + dt * 1024))
    for j in range(1, 4):
        e("s_sub_u32 s%d, s%d, %d", S_T + 2, S_W, j)
        e("s_and_b32 s%d, s%d, 3", S_T + 2, S_T + 2)
        e("s_mul_i32 s%d, s%d, 28672", S_T + 2, S_T + 2)
        e("v_add_u32 v%d, s%d, v%d", T + 2 + j, S_T + 2, T + 1)
    c.lg.wait_all()
    e("s_barrier")
    R = 96
    for j in range(1, 4):
        for dt in range(4):
            d = R + (j - 1) * 16 + 4 * dt
            c.lg.issue("ds_read_b128 v[%d:%d], v%d offset:%d" % (d, d + 3, T + 2 + j, LDS_WO + (j - 1) * 4096 + dt * 1024), "r%d" % j)
    for j in range(1, 4):
        c.lg.wait("r%d" % j)
        for dt in range(4):
            acc = P5_ACC + dt * 16; d = R + (j - 1) * 16 + 4 * dt
            for q in range(2):
                e("v_pk_add_f32 %s, %s, %s", pr(acc + 2 * q), pr(acc + 2 * q), pr(d + 2 * q))
    O = 160
    for dt in range(4):
        acc = P5_ACC + dt * 16; h = V_HRES + 2 * dt; t = 152
        e("v_lshlrev_b32 v%d, 16, v%d", t, h)
        e("v_and_b32 v%d, 0xffff0000, v%d", t + 1, h)
        e("v_lshlrev_b32 v%d, 16, v%d", t + 2, h + 1)
        e("v_and_b32 v%d, 0xffff0000, v%d", t + 3, h + 1)
        for q in range(2):
            e("v_pk_add_f32 %s, %s, %s", pr(acc + 2 * q), pr(acc + 2 * q), pr(t + 2 * q))
        e("v_cvt_pk_bf16_f32 v%d, v%d, v%d", O + 2 * dt, acc, acc + 1)
        e("v_cvt_pk_bf16_f32 v%d, v%d, v%d", O + 2 * dt + 1, acc + 2, acc + 3)
    c.srd(R_A, P_OUT, 2 << 20)
    e("v_lshlrev_b32 v%d, 10, v%d", T, V_L16)
    e("v_and_b32 v%d, 1, v%d", T + 1, V_G)
    e("v_lshl_add_u32 v%d, v%d, 5, v%d", T, T + 1, T)
    e("v_lshrrev_b32 v%d, 1, v%d", T + 1, V_G)
    e("v_lshl_add_u32 v%d, v%d, 4, v%d", T, T + 1, T)
    e("s_lshl_b32 s%d, s%d, 2", S_T, S_MB)
    e("s_add_u32 s%d, s%d, s%d", S_T, S_T, S_W)
    e("s_lshl_b32 s%d, s%d, 14", S_T, S_T)
    e("s_lshl_b32 s%d, s%d, 7", S_T + 1, S_NB)
    e("s_add_u32 s%d, s%d, s%d", S_T, S_T, S_T + 1)
    for p in range(2):
        o = O + 4 * p
        c.nop(2)
        e("v_permlane16_swap_b32 v%d, v%d", o, o + 2)
        e("v_permlane16_swap_b32 v%d, v%d", o + 1, o + 3)
        c.bstore(o, 4, T, R_A, S_T, 64 * p, "out")
```

```python
import sys
from core import *
import ph12, ph345
KNAME = "sequential_preLN__ssm_conv_h3__mixer_gmlp__prompt_kernel"

def drain_arrive(c, line_sreg, line_imm, boot=False):
    c.vm.wait_all()
    c.lg.wait_all()
    c.e("s_barrier")
    if boot: ph12.wait_boot(c)
    c.arrive(line_sreg, line_imm)

def build(stop=99, stamps=False, fine=False):
    body = Asm()
    c = Ctx(body, stamps)
    c.finestamps = fine
    e = c.e
    kernel_begin(body, KNAME)
    ph12.setup(c)
    ph12.bootstrap(c)
    WL = ph345.WLoader(c); SL = ph345.SpLoader(c)
    c.st.stamp("setup")
    ph12.p1_issue(c)
    if stop >= 3:
        WL.setup(); WL.issue(4)
    c.fine("p1issued")
    ph12.p1_compute(c)
    c.fine("p1done")
    drain_arrive(c, S_CG, L.C1_LINE, boot=True)
    c.st.stamp("arr1")
    if stop >= 2:
        ph12.p2_load_D(c)
        ph12.toeplitz(c)
        if stop >= 3: WL.step(4)
        c.fine("toep")
        c.poll(S_CG, L.C1_LINE, 1, 32)
        e("s_barrier")
        c.st.stamp("B1")
        ph12.p2_issue_u(c)
        c.vm.wait("ub")
        e("s_barrier")
        c.fine("ub")
        def hk(i):
            def f():
                if i == 1:
                    c.poll(None, L.C1_LINE, 8, 32)
                    e("s_barrier")
                    ph12.p2_issue_stats(c)
                if stop >= 3: WL.step(3)
            return f
        ph12.p2_main(c, {i: hk(i) for i in range(4)})
        c.st.stamp("p2main")
        ph12.p2_epilogue(c)
        c.fine("p2epi")
    if stop >= 3:
        e("s_and_b32 s57, s2, 15")
        drain_arrive(c, 57, L.C2_LINE)
        c.st.stamp("arr2")
        WL.colsum()
        ph345.p3_setup(c)
        c.poll(None, L.C2_LINE, 16, 16)
        e("s_barrier")
        c.st.stamp("B2")
        ph345.p3_issue_h(c)
        ph345.p3_main(c)
        c.st.stamp("p3main")
        ph345.p3_hstats(c)
        if stop >= 4:
            SL.setup(); SL.issue(3)
        ph345.p3_z2_gelu_publish(c)
        c.st.stamp("z2pub")
        if stop >= 4: SL.step(1)
        ph345.p3_z1_gelu(c)
        if stop >= 4: SL.step(2)
        c.fine("z1")
        ph345.p3_z2_finish(c)
        c.st.stamp("p3done")
    if stop >= 4:
        drain_arrive(c, S_NB, L.C3_LINE)
        SL.step(5)
        c.lg.wait_all()
        c.fine("sl")
        c.poll(S_NB, L.C3_LINE, 1, 32)
        e("s_barrier")
        c.st.stamp("B3")
        ph345.p4_main(c)
        c.st.stamp("p4main")
        ph345.p4_reduce_epilogue(c)
        if stop >= 5: ph345.p5_issue_wout(c)
        ph345.p4_finish(c)
        c.st.stamp("p4done")
    if stop >= 5:
        drain_arrive(c, S_MB, L.C4_LINE)
        c.poll(S_MB, L.C4_LINE, 1, 8)
        e("s_barrier")
        c.st.stamp("C4")
        ph345.p5_main(c)
        c.fine("p5main")
        ph345.p5_epilogue(c)
    c.vm.wait_all()
    c.st.stamp("end")
    c.st.stamp("real1", real=True)
    c.st.flush(P_WS, L.STAMPS, 2, 32, S_T)
    body.label("KEND")
    e("s_endpgm")
    a = Asm()
    hdr = open("cdna_kernels/%s.s.ref" % KNAME.replace("_kernel", "")).read().split("\n")
    for ln in hdr:
        if ln.startswith("; @launch") or ln.startswith("; Override") or ln.startswith("; grid="): continue
        if not ln.startswith(";"): break
        a(ln)
    a("; @launch grid=(256,1,1) block=(256,1,1) lds=163840")
    a('.amdgcn_target "amdgcn-amd-amdhsa--gfx950"')
    a(".text")
    a(body.text())
    a('.section .rodata,"a"')
    a(".p2align 6")
    kernel_desc(a, KNAME, 512, sgprs=102, accum=256)
    return a.text(), c.st.names

if __name__ == "__main__":
    kw = eval("dict(%s)" % (sys.argv[2] if len(sys.argv) > 2 else ""))
    t, names = build(**kw)
    open(sys.argv[1], "w").write(t)
    open(sys.argv[1] + ".stamps", "w").write(",".join(names))
```

```python
class Asm:
    def __init__(self):
        self.lines = []
        self.uid = 0
    def __call__(self, s=""):
        for ln in s.split("\n"):
            self.lines.append(ln)
    def e(self, fmt, *a):
        self.lines.append("    " + (fmt % a if a else fmt))
    def label(self, name):
        self.lines.append(name + ":")
    def newlabel(self, base="L"):
        self.uid += 1
        return "%s_%d" % (base, self.uid)
    def text(self):
        return "\n".join(self.lines) + "\n"

def vr(base, n=1):
    return "v%d" % base if n == 1 else "v[%d:%d]" % (base, base + n - 1)
def ar(base, n=1):
    return "a%d" % base if n == 1 else "a[%d:%d]" % (base, base + n - 1)
def sr(base, n=1):
    return "s%d" % base if n == 1 else "s[%d:%d]" % (base, base + n - 1)
def rr(idx, n=1):
    if idx < 256:
        assert idx + n <= 256, (idx, n)
        return vr(idx, n)
    return ar(idx - 256, n)

def kernel_begin(a, name):
    a(".globl %s" % name)
    a(".p2align 8")
    a(".type %s,@function" % name)
    a.label(name)

def kernel_desc(a, name, vgprs, sgprs=96, accum=None, ygrid=False):
    if accum is None:
        accum = min(256, (vgprs + 3) // 4 * 4)
    a(".amdhsa_kernel %s" % name)
    a("  .amdhsa_next_free_vgpr %d" % vgprs)
    a("  .amdhsa_next_free_sgpr %d" % sgprs)
    a("  .amdhsa_accum_offset %d" % accum)
    a("  .amdhsa_group_segment_fixed_size 0")
    a("  .amdhsa_kernarg_size 112")
    a("  .amdhsa_user_sgpr_count 2")
    a("  .amdhsa_user_sgpr_kernarg_segment_ptr 1")
    a("  .amdhsa_system_sgpr_workgroup_id_x 1")
    a("  .amdhsa_float_denorm_mode_32 3")
    a("  .amdhsa_float_denorm_mode_16_64 3")
    a(".end_amdhsa_kernel")


class Stamps:
    def __init__(self, a, base=64, on=False, maxn=36):
        self.a, self.base, self.on, self.n, self.maxn = a, base, on, 0, maxn
        self.names = []
    def stamp(self, name, real=False):
        if not self.on: return
        assert self.n < self.maxn, "too many stamps"
        self.a.e("%s s[100:101]", "s_memrealtime" if real else "s_memtime")
        self.a.e("s_waitcnt lgkmcnt(0)")
        self.a.e("s_mov_b32 s%d, s100", self.base + self.n)
        self.n += 1
        self.names.append(name)
    def flush(self, s_ws, off, s_wg, vtmp, s_tmp):
        if not self.on: return
        a = self.a
        a.e("s_waitcnt vmcnt(0) lgkmcnt(0)")
        a.e("v_and_b32 v%d, 63, v0", vtmp)
        a.e("v_cmp_eq_u32 vcc, 0, v%d", vtmp)
        a.e("s_and_saveexec_b64 s[%d:%d], vcc", s_tmp + 2, s_tmp + 3)
        a.e("v_lshrrev_b32 v%d, 6, v0", vtmp)
        a.e("s_lshl_b32 s%d, s%d, 3", s_tmp, s_wg)
        a.e("v_add_u32 v%d, s%d, v%d", vtmp, s_tmp, vtmp)
        a.e("v_lshlrev_b32 v%d, 8, v%d", vtmp, vtmp)
        a.e("v_add_u32 v%d, 0x%x, v%d", vtmp, off, vtmp)
        for i in range(self.n):
            a.e("v_mov_b32 v%d, s%d", vtmp + 1, self.base + i)
            a.e("global_store_dword v%d, v%d, s[%d:%d] offset:%d", vtmp, vtmp + 1, s_ws, s_ws + 1, 4 * i)
            a.e("s_nop 1")
        a.e("s_waitcnt vmcnt(0)")
        a.e("s_mov_b64 exec, s[%d:%d]", s_tmp + 2, s_tmp + 3)
```

```python
from asmb import *
import layout as L

class VM:
    def __init__(self, a):
        self.a = a; self.q = []
    def issue(self, text, tag):
        self.a.e(text); self.q.append(tag)
        assert len(self.q) <= 63, "too many vmem in flight: %d" % len(self.q)
    def wait(self, *tags):
        idx = -1
        for i, t in enumerate(self.q):
            if t in tags: idx = i
        if idx < 0: return
        n = len(self.q) - 1 - idx
        self.a.e("s_waitcnt vmcnt(%d)", n)
        self.q = self.q[idx + 1:]
    def wait_all(self):
        self.a.e("s_waitcnt vmcnt(0)"); self.q = []
    def pending(self, tag):
        return tag in self.q

class LG:
    def __init__(self, a):
        self.a = a; self.q = []
    def issue(self, text, tag="x"):
        if len(self.q) >= 15:
            self.a.e("s_waitcnt lgkmcnt(14)"); self.q = self.q[len(self.q) - 14:]
        self.a.e(text); self.q.append(tag)
    def wait(self, *tags):
        idx = -1
        for i, t in enumerate(self.q):
            if t in tags: idx = i
        if idx < 0: return
        n = len(self.q) - 1 - idx
        self.a.e("s_waitcnt lgkmcnt(%d)", n)
        self.q = self.q[idx + 1:]
    def wait_all(self):
        self.a.e("s_waitcnt lgkmcnt(0)"); self.q = []

S_B = 2; S_W = 3
P_Q, P_K, P_V, P_SHK = 4, 6, 8, 10
P_SSM, P_D = 12, 14
P_WIN, P_WSP, P_BSP, P_WOUT = 16, 18, 20, 22
P_OUT, P_DBG = 24, 26
P_WS = 28
S_CG, S_J = 30, 31
R_WS = 32
R_A, R_B, R_C = 36, 40, 44
S_MB, S_NB = 48, 49
S_T = 50
S_STAMP = 64
V_TID, V_LANE = 0, 1
V_CS = 2
V_HRES = 18
V_BIAS = 26
V_L16 = 27
V_G = 28
V_P = 32

class Ctx:
    def __init__(self, a, stamps=False):
        self.a = a
        self.vm = VM(a); self.lg = LG(a)
        self.st = Stamps(a, S_STAMP, stamps, maxn=36)
        self.finestamps = False
        self.opt = {}
        self.bgq = []
    def fine(self, name):
        if self.finestamps: self.st.stamp(name)
    def e(self, fmt, *x): self.a.e(fmt, *x)
    def srd(self, r, ptr, nbytes, off_sreg=None, off_imm=0):
        e = self.e
        if off_sreg is None and off_imm == 0:
            e("s_mov_b32 s%d, s%d", r, ptr); e("s_mov_b32 s%d, s%d", r + 1, ptr + 1)
        else:
            if off_sreg is not None:
                e("s_add_u32 s%d, s%d, s%d", r, ptr, off_sreg)
            else:
                e("s_add_u32 s%d, s%d, 0x%x", r, ptr, off_imm)
            e("s_addc_u32 s%d, s%d, 0", r + 1, ptr + 1)
        e("s_mov_b32 s%d, 0x%x", r + 2, nbytes)
        e("s_mov_b32 s%d, 0x20000", r + 3)
    def dma(self, voff, srd, soff, lds_sreg, lds_imm, tag, flags=""):
        e = self.e
        if lds_sreg is None: e("s_mov_b32 m0, 0x%x", lds_imm)
        else: e("s_add_u32 m0, s%d, 0x%x", lds_sreg, lds_imm)
        e("s_nop 0")
        so = "s%d" % soff if soff is not None else "0"
        self.vm.issue("buffer_load_dwordx4 v%d, s[%d:%d], %s offen%s lds" % (voff, srd, srd + 3, so, (" " + flags) if flags else ""), tag)
    def bload(self, dst, n, voff, srd, soff, imm, tag, flags=""):
        assert 0 <= imm < 4096, imm
        op = {1: "dword", 2: "dwordx2", 4: "dwordx4"}[n]
        so = "s%d" % soff if soff is not None else "0"
        self.vm.issue("buffer_load_%s %s, v%d, s[%d:%d], %s offen offset:%d%s" % (op, rr(dst, n), voff, srd, srd + 3, so, imm, (" " + flags) if flags else ""), tag)
    def bstore(self, src, n, voff, srd, soff, imm, tag, flags=""):
        assert 0 <= imm < 4096, imm
        op = {1: "dword", 2: "dwordx2", 4: "dwordx4"}[n]
        so = "s%d" % soff if soff is not None else "0"
        self.vm.issue("buffer_store_%s %s, v%d, s[%d:%d], %s offen offset:%d%s" % (op, rr(src, n), voff, srd, srd + 3, so, imm, (" " + flags) if flags else ""), tag)
    def bg(self, n=1):
        for _ in range(n):
            if self.bgq: self.bgq.pop(0)()
    def bg_flush(self):
        while self.bgq: self.bgq.pop(0)()
    def nop(self, n):
        while n > 0:
            k = min(n, 16); self.e("s_nop %d", k - 1); n -= k

    def arrive(self, line_sreg, line_imm):
        e = self.e; a = self.a
        skip = a.newlabel("arr")
        e("s_cmp_eq_u32 s%d, 0", S_W)
        e("s_cbranch_scc0 %s", skip)
        if line_sreg is not None:
            e("s_lshl_b32 s%d, s%d, 8", S_T, line_sreg)
            e("s_add_u32 s%d, s%d, 0x%x", S_T, S_T, L.FLAGS + line_imm * 256)
        else:
            e("s_mov_b32 s%d, 0x%x", S_T, L.FLAGS + line_imm * 256)
        e("s_mov_b64 s[%d:%d], exec", S_T + 2, S_T + 3)
        e("s_mov_b64 exec, 1")
        e("v_mov_b32 v29, s%d", S_T)
        e("v_mov_b32 v30, 1")
        e("global_atomic_add v29, v30, s[%d:%d] sc1", P_WS, P_WS + 1)
        e("s_mov_b64 exec, s[%d:%d]", S_T + 2, S_T + 3)
        a.label(skip)
    def poll(self, line_sreg, line_imm, nlines, target, all_waves=False):
        e = self.e; a = self.a
        skip = a.newlabel("pskip"); loop = a.newlabel("ploop"); done = a.newlabel("pdone")
        if not all_waves:
            e("s_cmp_eq_u32 s%d, 0", S_W)
            e("s_cbranch_scc0 %s", skip)
        if line_sreg is not None:
            e("s_lshl_b32 s%d, s%d, 8", S_T, line_sreg)
            e("s_add_u32 s%d, s%d, 0x%x", S_T, S_T, L.FLAGS + line_imm * 256)
        else:
            e("s_mov_b32 s%d, 0x%x", S_T, L.FLAGS + line_imm * 256)
        e("s_mov_b64 s[%d:%d], exec", S_T + 2, S_T + 3)
        e("v_lshlrev_b32 v29, 8, v%d", V_LANE)
        e("v_add_u32 v29, s%d, v29", S_T)
        e("s_mov_b64 exec, 0x%x", (1 << nlines) - 1)
        e("s_mov_b32 s%d, 0", S_T + 1)
        a.label(loop)
        e("global_load_dword v30, v29, s[%d:%d] sc1", P_WS, P_WS + 1)
        e("s_waitcnt vmcnt(0)")
        e("v_cmp_gt_u32 vcc, %d, v30", target)
        e("s_nop 1")
        e("s_cmp_eq_u64 vcc, 0")
        e("s_cbranch_scc1 %s", done)
        e("s_add_u32 s%d, s%d, 1", S_T + 1, S_T + 1)
        e("s_cmp_lt_u32 s%d, 0x200000", S_T + 1)
        e("s_cbranch_scc1 %s", loop)
        a.label(done)
        e("s_mov_b64 exec, s[%d:%d]", S_T + 2, S_T + 3)
        a.label(skip)

    def poll_early(self, vreg, vadr, line_imm, nlines):
        e = self.e; a = self.a
        skip = a.newlabel("pe")
        e("s_cmp_eq_u32 s%d, 0", S_W)
        e("s_cbranch_scc0 %s", skip)
        e("v_lshlrev_b32 v%d, 8, v%d", vadr, V_LANE)
        e("v_add_u32 v%d, 0x%x, v%d", vadr, L.FLAGS + line_imm * 256, vadr)
        e("s_mov_b64 s[%d:%d], exec", S_T + 2, S_T + 3)
        e("s_mov_b64 exec, 0x%x", (1 << nlines) - 1)
        e("global_load_dword v%d, v%d, s[%d:%d] sc1", vreg, vadr, P_WS, P_WS + 1)
        e("s_mov_b64 exec, s[%d:%d]", S_T + 2, S_T + 3)
        a.label(skip)
    def poll_late(self, vreg, vadr, nlines, target):
        e = self.e; a = self.a
        skip = a.newlabel("pl"); loop = a.newlabel("cl"); done = a.newlabel("cd")
        e("s_cmp_eq_u32 s%d, 0", S_W)
        e("s_cbranch_scc0 %s", skip)
        e("s_mov_b64 s[%d:%d], exec", S_T + 2, S_T + 3)
        e("s_mov_b64 exec, 0x%x", (1 << nlines) - 1)
        e("s_mov_b32 s%d, 0", S_T + 1)
        e("s_waitcnt vmcnt(0)")
        a.label(loop)
        e("v_cmp_gt_u32 vcc, %d, v%d", target, vreg)
        e("s_nop 1")
        e("s_cmp_eq_u64 vcc, 0")
        e("s_cbranch_scc1 %s", done)
        e("global_load_dword v%d, v%d, s[%d:%d] sc1", vreg, vadr, P_WS, P_WS + 1)
        e("s_waitcnt vmcnt(0)")
        e("s_add_u32 s%d, s%d, 1", S_T + 1, S_T + 1)
        e("s_cmp_lt_u32 s%d, 0x200000", S_T + 1)
        e("s_cbranch_scc1 %s", loop)
        a.label(done)
        e("s_mov_b64 exec, s[%d:%d]", S_T + 2, S_T + 3)
        a.label(skip)
```

```python
from core import *
pr = lambda r: "v[%d:%d]" % (r, r + 1)

LDS_COPY = 0
COPY_STRIDE = 4160
COPY_CH = 8 * COPY_STRIDE
LDS_T1, LDS_T2 = 0, 149504
LDS_UB = 66560
UB_CH = 4576
LDS_RAW = 75712
RAW_CH = 4128
LDS_WST = 83968

def setup(c):
    e = c.e; a = c.a
    e("s_cmp_ge_u32 s2, 256")
    e("s_cbranch_scc1 KEND")
    c.st.stamp("real0", real=True)
    c.st.stamp("start")
    e("s_load_dwordx8 s[4:11], s[0:1], 0")
    e("s_load_dwordx4 s[12:15], s[0:1], 32")
    e("s_load_dwordx8 s[16:23], s[0:1], 56")
    e("s_load_dwordx4 s[24:27], s[0:1], 88")
    e("s_load_dwordx2 s[28:29], s[0:1], 104")
    e("v_and_b32 v%d, 63, v0", V_LANE)
    e("v_lshrrev_b32 v29, 6, v0")
    e("v_and_b32 v%d, 15, v%d", V_L16, V_LANE)
    e("v_readfirstlane_b32 s%d, v29", S_W)
    e("v_lshrrev_b32 v%d, 4, v%d", V_G, V_LANE)
    e("s_and_b32 s%d, s2, 7", S_CG)
    e("s_lshr_b32 s%d, s2, 3", S_J)
    e("s_lshr_b32 s%d, s%d, 1", S_MB, S_CG)
    e("s_lshl_b32 s%d, s%d, 3", S_MB, S_MB)
    e("s_and_b32 s%d, s%d, 7", S_T, S_J)
    e("s_add_u32 s%d, s%d, s%d", S_MB, S_MB, S_T)
    e("s_and_b32 s%d, s%d, 1", S_NB, S_CG)
    e("s_lshl_b32 s%d, s%d, 2", S_NB, S_NB)
    e("s_lshr_b32 s%d, s%d, 3", S_T, S_J)
    e("s_add_u32 s%d, s%d, s%d", S_NB, S_NB, S_T)
    e("s_waitcnt lgkmcnt(0)")
    c.srd(R_WS, P_WS, L.WS_USED)

def bootstrap_a(c):
    e = c.e; a = c.a
    skip = a.newlabel("boot")
    e("s_cmp_eq_u32 s2, 0")
    e("s_cbranch_scc0 %s", skip)
    e("s_cmp_eq_u32 s%d, 3", S_W)
    e("s_cbranch_scc0 %s", skip)
    e("v_lshlrev_b32 v29, 8, v%d", V_LANE)
    e("v_add_u32 v29, 0x%x, v29", L.FLAGS)
    e("v_mov_b32 v30, 0")
    e("global_store_dword v29, v30, s[%d:%d] sc1", P_WS, P_WS + 1)
    e("v_add_u32 v29, 0x4000, v29")
    e("global_store_dword v29, v30, s[%d:%d] sc1", P_WS, P_WS + 1)
    a.label(skip)

def bootstrap_b(c):
    e = c.e; a = c.a
    skip = a.newlabel("boot")
    e("s_cmp_eq_u32 s2, 0")
    e("s_cbranch_scc0 %s", skip)
    e("s_cmp_eq_u32 s%d, 3", S_W)
    e("s_cbranch_scc0 %s", skip)
    e("s_waitcnt vmcnt(%d)", len(c.vm.q))
    e("v_mov_b32 v29, 0")
    e("v_mov_b32 v30, 1")
    e("s_mov_b64 s[%d:%d], exec", S_T + 2, S_T + 3)
    e("s_mov_b64 exec, 1")
    e("global_store_dword v29, v30, s[%d:%d] sc1", P_DBG, P_DBG + 1)
    e("s_mov_b64 exec, s[%d:%d]", S_T + 2, S_T + 3)
    a.label(skip)

V_BOOT = 31
def boot_flag_issue(c):
    c.e("v_mov_b32 v%d, 0", V_BOOT)
    c.vm.issue("global_load_dword v%d, v%d, s[%d:%d] sc1" % (V_BOOT, V_BOOT, P_DBG, P_DBG + 1), "boot")

def boot_flag_check(c):
    e = c.e; a = c.a
    skip = a.newlabel("wb"); loop = a.newlabel("wbl"); done = a.newlabel("wbd")
    c.vm.wait("boot")
    e("s_cmp_eq_u32 s%d, 0", S_W)
    e("s_cbranch_scc0 %s", skip)
    e("v_readfirstlane_b32 s%d, v%d", S_T, V_BOOT)
    e("s_mov_b32 s%d, 0", S_T + 1)
    e("s_nop 3")
    e("s_cmp_lg_u32 s%d, 0", S_T)
    e("s_cbranch_scc1 %s", done)
    e("v_mov_b32 v29, 0")
    a.label(loop)
    e("global_load_dword v30, v29, s[%d:%d] sc1", P_DBG, P_DBG + 1)
    e("s_waitcnt vmcnt(0)")
    e("v_readfirstlane_b32 s%d, v30", S_T)
    e("s_nop 3")
    e("s_cmp_lg_u32 s%d, 0", S_T)
    e("s_cbranch_scc1 %s", done)
    e("s_add_u32 s%d, s%d, 1", S_T + 1, S_T + 1)
    e("s_cmp_lt_u32 s%d, 0x200000", S_T + 1)
    e("s_cbranch_scc1 %s", loop)
    a.label(done)
    a.label(skip)

def p1_issue(c):
    e = c.e
    VK, VV, VX, VW, VS = 32, 52, 60, 68, 84
    VO = 92
    e("v_and_b32 v%d, 7, v0", VO)
    e("v_lshrrev_b32 v%d, 3, v0", VO + 1)
    e("s_lshl_b32 s%d, s%d, 16", S_T, S_J)
    e("s_lshl_b32 s%d, s%d, 7", S_T + 1, S_CG)
    e("s_add_u32 s%d, s%d, s%d", S_T, S_T, S_T + 1)
    e("v_lshlrev_b32 v%d, 11, v%d", VO + 2, VO + 1)
    e("v_lshl_add_u32 v%d, v%d, 4, v%d", VO + 2, VO, VO + 2)
    e("v_add_u32 v%d, s%d, v%d", VO + 2, S_T, VO + 2)
    c.srd(R_A, P_SHK, 4096)
    e("s_lshl_b32 s%d, s%d, 9", S_T, S_CG)
    e("v_lshlrev_b32 v%d, 6, v%d", VO + 6, VO)
    e("v_add_u32 v%d, s%d, v%d", VO + 6, S_T, VO + 6)
    c.srd(R_B, P_K, 2 << 20)
    c.srd(R_C, P_V, 2 << 20)
    for i in range(3):
        e("v_subrev_u32 v%d, %d, v%d", VO + 3 + i, (3 - i) * 1024, VO + 2)
    c.bload(VK + 12, 4, VO + 2, R_B, None, 0, "p1k")
    c.bload(VK + 16, 4, VO + 2, R_B, None, 1024, "p1k")
    c.bload(VV, 4, VO + 2, R_C, None, 0, "p1v")
    c.bload(VV + 4, 4, VO + 2, R_C, None, 1024, "p1v")
    for i in range(3):
        c.bload(VK + 4 * i, 4, VO + 3 + i, R_B, None, 0, "p1k")
    for i in range(4):
        c.bload(VW + 4 * i, 4, VO + 6, R_A, None, 16 * i, "p1w")

def p1_issue_x(c):
    e = c.e
    VX, VS = 60, 84
    VO = 92
    c.srd(R_C, P_Q, 2 << 20)
    c.bload(VX, 4, VO + 2, R_C, None, 0, "p1x")
    c.bload(VX + 4, 4, VO + 2, R_C, None, 1024, "p1x")
    e("s_lshl_b32 s%d, s2, 3", S_T)
    e("s_lshl_b32 s%d, s%d, 1", S_T + 1, S_W)
    e("s_add_u32 s%d, s%d, s%d", S_T, S_T, S_T + 1)
    e("s_lshl_b32 s%d, s%d, 10", S_T, S_T)
    c.bload(VS, 4, VO + 7, R_C, S_T, 0, "p1s")
    c.bload(VS + 4, 4, VO + 7, R_C, S_T, 1024, "p1s")

def p1_issue_raw(c):
    e = c.e
    VO = 92
    e("v_lshlrev_b32 v%d, 4, v%d", VO + 7, V_LANE)
    c.srd(R_B, P_SSM, 2 << 20)
    e("s_lshl_b32 s%d, s%d, 6", S_T, S_CG)
    e("s_lshl_b32 s%d, s%d, 1", S_T + 1, S_J)
    e("s_add_u32 s%d, s%d, s%d", S_T, S_T, S_T + 1)
    e("s_lshr_b32 s%d, s%d, 1", S_T + 1, S_W)
    e("s_add_u32 s%d, s%d, s%d", S_T, S_T, S_T + 1)
    e("s_lshl_b32 s%d, s%d, 12", S_T, S_T)
    e("s_and_b32 s%d, s%d, 1", S_T + 2, S_W)
    e("s_lshl_b32 s%d, s%d, 11", S_T + 2, S_T + 2)
    e("s_add_u32 s%d, s%d, s%d", S_T, S_T, S_T + 2)
    e("s_mul_i32 s%d, s%d, %d", S_T + 1, S_T + 1, RAW_CH)
    e("s_add_u32 s%d, s%d, s%d", S_T + 1, S_T + 1, S_T + 2)
    c.dma(VO + 7, R_B, S_T, S_T + 1, LDS_RAW + 32, "raw")
    e("s_add_u32 s%d, s%d, 1024", S_T, S_T)
    c.dma(VO + 7, R_B, S_T, S_T + 1, LDS_RAW + 32 + 1024, "raw")
    e("v_mov_b32 v%d, 0", VO + 8)
    e("v_mov_b32 v%d, 0", VO + 9)
    e("v_lshrrev_b32 v%d, 2, v0", VO + 10)
    e("v_mul_u32_u24 v%d, %d, v%d", VO + 10, RAW_CH, VO + 10)
    e("v_and_b32 v%d, 3, v0", VO + 11)
    e("v_lshl_add_u32 v%d, v%d, 3, v%d", VO + 10, VO + 11, VO + 10)
    e("v_add_u32 v%d, 0x%x, v%d", VO + 10, LDS_RAW, VO + 10)
    e("v_cmp_gt_u32 vcc, 8, v0")
    e("s_and_saveexec_b64 s[%d:%d], vcc", S_T + 2, S_T + 3)
    c.lg.issue("ds_write_b64 v%d, v[%d:%d]" % (VO + 10, VO + 8, VO + 9))
    e("s_mov_b64 exec, s[%d:%d]", S_T + 2, S_T + 3)
    skip = c.a.newlabel("ubz")
    e("s_cmp_lt_u32 s%d, 2", S_W)
    e("s_cbranch_scc0 %s", skip)
    e("s_mul_i32 s%d, s%d, %d", S_T, S_W, UB_CH)
    e("s_add_u32 s%d, s%d, 0x%x", S_T, S_T, LDS_UB + 4096)
    e("v_lshlrev_b32 v%d, 3, v%d", VO + 10, V_LANE)
    e("v_add_u32 v%d, s%d, v%d", VO + 10, S_T, VO + 10)
    e("v_cmp_gt_u32 vcc, 60, v%d", V_LANE)
    e("s_and_saveexec_b64 s[%d:%d], vcc", S_T + 2, S_T + 3)
    e("ds_write_b64 v%d, v[%d:%d]", VO + 10, VO + 8, VO + 9)
    e("s_mov_b64 exec, s[%d:%d]", S_T + 2, S_T + 3)
    c.a.label(skip)

def p1_kv(c, mid=None):
    e = c.e
    VK, VV, VX, VW, VS = 32, 52, 60, 68, 84
    VO = 92
    KF = 104
    WF = 144
    KS = 176
    VF = 192
    PK = 208
    AD = 224
    c.vm.wait("p1w")
    c.fine("d_loaded")
    if mid: mid()
    for i in range(5):
        for d in range(4):
            e("v_lshlrev_b32 v%d, 16, v%d", KF + 8 * i + 2 * d, VK + 4 * i + d)
            e("v_and_b32 v%d, 0xffff0000, v%d", KF + 8 * i + 2 * d + 1, VK + 4 * i + d)
    for ch in range(8):
        for jj in range(2):
            e("v_lshlrev_b32 v%d, 16, v%d", WF + 8 * (2 * jj) + ch, VW + 2 * ch + jj)
            e("v_and_b32 v%d, 0xffff0000, v%d", WF + 8 * (2 * jj + 1) + ch, VW + 2 * ch + jj)
    for i in range(2):
        for d in range(4):
            e("v_lshlrev_b32 v%d, 16, v%d", VF + 8 * i + 2 * d, VV + 4 * i + d)
            e("v_and_b32 v%d, 0xffff0000, v%d", VF + 8 * i + 2 * d + 1, VV + 4 * i + d)
    for i in range(2):
        for j in range(4):
            for q in range(4):
                dst = KS + 8 * i + 2 * q
                ksrc = KF + 8 * (i + 3 - j) + 2 * q
                wsrc = WF + 8 * j + 2 * q
                if j == 0: e("v_pk_mul_f32 %s, %s, %s", pr(dst), pr(ksrc), pr(wsrc))
                else: e("v_pk_fma_f32 %s, %s, %s, %s", pr(dst), pr(ksrc), pr(wsrc), pr(dst))
    for i in range(2):
        for q in range(4):
            dst = KS + 8 * i + 2 * q
            e("v_pk_mul_f32 %s, %s, %s", pr(dst), pr(dst), pr(VF + 8 * i + 2 * q))
    for ch in range(8):
        e("v_cvt_pk_bf16_f32 v%d, v%d, v%d", PK + ch, KS + 8 + ch, KS + ch)
    e("v_lshlrev_b32 v%d, 2, v%d", AD + 2, VO)
    e("v_xor_b32 v%d, v%d, v%d", AD + 1, VO + 1, AD + 2)
    e("v_sub_u32 v%d, 31, v%d", AD, VO + 1)
    e("v_xor_b32 v%d, v%d, v%d", AD, AD, AD + 2)
    e("v_lshlrev_b32 v%d, 10, v%d", AD + 2, VO)
    e("v_lshl_add_u32 v%d, v%d, 2, v%d", AD, AD, AD + 2)
    e("v_lshl_add_u32 v%d, v%d, 2, v%d", AD + 1, AD + 1, AD + 2)
    for ch in range(8):
        c.lg.issue("ds_write_b32 v%d, v%d offset:%d" % (AD, PK + ch, LDS_T1 + ch * 128))
    c.lg.wait_all()
    e("s_barrier")
    c.fine("d_kv")
    RD = 128
    T = 232
    e("v_lshrrev_b32 v%d, 3, v0", T)
    e("v_lshrrev_b32 v%d, 3, v%d", T + 1, T)
    e("v_and_b32 v%d, 7, v0", T + 2)
    e("v_xor_b32 v%d, v%d, v%d", T + 3, T + 2, T + 1)
    e("v_xor_b32 v%d, 4, v%d", T + 4, T + 3)
    e("v_lshlrev_b32 v%d, 7, v%d", T + 5, T)
    e("v_lshl_add_u32 v%d, v%d, 4, v%d", T + 3, T + 3, T + 5)
    e("v_lshl_add_u32 v%d, v%d, 4, v%d", T + 4, T + 4, T + 5)
    c.lg.issue("ds_read_b128 v[%d:%d], v%d offset:%d" % (RD, RD + 3, T + 3, LDS_T1), "a")
    c.lg.issue("ds_read_b128 v[%d:%d], v%d offset:%d" % (RD + 4, RD + 7, T + 4, LDS_T1 + 4096), "b")
    e("v_lshlrev_b32 v%d, 12, v%d", T + 6, T)
    e("v_lshl_add_u32 v%d, v%d, 4, v%d", T + 6, T + 2, T + 6)
    e("v_add_u32 v%d, 0x20000, v%d", T + 7, T + 6)
    e("s_lshl_b32 s%d, s%d, 18", S_T, S_CG)
    e("s_lshl_b32 s%d, s%d, 7", S_T + 1, S_J)
    e("s_sub_u32 s%d, %d, s%d", S_T + 2, 1984 * 2, S_T + 1)
    e("s_add_u32 s%d, s%d, s%d", S_T + 2, S_T + 2, S_T)
    e("s_add_u32 s%d, s%d, 0x%x", S_T + 2, S_T + 2, L.UREV)
    c.lg.wait("a"); c.bstore(RD, 4, T + 6, R_WS, S_T + 2, 0, "ust", "sc1")
    c.lg.wait("b"); c.bstore(RD + 4, 4, T + 7, R_WS, S_T + 2, 0, "ust", "sc1")

def p1_x(c):
    e = c.e
    VK, VV, VX, VW, VS = 32, 52, 60, 68, 84
    VO = 92
    KF = 104
    WF = 144
    KS = 176
    VF = 192
    PK = 208
    AD = 224
    c.vm.wait("p1x")
    e("s_mov_b32 s%d, 0x05040100", S_T)
    e("s_mov_b32 s%d, 0x07060302", S_T + 1)
    for ch in range(8):
        e("v_perm_b32 v%d, v%d, v%d, s%d", PK + 8 + ch, VX + 4 + ch // 2, VX + ch // 2, S_T + (ch & 1))
    e("v_lshlrev_b32 v%d, 2, v%d", AD + 2, VO)
    e("v_xor_b32 v%d, v%d, v%d", AD + 1, VO + 1, AD + 2)
    e("v_lshlrev_b32 v%d, 10, v%d", AD + 2, VO)
    e("v_lshl_add_u32 v%d, v%d, 2, v%d", AD + 1, AD + 1, AD + 2)
    e("v_add_u32 v%d, 0x%x, v%d", AD + 1, LDS_T2, AD + 1)
    for ch in range(8):
        c.lg.issue("ds_write_b32 v%d, v%d offset:%d" % (AD + 1, PK + 8 + ch, ch * 128))
    c.vm.wait("p1s")
    SF = 104
    SA = 120
    for i in range(2):
        for d in range(4):
            e("v_lshlrev_b32 v%d, 16, v%d", SF + 8 * i + 2 * d, VS + 4 * i + d)
            e("v_and_b32 v%d, 0xffff0000, v%d", SF + 8 * i + 2 * d + 1, VS + 4 * i + d)
    for i in range(2):
        e("v_pk_add_f32 %s, %s, %s", pr(SA + 4 * i), pr(SF + 8 * i), pr(SF + 8 * i + 2))
        e("v_pk_add_f32 %s, %s, %s", pr(SA + 4 * i + 2), pr(SF + 8 * i + 4), pr(SF + 8 * i + 6))
    for i in range(2):
        e("v_pk_add_f32 %s, %s, %s", pr(SA + 4 * i), pr(SA + 4 * i), pr(SA + 4 * i + 2))
    for i in range(2):
        e("v_add_f32 v%d, v%d, v%d", SA + 4 * i, SA + 4 * i, SA + 4 * i + 1)
    def wave_sum2(r0, r1, s0, s1):
        for dpp in ("row_shr:1", "row_shr:2", "row_shr:4", "row_shr:8"):
            c.nop(1)
            e("v_add_f32_dpp v%d, v%d, v%d %s row_mask:0xf bank_mask:0xf bound_ctrl:0", r0, r0, r0, dpp)
            e("v_add_f32_dpp v%d, v%d, v%d %s row_mask:0xf bank_mask:0xf bound_ctrl:0", r1, r1, r1, dpp)
        for dpp, m in (("row_bcast:15", "0xa"), ("row_bcast:31", "0xc")):
            c.nop(1)
            e("v_add_f32_dpp v%d, v%d, v%d %s row_mask:%s bank_mask:0xf", r0, r0, r0, dpp, m)
            e("v_add_f32_dpp v%d, v%d, v%d %s row_mask:%s bank_mask:0xf", r1, r1, r1, dpp, m)
        c.nop(1)
        e("v_readlane_b32 s%d, v%d, 63", s0, r0)
        e("v_readlane_b32 s%d, v%d, 63", s1, r1)
    wave_sum2(SA, SA + 4, S_T + 4, S_T + 5)
    c.nop(2)
    e("v_mov_b32 v%d, 0x3b000000", SA + 8)
    e("v_mul_f32 v%d, s%d, v%d", SA + 9, S_T + 4, SA + 8)
    e("v_mul_f32 v%d, s%d, v%d", SA + 10, S_T + 5, SA + 8)
    for i in range(2):
        for q in range(8):
            e("v_sub_f32 v%d, v%d, v%d", SF + 8 * i + q, SF + 8 * i + q, SA + 9 + i)
    for i in range(2):
        e("v_pk_mul_f32 %s, %s, %s", pr(SA + 4 * i), pr(SF + 8 * i), pr(SF + 8 * i))
        for q in range(1, 4):
            e("v_pk_fma_f32 %s, %s, %s, %s", pr(SA + 4 * i), pr(SF + 8 * i + 2 * q), pr(SF + 8 * i + 2 * q), pr(SA + 4 * i))
    for i in range(2):
        e("v_add_f32 v%d, v%d, v%d", SA + 4 * i, SA + 4 * i, SA + 4 * i + 1)
    wave_sum2(SA, SA + 4, S_T + 4, S_T + 5)
    c.nop(2)
    e("v_mov_b32 v%d, 0x3727c5ac", SA + 11)
    e("v_fma_f32 v%d, s%d, v%d, v%d", SA, S_T + 4, SA + 8, SA + 11)
    e("v_fma_f32 v%d, s%d, v%d, v%d", SA + 2, S_T + 5, SA + 8, SA + 11)
    e("v_rsq_f32 v%d, v%d", SA, SA)
    e("v_rsq_f32 v%d, v%d", SA + 2, SA + 2)
    c.nop(1)
    e("v_mul_f32 v%d, v%d, v%d", SA + 1, SA + 9, SA)
    e("v_mul_f32 v%d, v%d, v%d", SA + 3, SA + 10, SA + 2)
    e("v_sub_f32 v%d, 0, v%d", SA + 1, SA + 1)
    e("v_sub_f32 v%d, 0, v%d", SA + 3, SA + 3)
    e("s_lshl_b32 s%d, s2, 3", S_T)
    e("s_lshl_b32 s%d, s%d, 1", S_T + 1, S_W)
    e("s_add_u32 s%d, s%d, s%d", S_T, S_T, S_T + 1)
    e("s_lshl_b32 s%d, s%d, 3", S_T, S_T)
    e("s_add_u32 s%d, s%d, 0x%x", S_T, S_T, L.STAT1)
    e("v_mov_b32 v%d, 0", SA + 12)
    e("s_mov_b64 s[%d:%d], exec", S_T + 2, S_T + 3)
    e("s_mov_b64 exec, 1")
    c.bstore(SA, 4, SA + 12, R_WS, S_T, 0, "xst", "sc1")
    e("s_mov_b64 exec, s[%d:%d]", S_T + 2, S_T + 3)
    skip = c.a.newlabel("zs")
    e("s_cmp_eq_u32 s%d, 1", S_W)
    e("s_cbranch_scc0 %s", skip)
    e("s_lshl_b32 s%d, s%d, 3", S_T, S_MB)
    e("s_add_u32 s%d, s%d, s%d", S_T, S_T, S_NB)
    e("s_lshl_b32 s%d, s%d, 9", S_T, S_T)
    e("s_add_u32 s%d, s%d, 0x%x", S_T, S_T, L.ZST)
    e("v_lshlrev_b32 v%d, 3, v%d", SA + 12, V_LANE)
    e("v_mov_b32 v%d, 0", SA + 14)
    e("v_mov_b32 v%d, -1.0", SA + 15)
    e("buffer_store_dwordx2 v[%d:%d], v%d, s[%d:%d], s%d offen sc1", SA + 14, SA + 15, SA + 12, R_WS, R_WS + 3, S_T)
    c.a.label(skip)

def p1_x_store(c):
    e = c.e
    RD = 128; T = 232
    e("v_add_u32 v%d, 0x%x, v%d", T + 3, LDS_T2, T + 3)
    e("v_add_u32 v%d, 0x%x, v%d", T + 4, LDS_T2 + 4096, T + 4)
    c.lg.issue("ds_read_b128 v[%d:%d], v%d" % (RD + 8, RD + 11, T + 3), "c")
    c.lg.issue("ds_read_b128 v[%d:%d], v%d" % (RD + 12, RD + 15, T + 4), "d")
    e("s_lshl_b32 s%d, s%d, 18", S_T, S_CG)
    e("s_lshl_b32 s%d, s%d, 7", S_T + 1, S_J)
    e("s_add_u32 s%d, s%d, s%d", S_T + 3, S_T, S_T + 1)
    e("s_add_u32 s%d, s%d, 0x%x", S_T + 3, S_T + 3, L.XT)
    c.lg.wait("c"); c.bstore(RD + 8, 4, T + 6, R_WS, S_T + 3, 0, "xst", "sc1")
    c.lg.wait("d"); c.bstore(RD + 12, 4, T + 7, R_WS, S_T + 3, 0, "xst", "sc1")

def toeplitz(c):
    e = c.e
    AD = 104
    e("v_lshrrev_b32 v%d, 7, v0", AD)
    e("v_and_b32 v%d, 127, v0", AD + 1)
    e("v_mul_u32_u24 v%d, %d, v%d", AD + 2, RAW_CH, AD)
    e("v_lshl_add_u32 v%d, v%d, 4, v%d", AD + 2, AD + 1, AD + 2)
    e("v_add_u32 v%d, 0x%x, v%d", AD + 2, LDS_RAW, AD + 2)
    e("v_mul_u32_u24 v%d, %d, v%d", AD + 3, COPY_CH, AD)
    e("v_lshl_add_u32 v%d, v%d, 4, v%d", AD + 3, AD + 1, AD + 3)
    sets = [(112, 120, 128, 136), (144, 152, 160, 168), (176, 184, 192, 200)]
    def rd(k, roff):
        R = sets[k][0]
        c.lg.issue("ds_read_b128 v[%d:%d], v%d offset:%d" % (R, R + 3, AD + 2, roff), "r%d" % k)
        c.lg.issue("ds_read_b128 v[%d:%d], v%d offset:%d" % (R + 4, R + 7, AD + 2, roff + 16), "r%d" % k)
    def build(k, woff):
        R, O, AB, AO = sets[k]
        c.lg.wait("r%d" % k)
        for i in range(7):
            e("v_alignbit_b32 v%d, v%d, v%d, 16", AB + i, R + i + 1, R + i)
        for i in range(6):
            e("v_alignbit_b32 v%d, v%d, v%d, 16", AO + i, R + i + 2, R + i + 1)
        for i in range(6):
            e("v_mov_b32 v%d, v%d", O + i, R + i + 1)
        src = {0: AB, 1: O, 2: AO, 3: R + 2, 4: AB + 2, 5: O + 2, 6: AO + 2, 7: R + 4}
        for sft in (3, 7, 0, 4, 1, 5, 2, 6):
            c.lg.issue("ds_write_b128 v%d, v[%d:%d] offset:%d" % (AD + 3, src[sft], src[sft] + 3, LDS_COPY + sft * COPY_STRIDE + woff), "w")
    rd(0, 0); rd(1, 2048); rd(2, 4096)
    build(0, 0)
    build(1, 2048)
    e("v_cmp_eq_u32 vcc, 0, v%d", AD + 1)
    e("s_and_saveexec_b64 s[%d:%d], vcc", S_T + 2, S_T + 3)
    build(2, 4096)
    e("s_mov_b64 exec, s[%d:%d]", S_T + 2, S_T + 3)

P2_X, P2_ST = 200, 208
S_D = 56
def p2_issue_u(c):
    e = c.e
    VO = 32
    e("s_lshl_b32 s%d, s%d, 6", S_T, S_CG)
    e("s_lshl_b32 s%d, s%d, 1", S_T + 1, S_J)
    e("s_add_u32 s%d, s%d, s%d", S_T, S_T, S_T + 1)
    e("s_lshr_b32 s%d, s%d, 1", S_T + 1, S_W)
    e("s_add_u32 s%d, s%d, s%d", S_T, S_T, S_T + 1)
    e("s_lshl_b32 s57, s%d, 12", S_T)
    e("s_and_b32 s%d, s%d, 1", S_T + 2, S_W)
    e("s_lshl_b32 s%d, s%d, 11", S_T + 2, S_T + 2)
    e("s_add_u32 s%d, s57, s%d", S_T + 3, S_T + 2)
    e("s_add_u32 s%d, s%d, 0x%x", S_T + 3, S_T + 3, L.UREV)
    e("s_mul_i32 s%d, s%d, %d", S_T + 1, S_T + 1, UB_CH)
    e("s_add_u32 s%d, s%d, s%d", S_T + 1, S_T + 1, S_T + 2)
    e("v_lshlrev_b32 v%d, 4, v%d", VO, V_LANE)
    c.dma(VO, R_WS, S_T + 3, S_T + 1, LDS_UB, "ub", "sc1")
    e("s_add_u32 s%d, s%d, 1024", S_T + 3, S_T + 3)
    c.dma(VO, R_WS, S_T + 3, S_T + 1, LDS_UB + 1024, "ub", "sc1")

def load_D_issue(c):
    e = c.e
    e("s_lshl_b32 s%d, s%d, 6", S_T, S_CG)
    e("s_lshl_b32 s%d, s%d, 1", S_T + 1, S_J)
    e("s_add_u32 s%d, s%d, s%d", S_T, S_T, S_T + 1)
    e("s_lshl_b32 s%d, s%d, 1", S_T, S_T)
    e("s_load_dword s%d, s[%d:%d], s%d", S_D, P_D, P_D + 1, S_T)

def load_D_finish(c):
    e = c.e
    c.lg.wait_all()
    e("s_lshl_b32 s%d, s%d, 16", S_T, S_D)
    e("s_and_b32 s%d, s%d, 0xffff0000", S_T + 1, S_D)
    e("s_cmp_lt_u32 s%d, 2", S_W)
    e("s_cselect_b32 s%d, s%d, s%d", S_D, S_T, S_T + 1)

def p2_issue_stats(c):
    e = c.e
    VO = 32
    e("v_lshlrev_b32 v%d, 5, v%d", VO + 1, V_L16)
    e("v_lshl_add_u32 v%d, v%d, 3, v%d", VO + 1, V_G, VO + 1)
    e("s_and_b32 s%d, s%d, 1", S_T, S_W)
    e("s_lshl_b32 s%d, s%d, 11", S_T, S_T)
    e("s_add_u32 s%d, s%d, s57", S_T, S_T)
    e("s_add_u32 s%d, s%d, 0x%x", S_T, S_T, L.XT)
    for b in range(4):
        c.bload(P2_X + 2 * b, 2, VO + 1, R_WS, S_T, 512 * b, "x", "sc1")
    VO = 33
    e("v_lshlrev_b32 v%d, 7, v%d", VO, V_L16)
    e("v_lshl_add_u32 v%d, v%d, 5, v%d", VO, V_G, VO)
    e("s_and_b32 s%d, s%d, 1", S_T, S_W)
    e("s_lshl_b32 s%d, s%d, 13", S_T, S_T)
    e("s_add_u32 s%d, s%d, 0x%x", S_T, S_T, L.STAT1)
    for b in range(4):
        if b == 2: e("s_add_u32 s%d, s%d, 4096", S_T, S_T)
        c.bload(P2_ST + 8 * b, 4, VO, R_WS, S_T, 2048 * (b & 1), "stat", "sc1")
        c.bload(P2_ST + 8 * b + 4, 4, VO, R_WS, S_T, 2048 * (b & 1) + 16, "stat", "sc1")

def p2_main(c, hooks=None, inter=None):
    e = c.e; hooks = hooks or {}; inter = inter or {}
    FR = [40, 104]
    ACC = 168
    VA, VB = 34, 35
    e("v_and_b32 v%d, 7, v%d", VA, V_LANE)
    e("v_mul_u32_u24 v%d, %d, v%d", VA, COPY_STRIDE, VA)
    e("v_bfe_u32 v%d, v%d, 3, 1", VB, V_LANE)
    e("v_add_u32 v%d, v%d, v%d", VB, VB, V_G)
    e("v_lshl_add_u32 v%d, v%d, 4, v%d", VA, VB, VA)
    e("s_lshr_b32 s%d, s%d, 1", S_T, S_W)
    e("s_and_b32 s%d, s%d, 1", S_T + 1, S_W)
    e("s_mul_i32 s%d, s%d, %d", S_T + 2, S_T, COPY_CH)
    e("s_lshl_b32 s%d, s%d, 8", S_T + 3, S_T + 1)
    e("s_add_u32 s%d, s%d, s%d", S_T + 2, S_T + 2, S_T + 3)
    e("v_add_u32 v%d, s%d, v%d", VA, S_T + 2, VA)
    e("s_mul_i32 s%d, s%d, %d", S_T + 2, S_T, UB_CH)
    e("s_add_u32 s%d, s%d, s%d", S_T + 2, S_T + 2, S_T + 3)
    e("s_add_u32 s%d, s%d, %d", S_T + 2, S_T + 2, LDS_UB + 480)
    e("v_lshlrev_b32 v%d, 4, v%d", VB, V_G)
    e("v_lshlrev_b32 v36, 5, v%d", V_L16)
    e("v_sub_u32 v%d, v%d, v36", VB, VB)
    e("v_add_u32 v%d, s%d, v%d", VB, S_T + 2, VB)
    def reads(i):
        f = FR[i & 1]; out = []
        for x in range(8):
            out.append("ds_read_b128 v[%d:%d], v%d offset:%d" % (f + 4 * x, f + 4 * x + 3, VA, LDS_COPY + 64 * (i + 8 * x)))
            out.append("ds_read_b128 v[%d:%d], v%d offset:%d" % (f + 32 + 4 * x, f + 32 + 4 * x + 3, VB, 64 * i + 512 * (7 - x)))
        return out
    for r in reads(0): c.lg.issue(r)
    for i in range(4):
        c.lg.wait_all()
        f = FR[i & 1]
        nxt = reads(i + 1) if i < 3 else []
        m = 0
        for aa in range(8):
            for b in range(aa, 8):
                cc = "0" if (i == 0 and aa == 0) else "v[%d:%d]" % (ACC + 4 * b, ACC + 4 * b + 3)
                e("v_mfma_f32_16x16x32_bf16 v[%d:%d], v[%d:%d], v[%d:%d], %s", ACC + 4 * b, ACC + 4 * b + 3,
                  f + 4 * aa, f + 4 * aa + 3, f + 32 + 4 * (b - aa), f + 32 + 4 * (b - aa) + 3, cc)
                if m % 2 == 1 and nxt: c.lg.issue(nxt.pop(0))
                if m % 2 == 0 and inter.get(i): inter[i].pop(0)()
                m += 1
        while nxt: c.lg.issue(nxt.pop(0))
        while inter.get(i): inter[i].pop(0)()
        if i in hooks: hooks[i]()

def p2_epilogue(c):
    e = c.e; a = c.a
    ACC = 168; FIN = 40; TMP = 56; VO = 36
    LDS_RED = 0
    c.lg.wait_all()
    e("s_barrier")
    e("v_lshlrev_b32 v%d, 4, v%d", VO, V_LANE)
    e("s_lshl_b32 s%d, s%d, 12", S_T, S_W)
    e("v_add_u32 v%d, s%d, v%d", VO + 1, S_T, VO)
    e("s_xor_b32 s%d, s%d, 1", S_T + 1, S_W)
    e("s_lshl_b32 s%d, s%d, 12", S_T + 1, S_T + 1)
    e("v_add_u32 v%d, s%d, v%d", VO + 2, S_T + 1, VO)
    l1 = a.newlabel("hf1"); l2 = a.newlabel("hfd")
    e("s_and_b32 s%d, s%d, 1", S_T, S_W)
    e("s_cmp_eq_u32 s%d, 1", S_T)
    e("s_cbranch_scc1 %s", l1)
    for hf, lab in ((0, None), (1, l1)):
        if lab: a.label(lab)
        own = range(4 * hf, 4 * hf + 4); exp = range(4 * (1 - hf), 4 * (1 - hf) + 4)
        for x, b in enumerate(exp):
            e("ds_write_b128 v%d, v[%d:%d] offset:%d", VO + 1, ACC + 4 * b, ACC + 4 * b + 3, LDS_RED + 1024 * x)
        for x, b in enumerate(own):
            for r in range(4):
                e("v_mov_b32 v%d, v%d", FIN + 4 * x + r, ACC + 4 * b + r)
        if hf == 0: e("s_branch %s", l2)
    a.label(l2)
    e("s_waitcnt lgkmcnt(0)")
    e("s_barrier")
    for x in range(4):
        c.lg.issue("ds_read_b128 v[%d:%d], v%d offset:%d" % (TMP + 4 * x, TMP + 4 * x + 3, VO + 2, LDS_RED + 1024 * x), "red")
    e("s_lshr_b32 s%d, s%d, 1", S_T, S_W)
    e("s_mul_i32 s%d, s%d, %d", S_T, S_T, UB_CH)
    e("s_and_b32 s%d, s%d, 1", S_T + 1, S_W)
    e("s_lshl_b32 s%d, s%d, 11", S_T + 1, S_T + 1)
    e("s_sub_u32 s%d, s%d, s%d", S_T, S_T, S_T + 1)
    e("s_add_u32 s%d, s%d, %d", S_T, S_T, LDS_UB + 4088 - 1536)
    e("v_lshlrev_b32 v%d, 5, v%d", VO + 3, V_L16)
    e("v_lshl_add_u32 v%d, v%d, 3, v%d", VO + 3, V_G, VO + 3)
    e("v_sub_u32 v%d, s%d, v%d", VO + 3, S_T, VO + 3)
    U = 72
    for b in range(4):
        c.lg.issue("ds_read_b64 v[%d:%d], v%d offset:%d" % (U + 2 * b, U + 2 * b + 1, VO + 3, 512 * (3 - b)), "u")
    c.lg.wait("red")
    for x in range(4):
        for q in range(2):
            e("v_pk_add_f32 %s, %s, %s", pr(FIN + 4 * x + 2 * q), pr(FIN + 4 * x + 2 * q), pr(TMP + 4 * x + 2 * q))
    c.lg.wait("u")
    c.vm.wait("x", "stat")
    UF = 80; XF = 84; XN = 88; OUT = 96
    for b in range(4):
        e("v_and_b32 v%d, 0xffff0000, v%d", UF + 0, U + 2 * b + 1)
        e("v_lshlrev_b32 v%d, 16, v%d", UF + 1, U + 2 * b + 1)
        e("v_and_b32 v%d, 0xffff0000, v%d", UF + 2, U + 2 * b)
        e("v_lshlrev_b32 v%d, 16, v%d", UF + 3, U + 2 * b)
        e("v_lshlrev_b32 v%d, 16, v%d", XF + 0, P2_X + 2 * b)
        e("v_and_b32 v%d, 0xffff0000, v%d", XF + 1, P2_X + 2 * b)
        e("v_lshlrev_b32 v%d, 16, v%d", XF + 2, P2_X + 2 * b + 1)
        e("v_and_b32 v%d, 0xffff0000, v%d", XF + 3, P2_X + 2 * b + 1)
        for r in range(4):
            e("v_fma_f32 v%d, s%d, v%d, v%d", FIN + 4 * b + r, S_D, UF + r, FIN + 4 * b + r)
        for r in range(4):
            e("v_fma_f32 v%d, v%d, v%d, v%d", XN + r, P2_ST + 8 * b + 2 * r, XF + r, P2_ST + 8 * b + 2 * r + 1)
        for r in range(4):
            e("v_fma_f32 v%d, v%d, v%d, v%d", XN + r, XN + r, FIN + 4 * b + r, XF + r)
        e("v_cvt_pk_bf16_f32 v%d, v%d, v%d", OUT + 2 * b, XN, XN + 1)
        e("v_cvt_pk_bf16_f32 v%d, v%d, v%d", OUT + 2 * b + 1, XN + 2, XN + 3)
    e("v_and_b32 v%d, 1, v%d", VO, V_G)
    e("v_lshlrev_b32 v%d, 9, v%d", VO, VO)
    e("v_lshl_add_u32 v%d, v%d, 5, v%d", VO, V_L16, VO)
    e("v_lshrrev_b32 v%d, 1, v%d", VO + 1, V_G)
    e("v_lshl_add_u32 v%d, v%d, 4, v%d", VO, VO + 1, VO)
    e("s_and_b32 s%d, s%d, 1", S_T, S_W)
    e("s_lshl_b32 s%d, s%d, 11", S_T, S_T)
    e("s_add_u32 s%d, s%d, s57", S_T, S_T)
    e("s_add_u32 s%d, s%d, 0x%x", S_T, S_T, L.HT)
    for p in range(2):
        o = OUT + 4 * p
        c.nop(2)
        e("v_permlane16_swap_b32 v%d, v%d", o, o + 2)
        e("v_permlane16_swap_b32 v%d, v%d", o + 1, o + 3)
        c.bstore(o, 4, VO, R_WS, S_T, 1024 * p, "st", "sc1")
```

```python
from core import *
import ph12

pr = lambda r: "v[%d:%d]" % (r, r + 1)
A0 = 256

LDS_WP = 83968
LDS_WOP = 83968 + 7168
def wpre_issue(c):
    e = c.e
    V = 240
    c.srd(R_A, P_WIN, 512 * 3584)
    e("s_and_b32 s%d, s2, 15", S_T)
    e("s_mul_i32 s%d, s%d, %d", S_T, S_T, 32 * 3584)
    e("s_lshr_b32 s%d, s2, 4", S_T + 1)
    e("s_mul_i32 s%d, s%d, 224", S_T + 1, S_T + 1)
    e("s_add_u32 s%d, s%d, s%d", S_T + 4, S_T, S_T + 1)
    for it in range(2):
        e("s_add_u32 s%d, s%d, %d", S_T, S_W, 4 * it)
        e("s_lshl_b32 s%d, s%d, 6", S_T + 1, S_T)
        e("v_add_u32 v%d, s%d, v%d", V, S_T + 1, V_LANE)
        e("v_mul_u32_u24 v%d, 4682, v%d", V + 1, V)
        e("v_lshrrev_b32 v%d, 16, v%d", V + 1, V + 1)
        e("v_mul_u32_u24 v%d, 14, v%d", V + 2, V + 1)
        e("v_sub_u32 v%d, v%d, v%d", V + 2, V, V + 2)
        e("v_mul_u32_u24 v%d, 3584, v%d", V + 1, V + 1)
        e("v_lshl_add_u32 v%d, v%d, 4, v%d", V + 1, V + 2, V + 1)
        e("v_cmp_gt_u32 vcc, 448, v%d", V)
        e("v_mov_b32 v%d, 0x40000000", V + 2)
        e("s_lshl_b32 s%d, s%d, 10", S_T + 1, S_T)
        e("v_cndmask_b32 v%d, v%d, v%d, vcc", V + 3 + it, V + 2, V + 1)
        e("s_cmp_eq_u32 s%d, 7", S_T)
        e("s_cselect_b32 s%d, 0x3000, s%d", S_T + 1, S_T + 1)
        c.dma(V + 3 + it, R_A, S_T + 4, S_T + 1, LDS_WP, "wp")
    c.srd(R_B, P_WOUT, 896 * 1024)
    e("s_mul_i32 s%d, s2, 2341", S_T)
    e("s_lshr_b32 s%d, s%d, 16", S_T, S_T)
    e("s_mul_i32 s%d, s%d, 28", S_T + 1, S_T)
    e("s_sub_u32 s%d, s2, s%d", S_T + 1, S_T + 1)
    e("s_lshl_b32 s%d, s%d, 15", S_T + 2, S_T + 1)
    e("s_lshl_b32 s%d, s%d, 7", S_T + 3, S_T)
    e("s_add_u32 s%d, s%d, s%d", S_T + 2, S_T + 2, S_T + 3)
    e("s_lshl_b32 s%d, s%d, 13", S_T + 3, S_W)
    e("s_add_u32 s%d, s%d, s%d", S_T + 2, S_T + 2, S_T + 3)
    e("s_cmp_ge_u32 s2, 224")
    e("s_cselect_b32 s%d, 0x40000000, s%d", S_T + 2, S_T + 2)
    e("v_lshrrev_b32 v%d, 3, v%d", V, V_LANE)
    e("v_lshlrev_b32 v%d, 10, v%d", V, V)
    e("v_and_b32 v%d, 7, v%d", V + 1, V_LANE)
    e("v_lshlrev_b32 v%d, 1, v%d", V + 2, V_G)
    e("v_xor_b32 v%d, v%d, v%d", V + 1, V + 1, V + 2)
    e("v_lshl_add_u32 v%d, v%d, 4, v%d", V, V + 1, V)
    e("s_lshl_b32 s%d, s%d, 10", S_T + 3, S_W)
    c.dma(V, R_B, S_T + 2, S_T + 3, LDS_WOP, "wp")

def wpre_store(c):
    e = c.e
    V = 240; F = 176
    e("v_lshrrev_b32 v%d, 2, v%d", V, V_L16)
    e("v_lshl_add_u32 v%d, v%d, 2, v%d", V, V_G, V)
    e("v_mul_u32_u24 v%d, 224, v%d", V + 1, V)
    e("v_and_b32 v%d, 3, v%d", V + 2, V_LANE)
    e("v_lshl_add_u32 v%d, v%d, 3, v%d", V + 1, V + 2, V + 1)
    e("s_lshl_b32 s%d, s%d, 6", S_T, S_W)
    e("s_add_u32 s%d, s%d, 0x%x", S_T, S_T, LDS_WP)
    e("v_add_u32 v%d, s%d, v%d", V + 1, S_T, V + 1)
    for ti in range(2):
        for hh in range(2):
            c.lg.issue("ds_read_b64_tr_b16 v[%d:%d], v%d offset:%d" % (F + 4 * ti + 2 * hh, F + 4 * ti + 2 * hh + 1, V + 1, ti * 32 + hh * 16 * 224), "wp%d" % ti)
    e("v_lshlrev_b32 v%d, 7, v%d", V + 2, V)
    e("v_and_b32 v%d, 1, v%d", V + 3, V_LANE)
    e("v_lshl_add_u32 v%d, v%d, 3, v%d", V + 2, V + 3, V + 2)
    e("v_bfe_u32 v%d, v%d, 1, 1", V + 3, V_LANE)
    e("v_lshl_add_u32 v%d, v%d, 4, v%d", V + 2, V + 3, V + 2)
    e("v_and_b32 v%d, 1, v%d", V + 3, V_G)
    e("v_lshlrev_b32 v%d, 2, v%d", V + 3, V + 3)
    e("v_bfe_u32 v%d, v%d, 3, 1", V, V_LANE)
    e("v_lshl_add_u32 v%d, v%d, 1, v%d", V + 3, V, V + 3)
    e("s_lshl_b32 s%d, s%d, 1", S_T, S_W)
    e("v_xor_b32 v%d, s%d, v%d", V + 3, S_T, V + 3)
    e("v_lshl_add_u32 v%d, v%d, 4, v%d", V + 2, V + 3, V + 2)
    e("v_add_u32 v%d, 0x%x, v%d", V + 2, LDS_WOP, V + 2)
    for hh in range(2):
        c.lg.issue("ds_read_b64_tr_b16 v[%d:%d], v%d offset:%d" % (F + 8 + 2 * hh, F + 8 + 2 * hh + 1, V + 2, hh * 2048), "wo")
    e("v_lshlrev_b32 v%d, 4, v%d", V, V_LANE)
    e("v_add_u32 v%d, 0x40000000, v%d", V + 1, V)
    e("s_cmp_eq_u32 s%d, 3", S_W)
    e("s_cselect_b64 vcc, -1, 0")
    e("v_cndmask_b32 v%d, v%d, v%d, vcc", V + 1, V, V + 1)
    e("s_lshr_b32 s%d, s2, 4", S_T)
    e("s_mul_i32 s%d, s%d, 7", S_T, S_T)
    e("s_lshl_b32 s%d, s%d, 1", S_T + 1, S_W)
    e("s_add_u32 s%d, s%d, s%d", S_T, S_T, S_T + 1)
    e("s_lshl_b32 s%d, s%d, 4", S_T, S_T)
    e("s_and_b32 s%d, s2, 15", S_T + 1)
    e("s_add_u32 s%d, s%d, s%d", S_T, S_T, S_T + 1)
    e("s_lshl_b32 s%d, s%d, 10", S_T, S_T)
    e("s_add_u32 s%d, s%d, 0x%x", S_T, S_T, L.WINF)
    c.lg.wait("wp0"); c.bstore(F, 4, V, R_WS, S_T, 0, "xst", "sc1")
    e("s_add_u32 s%d, s%d, 16384", S_T, S_T)
    c.lg.wait("wp1"); c.bstore(F + 4, 4, V + 1, R_WS, S_T, 0, "xst", "sc1")
    e("s_mul_i32 s%d, s2, 2341", S_T)
    e("s_lshr_b32 s%d, s%d, 16", S_T, S_T)
    e("s_mul_i32 s%d, s%d, 28", S_T + 1, S_T)
    e("s_sub_u32 s%d, s2, s%d", S_T + 1, S_T + 1)
    e("s_lshl_b32 s%d, s%d, 2", S_T, S_T)
    e("s_add_u32 s%d, s%d, s%d", S_T, S_T, S_W)
    e("s_mul_i32 s%d, s%d, 28", S_T, S_T)
    e("s_add_u32 s%d, s%d, s%d", S_T, S_T, S_T + 1)
    e("s_lshl_b32 s%d, s%d, 10", S_T, S_T)
    e("s_add_u32 s%d, s%d, 0x%x", S_T, S_T, L.WOUTF)
    e("s_cmp_ge_u32 s2, 224")
    e("s_cselect_b32 s%d, 0x40000000, s%d", S_T, S_T)
    c.lg.wait("wo"); c.bstore(F + 8, 4, V, R_WS, S_T, 0, "xst", "sc1")

class WLoader:
    V0, V1 = 240, 241
    S0 = 58
    def __init__(self, c):
        self.c = c; self.issued = 0
    def setup(self):
        c = self.c; e = c.e
        e("v_lshlrev_b32 v%d, 4, v%d", self.V0, V_LANE)
        e("v_add_u32 v%d, 0x40000000, v%d", self.V1, self.V0)
        e("s_cmp_eq_u32 s%d, 3", S_W)
        e("s_cselect_b64 vcc, -1, 0")
        e("v_cndmask_b32 v%d, v%d, v%d, vcc", self.V1, self.V0, self.V1)
        e("s_mul_i32 s59, s%d, 7", S_NB)
        e("s_lshl_b32 s%d, s%d, 1", S_T, S_W)
        e("s_add_u32 s59, s59, s%d", S_T)
        e("s_lshl_b32 s59, s59, 14")
        e("s_add_u32 s59, s59, 0x%x", L.WINF)
        e("s_add_u32 s58, s59, %d", 56 * 16384)
    def loads(self, k0, k1):
        c = self.c; out = []
        for ks in range(k0, k1):
            for slot in range(4):
                def f(ks=ks, slot=slot):
                    base = 58 if slot < 2 else 59
                    off = (slot & 1) * 16384 + ks * 1024
                    c.e("s_add_u32 s%d, s%d, %d", S_T, base, off)
                    c.bload(A0 + (ks * 4 + slot) * 4, 4, self.V1 if (slot & 1) else self.V0, R_WS, S_T, 0, "W%d" % ks, "sc1")
                out.append(f)
        return out
    def colsum(self, k0, k1):
        c = self.c; e = c.e
        c.vm.wait("W%d" % (k1 - 1))
        if k0 == 0:
            for r in range(4): e("v_mov_b32 v%d, 0x3f803f80", 244 + r)
            c.nop(2)
        for ks in range(k0, k1):
            for slot in range(4):
                cc = "0" if ks == 0 else "v[%d:%d]" % (V_CS + 4 * slot, V_CS + 4 * slot + 3)
                e("v_mfma_f32_16x16x32_bf16 v[%d:%d], %s, v[244:247], %s", V_CS + 4 * slot, V_CS + 4 * slot + 3, rr(A0 + (ks * 4 + slot) * 4, 4), cc)

LDS_H = 0
LDS_WSPST = 0
LDS_ZT = 98304
LDS_ZS = 118784
LDS_HST = 126976
LDS_ZROW = 127488
LDS_Z1 = 147456

P3_ACC = 32
P3_HF = 96
P3_AS, P3_AG = 128, 132
P3_RD = 136
P3_ONE = 140

def p3_issue_h(c):
    e = c.e
    V = 144
    e("v_lshrrev_b32 v%d, 3, v%d", V, V_LANE)
    e("v_lshlrev_b32 v%d, 12, v%d", V, V)
    e("v_and_b32 v%d, 7, v%d", V + 1, V_LANE)
    e("v_lshlrev_b32 v%d, 1, v%d", V + 2, V_G)
    e("v_xor_b32 v%d, v%d, v%d", V + 1, V + 1, V + 2)
    e("v_lshl_add_u32 v%d, v%d, 4, v%d", V, V + 1, V)
    e("s_lshl_b32 s%d, s%d, 7", S_T + 1, S_MB)
    e("s_lshl_b32 s%d, s%d, 17", S_T + 2, S_W)
    e("s_add_u32 s%d, s%d, s%d", S_T + 1, S_T + 1, S_T + 2)
    e("s_add_u32 s%d, s%d, 0x%x", S_T + 1, S_T + 1, L.HT)
    e("s_lshl_b32 s%d, s%d, 12", S_T + 3, S_W)
    for ch in range(4):
        for i in range(4):
            e("s_add_u32 s%d, s%d, 0x%x", S_T, S_T + 1, (128 * ch + 8 * i) * 4096)
            c.dma(V, R_WS, S_T, S_T + 3, LDS_H + ch * 16384 + i * 1024, "h%d" % ch, "sc1")

def h_addr(c, dst, jrot):
    pass

def p3_setup(c):
    e = c.e
    T = 144
    e("v_lshrrev_b32 v%d, 2, v%d", T, V_L16)
    e("v_lshl_add_u32 v%d, v%d, 2, v%d", T + 1, V_G, T)
    e("v_lshlrev_b32 v%d, 7, v%d", T + 1, T + 1)
    e("v_and_b32 v%d, 1, v%d", T + 2, V_LANE)
    e("v_lshl_add_u32 v%d, v%d, 3, v%d", T + 1, T + 2, T + 1)
    e("v_bfe_u32 v%d, v%d, 1, 1", T + 2, V_LANE)
    e("v_lshl_add_u32 v%d, v%d, 4, v%d", T + 1, T + 2, T + 1)
    e("v_and_b32 v%d, 1, v%d", T + 2, V_G)
    e("v_lshlrev_b32 v%d, 2, v%d", T + 2, T + 2)
    e("v_lshrrev_b32 v%d, 1, v%d", T + 3, T)
    e("v_lshl_add_u32 v%d, v%d, 1, v%d", T + 2, T + 3, T + 2)
    for j in range(4):
        e("s_add_u32 s%d, s%d, %d", S_T, S_W, j)
        e("s_and_b32 s%d, s%d, 3", S_T, S_T)
        e("s_lshl_b32 s%d, s%d, 1", S_T, S_T)
        e("v_xor_b32 v%d, s%d, v%d", T + 3, S_T, T + 2)
        e("v_lshl_add_u32 v%d, v%d, 4, v%d", P3_RD + j, T + 3, T + 1)
    for r in range(4): e("v_mov_b32 v%d, 0x3f803f80", P3_ONE + r)

def p3_main(c, hooks=None):
    e = c.e; hooks = hooks or {}
    def reads(ks):
        f = P3_HF + 16 * (ks & 1); out = []
        for j in range(4):
            for hh in range(2):
                out.append("ds_read_b64_tr_b16 v[%d:%d], v%d offset:%d" % (f + 4 * j + 2 * hh, f + 4 * j + 2 * hh + 1, P3_RD + j, LDS_H + ks * 4096 + hh * 2048))
        return out
    for ks in range(16):
        if ks == 0:
            c.vm.wait("h0")
            c.lg.wait_all()
            e("s_barrier")
            for r in reads(0): c.lg.issue(r, "hf0")
        if ks == 3:
            c.vm.wait("h3")
            e("s_barrier")
        c.lg.wait("hf%d" % ks)
        f = P3_HF + 16 * (ks & 1)
        nxt = reads(ks + 1) if ks < 15 else []
        m = 0
        for slot in range(4):
            for j in range(4):
                acc = P3_ACC + (slot * 4 + j) * 4
                cc = "0" if ks == 0 else "v[%d:%d]" % (acc, acc + 3)
                e("v_mfma_f32_16x16x32_bf16 v[%d:%d], %s, v[%d:%d], %s", acc, acc + 3, rr(A0 + (ks * 4 + slot) * 4, 4), f + 4 * j, f + 4 * j + 3, cc)
                if m % 2 == 0 and nxt: c.lg.issue(nxt.pop(0), "hf%d" % (ks + 1))
                m += 1
        cs = "0" if ks == 0 else "v[%d:%d]" % (P3_AS, P3_AS + 3)
        cg = "0" if ks == 0 else "v[%d:%d]" % (P3_AG, P3_AG + 3)
        e("v_mfma_f32_16x16x32_bf16 v[%d:%d], v[%d:%d], v[%d:%d], %s", P3_AS, P3_AS + 3, P3_ONE, P3_ONE + 3, f, f + 3, cs)
        e("v_mfma_f32_16x16x32_bf16 v[%d:%d], v[%d:%d], v[%d:%d], %s", P3_AG, P3_AG + 3, f, f + 3, f, f + 3, cg)
        if ks in hooks: hooks[ks]()
    e("s_lshl_b32 s%d, s%d, 13", S_T, S_NB)
    e("v_add_u32 v144, s%d, v%d", S_T, P3_RD)
    for dt in range(4):
        c.lg.issue("ds_read_b64_tr_b16 v[%d:%d], v144 offset:%d" % (V_HRES + 2 * dt, V_HRES + 2 * dt + 1, LDS_H + (dt >> 1) * 4096 + (dt & 1) * 2048), "hres")

def p3_hstats(c):
    e = c.e
    T = 144
    c.nop(8)
    e("v_and_b32 v%d, 3, v%d", T, V_L16)
    e("v_cmp_eq_u32 vcc, 1, v%d", T)
    e("v_cmp_eq_u32 s[%d:%d], 2, v%d", S_T + 2, S_T + 3, T)
    e("v_cmp_eq_u32 s[%d:%d], 3, v%d", S_T + 4, S_T + 5, T)
    e("v_cndmask_b32 v%d, v%d, v%d, vcc", T + 1, P3_AG, P3_AG + 1)
    e("v_cndmask_b32 v%d, v%d, v%d, s[%d:%d]", T + 1, T + 1, P3_AG + 2, S_T + 2, S_T + 3)
    e("v_cndmask_b32 v%d, v%d, v%d, s[%d:%d]", T + 1, T + 1, P3_AG + 3, S_T + 4, S_T + 5)
    e("v_mul_f32 v%d, 0x3b000000, v%d", T + 2, P3_AS)
    e("v_mul_f32 v%d, 0x3b000000, v%d", T + 1, T + 1)
    e("v_fma_f32 v%d, -v%d, v%d, v%d", T + 1, T + 2, T + 2, T + 1)
    e("v_max_f32 v%d, 0, v%d", T + 1, T + 1)
    e("v_add_f32 v%d, 0x3727c5ac, v%d", T + 1, T + 1)
    e("v_rsq_f32 v%d, v%d", T + 4, T + 1)
    e("s_nop 0")
    e("v_mul_f32 v%d, v%d, v%d", T + 5, T + 4, T + 2)
    e("v_lshrrev_b32 v%d, 2, v%d", T + 2, V_L16)
    e("v_cmp_eq_u32 vcc, v%d, v%d", T + 2, V_G)
    e("s_lshl_b32 s%d, s%d, 7", S_T, S_W)
    e("s_add_u32 s%d, s%d, 0x%x", S_T, S_T, LDS_HST)
    e("v_lshlrev_b32 v%d, 3, v%d", T + 3, V_L16)
    e("v_add_u32 v%d, s%d, v%d", T + 3, S_T, T + 3)
    e("s_and_saveexec_b64 s[%d:%d], vcc", S_T + 2, S_T + 3)
    c.lg.issue("ds_write_b64 v%d, v[%d:%d]" % (T + 3, T + 4, T + 5))
    e("s_mov_b64 exec, s[%d:%d]", S_T + 2, S_T + 3)
    c.lg.wait_all()
    e("s_barrier")
    e("v_lshlrev_b32 v%d, 3, v%d", T + 3, V_L16)
    for j in range(4):
        e("s_add_u32 s%d, s%d, %d", S_T, S_W, j)
        e("s_and_b32 s%d, s%d, 3", S_T, S_T)
        e("s_lshl_b32 s%d, s%d, 7", S_T, S_T)
        e("s_add_u32 s%d, s%d, 0x%x", S_T, S_T, LDS_HST)
        e("v_add_u32 v%d, s%d, v%d", T + 4, S_T, T + 3)
        c.lg.issue("ds_read_b64 v[%d:%d], v%d" % (150 + 2 * j, 151 + 2 * j, T + 4), "hs")
    c.lg.wait_all()

GC0, GC1 = 60, 62
def gelu_consts(c):
    import struct
    f2u = lambda x: struct.unpack("<I", struct.pack("<f", x))[0]
    k = -2.0 * 0.7978845608028654 * 1.4426950408889634
    c.e("s_mov_b32 s60, 0x%x", f2u(k)); c.e("s_mov_b32 s61, 0x%x", f2u(k))
    c.e("s_mov_b32 s62, 0x%x", f2u(k * 0.044715)); c.e("s_mov_b32 s63, 0x%x", f2u(k * 0.044715))

def gelu_tile(c, acc, slot, j, T):
    e = c.e
    R = 150 + 2 * j
    for q in range(2):
        x = acc + 2 * q; cs = V_CS + 4 * slot + 2 * q; t = T + 8 * q
        e("v_pk_mul_f32 %s, %s, %s op_sel:[0,1] op_sel_hi:[1,1]", pr(t), pr(cs), pr(R))
        e("v_pk_fma_f32 %s, %s, %s, %s op_sel_hi:[1,0,1] neg_lo:[0,0,1] neg_hi:[0,0,1]", pr(x), pr(x), pr(R), pr(t))
    for q in range(2):
        x = acc + 2 * q; t = T + 8 * q
        e("v_pk_mul_f32 %s, %s, %s", pr(t), pr(x), pr(x))
    for q in range(2):
        x = acc + 2 * q; t = T + 8 * q
        e("v_pk_fma_f32 %s, %s, s[62:63], %s", pr(t), pr(t), pr(t + 2))
    for q in range(2):
        x = acc + 2 * q; t = T + 8 * q
        e("v_pk_mul_f32 %s, %s, %s", pr(t), pr(t), pr(x))
    for q in range(2):
        t = T + 8 * q
        e("v_exp_f32 v%d, v%d", t, t); e("v_exp_f32 v%d, v%d", t + 1, t + 1)
    e("s_nop 0")
    for q in range(2):
        t = T + 8 * q
        e("v_pk_add_f32 %s, %s, %s", pr(t), pr(t), pr(t + 4))
    for q in range(2):
        t = T + 8 * q
        e("v_rcp_f32 v%d, v%d", t, t); e("v_rcp_f32 v%d, v%d", t + 1, t + 1)
    e("s_nop 0")
    for q in range(2):
        x = acc + 2 * q; t = T + 8 * q
        e("v_pk_mul_f32 %s, %s, %s", pr(x), pr(x), pr(t))

def gelu_tile_bg(c, acc, slot, j, T, nbg):
    c.bg((nbg + 1) // 2)
    gelu_tile(c, acc, slot, j, T)
    c.bg(nbg // 2)

def gelu_setup(c, T):
    e = c.e
    gelu_consts(c)
    for q in range(2):
        t = T + 8 * q
        e("v_mov_b32 v%d, s60", t + 2); e("v_mov_b32 v%d, s60", t + 3)
        e("v_mov_b32 v%d, 1.0", t + 4); e("v_mov_b32 v%d, 1.0", t + 5)

def p3_z2_gelu_publish(c):
    e = c.e
    T = 160
    gelu_setup(c, T)
    SUM = 176
    for j in range(4):
        for slot in range(2):
            acc = P3_ACC + (slot * 4 + j) * 4
            gelu_tile_bg(c, acc, slot, j, T, 3)
            s0, q0 = SUM + 4 * j, SUM + 4 * j + 2
            if slot == 0:
                e("v_pk_add_f32 %s, %s, %s", pr(s0), pr(acc), pr(acc + 2))
                e("v_pk_mul_f32 %s, %s, %s", pr(q0), pr(acc), pr(acc))
            else:
                e("v_pk_add_f32 %s, %s, %s", pr(s0), pr(s0), pr(acc))
                e("v_pk_add_f32 %s, %s, %s", pr(s0), pr(s0), pr(acc + 2))
                e("v_pk_fma_f32 %s, %s, %s, %s", pr(q0), pr(acc), pr(acc), pr(q0))
            e("v_pk_fma_f32 %s, %s, %s, %s", pr(q0), pr(acc + 2), pr(acc + 2), pr(q0))
    e("s_lshl_b32 s%d, s%d, 11", S_T + 1, S_W)
    e("s_add_u32 s%d, s%d, 0x%x", S_T + 1, S_T + 1, LDS_ZS)
    e("v_lshlrev_b32 v%d, 9, v%d", T, V_G)
    e("v_lshl_add_u32 v%d, v%d, 3, v%d", T, V_L16, T)
    e("v_add_u32 v%d, s%d, v%d", T, S_T + 1, T)
    for j in range(4):
        s0, q0 = SUM + 4 * j, SUM + 4 * j + 2
        e("v_add_f32 v%d, v%d, v%d", s0, s0, s0 + 1)
        e("v_add_f32 v%d, v%d, v%d", s0 + 1, q0, q0 + 1)
        e("s_add_u32 s%d, s%d, %d", S_T, S_W, j)
        e("s_and_b32 s%d, s%d, 3", S_T, S_T)
        e("s_lshl_b32 s%d, s%d, 7", S_T, S_T)
        e("v_add_u32 v%d, s%d, v%d", T + 1, S_T, T)
        c.lg.issue("ds_write_b64 v%d, v[%d:%d]" % (T + 1, s0, s0 + 1))
    c.lg.wait_all()
    e("s_barrier")
    e("s_lshl_b32 s%d, s%d, 7", S_T, S_W)
    e("s_add_u32 s%d, s%d, 0x%x", S_T, S_T, LDS_ZS)
    e("v_lshlrev_b32 v%d, 9, v%d", T, V_G)
    e("v_lshl_add_u32 v%d, v%d, 3, v%d", T, V_L16, T)
    e("v_add_u32 v%d, s%d, v%d", T, S_T, T)
    for w in range(4):
        c.lg.issue("ds_read_b64 v[%d:%d], v%d offset:%d" % (SUM + 2 * w, SUM + 2 * w + 1, T, w * 2048))
    c.lg.wait_all()
    e("v_pk_add_f32 %s, %s, %s", pr(SUM), pr(SUM), pr(SUM + 2))
    e("v_pk_add_f32 %s, %s, %s", pr(SUM + 4), pr(SUM + 4), pr(SUM + 6))
    e("v_pk_add_f32 %s, %s, %s", pr(SUM), pr(SUM), pr(SUM + 4))
    for swap in ("v_permlane16_swap_b32", "v_permlane32_swap_b32"):
        e("v_mov_b32 v%d, v%d", SUM + 2, SUM)
        e("v_mov_b32 v%d, v%d", SUM + 3, SUM + 1)
        c.nop(2)
        e("%s v%d, v%d", swap, SUM, SUM + 2)
        e("%s v%d, v%d", swap, SUM + 1, SUM + 3)
        c.nop(1)
        e("v_pk_add_f32 %s, %s, %s", pr(SUM), pr(SUM), pr(SUM + 2))
    e("s_lshl_b32 s%d, s%d, 3", S_T, S_MB)
    e("s_add_u32 s%d, s%d, s%d", S_T, S_T, S_NB)
    e("s_lshl_b32 s%d, s%d, 9", S_T, S_T)
    e("s_lshl_b32 s%d, s%d, 7", S_T + 1, S_W)
    e("s_add_u32 s%d, s%d, s%d", S_T, S_T, S_T + 1)
    e("s_add_u32 s%d, s%d, 0x%x", S_T, S_T, L.ZST)
    e("v_lshlrev_b32 v%d, 3, v%d", T, V_L16)
    e("s_mov_b64 s[%d:%d], exec", S_T + 2, S_T + 3)
    e("s_mov_b64 exec, 0xffff")
    c.bstore(SUM, 2, T, R_WS, S_T, 0, "zst", "sc1")
    e("s_mov_b64 exec, s[%d:%d]", S_T + 2, S_T + 3)

def p3_z1_gelu(c):
    e = c.e
    T = 160
    e("v_lshlrev_b32 v176, 3, v%d", V_LANE)
    e("s_lshl_b32 s%d, s%d, 10", S_T + 1, S_W)
    e("s_add_u32 s%d, s%d, 0x%x", S_T + 1, S_T + 1, LDS_Z1)
    e("v_add_u32 v176, s%d, v176", S_T + 1)
    for j in range(4):
        e("s_add_u32 s%d, s%d, %d", S_T, S_W, j)
        e("s_and_b32 s%d, s%d, 3", S_T, S_T)
        e("s_lshl_b32 s%d, s%d, 12", S_T, S_T)
        e("v_add_u32 v177, s%d, v176", S_T)
        for sl in range(2):
            slot = 2 + sl
            acc = P3_ACC + (slot * 4 + j) * 4
            gelu_tile_bg(c, acc, slot, j, T, 3)
            e("v_cvt_pk_bf16_f32 v%d, v%d, v%d", acc, acc, acc + 1)
            e("v_cvt_pk_bf16_f32 v%d, v%d, v%d", acc + 1, acc + 2, acc + 3)
            c.lg.issue("ds_write_b64 v177, v[%d:%d] offset:%d" % (acc, acc + 1, sl * 512))

def p3_z2_finish(c):
    e = c.e; a = c.a
    T = 160; G = 180
    e("s_lshl_b32 s%d, s%d, 12", S_T, S_MB)
    e("s_add_u32 s%d, s%d, 0x%x", S_T, S_T, L.ZST)
    e("v_lshlrev_b32 v%d, 3, v%d", T, V_LANE)
    loop = a.newlabel("zp"); done = a.newlabel("zpd")
    e("s_mov_b32 s%d, 0", S_T + 1)
    a.label(loop)
    for n in range(8):
        e("buffer_load_dwordx2 v[%d:%d], v%d, s[%d:%d], s%d offen offset:%d sc1", G + 2 * n, G + 2 * n + 1, T, R_WS, R_WS + 3, S_T, 512 * n)
    e("s_waitcnt vmcnt(0)")
    c.vm.q = []
    e("v_min_f32 v%d, v%d, v%d", T + 1, G + 1, G + 3)
    for n in range(2, 8):
        e("v_min_f32 v%d, v%d, v%d", T + 1, T + 1, G + 2 * n + 1)
    e("v_cmp_gt_f32 vcc, 0, v%d", T + 1)
    e("s_nop 1")
    e("s_cmp_eq_u64 vcc, 0")
    e("s_cbranch_scc1 %s", done)
    e("s_add_u32 s%d, s%d, 1", S_T + 1, S_T + 1)
    e("s_cmp_lt_u32 s%d, 0x100000", S_T + 1)
    e("s_cbranch_scc1 %s", loop)
    a.label(done)
    for n in range(1, 8):
        e("v_pk_add_f32 %s, %s, %s", pr(G), pr(G), pr(G + 2 * n))
    import struct
    inv = struct.unpack("<I", struct.pack("<f", 1.0 / 896))[0]
    e("v_mul_f32 v%d, 0x%x, v%d", G, inv, G)
    e("v_mul_f32 v%d, 0x%x, v%d", G + 1, inv, G + 1)
    e("v_fma_f32 v%d, -v%d, v%d, v%d", G + 1, G, G, G + 1)
    e("v_max_f32 v%d, 0, v%d", G + 1, G + 1)
    e("v_add_f32 v%d, 0x3727c5ac, v%d", G + 1, G + 1)
    e("v_rsq_f32 v%d, v%d", G + 2, G + 1)
    e("s_nop 0")
    e("v_mul_f32 v%d, v%d, v%d", G + 3, G, G + 2)
    e("v_sub_f32 v%d, 0, v%d", G + 3, G + 3)
    e("s_lshl_b32 s%d, s%d, 9", S_T, S_W)
    e("s_add_u32 s%d, s%d, 0x%x", S_T, S_T, LDS_ZROW)
    e("v_add_u32 v%d, s%d, v%d", T + 1, S_T, T)
    c.lg.issue("ds_write_b64 v%d, v[%d:%d]" % (T + 1, G + 2, G + 3))
    c.lg.wait_all()
    e("v_lshlrev_b32 v%d, 3, v%d", T + 2, V_L16)
    e("v_add_u32 v%d, s%d, v%d", T + 2, S_T, T + 2)
    for j in range(4):
        e("s_add_u32 s%d, s%d, %d", S_T + 1, S_W, j)
        e("s_and_b32 s%d, s%d, 3", S_T + 1, S_T + 1)
        e("s_lshl_b32 s%d, s%d, 7", S_T + 1, S_T + 1)
        e("v_add_u32 v%d, s%d, v%d", T + 3, S_T + 1, T + 2)
        c.lg.issue("ds_read_b64 v[%d:%d], v%d" % (150 + 2 * j, 151 + 2 * j, T + 3))
    c.lg.wait_all()
    e("s_mul_i32 s%d, s%d, 5120", S_T, S_W)
    e("s_add_u32 s%d, s%d, 0x%x", S_T, S_T, LDS_ZT)
    e("v_mul_u32_u24 v%d, 40, v%d", T + 4, V_L16)
    e("v_lshl_add_u32 v%d, v%d, 3, v%d", T + 4, V_G, T + 4)
    e("v_add_u32 v%d, s%d, v%d", T + 4, S_T, T + 4)
    for j in range(4):
        R = 150 + 2 * j
        e("s_add_u32 s%d, s%d, %d", S_T + 1, S_W, j)
        e("s_and_b32 s%d, s%d, 3", S_T + 1, S_T + 1)
        e("s_mul_i32 s%d, s%d, 640", S_T + 1, S_T + 1)
        e("v_add_u32 v%d, s%d, v%d", T + 5, S_T + 1, T + 4)
        for slot in range(2):
            acc = P3_ACC + (slot * 4 + j) * 4
            for q in range(2):
                x = acc + 2 * q
                e("v_pk_fma_f32 %s, %s, %s, %s op_sel:[0,0,1] op_sel_hi:[1,0,1]", pr(x), pr(x), pr(R), pr(R))
            e("v_cvt_pk_bf16_f32 v%d, v%d, v%d", acc, acc, acc + 1)
            e("v_cvt_pk_bf16_f32 v%d, v%d, v%d", acc + 1, acc + 2, acc + 3)
            c.lg.issue("ds_write_b64 v%d, v[%d:%d] offset:%d" % (T + 5, acc, acc + 1, slot * 2560))
    c.lg.wait_all()
    e("v_lshrrev_b32 v%d, 2, v%d", T + 4, V_L16)
    e("v_lshl_add_u32 v%d, v%d, 2, v%d", T + 4, V_G, T + 4)
    e("v_mul_u32_u24 v%d, 40, v%d", T + 4, T + 4)
    e("v_and_b32 v%d, 3, v%d", T + 5, V_LANE)
    e("v_lshl_add_u32 v%d, v%d, 3, v%d", T + 4, T + 5, T + 4)
    e("v_add_u32 v%d, s%d, v%d", T + 4, S_T, T + 4)
    O = 96
    for slot in range(2):
        for pp in range(2):
            for hh in range(2):
                d = O + (slot * 2 + pp) * 4 + 2 * hh
                c.lg.issue("ds_read_b64_tr_b16 v[%d:%d], v%d offset:%d" % (d, d + 1, T + 4, slot * 2560 + (32 * pp + 16 * hh) * 40), "o%d%d" % (slot, pp))
    e("s_lshl_b32 s%d, s%d, 6", S_T, S_NB)
    e("s_lshl_b32 s%d, s%d, 1", S_T + 1, S_MB)
    e("s_add_u32 s%d, s%d, s%d", S_T, S_T, S_T + 1)
    e("s_mul_i32 s%d, s%d, 7", S_T, S_T)
    e("s_lshl_b32 s%d, s%d, 1", S_T + 1, S_W)
    e("s_add_u32 s%d, s%d, s%d", S_T, S_T, S_T + 1)
    e("s_lshl_b32 s%d, s%d, 10", S_T, S_T)
    e("s_add_u32 s%d, s%d, 0x%x", S_T, S_T, L.Z2N)
    e("v_lshlrev_b32 v%d, 4, v%d", T + 5, V_LANE)
    e("v_add_u32 v%d, 0x40000000, v%d", T + 6, T + 5)
    e("s_cmp_eq_u32 s%d, 3", S_W)
    e("s_cselect_b64 vcc, -1, 0")
    e("v_cndmask_b32 v%d, v%d, v%d, vcc", T + 6, T + 5, T + 6)
    for slot in range(2):
        for pp in range(2):
            e("s_add_u32 s%d, s%d, %d", S_T + 1, S_T, (pp * 7 + slot) * 1024)
            c.lg.wait("o%d%d" % (slot, pp))
            c.bstore(O + (slot * 2 + pp) * 4, 4, T + 5 + slot, R_WS, S_T + 1, 0, "st", "sc1")

class SpLoader:
    NST = 3
    V_DMA = 200
    V_RD = 208
    S_LDS, S_K = 58, 59
    def __init__(self, c):
        self.c = c; self.issued = 0; self.read_ = 0
    def setup(self):
        c = self.c; e = c.e
        T = 212
        e("v_lshrrev_b32 v%d, 3, v%d", T, V_LANE)
        e("v_lshlrev_b32 v%d, 12, v%d", T, T)
        e("v_and_b32 v%d, 7, v%d", T + 1, V_LANE)
        e("v_xor_b32 v%d, v%d, v%d", T + 1, T + 1, V_G)
        e("v_xor_b32 v%d, 4, v%d", T + 2, T + 1)
        e("v_lshl_add_u32 v%d, v%d, 4, v%d", T + 1, T + 1, T)
        e("v_lshl_add_u32 v%d, v%d, 4, v%d", T + 2, T + 2, T)
        for i in range(8):
            jj = i // 2
            e("s_add_u32 s%d, s%d, %d", S_T, S_W, jj)
            e("s_and_b32 s%d, s%d, 3", S_T, S_T)
            e("s_lshl_b32 s%d, s%d, 16", S_T, S_T)
            e("s_add_u32 s%d, s%d, %d", S_T, S_T, (i % 2) * 8 * 4096)
            e("v_add_u32 v%d, s%d, v%d", self.V_DMA + i, S_T, T + 1 + (i % 2))
        e("s_mul_i32 s%d, s%d, %d", self.S_LDS, S_W, self.NST * 8192)
        e("s_add_u32 s%d, s%d, %d", self.S_LDS, self.S_LDS, LDS_WSPST)
        e("v_lshrrev_b32 v%d, 1, v%d", T + 1, V_L16)
        e("v_lshrrev_b32 v%d, 1, v%d", T + 2, V_G)
        e("v_xor_b32 v%d, v%d, v%d", T + 1, T + 1, T + 2)
        e("v_and_b32 v%d, 1, v%d", T + 2, V_G)
        e("v_lshlrev_b32 v%d, 3, v%d", T + 2, T + 2)
        e("v_lshl_add_u32 v%d, v%d, 7, v%d", T + 2, V_L16, T + 2)
        e("v_add_u32 v%d, s%d, v%d", T + 2, self.S_LDS, T + 2)
        for kk in range(2):
            for hh in range(2):
                e("v_xor_b32 v%d, %d, v%d", T + 3, 4 * kk + 2 * hh, T + 1)
                e("v_lshl_add_u32 v%d, v%d, 4, v%d", self.V_RD + 2 * kk + hh, T + 3, T + 2)
        e("s_lshl_b32 s%d, s%d, 10", self.S_K, S_W)
    def srd(self):
        c = self.c; e = c.e
        e("s_lshl_b32 s%d, s%d, 18", S_T, S_MB)
        c.srd(R_B, P_WSP, 0x40000, off_sreg=S_T)
    def ops(self, n):
        c = self.c; out = []
        for _ in range(n):
            dd = self.issued
            st = dd % self.NST
            for i in range(8):
                def f(dd=dd, st=st, i=i):
                    c.e("s_add_u32 s%d, s%d, %d", S_T + 5, self.S_K, dd * 128)
                    c.dma(self.V_DMA + i, R_B, S_T + 5, self.S_LDS, st * 8192 + i * 1024, "S%d" % dd)
                out.append(f)
            self.issued += 1
        return out
    def issue(self, n=1):
        for f in self.ops(n): f()
    def read(self, n):
        c = self.c
        for _ in range(n):
            dd = self.read_
            c.vm.wait("S%d" % dd)
            st = dd % self.NST
            for kk in range(2):
                for j in range(4):
                    for hh in range(2):
                        dst = A0 + ((dd * 2 + kk) * 4 + j) * 4 + 2 * hh
                        c.lg.issue("ds_read_b64 %s, v%d offset:%d" % (rr(dst, 2), self.V_RD + 2 * kk + hh, st * 8192 + j * 2048), "sl")
            self.read_ += 1
    def refill(self, n):
        self.c.lg.wait("sl")
        self.issue(n)

P4_ACC = 32
P4_ZB = 144
def p4_main(c, tail_ops):
    e = c.e
    NZ = 4
    e("v_lshlrev_b32 v29, 4, v%d", V_LANE)
    e("v_add_u32 v30, 0x1000, v29")
    e("s_lshl_b32 s%d, s%d, 6", 56, S_NB)
    e("s_lshl_b32 s%d, s%d, 4", 57, S_W)
    e("s_add_u32 s56, s56, s57")
    e("s_mul_i32 s56, s56, 7168")
    e("s_add_u32 s56, s56, 0x%x", L.Z2N)
    def issue_z(ks, ft):
        d, v, imm = P4_ZB + (ks % NZ) * 28 + 4 * ft, 29 + ft // 4, (ft % 4) * 1024
        if ft == 0: e("s_add_u32 s57, s56, %d", ks * 7168)
        c.bload(d, 4, v, R_WS, 57, imm, "z%d" % ks, c.opt.get("zflag", "sc1"))
    for ks in range(NZ - 1):
        for ft in range(7): issue_z(ks, ft)
    for ks in range(16):
        c.vm.wait("z%d" % ks)
        nk = ks + NZ - 1
        m = 0; nf = 0
        for ft in range(7):
            for j in range(4):
                acc = P4_ACC + (ft * 4 + j) * 4
                cc = "0" if ks == 0 else "v[%d:%d]" % (acc, acc + 3)
                z = P4_ZB + (ks % NZ) * 28 + 4 * ft
                e("v_mfma_f32_16x16x32_bf16 v[%d:%d], v[%d:%d], %s, %s", acc, acc + 3, z, z + 3, rr(A0 + (ks * 4 + j) * 4, 4), cc)
                m += 1
                if nk < 16 and m % 4 == 0 and nf < 7:
                    issue_z(nk, nf); nf += 1
                if nk >= 16 and m % 3 == 0 and tail_ops:
                    tail_ops.pop(0)()
    while tail_ops: tail_ops.pop(0)()

def p4_reduce_epilogue(c):
    e = c.e
    T = 144
    e("s_lshl_b32 s%d, s%d, 2", S_T, S_MB)
    e("s_add_u32 s%d, s%d, s%d", S_T, S_T, S_W)
    e("s_lshl_b32 s%d, s%d, 5", S_T + 1, S_T)
    e("v_lshlrev_b32 v%d, 1, v%d", T, V_L16)
    e("v_add_u32 v%d, s%d, v%d", T, S_T + 1, T)
    c.vm.issue("global_load_ushort v%d, v%d, s[%d:%d]" % (V_BIAS, T, P_BSP, P_BSP + 1), "bias")
    e("s_mul_i32 s%d, s%d, 24576", S_T + 2, S_W)
    e("v_lshlrev_b32 v%d, 4, v%d", T + 1, V_LANE)
    e("v_add_u32 v%d, s%d, v%d", T + 2, S_T + 2, T + 1)
    c.nop(8)
    for j in range(1, 4):
        for ft in range(7):
            acc = P4_ACC + (ft * 4 + j) * 4
            c.lg.issue("ds_write_b128 v%d, v[%d:%d] offset:%d" % (T + 2, acc, acc + 3, (j - 1) * 7168 + ft * 1024))
    for j in range(1, 4):
        e("s_sub_u32 s%d, s%d, %d", S_T + 2, S_W, j)
        e("s_and_b32 s%d, s%d, 3", S_T + 2, S_T + 2)
        e("s_mul_i32 s%d, s%d, 24576", S_T + 2, S_T + 2)
        e("v_add_u32 v%d, s%d, v%d", T + 2 + j, S_T + 2, T + 1)
    c.lg.wait_all()
    e("s_barrier")
    R = 152
    for j in range(1, 4):
        for ft in range(7):
            d = R + (j - 1) * 28 + 4 * ft
            c.lg.issue("ds_read_b128 v[%d:%d], v%d offset:%d" % (d, d + 3, T + 2 + j, (j - 1) * 7168 + ft * 1024), "r%d" % j)
    Z1 = 236
    e("s_lshl_b32 s%d, s%d, 12", S_T + 2, S_W)
    e("s_add_u32 s%d, s%d, 0x%x", S_T + 2, S_T + 2, LDS_Z1)
    e("v_lshlrev_b32 v%d, 3, v%d", T + 6, V_LANE)
    e("v_add_u32 v%d, s%d, v%d", T + 6, S_T + 2, T + 6)
    for ft in range(7):
        c.lg.issue("ds_read_b64 v[%d:%d], v%d offset:%d" % (Z1 + 2 * ft, Z1 + 2 * ft + 1, T + 6, ft * 512), "z1")
    for j in range(1, 4):
        c.lg.wait("r%d" % j)
        for ft in range(7):
            acc = P4_ACC + (ft * 4) * 4
            d = R + (j - 1) * 28 + 4 * ft
            for q in range(2):
                e("v_pk_add_f32 %s, %s, %s", pr(acc + 2 * q), pr(acc + 2 * q), pr(d + 2 * q))
    c.lg.wait_all()
    e("s_barrier")

def p4_finish(c):
    e = c.e; a = c.a
    T = 144; Z1 = 236
    c.vm.wait("bias")
    e("v_lshlrev_b32 v%d, 16, v%d", V_BIAS, V_BIAS)
    e("s_lshl_b32 s%d, s%d, 2", S_T, S_MB)
    e("s_add_u32 s%d, s%d, s%d", S_T, S_T, S_W)
    e("s_mul_i32 s%d, s%d, %d", S_T, S_T, 28 * 1024)
    e("s_add_u32 s%d, s%d, 0x%x", S_T, S_T, L.PF)
    e("s_mul_i32 s%d, s%d, 7", S_T + 1, S_NB)
    e("s_lshr_b32 s%d, s%d, 1", S_T + 2, S_T + 1)
    e("s_lshl_b32 s%d, s%d, 10", S_T + 2, S_T + 2)
    e("s_add_u32 s%d, s%d, s%d", S_T, S_T, S_T + 2)
    e("v_lshlrev_b32 v%d, 4, v%d", T + 1, V_LANE)
    O = 152
    for ft in range(7):
        x = P4_ACC + ft * 16
        z = Z1 + 2 * ft; t = T + 2
        e("v_lshlrev_b32 v%d, 16, v%d", t, z)
        e("v_and_b32 v%d, 0xffff0000, v%d", t + 1, z)
        e("v_lshlrev_b32 v%d, 16, v%d", t + 2, z + 1)
        e("v_and_b32 v%d, 0xffff0000, v%d", t + 3, z + 1)
        for r in range(4): e("v_add_f32 v%d, v%d, v%d", x + r, x + r, V_BIAS)
        for q in range(2): e("v_pk_mul_f32 %s, %s, %s", pr(x + 2 * q), pr(x + 2 * q), pr(t + 2 * q))
        e("v_cvt_pk_bf16_f32 v%d, v%d, v%d", O + 2 * ft, x, x + 1)
        e("v_cvt_pk_bf16_f32 v%d, v%d, v%d", O + 2 * ft + 1, x + 2, x + 3)
    odd = a.newlabel("podd"); done = a.newlabel("pdone")
    e("s_bitcmp1_b32 s%d, 0", S_NB)
    e("s_cbranch_scc1 %s", odd)
    txt = lambda src, n, imm: "buffer_store_%s %s, v%d, s[%d:%d], s%d offen offset:%d sc1" % ({2: "dwordx2", 4: "dwordx4"}[n], rr(src, n), T + 1, R_WS, R_WS + 3, S_T, imm)
    for p in range(3): e(txt(O + 4 * p, 4, 1024 * p))
    e(txt(O + 12, 2, 3072))
    e("s_branch %s", done)
    a.label(odd)
    e(txt(O, 2, 8))
    for p in range(3):
        e("v_mov_b32 v%d, v%d", T + 4, O + 2 + 4 * p); e("v_mov_b32 v%d, v%d", T + 5, O + 3 + 4 * p)
        e("v_mov_b32 v%d, v%d", T + 6, O + 4 + 4 * p); e("v_mov_b32 v%d, v%d", T + 7, O + 5 + 4 * p)
        e(txt(T + 4, 4, 1024 * (p + 1)))
        e("s_nop 1")
    a.label(done)
    for _ in range(4): c.vm.q.append("st")

LDS_WO = 0
def p5_wout_ops(c):
    e = c.e
    e("v_lshlrev_b32 v31, 4, v%d", V_LANE)
    e("s_lshl_b32 s58, s%d, 2", S_NB)
    e("s_mul_i32 s58, s58, 28")
    e("s_mul_i32 s%d, s%d, 7", S_T, S_W)
    e("s_add_u32 s58, s58, s%d", S_T)
    e("s_lshl_b32 s58, s58, 10")
    e("s_add_u32 s58, s58, 0x%x", L.WOUTF)
    out = []
    for kl in range(7):
        for dt in range(4):
            def f(kl=kl, dt=dt):
                c.e("s_add_u32 s%d, s58, %d", S_T, (dt * 28 + kl) * 1024)
                c.bload(A0 + (kl * 4 + dt) * 4, 4, 31, R_WS, S_T, 0, "wo%d" % kl, "sc1")
            out.append(f)
    return out

P5_ACC = 32
P5_PF = 96
def p5_main(c):
    e = c.e
    T = 240
    e("v_lshlrev_b32 v%d, 4, v%d", T, V_LANE)
    e("v_add_u32 v%d, 0x1000, v%d", T + 1, T)
    for j in range(4):
        e("s_add_u32 s%d, s%d, %d", S_T, S_W, j)
        e("s_and_b32 s%d, s%d, 3", S_T, S_T)
        e("s_lshl_b32 s%d, s%d, 2", S_T + 1, S_MB)
        e("s_add_u32 s%d, s%d, s%d", S_T, S_T, S_T + 1)
        e("s_mul_i32 s%d, s%d, 28", S_T, S_T)
        e("s_mul_i32 s%d, s%d, 7", S_T + 1, S_W)
        e("s_add_u32 s%d, s%d, s%d", S_T, S_T, S_T + 1)
        e("s_lshl_b32 s%d, s%d, 10", S_T, S_T)
        e("s_add_u32 s%d, s%d, 0x%x", 52 + j, S_T, L.PF)
    for kl in range(7):
        for j in range(4):
            c.bload(P5_PF + (kl * 4 + j) * 4, 4, T + kl // 4, R_WS, 52 + j, (kl % 4) * 1024, "p%d" % kl, "sc1")
    for kl in range(7):
        c.vm.wait("p%d" % kl, "wo%d" % kl)
        for dt in range(4):
            for j in range(4):
                acc = P5_ACC + (dt * 4 + j) * 4
                cc = "0" if kl == 0 else "v[%d:%d]" % (acc, acc + 3)
                p = P5_PF + (kl * 4 + j) * 4
                e("v_mfma_f32_16x16x32_bf16 v[%d:%d], %s, v[%d:%d], %s", acc, acc + 3, rr(A0 + (kl * 4 + dt) * 4, 4), p, p + 3, cc)

def p5_epilogue(c):
    e = c.e
    T = 240
    c.lg.wait_all()
    e("s_mul_i32 s%d, s%d, 28672", S_T + 2, S_W)
    e("v_lshlrev_b32 v%d, 4, v%d", T + 1, V_LANE)
    e("v_add_u32 v%d, s%d, v%d", T + 2, S_T + 2, T + 1)
    c.nop(8)
    for j in range(1, 4):
        for dt in range(4):
            acc = P5_ACC + (dt * 4 + j) * 4
            c.lg.issue("ds_write_b128 v%d, v[%d:%d] offset:%d" % (T + 2, acc, acc + 3, LDS_WO + (j - 1) * 4096 + dt * 1024))
    for j in range(1, 4):
        e("s_sub_u32 s%d, s%d, %d", S_T + 2, S_W, j)
        e("s_and_b32 s%d, s%d, 3", S_T + 2, S_T + 2)
        e("s_mul_i32 s%d, s%d, 28672", S_T + 2, S_T + 2)
        e("v_add_u32 v%d, s%d, v%d", T + 2 + j, S_T + 2, T + 1)
    c.lg.wait_all()
    e("s_barrier")
    R = 96
    for j in range(1, 4):
        for dt in range(4):
            d = R + (j - 1) * 16 + 4 * dt
            c.lg.issue("ds_read_b128 v[%d:%d], v%d offset:%d" % (d, d + 3, T + 2 + j, LDS_WO + (j - 1) * 4096 + dt * 1024), "r%d" % j)
    for j in range(1, 4):
        c.lg.wait("r%d" % j)
        for dt in range(4):
            acc = P5_ACC + dt * 16; d = R + (j - 1) * 16 + 4 * dt
            for q in range(2):
                e("v_pk_add_f32 %s, %s, %s", pr(acc + 2 * q), pr(acc + 2 * q), pr(d + 2 * q))
    O = 160
    for dt in range(4):
        acc = P5_ACC + dt * 16; h = V_HRES + 2 * dt; t = 152
        e("v_lshlrev_b32 v%d, 16, v%d", t, h)
        e("v_and_b32 v%d, 0xffff0000, v%d", t + 1, h)
        e("v_lshlrev_b32 v%d, 16, v%d", t + 2, h + 1)
        e("v_and_b32 v%d, 0xffff0000, v%d", t + 3, h + 1)
        for q in range(2):
            e("v_pk_add_f32 %s, %s, %s", pr(acc + 2 * q), pr(acc + 2 * q), pr(t + 2 * q))
        e("v_cvt_pk_bf16_f32 v%d, v%d, v%d", O + 2 * dt, acc, acc + 1)
        e("v_cvt_pk_bf16_f32 v%d, v%d, v%d", O + 2 * dt + 1, acc + 2, acc + 3)
    c.srd(R_A, P_OUT, 2 << 20)
    e("v_lshlrev_b32 v%d, 10, v%d", T, V_L16)
    e("v_and_b32 v%d, 1, v%d", T + 1, V_G)
    e("v_lshl_add_u32 v%d, v%d, 5, v%d", T, T + 1, T)
    e("v_lshrrev_b32 v%d, 1, v%d", T + 1, V_G)
    e("v_lshl_add_u32 v%d, v%d, 4, v%d", T, T + 1, T)
    e("s_lshl_b32 s%d, s%d, 2", S_T, S_MB)
    e("s_add_u32 s%d, s%d, s%d", S_T, S_T, S_W)
    e("s_lshl_b32 s%d, s%d, 14", S_T, S_T)
    e("s_lshl_b32 s%d, s%d, 7", S_T + 1, S_NB)
    e("s_add_u32 s%d, s%d, s%d", S_T, S_T, S_T + 1)
    for p in range(2):
        o = O + 4 * p
        c.nop(2)
        e("v_permlane16_swap_b32 v%d, v%d", o, o + 2)
        e("v_permlane16_swap_b32 v%d, v%d", o + 1, o + 3)
        c.bstore(o, 4, T, R_A, S_T, 64 * p, "out")

def touch_wsp(c, dd0, ndd):
    e = c.e
    V = 145
    e("s_lshl_b32 s%d, s%d, 18", S_T, S_MB)
    e("s_and_b32 s%d, s%d, 3", S_T + 1, S_NB)
    e("s_lshl_b32 s%d, s%d, 16", S_T + 1, S_T + 1)
    e("s_add_u32 s%d, s%d, s%d", S_T, S_T, S_T + 1)
    e("s_lshl_b32 s%d, s%d, 10", S_T + 1, S_W)
    e("s_add_u32 s%d, s%d, s%d", S_T, S_T, S_T + 1)
    e("s_add_u32 s%d, s%d, %d", S_T, S_T, dd0 * 128)
    c.srd(R_C, P_WSP, 8 << 20)
    e("v_lshlrev_b32 v%d, 12, v%d", V, V_L16)
    e("v_lshl_add_u32 v%d, v%d, 7, v%d", V, V_G, V)
    e("v_cmp_gt_u32 vcc, %d, v%d", ndd, V_G)
    e("v_mov_b32 v%d, 0x40000000", V + 1)
    e("s_nop 0")
    e("v_cndmask_b32 v%d, v%d, v%d, vcc", V, V + 1, V)
    c.bload(31, 1, V, R_C, S_T, 0, "touch")

def touch_z2n(c):
    e = c.e
    e("s_lshl_b32 s%d, s%d, 6", S_T, S_NB)
    e("s_lshl_b32 s%d, s%d, 4", S_T + 1, S_W)
    e("s_add_u32 s%d, s%d, s%d", S_T, S_T, S_T + 1)
    e("s_and_b32 s%d, s%d, 7", S_T + 1, S_MB)
    e("s_lshl_b32 s%d, s%d, 1", S_T + 1, S_T + 1)
    e("s_add_u32 s%d, s%d, s%d", S_T, S_T, S_T + 1)
    e("s_mul_i32 s%d, s%d, 7168", S_T, S_T)
    e("s_add_u32 s%d, s%d, 0x%x", S_T, S_T, L.Z2N)
    e("v_lshlrev_b32 v2, 7, v%d", V_LANE)
    c.bload(31, 1, 2, R_WS, S_T, 0, "touch", c.opt.get("zflag", "sc1"))
    e("v_add_u32 v2, 0x2000, v2")
    e("v_cmp_gt_u32 vcc, 48, v%d", V_LANE)
    e("v_mov_b32 v3, 0x40000000")
    e("s_nop 0")
    e("v_cndmask_b32 v2, v3, v2, vcc")
    c.bload(31, 1, 2, R_WS, S_T, 0, "touch", c.opt.get("zflag", "sc1"))
```

```python
import sys
from core import *
import ph12, ph345
KNAME = "sequential_preLN__ssm_conv_h3__mixer_gmlp__prompt_kernel"

def drain_arrive(c, line_sreg, line_imm, boot=False):
    c.vm.wait_all()
    c.lg.wait_all()
    c.e("s_barrier")
    if boot: ph12.wait_boot(c)
    c.arrive(line_sreg, line_imm)

def build(stop=99, stamps=False, fine=False, **opt):
    body = Asm()
    c = Ctx(body, stamps)
    c.finestamps = fine
    c.opt = opt
    e = c.e
    kernel_begin(body, KNAME)
    ph12.setup(c)
    ph12.load_D_issue(c)
    ph12.bootstrap_a(c)
    WL = ph345.WLoader(c); SL = ph345.SpLoader(c)
    c.st.stamp("setup")
    ph12.p1_issue(c)
    ph12.p1_issue_raw(c)
    ph12.bootstrap_b(c)
    def mid():
        ph12.p1_issue_x(c)
        ph345.wpre_issue(c)
    ph12.p1_kv(c, mid)
    ph12.load_D_finish(c)
    ph12.boot_flag_issue(c)
    c.fine("ust")
    c.vm.wait("raw")
    c.lg.wait_all()
    e("s_barrier")
    ph12.toeplitz(c)
    c.fine("toep")
    ph12.p1_x(c)
    c.vm.wait("wp")
    c.lg.wait_all()
    e("s_barrier")
    c.fine("xwork")
    ph12.p1_x_store(c)
    ph345.wpre_store(c)
    WL.setup()
    c.fine("xst")
    c.vm.wait("xst")
    c.fine("xack")
    ph12.boot_flag_check(c)
    c.fine("boot")
    c.lg.wait_all()
    e("s_barrier")
    c.arrive(S_CG, L.C1_LINE)
    c.st.stamp("arr1")
    c.poll(None, L.C1_LINE, 8, 32)
    e("s_barrier")
    c.st.stamp("B1")
    ph12.p2_issue_u(c)
    ph12.p2_issue_stats(c)
    c.vm.wait("ub")
    e("s_barrier")
    c.fine("ub")
    ph12.p2_main(c, {})
    c.st.stamp("p2main")
    wl = WL.loads(0, 16)
    ph12.p2_epilogue(c)
    for _ in range(8): wl.pop(0)()
    c.fine("p2epi")
    e("s_and_b32 s57, s2, 15")
    c.vm.wait("st")
    c.lg.wait_all()
    e("s_barrier")
    c.arrive(57, L.C2_LINE)
    c.st.stamp("arr2")
    ph345.p3_setup(c)
    for _ in range(24): wl.pop(0)()
    WL.colsum(0, 4)
    for _ in range(16): wl.pop(0)()
    WL.colsum(4, 8)
    for _ in range(16): wl.pop(0)()
    WL.colsum(8, 12)
    c.poll(None, L.C2_LINE, 16, 16)
    e("s_barrier")
    c.st.stamp("B2")
    ph345.p3_issue_h(c)
    WL.colsum(12, 16)
    ph345.p3_main(c, {1: lambda: ph345.touch_wsp(c, 0, 3), 9: lambda: ph345.touch_wsp(c, 3, 3)})
    c.st.stamp("p3main")
    ph345.p3_hstats(c)
    SL.setup(); SL.srd()
    c.bgq = SL.ops(3)
    c.fine("hstats")
    ph345.p3_z2_gelu_publish(c)
    c.bg_flush()
    ph345.touch_wsp(c, 6, 2)
    c.st.stamp("z2pub")
    SL.read(3)
    c.lg.wait("sl")
    c.bgq = SL.ops(3)
    ph345.p3_z1_gelu(c)
    c.bg_flush()
    c.fine("z1")
    ph345.p3_z2_finish(c)
    c.st.stamp("p3done")
    SL.read(3)
    c.lg.wait("sl")
    s2 = SL.ops(2)
    for _ in range(8): s2.pop(0)()
    c.vm.wait("st")
    c.lg.wait_all()
    e("s_barrier")
    c.arrive(S_NB, L.C3_LINE)
    c.fine("arr3")
    for f in s2: f()
    SL.read(2)
    c.lg.wait_all()
    c.fine("sl")
    c.poll(S_NB, L.C3_LINE, 1, 32)
    e("s_barrier")
    c.st.stamp("B3")
    tail = ph345.p5_wout_ops(c)
    ph345.p4_main(c, tail)
    c.st.stamp("p4main")
    ph345.p4_reduce_epilogue(c)
    c.fine("p4red")
    ph345.p4_finish(c)
    c.st.stamp("p4done")
    c.vm.wait("st")
    e("s_barrier")
    c.arrive(S_MB, L.C4_LINE)
    c.fine("arr4")
    c.poll(S_MB, L.C4_LINE, 1, 8)
    e("s_barrier")
    c.st.stamp("C4")
    ph345.p5_main(c)
    c.fine("p5main")
    ph345.p5_epilogue(c)
    c.vm.wait_all()
    c.st.stamp("end")
    c.st.stamp("real1", real=True)
    c.st.flush(P_WS, L.STAMPS, 2, 32, S_T)
    body.label("KEND")
    e("s_endpgm")
    a = Asm()
    hdr = open("cdna_kernels/%s.s.ref" % KNAME.replace("_kernel", "")).read().split("\n")
    for ln in hdr:
        if ln.startswith("; @launch") or ln.startswith("; Override") or ln.startswith("; grid="): continue
        if not ln.startswith(";"): break
        a(ln)
    a("; @launch grid=(256,1,1) block=(256,1,1) lds=163840")
    a('.amdgcn_target "amdgcn-amd-amdhsa--gfx950"')
    a(".text")
    a(body.text())
    a('.section .rodata,"a"')
    a(".p2align 6")
    kernel_desc(a, KNAME, 512, sgprs=102, accum=256)
    return a.text(), c.st.names

if __name__ == "__main__":
    kw = eval("dict(%s)" % (sys.argv[2] if len(sys.argv) > 2 else ""))
    t, names = build(**kw)
    open(sys.argv[1], "w").write(t)
    open(sys.argv[1] + ".stamps", "w").write(",".join(names))
```

```python
from asmb import *
import layout as L

class VM:
    def __init__(self, a):
        self.a = a; self.q = []
    def issue(self, text, tag):
        self.a.e(text); self.q.append(tag)
        assert len(self.q) <= 63, "too many vmem in flight: %d" % len(self.q)
    def wait(self, *tags):
        idx = -1
        for i, t in enumerate(self.q):
            if t in tags: idx = i
        if idx < 0: return
        n = len(self.q) - 1 - idx
        self.a.e("s_waitcnt vmcnt(%d)", n)
        self.q = self.q[idx + 1:]
    def wait_all(self):
        self.a.e("s_waitcnt vmcnt(0)"); self.q = []
    def pending(self, tag):
        return tag in self.q

class LG:
    def __init__(self, a):
        self.a = a; self.q = []
    def issue(self, text, tag="x"):
        if len(self.q) >= 15:
            self.a.e("s_waitcnt lgkmcnt(14)"); self.q = self.q[len(self.q) - 14:]
        self.a.e(text); self.q.append(tag)
    def wait(self, *tags):
        idx = -1
        for i, t in enumerate(self.q):
            if t in tags: idx = i
        if idx < 0: return
        n = len(self.q) - 1 - idx
        self.a.e("s_waitcnt lgkmcnt(%d)", n)
        self.q = self.q[idx + 1:]
    def wait_all(self):
        self.a.e("s_waitcnt lgkmcnt(0)"); self.q = []

S_B = 2; S_W = 3
P_Q, P_K, P_V, P_SHK = 4, 6, 8, 10
P_SSM, P_D = 12, 14
P_WIN, P_WSP, P_BSP, P_WOUT = 16, 18, 20, 22
P_OUT, P_DBG = 24, 26
P_WS = 28
S_CG, S_J = 30, 31
R_WS = 32
R_A, R_B, R_C = 36, 40, 44
S_MB, S_NB = 48, 49
S_T = 50
S_ROT = 64
S_ROT5 = 65
S_X0, S_X1 = 66, 67
S_ROTZ = 68
S_STAMP = 70
V_TID, V_LANE = 0, 1
V_CS = 2
V_HRES = 18
V_BIAS = 26
V_L16 = 27
V_G = 28
V_P = 32

class Ctx:
    def __init__(self, a, stamps=False):
        self.a = a
        self.vm = VM(a); self.lg = LG(a)
        self.st = Stamps(a, S_STAMP, stamps, maxn=30)
        self.finestamps = False
        self.finerstamps = False
        self.opt = {}
        self.bgq = []
    def finer(self, name):
        if self.finerstamps: self.st.stamp(name)
    def fine(self, name):
        if self.finestamps: self.st.stamp(name)
    def e(self, fmt, *x): self.a.e(fmt, *x)
    def srd(self, r, ptr, nbytes, off_sreg=None, off_imm=0):
        e = self.e
        if off_sreg is None and off_imm == 0:
            e("s_mov_b32 s%d, s%d", r, ptr); e("s_mov_b32 s%d, s%d", r + 1, ptr + 1)
        else:
            if off_sreg is not None:
                e("s_add_u32 s%d, s%d, s%d", r, ptr, off_sreg)
            else:
                e("s_add_u32 s%d, s%d, 0x%x", r, ptr, off_imm)
            e("s_addc_u32 s%d, s%d, 0", r + 1, ptr + 1)
        e("s_mov_b32 s%d, 0x%x", r + 2, nbytes)
        e("s_mov_b32 s%d, 0x20000", r + 3)
    def dma(self, voff, srd, soff, lds_sreg, lds_imm, tag, flags=""):
        e = self.e
        if lds_sreg is None: e("s_mov_b32 m0, 0x%x", lds_imm)
        else: e("s_add_u32 m0, s%d, 0x%x", lds_sreg, lds_imm)
        e("s_nop 0")
        so = "s%d" % soff if soff is not None else "0"
        self.vm.issue("buffer_load_dwordx4 v%d, s[%d:%d], %s offen%s lds" % (voff, srd, srd + 3, so, (" " + flags) if flags else ""), tag)
    def bload(self, dst, n, voff, srd, soff, imm, tag, flags=""):
        assert 0 <= imm < 4096, imm
        op = {1: "dword", 2: "dwordx2", 4: "dwordx4"}[n]
        so = "s%d" % soff if soff is not None else "0"
        self.vm.issue("buffer_load_%s %s, v%d, s[%d:%d], %s offen offset:%d%s" % (op, rr(dst, n), voff, srd, srd + 3, so, imm, (" " + flags) if flags else ""), tag)
    def bstore(self, src, n, voff, srd, soff, imm, tag, flags=""):
        assert 0 <= imm < 4096, imm
        op = {1: "dword", 2: "dwordx2", 4: "dwordx4"}[n]
        so = "s%d" % soff if soff is not None else "0"
        self.vm.issue("buffer_store_%s %s, v%d, s[%d:%d], %s offen offset:%d%s" % (op, rr(src, n), voff, srd, srd + 3, so, imm, (" " + flags) if flags else ""), tag)
    def bg(self, n=1):
        for _ in range(n):
            if self.bgq: self.bgq.pop(0)()
    def bg_flush(self):
        while self.bgq: self.bgq.pop(0)()
    def nop(self, n):
        while n > 0:
            k = min(n, 16); self.e("s_nop %d", k - 1); n -= k

    def arrive(self, line_sreg, line_imm):
        e = self.e; a = self.a
        skip = a.newlabel("arr")
        e("s_cmp_eq_u32 s%d, 0", S_W)
        e("s_cbranch_scc0 %s", skip)
        if line_sreg is not None:
            e("s_lshl_b32 s%d, s%d, 8", S_T, line_sreg)
            e("s_add_u32 s%d, s%d, 0x%x", S_T, S_T, L.FLAGS + line_imm * 256)
        else:
            e("s_mov_b32 s%d, 0x%x", S_T, L.FLAGS + line_imm * 256)
        e("s_mov_b64 s[%d:%d], exec", S_T + 2, S_T + 3)
        e("s_mov_b64 exec, 1")
        e("v_mov_b32 v29, s%d", S_T)
        e("v_mov_b32 v30, 1")
        e("global_atomic_add v29, v30, s[%d:%d] sc1", P_WS, P_WS + 1)
        e("s_mov_b64 exec, s[%d:%d]", S_T + 2, S_T + 3)
        a.label(skip)
    def poll(self, line_sreg, line_imm, nlines, target, all_waves=False):
        e = self.e; a = self.a
        if line_imm in self.opt.get("nopoll", ()): return
        skip = a.newlabel("pskip"); loop = a.newlabel("ploop"); done = a.newlabel("pdone")
        if not all_waves:
            e("s_cmp_eq_u32 s%d, 0", S_W)
            e("s_cbranch_scc0 %s", skip)
        if line_sreg is not None:
            e("s_lshl_b32 s%d, s%d, 8", S_T, line_sreg)
            e("s_add_u32 s%d, s%d, 0x%x", S_T, S_T, L.FLAGS + line_imm * 256)
        else:
            e("s_mov_b32 s%d, 0x%x", S_T, L.FLAGS + line_imm * 256)
        e("s_mov_b64 s[%d:%d], exec", S_T + 2, S_T + 3)
        e("v_lshlrev_b32 v29, 8, v%d", V_LANE)
        e("v_add_u32 v29, s%d, v29", S_T)
        e("s_mov_b64 exec, 0x%x", (1 << nlines) - 1)
        e("s_mov_b32 s%d, 0", S_T + 1)
        a.label(loop)
        e("global_load_dword v30, v29, s[%d:%d] sc1", P_WS, P_WS + 1)
        e("s_waitcnt vmcnt(0)")
        e("v_cmp_gt_u32 vcc, %d, v30", target)
        e("s_nop 1")
        e("s_cmp_eq_u64 vcc, 0")
        e("s_cbranch_scc1 %s", done)
        e("s_add_u32 s%d, s%d, 1", S_T + 1, S_T + 1)
        e("s_cmp_lt_u32 s%d, 0x200000", S_T + 1)
        e("s_cbranch_scc1 %s", loop)
        a.label(done)
        e("s_mov_b64 exec, s[%d:%d]", S_T + 2, S_T + 3)
        a.label(skip)

    def poll_early(self, vreg, vadr, line_imm, nlines):
        e = self.e; a = self.a
        skip = a.newlabel("pe")
        e("s_cmp_eq_u32 s%d, 0", S_W)
        e("s_cbranch_scc0 %s", skip)
        e("v_lshlrev_b32 v%d, 8, v%d", vadr, V_LANE)
        e("v_add_u32 v%d, 0x%x, v%d", vadr, L.FLAGS + line_imm * 256, vadr)
        e("s_mov_b64 s[%d:%d], exec", S_T + 2, S_T + 3)
        e("s_mov_b64 exec, 0x%x", (1 << nlines) - 1)
        e("global_load_dword v%d, v%d, s[%d:%d] sc1", vreg, vadr, P_WS, P_WS + 1)
        e("s_mov_b64 exec, s[%d:%d]", S_T + 2, S_T + 3)
        a.label(skip)
    def poll_late(self, vreg, vadr, nlines, target):
        e = self.e; a = self.a
        skip = a.newlabel("pl"); loop = a.newlabel("cl"); done = a.newlabel("cd")
        e("s_cmp_eq_u32 s%d, 0", S_W)
        e("s_cbranch_scc0 %s", skip)
        e("s_mov_b64 s[%d:%d], exec", S_T + 2, S_T + 3)
        e("s_mov_b64 exec, 0x%x", (1 << nlines) - 1)
        e("s_mov_b32 s%d, 0", S_T + 1)
        e("s_waitcnt vmcnt(0)")
        a.label(loop)
        e("v_cmp_gt_u32 vcc, %d, v%d", target, vreg)
        e("s_nop 1")
        e("s_cmp_eq_u64 vcc, 0")
        e("s_cbranch_scc1 %s", done)
        e("global_load_dword v%d, v%d, s[%d:%d] sc1", vreg, vadr, P_WS, P_WS + 1)
        e("s_waitcnt vmcnt(0)")
        e("s_add_u32 s%d, s%d, 1", S_T + 1, S_T + 1)
        e("s_cmp_lt_u32 s%d, 0x200000", S_T + 1)
        e("s_cbranch_scc1 %s", loop)
        a.label(done)
        e("s_mov_b64 exec, s[%d:%d]", S_T + 2, S_T + 3)
        a.label(skip)

    def garrive(self, line0):
        e = self.e; a = self.a
        skip = a.newlabel("ga")
        e("s_cmp_eq_u32 s%d, 0", S_W)
        e("s_cbranch_scc0 %s", skip)
        e("s_and_b32 s%d, s2, 15", S_T)
        e("v_lshlrev_b32 v29, 4, v%d", V_LANE)
        e("v_add_u32 v29, s%d, v29", S_T)
        e("v_lshlrev_b32 v29, 8, v29")
        e("v_add_u32 v29, 0x%x, v29", L.FLAGS + line0 * 256)
        e("v_mov_b32 v30, 1")
        e("s_mov_b64 s[%d:%d], exec", S_T + 2, S_T + 3)
        e("s_mov_b64 exec, 15")
        e("global_atomic_add v29, v30, s[%d:%d] sc1", P_WS, P_WS + 1)
        e("s_mov_b64 exec, s[%d:%d]", S_T + 2, S_T + 3)
        a.label(skip)
    def gpoll_addr(self, vadr, line0):
        e = self.e
        e("s_lshr_b32 s%d, s2, 4", S_T)
        e("s_and_b32 s%d, s%d, 3", S_T, S_T)
        e("s_lshl_b32 s%d, s%d, 4", S_T, S_T)
        e("v_add_u32 v%d, s%d, v%d", vadr, S_T, V_LANE)
        e("v_lshlrev_b32 v%d, 8, v%d", vadr, vadr)
        e("v_add_u32 v%d, 0x%x, v%d", vadr, L.FLAGS + line0 * 256, vadr)
    def gpoll(self, line0, vreg=30, vadr=29, early=False, late=False):
        e = self.e; a = self.a
        if line0 in self.opt.get("nopoll", ()): return
        skip = a.newlabel("gp"); loop = a.newlabel("gl"); done = a.newlabel("gd")
        e("s_cmp_eq_u32 s%d, 0", S_W)
        e("s_cbranch_scc0 %s", skip)
        if not late: self.gpoll_addr(vadr, line0)
        e("s_mov_b64 s[%d:%d], exec", S_T + 2, S_T + 3)
        e("s_mov_b64 exec, 0xffff")
        if not late:
            e("global_load_dword v%d, v%d, s[%d:%d] sc1", vreg, vadr, P_WS, P_WS + 1)
        if not early:
            e("s_mov_b32 s%d, 0", S_T + 1)
            a.label(loop)
            e("s_waitcnt vmcnt(0)")
            e("v_cmp_gt_u32 vcc, 16, v%d", vreg)
            e("s_nop 1")
            e("s_cmp_eq_u64 vcc, 0")
            e("s_cbranch_scc1 %s", done)
            e("global_load_dword v%d, v%d, s[%d:%d] sc1", vreg, vadr, P_WS, P_WS + 1)
            e("s_add_u32 s%d, s%d, 1", S_T + 1, S_T + 1)
            e("s_cmp_lt_u32 s%d, 0x200000", S_T + 1)
            e("s_cbranch_scc1 %s", loop)
            e("s_waitcnt vmcnt(0)")
            a.label(done)
        e("s_mov_b64 exec, s[%d:%d]", S_T + 2, S_T + 3)
        a.label(skip)
```

```python
from core import *
pr = lambda r: "v[%d:%d]" % (r, r + 1)

LDS_COPY = 0
COPY_STRIDE = 4160
COPY_CH = 8 * COPY_STRIDE
LDS_T1, LDS_T2 = 0, 149504
LDS_UB = 66560
UB_CH = 4576
LDS_RAW = 75712
RAW_CH = 4128
LDS_WST = 83968

def setup(c):
    e = c.e; a = c.a
    e("s_cmp_ge_u32 s2, 256")
    e("s_cbranch_scc1 KEND")
    c.st.stamp("real0", real=True)
    c.st.stamp("start")
    e("s_load_dwordx8 s[4:11], s[0:1], 0")
    e("s_load_dwordx4 s[12:15], s[0:1], 32")
    e("s_load_dwordx8 s[16:23], s[0:1], 56")
    e("s_load_dwordx4 s[24:27], s[0:1], 88")
    e("s_load_dwordx2 s[28:29], s[0:1], 104")
    e("v_and_b32 v%d, 63, v0", V_LANE)
    e("v_lshrrev_b32 v29, 6, v0")
    e("v_and_b32 v%d, 15, v%d", V_L16, V_LANE)
    e("v_readfirstlane_b32 s%d, v29", S_W)
    e("v_lshrrev_b32 v%d, 4, v%d", V_G, V_LANE)
    e("s_and_b32 s%d, s2, 7", S_CG)
    e("s_lshr_b32 s%d, s2, 3", S_J)
    e("s_lshr_b32 s%d, s%d, 1", S_MB, S_CG)
    e("s_lshl_b32 s%d, s%d, 3", S_MB, S_MB)
    e("s_and_b32 s%d, s%d, 7", S_T, S_J)
    e("s_add_u32 s%d, s%d, s%d", S_MB, S_MB, S_T)
    e("s_and_b32 s%d, s%d, 1", S_NB, S_CG)
    e("s_lshl_b32 s%d, s%d, 2", S_NB, S_NB)
    e("s_lshr_b32 s%d, s%d, 3", S_T, S_J)
    e("s_add_u32 s%d, s%d, s%d", S_NB, S_NB, S_T)
    e("s_and_b32 s%d, s%d, 7", S_ROT, S_MB)
    e("s_lshl_b32 s%d, s%d, 1", S_ROT, S_ROT)
    e("s_lshl_b32 s%d, s%d, 1", S_ROT5, S_NB)
    e("s_add_u32 s%d, s%d, s%d", S_ROT5, S_ROT5, S_MB)
    e("s_mul_i32 s%d, s%d, 9363", S_T, S_ROT5)
    e("s_lshr_b32 s%d, s%d, 16", S_T, S_T)
    e("s_mul_i32 s%d, s%d, 7", S_T, S_T)
    e("s_sub_u32 s%d, s%d, s%d", S_ROT5, S_ROT5, S_T)
    e("s_mov_b32 s%d, s%d", S_ROTZ, S_ROT)
    if not c.opt.get("rotz", 0): e("s_mov_b32 s%d, 0", S_ROTZ)
    if not c.opt.get("rot", 0): e("s_mov_b32 s%d, 0", S_ROT)
    if not c.opt.get("rot5", 0): e("s_mov_b32 s%d, 0", S_ROT5)
    e("s_waitcnt lgkmcnt(0)")
    c.srd(R_WS, P_WS, L.WS_USED)

def bootstrap_a(c):
    e = c.e; a = c.a
    skip = a.newlabel("boot")
    e("s_cmp_eq_u32 s2, 0")
    e("s_cbranch_scc0 %s", skip)
    e("s_cmp_eq_u32 s%d, 3", S_W)
    e("s_cbranch_scc0 %s", skip)
    e("v_lshlrev_b32 v29, 8, v%d", V_LANE)
    e("v_add_u32 v29, 0x%x, v29", L.FLAGS)
    e("v_mov_b32 v30, 0")
    for i in range(4):
        e("global_store_dword v29, v30, s[%d:%d] sc1", P_WS, P_WS + 1)
        if i < 3: e("v_add_u32 v29, 0x4000, v29")
    a.label(skip)

def bootstrap_b(c):
    e = c.e; a = c.a
    skip = a.newlabel("boot")
    e("s_cmp_eq_u32 s2, 0")
    e("s_cbranch_scc0 %s", skip)
    e("s_cmp_eq_u32 s%d, 3", S_W)
    e("s_cbranch_scc0 %s", skip)
    e("s_waitcnt vmcnt(%d)", len(c.vm.q))
    e("v_mov_b32 v29, 0")
    e("v_mov_b32 v30, 1")
    e("s_mov_b64 s[%d:%d], exec", S_T + 2, S_T + 3)
    e("s_mov_b64 exec, 1")
    e("global_store_dword v29, v30, s[%d:%d] sc1", P_DBG, P_DBG + 1)
    e("s_mov_b64 exec, s[%d:%d]", S_T + 2, S_T + 3)
    a.label(skip)

V_BOOT = 31
def boot_flag_issue(c):
    c.e("v_mov_b32 v%d, 0", V_BOOT)
    c.vm.issue("global_load_dword v%d, v%d, s[%d:%d] sc1" % (V_BOOT, V_BOOT, P_DBG, P_DBG + 1), "boot")

def boot_flag_check(c):
    e = c.e; a = c.a
    skip = a.newlabel("wb"); loop = a.newlabel("wbl"); done = a.newlabel("wbd")
    c.vm.wait("boot")
    e("s_cmp_eq_u32 s%d, 0", S_W)
    e("s_cbranch_scc0 %s", skip)
    e("v_readfirstlane_b32 s%d, v%d", S_T, V_BOOT)
    e("s_mov_b32 s%d, 0", S_T + 1)
    e("s_nop 3")
    e("s_cmp_lg_u32 s%d, 0", S_T)
    e("s_cbranch_scc1 %s", done)
    e("v_mov_b32 v29, 0")
    a.label(loop)
    e("global_load_dword v30, v29, s[%d:%d] sc1", P_DBG, P_DBG + 1)
    e("s_waitcnt vmcnt(0)")
    e("v_readfirstlane_b32 s%d, v30", S_T)
    e("s_nop 3")
    e("s_cmp_lg_u32 s%d, 0", S_T)
    e("s_cbranch_scc1 %s", done)
    e("s_add_u32 s%d, s%d, 1", S_T + 1, S_T + 1)
    e("s_cmp_lt_u32 s%d, 0x200000", S_T + 1)
    e("s_cbranch_scc1 %s", loop)
    a.label(done)
    a.label(skip)

def p1_issue(c):
    e = c.e
    VK, VV, VX, VW, VS = 32, 52, 60, 68, 84
    VO = 92
    e("v_and_b32 v%d, 7, v0", VO)
    e("v_lshrrev_b32 v%d, 3, v0", VO + 1)
    e("s_lshl_b32 s%d, s%d, 16", S_T, S_J)
    e("s_lshl_b32 s%d, s%d, 7", S_T + 1, S_CG)
    e("s_add_u32 s%d, s%d, s%d", S_T, S_T, S_T + 1)
    e("v_lshlrev_b32 v%d, 11, v%d", VO + 2, VO + 1)
    e("v_lshl_add_u32 v%d, v%d, 4, v%d", VO + 2, VO, VO + 2)
    e("v_add_u32 v%d, s%d, v%d", VO + 2, S_T, VO + 2)
    c.srd(R_A, P_SHK, 4096)
    e("s_lshl_b32 s%d, s%d, 9", S_T, S_CG)
    e("v_lshlrev_b32 v%d, 6, v%d", VO + 6, VO)
    e("v_add_u32 v%d, s%d, v%d", VO + 6, S_T, VO + 6)
    c.srd(R_B, P_K, 2 << 20)
    c.srd(R_C, P_V, 2 << 20)
    for i in range(3):
        e("v_subrev_u32 v%d, %d, v%d", VO + 3 + i, (3 - i) * 1024, VO + 2)
    c.bload(VK + 12, 4, VO + 2, R_B, None, 0, "p1k", c.opt.get("nt", ""))
    c.bload(VK + 16, 4, VO + 2, R_B, None, 1024, "p1k", c.opt.get("nt", ""))
    c.bload(VV, 4, VO + 2, R_C, None, 0, "p1v", c.opt.get("nt", ""))
    c.bload(VV + 4, 4, VO + 2, R_C, None, 1024, "p1v", c.opt.get("nt", ""))
    for i in range(3):
        c.bload(VK + 4 * i, 4, VO + 3 + i, R_B, None, 0, "p1k", c.opt.get("nt", ""))
    for i in range(4):
        c.bload(VW + 4 * i, 4, VO + 6, R_A, None, 16 * i, "p1w")

def p1_issue_x(c):
    e = c.e
    VX, VS = 60, 84
    VO = 92
    e("v_lshlrev_b32 v%d, 4, v%d", VO + 7, V_LANE)
    c.srd(R_C, P_Q, 2 << 20)
    c.bload(VX, 4, VO + 2, R_C, None, 0, "p1x", c.opt.get("nt", ""))
    c.bload(VX + 4, 4, VO + 2, R_C, None, 1024, "p1x", c.opt.get("nt", ""))
    e("s_lshl_b32 s%d, s2, 3", S_T)
    e("s_lshl_b32 s%d, s%d, 1", S_T + 1, S_W)
    e("s_add_u32 s%d, s%d, s%d", S_T, S_T, S_T + 1)
    e("s_lshl_b32 s%d, s%d, 10", S_T, S_T)
    c.bload(VS, 4, VO + 7, R_C, S_T, 0, "p1s", c.opt.get("nt", ""))
    c.bload(VS + 4, 4, VO + 7, R_C, S_T, 1024, "p1s", c.opt.get("nt", ""))

def p1_issue_raw(c):
    e = c.e
    VO = 92
    e("v_lshlrev_b32 v%d, 4, v%d", VO + 7, V_LANE)
    c.srd(R_B, P_SSM, 2 << 20)
    e("s_lshl_b32 s%d, s%d, 6", S_T, S_CG)
    e("s_lshl_b32 s%d, s%d, 1", S_T + 1, S_J)
    e("s_add_u32 s%d, s%d, s%d", S_T, S_T, S_T + 1)
    e("s_lshr_b32 s%d, s%d, 1", S_T + 1, S_W)
    e("s_add_u32 s%d, s%d, s%d", S_T, S_T, S_T + 1)
    e("s_lshl_b32 s%d, s%d, 12", S_T, S_T)
    e("s_and_b32 s%d, s%d, 1", S_T + 2, S_W)
    e("s_lshl_b32 s%d, s%d, 11", S_T + 2, S_T + 2)
    e("s_add_u32 s%d, s%d, s%d", S_T, S_T, S_T + 2)
    e("s_mul_i32 s%d, s%d, %d", S_T + 1, S_T + 1, RAW_CH)
    e("s_add_u32 s%d, s%d, s%d", S_T + 1, S_T + 1, S_T + 2)
    c.dma(VO + 7, R_B, S_T, S_T + 1, LDS_RAW + 32, "raw", c.opt.get("nt", ""))
    e("s_add_u32 s%d, s%d, 1024", S_T, S_T)
    c.dma(VO + 7, R_B, S_T, S_T + 1, LDS_RAW + 32 + 1024, "raw", c.opt.get("nt", ""))
    e("v_mov_b32 v%d, 0", VO + 8)
    e("v_mov_b32 v%d, 0", VO + 9)
    e("v_lshrrev_b32 v%d, 2, v0", VO + 10)
    e("v_mul_u32_u24 v%d, %d, v%d", VO + 10, RAW_CH, VO + 10)
    e("v_and_b32 v%d, 3, v0", VO + 11)
    e("v_lshl_add_u32 v%d, v%d, 3, v%d", VO + 10, VO + 11, VO + 10)
    e("v_add_u32 v%d, 0x%x, v%d", VO + 10, LDS_RAW, VO + 10)
    e("v_cmp_gt_u32 vcc, 8, v0")
    e("s_and_saveexec_b64 s[%d:%d], vcc", S_T + 2, S_T + 3)
    c.lg.issue("ds_write_b64 v%d, v[%d:%d]" % (VO + 10, VO + 8, VO + 9))
    e("s_mov_b64 exec, s[%d:%d]", S_T + 2, S_T + 3)
    skip = c.a.newlabel("ubz")
    e("s_cmp_lt_u32 s%d, 2", S_W)
    e("s_cbranch_scc0 %s", skip)
    e("s_mul_i32 s%d, s%d, %d", S_T, S_W, UB_CH)
    e("s_add_u32 s%d, s%d, 0x%x", S_T, S_T, LDS_UB + 4096)
    e("v_lshlrev_b32 v%d, 3, v%d", VO + 10, V_LANE)
    e("v_add_u32 v%d, s%d, v%d", VO + 10, S_T, VO + 10)
    e("v_cmp_gt_u32 vcc, 60, v%d", V_LANE)
    e("s_and_saveexec_b64 s[%d:%d], vcc", S_T + 2, S_T + 3)
    e("ds_write_b64 v%d, v[%d:%d]", VO + 10, VO + 8, VO + 9)
    e("s_mov_b64 exec, s[%d:%d]", S_T + 2, S_T + 3)
    c.a.label(skip)

def p1_kv(c, mid=None):
    e = c.e
    VK, VV, VX, VW, VS = 32, 52, 60, 68, 84
    VO = 92
    KF = 104
    WF = 144
    KS = 176
    VF = 192
    PK = 208
    AD = 224
    c.vm.wait("p1w")
    c.fine("d_loaded")
    if mid: mid()
    for i in range(5):
        for d in range(4):
            e("v_lshlrev_b32 v%d, 16, v%d", KF + 8 * i + 2 * d, VK + 4 * i + d)
            e("v_and_b32 v%d, 0xffff0000, v%d", KF + 8 * i + 2 * d + 1, VK + 4 * i + d)
    for ch in range(8):
        for jj in range(2):
            e("v_lshlrev_b32 v%d, 16, v%d", WF + 8 * (2 * jj) + ch, VW + 2 * ch + jj)
            e("v_and_b32 v%d, 0xffff0000, v%d", WF + 8 * (2 * jj + 1) + ch, VW + 2 * ch + jj)
    for i in range(2):
        for d in range(4):
            e("v_lshlrev_b32 v%d, 16, v%d", VF + 8 * i + 2 * d, VV + 4 * i + d)
            e("v_and_b32 v%d, 0xffff0000, v%d", VF + 8 * i + 2 * d + 1, VV + 4 * i + d)
    for i in range(2):
        for j in range(4):
            for q in range(4):
                dst = KS + 8 * i + 2 * q
                ksrc = KF + 8 * (i + 3 - j) + 2 * q
                wsrc = WF + 8 * j + 2 * q
                if j == 0: e("v_pk_mul_f32 %s, %s, %s", pr(dst), pr(ksrc), pr(wsrc))
                else: e("v_pk_fma_f32 %s, %s, %s, %s", pr(dst), pr(ksrc), pr(wsrc), pr(dst))
    for i in range(2):
        for q in range(4):
            dst = KS + 8 * i + 2 * q
            e("v_pk_mul_f32 %s, %s, %s", pr(dst), pr(dst), pr(VF + 8 * i + 2 * q))
    for ch in range(8):
        e("v_cvt_pk_bf16_f32 v%d, v%d, v%d", PK + ch, KS + 8 + ch, KS + ch)
    e("v_lshlrev_b32 v%d, 2, v%d", AD + 2, VO)
    e("v_xor_b32 v%d, v%d, v%d", AD + 1, VO + 1, AD + 2)
    e("v_sub_u32 v%d, 31, v%d", AD, VO + 1)
    e("v_xor_b32 v%d, v%d, v%d", AD, AD, AD + 2)
    e("v_lshlrev_b32 v%d, 10, v%d", AD + 2, VO)
    e("v_lshl_add_u32 v%d, v%d, 2, v%d", AD, AD, AD + 2)
    e("v_lshl_add_u32 v%d, v%d, 2, v%d", AD + 1, AD + 1, AD + 2)
    for ch in range(8):
        c.lg.issue("ds_write_b32 v%d, v%d offset:%d" % (AD, PK + ch, LDS_T1 + ch * 128))
    c.lg.wait_all()
    e("s_barrier")
    c.fine("d_kv")
    RD = 128
    T = 232
    e("v_lshrrev_b32 v%d, 3, v0", T)
    e("v_lshrrev_b32 v%d, 3, v%d", T + 1, T)
    e("v_and_b32 v%d, 7, v0", T + 2)
    e("v_xor_b32 v%d, v%d, v%d", T + 3, T + 2, T + 1)
    e("v_xor_b32 v%d, 4, v%d", T + 4, T + 3)
    e("v_lshlrev_b32 v%d, 7, v%d", T + 5, T)
    e("v_lshl_add_u32 v%d, v%d, 4, v%d", T + 3, T + 3, T + 5)
    e("v_lshl_add_u32 v%d, v%d, 4, v%d", T + 4, T + 4, T + 5)
    c.lg.issue("ds_read_b128 v[%d:%d], v%d offset:%d" % (RD, RD + 3, T + 3, LDS_T1), "a")
    c.lg.issue("ds_read_b128 v[%d:%d], v%d offset:%d" % (RD + 4, RD + 7, T + 4, LDS_T1 + 4096), "b")
    e("v_lshlrev_b32 v%d, 12, v%d", T + 6, T)
    e("v_lshl_add_u32 v%d, v%d, 4, v%d", T + 6, T + 2, T + 6)
    e("v_add_u32 v%d, 0x20000, v%d", T + 7, T + 6)
    e("s_lshl_b32 s%d, s%d, 18", S_T, S_CG)
    e("s_lshl_b32 s%d, s%d, 7", S_T + 1, S_J)
    e("s_sub_u32 s%d, %d, s%d", S_T + 2, 1984 * 2, S_T + 1)
    e("s_add_u32 s%d, s%d, s%d", S_T + 2, S_T + 2, S_T)
    e("s_add_u32 s%d, s%d, 0x%x", S_T + 2, S_T + 2, L.UREV)
    c.lg.wait("a"); c.bstore(RD, 4, T + 6, R_WS, S_T + 2, 0, "ust", "sc1")
    c.lg.wait("b"); c.bstore(RD + 4, 4, T + 7, R_WS, S_T + 2, 0, "ust", "sc1")

def p1_x(c):
    e = c.e
    VK, VV, VX, VW, VS = 32, 52, 60, 68, 84
    VO = 92
    KF = 104
    WF = 144
    KS = 176
    VF = 192
    PK = 208
    AD = 224
    c.vm.wait("p1x", c.opt.get("nt", ""))
    e("s_mov_b32 s%d, 0x05040100", S_T)
    e("s_mov_b32 s%d, 0x07060302", S_T + 1)
    for ch in range(8):
        e("v_perm_b32 v%d, v%d, v%d, s%d", PK + 8 + ch, VX + 4 + ch // 2, VX + ch // 2, S_T + (ch & 1))
    e("v_lshlrev_b32 v%d, 2, v%d", AD + 2, VO)
    e("v_xor_b32 v%d, v%d, v%d", AD + 1, VO + 1, AD + 2)
    e("v_lshlrev_b32 v%d, 10, v%d", AD + 2, VO)
    e("v_lshl_add_u32 v%d, v%d, 2, v%d", AD + 1, AD + 1, AD + 2)
    e("v_add_u32 v%d, 0x%x, v%d", AD + 1, LDS_T2, AD + 1)
    for ch in range(8):
        c.lg.issue("ds_write_b32 v%d, v%d offset:%d" % (AD + 1, PK + 8 + ch, ch * 128))
    c.vm.wait("p1s", c.opt.get("nt", ""))
    SF = 104
    SA = 120
    for i in range(2):
        for d in range(4):
            e("v_lshlrev_b32 v%d, 16, v%d", SF + 8 * i + 2 * d, VS + 4 * i + d)
            e("v_and_b32 v%d, 0xffff0000, v%d", SF + 8 * i + 2 * d + 1, VS + 4 * i + d)
    for i in range(2):
        e("v_pk_add_f32 %s, %s, %s", pr(SA + 4 * i), pr(SF + 8 * i), pr(SF + 8 * i + 2))
        e("v_pk_add_f32 %s, %s, %s", pr(SA + 4 * i + 2), pr(SF + 8 * i + 4), pr(SF + 8 * i + 6))
    for i in range(2):
        e("v_pk_add_f32 %s, %s, %s", pr(SA + 4 * i), pr(SA + 4 * i), pr(SA + 4 * i + 2))
    for i in range(2):
        e("v_add_f32 v%d, v%d, v%d", SA + 4 * i, SA + 4 * i, SA + 4 * i + 1)
    def wave_sum2(r0, r1, s0, s1):
        for dpp in ("row_shr:1", "row_shr:2", "row_shr:4", "row_shr:8"):
            c.nop(1)
            e("v_add_f32_dpp v%d, v%d, v%d %s row_mask:0xf bank_mask:0xf bound_ctrl:0", r0, r0, r0, dpp)
            e("v_add_f32_dpp v%d, v%d, v%d %s row_mask:0xf bank_mask:0xf bound_ctrl:0", r1, r1, r1, dpp)
        for dpp, m in (("row_bcast:15", "0xa"), ("row_bcast:31", "0xc")):
            c.nop(1)
            e("v_add_f32_dpp v%d, v%d, v%d %s row_mask:%s bank_mask:0xf", r0, r0, r0, dpp, m)
            e("v_add_f32_dpp v%d, v%d, v%d %s row_mask:%s bank_mask:0xf", r1, r1, r1, dpp, m)
        c.nop(1)
        e("v_readlane_b32 s%d, v%d, 63", s0, r0)
        e("v_readlane_b32 s%d, v%d, 63", s1, r1)
    wave_sum2(SA, SA + 4, S_T + 4, S_T + 5)
    c.nop(2)
    e("v_mov_b32 v%d, 0x3b000000", SA + 8)
    e("v_mul_f32 v%d, s%d, v%d", SA + 9, S_T + 4, SA + 8)
    e("v_mul_f32 v%d, s%d, v%d", SA + 10, S_T + 5, SA + 8)
    for i in range(2):
        for q in range(8):
            e("v_sub_f32 v%d, v%d, v%d", SF + 8 * i + q, SF + 8 * i + q, SA + 9 + i)
    for i in range(2):
        e("v_pk_mul_f32 %s, %s, %s", pr(SA + 4 * i), pr(SF + 8 * i), pr(SF + 8 * i))
        for q in range(1, 4):
            e("v_pk_fma_f32 %s, %s, %s, %s", pr(SA + 4 * i), pr(SF + 8 * i + 2 * q), pr(SF + 8 * i + 2 * q), pr(SA + 4 * i))
    for i in range(2):
        e("v_add_f32 v%d, v%d, v%d", SA + 4 * i, SA + 4 * i, SA + 4 * i + 1)
    wave_sum2(SA, SA + 4, S_T + 4, S_T + 5)
    c.nop(2)
    e("v_mov_b32 v%d, 0x3727c5ac", SA + 11)
    e("v_fma_f32 v%d, s%d, v%d, v%d", SA, S_T + 4, SA + 8, SA + 11)
    e("v_fma_f32 v%d, s%d, v%d, v%d", SA + 2, S_T + 5, SA + 8, SA + 11)
    e("v_rsq_f32 v%d, v%d", SA, SA)
    e("v_rsq_f32 v%d, v%d", SA + 2, SA + 2)
    c.nop(1)
    e("v_mul_f32 v%d, v%d, v%d", SA + 1, SA + 9, SA)
    e("v_mul_f32 v%d, v%d, v%d", SA + 3, SA + 10, SA + 2)
    e("v_sub_f32 v%d, 0, v%d", SA + 1, SA + 1)
    e("v_sub_f32 v%d, 0, v%d", SA + 3, SA + 3)
    e("s_lshl_b32 s%d, s%d, 4", S_T, S_W)
    e("s_add_u32 s%d, s%d, 0x%x", S_T, S_T, LDS_T2 + 8192)
    e("v_mov_b32 v%d, s%d", SA + 12, S_T)
    e("s_mov_b64 s[%d:%d], exec", S_T + 2, S_T + 3)
    e("s_mov_b64 exec, 1")
    c.lg.issue("ds_write_b128 v%d, v[%d:%d]" % (SA + 12, SA, SA + 3))
    e("s_mov_b64 exec, s[%d:%d]", S_T + 2, S_T + 3)
    skip = c.a.newlabel("zs")
    e("s_cmp_eq_u32 s%d, 1", S_W)
    e("s_cbranch_scc0 %s", skip)
    e("s_lshl_b32 s%d, s%d, 3", S_T, S_MB)
    e("s_add_u32 s%d, s%d, s%d", S_T, S_T, S_NB)
    e("s_lshl_b32 s%d, s%d, 9", S_T, S_T)
    e("s_add_u32 s%d, s%d, 0x%x", S_T, S_T, L.ZST)
    e("v_lshlrev_b32 v%d, 3, v%d", SA + 12, V_LANE)
    e("v_mov_b32 v%d, 0", SA + 14)
    e("v_mov_b32 v%d, -1.0", SA + 15)
    e("buffer_store_dwordx2 v[%d:%d], v%d, s[%d:%d], s%d offen sc1", SA + 14, SA + 15, SA + 12, R_WS, R_WS + 3, S_T)
    c.a.label(skip)

def p1_x_store(c):
    e = c.e
    RD = 128; T = 232
    e("v_add_u32 v%d, 0x%x, v%d", T + 3, LDS_T2, T + 3)
    e("v_add_u32 v%d, 0x%x, v%d", T + 4, LDS_T2 + 4096, T + 4)
    c.lg.issue("ds_read_b128 v[%d:%d], v%d" % (RD + 8, RD + 11, T + 3), "c")
    c.lg.issue("ds_read_b128 v[%d:%d], v%d" % (RD + 12, RD + 15, T + 4), "d")
    e("s_lshl_b32 s%d, s%d, 18", S_T, S_CG)
    e("s_lshl_b32 s%d, s%d, 7", S_T + 1, S_J)
    e("s_add_u32 s%d, s%d, s%d", S_T + 3, S_T, S_T + 1)
    e("s_add_u32 s%d, s%d, 0x%x", S_T + 3, S_T + 3, L.XT)
    c.lg.wait("c"); c.bstore(RD + 8, 4, T + 6, R_WS, S_T + 3, 0, "xst", "sc1")
    c.lg.wait("d"); c.bstore(RD + 12, 4, T + 7, R_WS, S_T + 3, 0, "xst", "sc1")
    skip = c.a.newlabel("sst")
    e("s_cmp_eq_u32 s%d, 2", S_W)
    e("s_cbranch_scc0 %s", skip)
    e("v_lshlrev_b32 v%d, 4, v%d", RD, V_LANE)
    e("v_add_u32 v%d, 0x%x, v%d", RD + 1, LDS_T2 + 8192, RD)
    e("ds_read_b128 v[%d:%d], v%d", RD + 4, RD + 7, RD + 1)
    e("s_waitcnt lgkmcnt(0)")
    e("v_cmp_gt_u32 vcc, 4, v%d", V_LANE)
    e("s_nop 1")
    for r in range(4): e("v_cndmask_b32 v%d, 0, v%d, vcc", RD + 4 + r, RD + 4 + r)
    e("s_lshl_b32 s%d, s2, 7", S_T)
    e("s_add_u32 s%d, s%d, 0x%x", S_T, S_T, L.STAT1)
    e("s_mov_b64 s[%d:%d], exec", S_T + 2, S_T + 3)
    e("s_mov_b64 exec, 0xff")
    e("buffer_store_dwordx4 v[%d:%d], v%d, s[%d:%d], s%d offen sc1", RD + 4, RD + 7, RD, R_WS, R_WS + 3, S_T)
    e("s_mov_b64 exec, s[%d:%d]", S_T + 2, S_T + 3)
    c.a.label(skip)
    c.lg.q = []

def toeplitz(c):
    e = c.e
    AD = 104
    e("v_lshrrev_b32 v%d, 7, v0", AD)
    e("v_and_b32 v%d, 127, v0", AD + 1)
    e("v_mul_u32_u24 v%d, %d, v%d", AD + 2, RAW_CH, AD)
    e("v_lshl_add_u32 v%d, v%d, 4, v%d", AD + 2, AD + 1, AD + 2)
    e("v_add_u32 v%d, 0x%x, v%d", AD + 2, LDS_RAW, AD + 2)
    e("v_mul_u32_u24 v%d, %d, v%d", AD + 3, COPY_CH, AD)
    e("v_lshl_add_u32 v%d, v%d, 4, v%d", AD + 3, AD + 1, AD + 3)
    sets = [(112, 120, 128, 136), (144, 152, 160, 168), (176, 184, 192, 200)]
    def rd(k, roff):
        R = sets[k][0]
        c.lg.issue("ds_read_b128 v[%d:%d], v%d offset:%d" % (R, R + 3, AD + 2, roff), "r%d" % k)
        c.lg.issue("ds_read_b128 v[%d:%d], v%d offset:%d" % (R + 4, R + 7, AD + 2, roff + 16), "r%d" % k)
    def build(k, woff):
        R, O, AB, AO = sets[k]
        c.lg.wait("r%d" % k)
        for i in range(7):
            e("v_alignbit_b32 v%d, v%d, v%d, 16", AB + i, R + i + 1, R + i)
        for i in range(6):
            e("v_alignbit_b32 v%d, v%d, v%d, 16", AO + i, R + i + 2, R + i + 1)
        for i in range(6):
            e("v_mov_b32 v%d, v%d", O + i, R + i + 1)
        src = {0: AB, 1: O, 2: AO, 3: R + 2, 4: AB + 2, 5: O + 2, 6: AO + 2, 7: R + 4}
        for sft in (3, 7, 0, 4, 1, 5, 2, 6):
            c.lg.issue("ds_write_b128 v%d, v[%d:%d] offset:%d" % (AD + 3, src[sft], src[sft] + 3, LDS_COPY + sft * COPY_STRIDE + woff), "w")
    rd(0, 0); rd(1, 2048); rd(2, 4096)
    build(0, 0)
    build(1, 2048)
    e("v_cmp_eq_u32 vcc, 0, v%d", AD + 1)
    e("s_and_saveexec_b64 s[%d:%d], vcc", S_T + 2, S_T + 3)
    build(2, 4096)
    e("s_mov_b64 exec, s[%d:%d]", S_T + 2, S_T + 3)

P2_X, P2_ST = 200, 208
S_D = 56
def p2_issue_u(c):
    e = c.e
    VO = 32
    e("s_lshl_b32 s%d, s%d, 6", S_T, S_CG)
    e("s_lshl_b32 s%d, s%d, 1", S_T + 1, S_J)
    e("s_add_u32 s%d, s%d, s%d", S_T, S_T, S_T + 1)
    e("s_lshr_b32 s%d, s%d, 1", S_T + 1, S_W)
    e("s_add_u32 s%d, s%d, s%d", S_T, S_T, S_T + 1)
    e("s_lshl_b32 s57, s%d, 12", S_T)
    e("s_and_b32 s%d, s%d, 1", S_T + 2, S_W)
    e("s_lshl_b32 s%d, s%d, 11", S_T + 2, S_T + 2)
    e("s_add_u32 s%d, s57, s%d", S_T + 3, S_T + 2)
    e("s_add_u32 s%d, s%d, 0x%x", S_T + 3, S_T + 3, L.UREV)
    e("s_mul_i32 s%d, s%d, %d", S_T + 1, S_T + 1, UB_CH)
    e("s_add_u32 s%d, s%d, s%d", S_T + 1, S_T + 1, S_T + 2)
    e("v_lshlrev_b32 v%d, 4, v%d", VO, V_LANE)
    c.dma(VO, R_WS, S_T + 3, S_T + 1, LDS_UB, "ub", "sc1")
    e("s_add_u32 s%d, s%d, 1024", S_T + 3, S_T + 3)
    c.dma(VO, R_WS, S_T + 3, S_T + 1, LDS_UB + 1024, "ub", "sc1")

def load_D_issue(c):
    e = c.e
    e("s_lshl_b32 s%d, s%d, 6", S_T, S_CG)
    e("s_lshl_b32 s%d, s%d, 1", S_T + 1, S_J)
    e("s_add_u32 s%d, s%d, s%d", S_T, S_T, S_T + 1)
    e("s_lshl_b32 s%d, s%d, 1", S_T, S_T)
    e("s_load_dword s%d, s[%d:%d], s%d", S_D, P_D, P_D + 1, S_T)

def load_D_finish(c):
    e = c.e
    c.lg.wait_all()
    e("s_lshl_b32 s%d, s%d, 16", S_T, S_D)
    e("s_and_b32 s%d, s%d, 0xffff0000", S_T + 1, S_D)
    e("s_cmp_lt_u32 s%d, 2", S_W)
    e("s_cselect_b32 s%d, s%d, s%d", S_D, S_T, S_T + 1)

LDS_ST = 98304
def p2_stats_ops(c):
    e = c.e
    e("v_lshlrev_b32 v33, 5, v%d", V_L16)
    e("v_lshl_add_u32 v33, v%d, 3, v33", V_G)
    e("s_and_b32 s%d, s%d, 1", S_T, S_W)
    e("s_lshl_b32 s60, s%d, 11", S_T)
    e("s_add_u32 s60, s60, s57")
    e("s_add_u32 s60, s60, 0x%x", L.XT)
    e("v_lshlrev_b32 v39, 4, v%d", V_LANE)
    e("s_lshl_b32 s61, s%d, 13", S_W)
    e("s_add_u32 s62, s61, 0x%x", L.STAT1)
    out = []
    for i in range(8):
        def f(i=i):
            c.e("s_add_u32 s%d, s62, %d", S_T, 1024 * i)
            c.dma(39, R_WS, S_T, 61, LDS_ST + 1024 * i, "stat", "sc1")
        out.append(f)
    for b in range(4):
        out.append(lambda b=b: c.bload(P2_X + 2 * b, 2, 33, R_WS, 60, 512 * b, "x", "sc1"))
    return out

def p2_stats_read(c):
    e = c.e
    e("v_lshlrev_b32 v39, 8, v%d", V_L16)
    e("v_lshrrev_b32 v38, 1, v%d", V_G)
    e("v_lshl_add_u32 v39, v38, 7, v39")
    e("v_and_b32 v38, 1, v%d", V_G)
    e("v_lshl_add_u32 v39, v38, 5, v39")
    e("s_and_b32 s%d, s%d, 1", S_T, S_W)
    e("s_lshl_b32 s%d, s%d, 14", S_T, S_T)
    e("s_add_u32 s%d, s%d, 0x%x", S_T, S_T, LDS_ST)
    e("v_add_u32 v39, s%d, v39", S_T)
    for b in range(4):
        c.lg.issue("ds_read_b128 v[%d:%d], v39 offset:%d" % (P2_ST + 8 * b, P2_ST + 8 * b + 3, 4096 * b), "st2")
        c.lg.issue("ds_read_b128 v[%d:%d], v39 offset:%d" % (P2_ST + 8 * b + 4, P2_ST + 8 * b + 7, 4096 * b + 16), "st2")

def p2_main(c, hooks=None, inter=None):
    e = c.e; hooks = hooks or {}; inter = inter or {}
    FR = [40, 104]
    ACC = 168
    VA, VB = 34, 35
    e("v_and_b32 v%d, 7, v%d", VA, V_LANE)
    e("v_mul_u32_u24 v%d, %d, v%d", VA, COPY_STRIDE, VA)
    e("v_bfe_u32 v%d, v%d, 3, 1", VB, V_LANE)
    e("v_add_u32 v%d, v%d, v%d", VB, VB, V_G)
    e("v_lshl_add_u32 v%d, v%d, 4, v%d", VA, VB, VA)
    e("s_lshr_b32 s%d, s%d, 1", S_T, S_W)
    e("s_and_b32 s%d, s%d, 1", S_T + 1, S_W)
    e("s_mul_i32 s%d, s%d, %d", S_T + 2, S_T, COPY_CH)
    e("s_lshl_b32 s%d, s%d, 8", S_T + 3, S_T + 1)
    e("s_add_u32 s%d, s%d, s%d", S_T + 2, S_T + 2, S_T + 3)
    e("v_add_u32 v%d, s%d, v%d", VA, S_T + 2, VA)
    e("s_mul_i32 s%d, s%d, %d", S_T + 2, S_T, UB_CH)
    e("s_add_u32 s%d, s%d, s%d", S_T + 2, S_T + 2, S_T + 3)
    e("s_add_u32 s%d, s%d, %d", S_T + 2, S_T + 2, LDS_UB + 480)
    e("v_lshlrev_b32 v%d, 4, v%d", VB, V_G)
    e("v_lshlrev_b32 v36, 5, v%d", V_L16)
    e("v_sub_u32 v%d, v%d, v36", VB, VB)
    e("v_add_u32 v%d, s%d, v%d", VB, S_T + 2, VB)
    def reads(i):
        f = FR[i & 1]; out = []
        for x in range(8):
            out.append("ds_read_b128 v[%d:%d], v%d offset:%d" % (f + 4 * x, f + 4 * x + 3, VA, LDS_COPY + 64 * (i + 8 * x)))
            out.append("ds_read_b128 v[%d:%d], v%d offset:%d" % (f + 32 + 4 * x, f + 32 + 4 * x + 3, VB, 64 * i + 512 * (7 - x)))
        return out
    for r in reads(0): c.lg.issue(r)
    for i in range(4):
        c.lg.wait_all()
        f = FR[i & 1]
        nxt = reads(i + 1) if i < 3 else []
        m = 0
        for aa in range(8):
            for b in range(aa, 8):
                cc = "0" if (i == 0 and aa == 0) else "v[%d:%d]" % (ACC + 4 * b, ACC + 4 * b + 3)
                e("v_mfma_f32_16x16x32_bf16 v[%d:%d], v[%d:%d], v[%d:%d], %s", ACC + 4 * b, ACC + 4 * b + 3,
                  f + 4 * aa, f + 4 * aa + 3, f + 32 + 4 * (b - aa), f + 32 + 4 * (b - aa) + 3, cc)
                if m % 2 == 1 and nxt: c.lg.issue(nxt.pop(0))
                if m % (3 if i == 0 else 4) == 0 and inter.get(i): inter[i].pop(0)()
                m += 1
        while nxt: c.lg.issue(nxt.pop(0))
        while inter.get(i): inter[i].pop(0)()
        if i in hooks: hooks[i]()

def p2_epilogue(c):
    e = c.e; a = c.a
    ACC = 168; FIN = 40; TMP = 56; VO = 36
    LDS_RED = 0
    c.vm.wait("stat")
    c.lg.wait_all()
    e("s_barrier")
    p2_stats_read(c)
    e("v_lshlrev_b32 v%d, 4, v%d", VO, V_LANE)
    e("s_lshl_b32 s%d, s%d, 12", S_T, S_W)
    e("v_add_u32 v%d, s%d, v%d", VO + 1, S_T, VO)
    e("s_xor_b32 s%d, s%d, 1", S_T + 1, S_W)
    e("s_lshl_b32 s%d, s%d, 12", S_T + 1, S_T + 1)
    e("v_add_u32 v%d, s%d, v%d", VO + 2, S_T + 1, VO)
    l1 = a.newlabel("hf1"); l2 = a.newlabel("hfd")
    e("s_and_b32 s%d, s%d, 1", S_T, S_W)
    e("s_cmp_eq_u32 s%d, 1", S_T)
    e("s_cbranch_scc1 %s", l1)
    for hf, lab in ((0, None), (1, l1)):
        if lab: a.label(lab)
        own = range(4 * hf, 4 * hf + 4); exp = range(4 * (1 - hf), 4 * (1 - hf) + 4)
        for x, b in enumerate(exp):
            e("ds_write_b128 v%d, v[%d:%d] offset:%d", VO + 1, ACC + 4 * b, ACC + 4 * b + 3, LDS_RED + 1024 * x)
        for x, b in enumerate(own):
            for r in range(4):
                e("v_mov_b32 v%d, v%d", FIN + 4 * x + r, ACC + 4 * b + r)
        if hf == 0: e("s_branch %s", l2)
    a.label(l2)
    c.bg(2)
    e("s_waitcnt lgkmcnt(0)")
    e("s_barrier")
    c.bg(2)
    for x in range(4):
        c.lg.issue("ds_read_b128 v[%d:%d], v%d offset:%d" % (TMP + 4 * x, TMP + 4 * x + 3, VO + 2, LDS_RED + 1024 * x), "red")
    e("s_lshr_b32 s%d, s%d, 1", S_T, S_W)
    e("s_mul_i32 s%d, s%d, %d", S_T, S_T, UB_CH)
    e("s_and_b32 s%d, s%d, 1", S_T + 1, S_W)
    e("s_lshl_b32 s%d, s%d, 11", S_T + 1, S_T + 1)
    e("s_sub_u32 s%d, s%d, s%d", S_T, S_T, S_T + 1)
    e("s_add_u32 s%d, s%d, %d", S_T, S_T, LDS_UB + 4088 - 1536)
    e("v_lshlrev_b32 v%d, 5, v%d", VO + 3, V_L16)
    e("v_lshl_add_u32 v%d, v%d, 3, v%d", VO + 3, V_G, VO + 3)
    e("v_sub_u32 v%d, s%d, v%d", VO + 3, S_T, VO + 3)
    U = 72
    for b in range(4):
        c.lg.issue("ds_read_b64 v[%d:%d], v%d offset:%d" % (U + 2 * b, U + 2 * b + 1, VO + 3, 512 * (3 - b)), "u")
    c.lg.wait("red")
    for x in range(4):
        for q in range(2):
            e("v_pk_add_f32 %s, %s, %s", pr(FIN + 4 * x + 2 * q), pr(FIN + 4 * x + 2 * q), pr(TMP + 4 * x + 2 * q))
    c.lg.wait("u")
    c.vm.wait("x")
    UF = 80; XF = 84; XN = 88; OUT = 96
    for b in range(4):
        e("v_and_b32 v%d, 0xffff0000, v%d", UF + 0, U + 2 * b + 1)
        e("v_lshlrev_b32 v%d, 16, v%d", UF + 1, U + 2 * b + 1)
        e("v_and_b32 v%d, 0xffff0000, v%d", UF + 2, U + 2 * b)
        e("v_lshlrev_b32 v%d, 16, v%d", UF + 3, U + 2 * b)
        c.bg(1)
        e("v_lshlrev_b32 v%d, 16, v%d", XF + 0, P2_X + 2 * b)
        e("v_and_b32 v%d, 0xffff0000, v%d", XF + 1, P2_X + 2 * b)
        e("v_lshlrev_b32 v%d, 16, v%d", XF + 2, P2_X + 2 * b + 1)
        e("v_and_b32 v%d, 0xffff0000, v%d", XF + 3, P2_X + 2 * b + 1)
        for r in range(4):
            e("v_fma_f32 v%d, s%d, v%d, v%d", FIN + 4 * b + r, S_D, UF + r, FIN + 4 * b + r)
        c.bg(1)
        for r in range(4):
            e("v_fma_f32 v%d, v%d, v%d, v%d", XN + r, P2_ST + 8 * b + 2 * r, XF + r, P2_ST + 8 * b + 2 * r + 1)
        for r in range(4):
            e("v_fma_f32 v%d, v%d, v%d, v%d", XN + r, XN + r, FIN + 4 * b + r, XF + r)
        e("v_cvt_pk_bf16_f32 v%d, v%d, v%d", OUT + 2 * b, XN, XN + 1)
        e("v_cvt_pk_bf16_f32 v%d, v%d, v%d", OUT + 2 * b + 1, XN + 2, XN + 3)
        c.bg(1)
    e("v_and_b32 v%d, 1, v%d", VO, V_G)
    e("v_lshlrev_b32 v%d, 9, v%d", VO, VO)
    e("v_lshl_add_u32 v%d, v%d, 5, v%d", VO, V_L16, VO)
    e("v_lshrrev_b32 v%d, 1, v%d", VO + 1, V_G)
    e("v_lshl_add_u32 v%d, v%d, 4, v%d", VO, VO + 1, VO)
    e("s_and_b32 s%d, s%d, 1", S_T, S_W)
    e("s_lshl_b32 s%d, s%d, 11", S_T, S_T)
    e("s_add_u32 s%d, s%d, s57", S_T, S_T)
    e("s_add_u32 s%d, s%d, 0x%x", S_T, S_T, L.HT)
    for p in range(2):
        o = OUT + 4 * p
        c.nop(2)
        e("v_permlane16_swap_b32 v%d, v%d", o, o + 2)
        e("v_permlane16_swap_b32 v%d, v%d", o + 1, o + 3)
        c.bstore(o, 4, VO, R_WS, S_T, 1024 * p, "st", "sc1")
```

```python
from core import *
import ph12

pr = lambda r: "v[%d:%d]" % (r, r + 1)
A0 = 256

LDS_WP = 83968
LDS_WOP = 83968 + 7168
def wpre_issue(c):
    e = c.e
    V = 240
    c.srd(R_A, P_WIN, 512 * 3584)
    e("s_and_b32 s%d, s2, 15", S_T)
    e("s_mul_i32 s%d, s%d, %d", S_T, S_T, 32 * 3584)
    e("s_lshr_b32 s%d, s2, 4", S_T + 1)
    e("s_mul_i32 s%d, s%d, 224", S_T + 1, S_T + 1)
    e("s_add_u32 s%d, s%d, s%d", S_T + 4, S_T, S_T + 1)
    for it in range(2):
        e("s_add_u32 s%d, s%d, %d", S_T, S_W, 4 * it)
        e("s_lshl_b32 s%d, s%d, 6", S_T + 1, S_T)
        e("v_add_u32 v%d, s%d, v%d", V, S_T + 1, V_LANE)
        e("v_mul_u32_u24 v%d, 4682, v%d", V + 1, V)
        e("v_lshrrev_b32 v%d, 16, v%d", V + 1, V + 1)
        e("v_mul_u32_u24 v%d, 14, v%d", V + 2, V + 1)
        e("v_sub_u32 v%d, v%d, v%d", V + 2, V, V + 2)
        e("v_mul_u32_u24 v%d, 3584, v%d", V + 1, V + 1)
        e("v_lshl_add_u32 v%d, v%d, 4, v%d", V + 1, V + 2, V + 1)
        e("v_cmp_gt_u32 vcc, 448, v%d", V)
        e("v_mov_b32 v%d, 0x40000000", V + 2)
        e("s_lshl_b32 s%d, s%d, 10", S_T + 1, S_T)
        e("v_cndmask_b32 v%d, v%d, v%d, vcc", V + 3 + it, V + 2, V + 1)
        e("s_cmp_eq_u32 s%d, 7", S_T)
        e("s_cselect_b32 s%d, 0x3000, s%d", S_T + 1, S_T + 1)
        c.dma(V + 3 + it, R_A, S_T + 4, S_T + 1, LDS_WP, "wp", c.opt.get("nt", ""))
    c.srd(R_B, P_WOUT, 896 * 1024)
    e("s_mul_i32 s%d, s2, 2341", S_T)
    e("s_lshr_b32 s%d, s%d, 16", S_T, S_T)
    e("s_mul_i32 s%d, s%d, 28", S_T + 1, S_T)
    e("s_sub_u32 s%d, s2, s%d", S_T + 1, S_T + 1)
    e("s_lshl_b32 s%d, s%d, 15", S_T + 2, S_T + 1)
    e("s_lshl_b32 s%d, s%d, 7", S_T + 3, S_T)
    e("s_add_u32 s%d, s%d, s%d", S_T + 2, S_T + 2, S_T + 3)
    e("s_lshl_b32 s%d, s%d, 13", S_T + 3, S_W)
    e("s_add_u32 s%d, s%d, s%d", S_T + 2, S_T + 2, S_T + 3)
    e("s_cmp_ge_u32 s2, 224")
    e("s_cselect_b32 s%d, 0x40000000, s%d", S_T + 2, S_T + 2)
    e("v_lshrrev_b32 v%d, 3, v%d", V, V_LANE)
    e("v_lshlrev_b32 v%d, 10, v%d", V, V)
    e("v_and_b32 v%d, 7, v%d", V + 1, V_LANE)
    e("v_lshlrev_b32 v%d, 1, v%d", V + 2, V_G)
    e("v_xor_b32 v%d, v%d, v%d", V + 1, V + 1, V + 2)
    e("v_lshl_add_u32 v%d, v%d, 4, v%d", V, V + 1, V)
    e("s_lshl_b32 s%d, s%d, 10", S_T + 3, S_W)
    c.dma(V, R_B, S_T + 2, S_T + 3, LDS_WOP, "wp", c.opt.get("nt", ""))

def wpre_store3(c):
    e = c.e; a = c.a
    V = 240; F = 176
    e("v_lshrrev_b32 v%d, 2, v%d", V, V_L16)
    e("v_lshl_add_u32 v%d, v%d, 2, v%d", V, V_G, V)
    e("v_mul_u32_u24 v%d, 224, v%d", V + 1, V)
    e("v_and_b32 v%d, 3, v%d", V + 2, V_LANE)
    e("v_lshl_add_u32 v%d, v%d, 3, v%d", V + 1, V + 2, V + 1)
    e("v_add_u32 v%d, 0x%x, v%d", V + 1, LDS_WP, V + 1)
    e("v_lshlrev_b32 v%d, 7, v%d", V + 2, V)
    e("v_and_b32 v%d, 1, v%d", V + 3, V_LANE)
    e("v_lshl_add_u32 v%d, v%d, 3, v%d", V + 2, V + 3, V + 2)
    e("v_bfe_u32 v%d, v%d, 1, 1", V + 3, V_LANE)
    e("v_lshl_add_u32 v%d, v%d, 4, v%d", V + 2, V + 3, V + 2)
    e("v_add_u32 v%d, 0x%x, v%d", V + 2, LDS_WOP, V + 2)
    e("v_and_b32 v%d, 1, v%d", V + 3, V_G)
    e("v_lshlrev_b32 v%d, 2, v%d", V + 3, V + 3)
    e("v_bfe_u32 v%d, v%d, 3, 1", V, V_LANE)
    e("v_lshl_add_u32 v%d, v%d, 1, v%d", V + 3, V, V + 3)
    e("v_lshlrev_b32 v%d, 4, v%d", V, V_LANE)
    e("s_lshr_b32 s52, s2, 4")
    e("s_mul_i32 s52, s52, 112")
    e("s_and_b32 s%d, s2, 15", S_T)
    e("s_add_u32 s52, s52, s%d", S_T)
    e("s_lshl_b32 s52, s52, 10")
    e("s_add_u32 s52, s52, 0x%x", L.WINF)
    e("s_mul_i32 s%d, s2, 2341", S_T)
    e("s_lshr_b32 s%d, s%d, 16", S_T, S_T)
    e("s_mul_i32 s%d, s%d, 28", S_T + 1, S_T)
    e("s_sub_u32 s%d, s2, s%d", S_T + 1, S_T + 1)
    e("s_mul_i32 s53, s%d, 112", S_T)
    e("s_add_u32 s53, s53, s%d", S_T + 1)
    e("s_lshl_b32 s53, s53, 10")
    e("s_add_u32 s53, s53, 0x%x", L.WOUTF)
    e("s_cmp_ge_u32 s2, 224")
    e("s_cselect_b32 s53, 0x40000000, s53")
    e("s_sub_u32 s54, s%d, 1", S_W)
    e("s_lshl_b32 s54, s54, 2")
    for sl in range(4):
        isw = a.newlabel("wq"); done = a.newlabel("wqd")
        f = F + 4 * sl
        e("s_add_u32 s55, s54, %d", sl)
        e("s_cmp_lt_u32 s55, 7")
        e("s_cbranch_scc1 %s", isw)
        e("s_sub_u32 s55, s55, 7")
        e("s_lshl_b32 s%d, s55, 1", S_T)
        e("v_xor_b32 v%d, s%d, v%d", V + 4, S_T, V + 3)
        e("v_lshl_add_u32 v%d, v%d, 4, v%d", V + 4, V + 4, V + 2)
        e("ds_read_b64_tr_b16 v[%d:%d], v%d", f, f + 1, V + 4)
        e("ds_read_b64_tr_b16 v[%d:%d], v%d offset:2048", f + 2, f + 3, V + 4)
        e("s_mul_i32 s%d, s55, %d", S_T, 28 * 1024)
        e("s_add_u32 s%d, s%d, s53", S_T, S_T)
        e("s_cmp_ge_u32 s55, 4")
        e("s_cselect_b32 s%d, 0x40000000, s%d", S_T, S_T)
        e("s_branch %s", done)
        a.label(isw)
        e("s_lshl_b32 s%d, s55, 5", S_T)
        e("v_add_u32 v%d, s%d, v%d", V + 4, S_T, V + 1)
        e("ds_read_b64_tr_b16 v[%d:%d], v%d", f, f + 1, V + 4)
        e("ds_read_b64_tr_b16 v[%d:%d], v%d offset:%d", f + 2, f + 3, V + 4, 16 * 224)
        e("s_lshl_b32 s%d, s55, 14", S_T)
        e("s_add_u32 s%d, s%d, s52", S_T, S_T)
        a.label(done)
        e("s_waitcnt lgkmcnt(0)")
        e("buffer_store_dwordx4 v[%d:%d], v%d, s[%d:%d], s%d offen sc1", f, f + 3, V, R_WS, R_WS + 3, S_T)

class WLoader:
    V0, V1 = 240, 241
    S0 = 58
    def __init__(self, c):
        self.c = c; self.issued = 0
    def setup(self):
        c = self.c; e = c.e
        e("v_lshlrev_b32 v%d, 4, v%d", self.V0, V_LANE)
        e("v_add_u32 v%d, 0x40000000, v%d", self.V1, self.V0)
        e("s_cmp_eq_u32 s%d, 3", S_W)
        e("s_cselect_b64 vcc, -1, 0")
        e("v_cndmask_b32 v%d, v%d, v%d, vcc", self.V1, self.V0, self.V1)
        e("s_mul_i32 s59, s%d, 7", S_NB)
        e("s_lshl_b32 s%d, s%d, 1", S_T, S_W)
        e("s_add_u32 s59, s59, s%d", S_T)
        e("s_lshl_b32 s59, s59, 14")
        e("s_add_u32 s59, s59, 0x%x", L.WINF)
        e("s_add_u32 s58, s59, %d", 56 * 16384)
    def loads(self, k0, k1):
        c = self.c; out = []
        for ks in range(k0, k1):
            for slot in range(4):
                def f(ks=ks, slot=slot):
                    base = 58 if slot < 2 else 59
                    if slot == 0:
                        c.e("s_add_u32 s%d, s%d, %d", S_X0, S_ROT, ks)
                        c.e("s_and_b32 s%d, s%d, 15", S_X0, S_X0)
                        c.e("s_lshl_b32 s%d, s%d, 10", S_X0, S_X0)
                    c.e("s_add_u32 s%d, s%d, s%d", S_T, base, S_X0)
                    if slot & 1: c.e("s_add_u32 s%d, s%d, 16384", S_T, S_T)
                    c.bload(A0 + (ks * 4 + slot) * 4, 4, self.V1 if (slot & 1) else self.V0, R_WS, S_T, 0, "W%d" % ks, "sc1")
                out.append(f)
        return out
    def colsum_prep(self):
        for r in range(4): self.c.e("v_mov_b32 v%d, 0x3f803f80", 244 + r)
        self.c.nop(2)
    def colsum(self, k0, k1):
        c = self.c; e = c.e
        c.vm.wait("W%d" % (k1 - 1))
        for ks in range(k0, k1):
            for slot in range(4):
                cc = "0" if ks == 0 else "v[%d:%d]" % (V_CS + 4 * slot, V_CS + 4 * slot + 3)
                e("v_mfma_f32_16x16x32_bf16 v[%d:%d], %s, v[244:247], %s", V_CS + 4 * slot, V_CS + 4 * slot + 3, rr(A0 + (ks * 4 + slot) * 4, 4), cc)

LDS_H = 0
LDS_WSPST = 0
LDS_ZT = 98304
LDS_ZS = 118784
LDS_HST = 126976
LDS_ZROW = 127488
LDS_Z1 = 147456

P3_ACC = 32
P3_HF = 96
P3_AS, P3_AG = 128, 132
P3_RD = 136
P3_ONE = 140

def p3_issue_h(c):
    e = c.e
    V = 144
    e("v_lshrrev_b32 v%d, 3, v%d", V, V_LANE)
    e("v_lshlrev_b32 v%d, 12, v%d", V, V)
    e("v_and_b32 v%d, 7, v%d", V + 1, V_LANE)
    e("v_lshlrev_b32 v%d, 1, v%d", V + 2, V_G)
    e("v_xor_b32 v%d, v%d, v%d", V + 1, V + 1, V + 2)
    e("v_lshl_add_u32 v%d, v%d, 4, v%d", V, V + 1, V)
    e("s_lshl_b32 s%d, s%d, 7", S_T + 1, S_MB)
    e("s_add_u32 s%d, s%d, 0x%x", S_T + 1, S_T + 1, L.HT)
    e("s_lshl_b32 s%d, s%d, 12", S_T + 3, S_W)
    for ch in range(4):
        e("s_add_u32 s%d, s%d, %d", S_T + 2, S_W, 4 * ch)
        e("s_add_u32 s%d, s%d, s%d", S_T + 2, S_T + 2, S_ROT)
        e("s_and_b32 s%d, s%d, 15", S_T + 2, S_T + 2)
        e("s_lshl_b32 s%d, s%d, 17", S_T + 2, S_T + 2)
        e("s_add_u32 s%d, s%d, s%d", S_T + 2, S_T + 2, S_T + 1)
        for i in range(4):
            e("s_add_u32 s%d, s%d, 0x%x", S_T, S_T + 2, 8 * i * 4096)
            c.dma(V, R_WS, S_T, S_T + 3, LDS_H + ch * 16384 + i * 1024, "h%d" % ch, "sc1")

def h_addr(c, dst, jrot):
    pass

def p3_setup(c):
    e = c.e
    T = 144
    e("v_lshrrev_b32 v%d, 2, v%d", T, V_L16)
    e("v_lshl_add_u32 v%d, v%d, 2, v%d", T + 1, V_G, T)
    e("v_lshlrev_b32 v%d, 7, v%d", T + 1, T + 1)
    e("v_and_b32 v%d, 1, v%d", T + 2, V_LANE)
    e("v_lshl_add_u32 v%d, v%d, 3, v%d", T + 1, T + 2, T + 1)
    e("v_bfe_u32 v%d, v%d, 1, 1", T + 2, V_LANE)
    e("v_lshl_add_u32 v%d, v%d, 4, v%d", T + 1, T + 2, T + 1)
    e("v_and_b32 v%d, 1, v%d", T + 2, V_G)
    e("v_lshlrev_b32 v%d, 2, v%d", T + 2, T + 2)
    e("v_lshrrev_b32 v%d, 1, v%d", T + 3, T)
    e("v_lshl_add_u32 v%d, v%d, 1, v%d", T + 2, T + 3, T + 2)
    for j in range(4):
        e("s_add_u32 s%d, s%d, %d", S_T, S_W, j)
        e("s_and_b32 s%d, s%d, 3", S_T, S_T)
        e("s_lshl_b32 s%d, s%d, 1", S_T, S_T)
        e("v_xor_b32 v%d, s%d, v%d", T + 3, S_T, T + 2)
        e("v_lshl_add_u32 v%d, v%d, 4, v%d", P3_RD + j, T + 3, T + 1)
    for r in range(4): e("v_mov_b32 v%d, 0x3f803f80", P3_ONE + r)

P3_SF = 164
def p3_main(c, hooks=None, inter=None):
    e = c.e; hooks = hooks or {}; inter = inter or {}
    def reads(ks):
        f = P3_HF + 16 * (ks & 1); out = []
        for j in range(4):
            for hh in range(2):
                out.append("ds_read_b64_tr_b16 v[%d:%d], v%d offset:%d" % (f + 4 * j + 2 * hh, f + 4 * j + 2 * hh + 1, P3_RD + j, LDS_H + ks * 4096 + hh * 2048))
        return out
    def sreads(kk):
        f = P3_SF + 4 * (kk & 7)
        return ["ds_read_b64_tr_b16 v[%d:%d], v%d offset:%d" % (f + 2 * hh, f + 2 * hh + 1, P3_RD, LDS_H + kk * 4096 + hh * 2048) for hh in range(2)]
    def smfma(kk):
        f = P3_SF + 4 * (kk & 7)
        cs = "0" if kk == 0 else "v[%d:%d]" % (P3_AS, P3_AS + 3)
        cg = "0" if kk == 0 else "v[%d:%d]" % (P3_AG, P3_AG + 3)
        e("v_mfma_f32_16x16x32_bf16 v[%d:%d], v[%d:%d], v[%d:%d], %s", P3_AS, P3_AS + 3, P3_ONE, P3_ONE + 3, f, f + 3, cs)
        e("v_mfma_f32_16x16x32_bf16 v[%d:%d], v[%d:%d], v[%d:%d], %s", P3_AG, P3_AG + 3, f, f + 3, f, f + 3, cg)
    for ks in range(16):
        if ks == 0:
            c.vm.wait("h0")
            c.lg.wait_all()
            e("s_barrier")
            for r in reads(0): c.lg.issue(r, "hf0")
        if ks == 3:
            c.vm.wait("h3")
            e("s_barrier")
        c.lg.wait("hf%d" % ks)
        if 4 <= ks <= 7: c.lg.wait("sf%d" % ks)
        if ks in (1, 4): c.fine("p3k%d" % ks)
        f = P3_HF + 16 * (ks & 1)
        nxt = [(r, "hf%d" % (ks + 1)) for r in reads(ks + 1)] if ks < 15 else []
        if 3 <= ks <= 6:
            i = ks - 3
            nxt = nxt + [(r, "sf%d" % (ks + 1)) for kk in range(4 * i, 4 * i + 4) for r in sreads(kk)]
        ops = list(inter.get(ks, []))
        m = 0
        for slot in range(4):
            for j in range(4):
                acc = P3_ACC + (slot * 4 + j) * 4
                cc = "0" if ks == 0 else "v[%d:%d]" % (acc, acc + 3)
                e("v_mfma_f32_16x16x32_bf16 v[%d:%d], %s, v[%d:%d], %s", acc, acc + 3, rr(A0 + (ks * 4 + slot) * 4, 4), f + 4 * j, f + 4 * j + 3, cc)
                if nxt:
                    r, t = nxt.pop(0); c.lg.issue(r, t)
                if m % 4 == 1 and ops: ops.pop(0)()
                m += 1
        while nxt:
            r, t = nxt.pop(0); c.lg.issue(r, t)
        while ops: ops.pop(0)()
        if 4 <= ks <= 7:
            i = ks - 4
            for kk in range(4 * i, 4 * i + 4): smfma(kk)
        if ks == 8: p3_hstats_a(c)
        if ks == 9: p3_hstats_b(c)
        if ks in hooks: hooks[ks]()
    e("s_lshl_b32 s%d, s%d, 1", S_T, S_NB)
    e("s_sub_u32 s%d, s%d, s%d", S_T, S_T, S_ROT)
    e("s_and_b32 s%d, s%d, 15", S_T, S_T)
    e("s_lshl_b32 s%d, s%d, 12", S_T, S_T)
    e("v_add_u32 v144, s%d, v%d", S_T, P3_RD)
    for dt in range(4):
        c.lg.issue("ds_read_b64_tr_b16 v[%d:%d], v144 offset:%d" % (V_HRES + 2 * dt, V_HRES + 2 * dt + 1, LDS_H + (dt >> 1) * 4096 + (dt & 1) * 2048), "hres")

LDS_HST2 = 163840 - 512
def p3_hstats_a(c):
    e = c.e
    T = 144
    e("v_and_b32 v%d, 3, v%d", T, V_L16)
    e("v_cmp_eq_u32 vcc, 1, v%d", T)
    e("v_cmp_eq_u32 s[%d:%d], 2, v%d", S_T + 2, S_T + 3, T)
    e("v_cmp_eq_u32 s[%d:%d], 3, v%d", S_T + 4, S_T + 5, T)
    e("v_cndmask_b32 v%d, v%d, v%d, vcc", T + 1, P3_AG, P3_AG + 1)
    e("v_cndmask_b32 v%d, v%d, v%d, s[%d:%d]", T + 1, T + 1, P3_AG + 2, S_T + 2, S_T + 3)
    e("v_cndmask_b32 v%d, v%d, v%d, s[%d:%d]", T + 1, T + 1, P3_AG + 3, S_T + 4, S_T + 5)
    e("v_mul_f32 v%d, 0x3b000000, v%d", T + 2, P3_AS)
    e("v_mul_f32 v%d, 0x3b000000, v%d", T + 1, T + 1)
    e("v_fma_f32 v%d, -v%d, v%d, v%d", T + 1, T + 2, T + 2, T + 1)
    e("v_max_f32 v%d, 0, v%d", T + 1, T + 1)
    e("v_add_f32 v%d, 0x3727c5ac, v%d", T + 1, T + 1)
    e("v_rsq_f32 v%d, v%d", T + 4, T + 1)
    e("v_lshrrev_b32 v%d, 2, v%d", T + 3, V_L16)
    e("v_mul_f32 v%d, v%d, v%d", T + 5, T + 4, T + 2)
    e("v_cmp_eq_u32 vcc, v%d, v%d", T + 3, V_G)
    e("s_lshl_b32 s%d, s%d, 7", S_T, S_W)
    e("s_add_u32 s%d, s%d, 0x%x", S_T, S_T, LDS_HST2)
    e("v_lshlrev_b32 v%d, 3, v%d", T + 3, V_L16)
    e("v_add_u32 v%d, s%d, v%d", T + 3, S_T, T + 3)
    e("s_and_saveexec_b64 s[%d:%d], vcc", S_T + 2, S_T + 3)
    c.lg.issue("ds_write_b64 v%d, v[%d:%d]" % (T + 3, T + 4, T + 5), "hs")
    e("s_mov_b64 exec, s[%d:%d]", S_T + 2, S_T + 3)

def p3_hstats_b(c):
    e = c.e
    T = 144
    c.lg.wait("hs")
    e("s_barrier")
    e("v_lshlrev_b32 v%d, 3, v%d", T + 3, V_L16)
    for j in range(4):
        e("s_add_u32 s%d, s%d, %d", S_T, S_W, j)
        e("s_and_b32 s%d, s%d, 3", S_T, S_T)
        e("s_lshl_b32 s%d, s%d, 7", S_T, S_T)
        e("s_add_u32 s%d, s%d, 0x%x", S_T, S_T, LDS_HST2)
        e("v_add_u32 v%d, s%d, v%d", T + 4, S_T, T + 3)
        c.lg.issue("ds_read_b64 v[%d:%d], v%d" % (150 + 2 * j, 151 + 2 * j, T + 4), "hs2")

GC0, GC1 = 60, 62
def gelu_consts(c):
    import struct
    f2u = lambda x: struct.unpack("<I", struct.pack("<f", x))[0]
    k = -2.0 * 0.7978845608028654 * 1.4426950408889634
    c.e("s_mov_b32 s60, 0x%x", f2u(k)); c.e("s_mov_b32 s61, 0x%x", f2u(k))
    c.e("s_mov_b32 s62, 0x%x", f2u(k * 0.044715)); c.e("s_mov_b32 s63, 0x%x", f2u(k * 0.044715))

def gelu_tile(c, acc, slot, j, T, nbg=0):
    e = c.e
    R = 150 + 2 * j
    if nbg >= 1: c.bg(1)
    for q in range(2):
        x = acc + 2 * q; cs = V_CS + 4 * slot + 2 * q; t = T + 8 * q
        e("v_pk_mul_f32 %s, %s, %s op_sel:[0,1] op_sel_hi:[1,1]", pr(t), pr(cs), pr(R))
    for q in range(2):
        x = acc + 2 * q; t = T + 8 * q
        e("v_pk_fma_f32 %s, %s, %s, %s op_sel_hi:[1,0,1] neg_lo:[0,0,1] neg_hi:[0,0,1]", pr(x), pr(x), pr(R), pr(t))
    for q in range(2):
        x = acc + 2 * q; t = T + 8 * q
        e("v_pk_mul_f32 %s, %s, %s", pr(t), pr(x), pr(x))
    for q in range(2):
        x = acc + 2 * q; t = T + 8 * q
        e("v_pk_fma_f32 %s, %s, s[62:63], %s", pr(t), pr(t), pr(t + 2))
    for q in range(2):
        x = acc + 2 * q; t = T + 8 * q
        e("v_pk_mul_f32 %s, %s, %s", pr(t), pr(t), pr(x))
    for q in range(2):
        t = T + 8 * q
        e("v_exp_f32 v%d, v%d", t, t); e("v_exp_f32 v%d, v%d", t + 1, t + 1)
    if nbg >= 2: c.bg(1)
    else: e("s_nop 0")
    e("s_nop 0")
    for q in range(2):
        t = T + 8 * q
        e("v_pk_add_f32 %s, %s, %s", pr(t), pr(t), pr(t + 4))
    for q in range(2):
        t = T + 8 * q
        e("v_rcp_f32 v%d, v%d", t, t); e("v_rcp_f32 v%d, v%d", t + 1, t + 1)
    if nbg >= 3: c.bg(1)
    e("s_nop 0")
    for q in range(2):
        x = acc + 2 * q; t = T + 8 * q
        e("v_pk_mul_f32 %s, %s, %s", pr(x), pr(x), pr(t))

def gelu_tile_bg(c, acc, slot, j, T, nbg):
    gelu_tile(c, acc, slot, j, T, nbg)

def gelu_setup(c, T):
    e = c.e
    gelu_consts(c)
    for q in range(2):
        t = T + 8 * q
        e("v_mov_b32 v%d, s60", t + 2); e("v_mov_b32 v%d, s60", t + 3)
        e("v_mov_b32 v%d, 1.0", t + 4); e("v_mov_b32 v%d, 1.0", t + 5)

def p3_z2_gelu_publish(c):
    e = c.e
    T = 160
    gelu_setup(c, T)
    SUM = 176
    for j in range(4):
        for slot in range(2):
            acc = P3_ACC + (slot * 4 + j) * 4
            gelu_tile_bg(c, acc, slot, j, T, 3)
            s0, q0 = SUM + 4 * j, SUM + 4 * j + 2
            if slot == 0:
                e("v_pk_add_f32 %s, %s, %s", pr(s0), pr(acc), pr(acc + 2))
                e("v_pk_mul_f32 %s, %s, %s", pr(q0), pr(acc), pr(acc))
            else:
                e("v_pk_add_f32 %s, %s, %s", pr(s0), pr(s0), pr(acc))
                e("v_pk_add_f32 %s, %s, %s", pr(s0), pr(s0), pr(acc + 2))
                e("v_pk_fma_f32 %s, %s, %s, %s", pr(q0), pr(acc), pr(acc), pr(q0))
            e("v_pk_fma_f32 %s, %s, %s, %s", pr(q0), pr(acc + 2), pr(acc + 2), pr(q0))
    e("s_lshl_b32 s%d, s%d, 11", S_T + 1, S_W)
    e("s_add_u32 s%d, s%d, 0x%x", S_T + 1, S_T + 1, LDS_ZS)
    e("v_lshlrev_b32 v%d, 9, v%d", T, V_G)
    e("v_lshl_add_u32 v%d, v%d, 3, v%d", T, V_L16, T)
    e("v_add_u32 v%d, s%d, v%d", T, S_T + 1, T)
    for j in range(4):
        s0, q0 = SUM + 4 * j, SUM + 4 * j + 2
        e("v_add_f32 v%d, v%d, v%d", s0, s0, s0 + 1)
        e("v_add_f32 v%d, v%d, v%d", s0 + 1, q0, q0 + 1)
        e("s_add_u32 s%d, s%d, %d", S_T, S_W, j)
        e("s_and_b32 s%d, s%d, 3", S_T, S_T)
        e("s_lshl_b32 s%d, s%d, 7", S_T, S_T)
        e("v_add_u32 v%d, s%d, v%d", T + 1, S_T, T)
        c.lg.issue("ds_write_b64 v%d, v[%d:%d]" % (T + 1, s0, s0 + 1))
    c.lg.wait_all()
    e("s_barrier")
    e("s_lshl_b32 s%d, s%d, 7", S_T, S_W)
    e("s_add_u32 s%d, s%d, 0x%x", S_T, S_T, LDS_ZS)
    e("v_lshlrev_b32 v%d, 9, v%d", T, V_G)
    e("v_lshl_add_u32 v%d, v%d, 3, v%d", T, V_L16, T)
    e("v_add_u32 v%d, s%d, v%d", T, S_T, T)
    for w in range(4):
        c.lg.issue("ds_read_b64 v[%d:%d], v%d offset:%d" % (SUM + 2 * w, SUM + 2 * w + 1, T, w * 2048))
    c.lg.wait_all()
    e("v_pk_add_f32 %s, %s, %s", pr(SUM), pr(SUM), pr(SUM + 2))
    e("v_pk_add_f32 %s, %s, %s", pr(SUM + 4), pr(SUM + 4), pr(SUM + 6))
    e("v_pk_add_f32 %s, %s, %s", pr(SUM), pr(SUM), pr(SUM + 4))
    for swap in ("v_permlane16_swap_b32", "v_permlane32_swap_b32"):
        e("v_mov_b32 v%d, v%d", SUM + 2, SUM)
        e("v_mov_b32 v%d, v%d", SUM + 3, SUM + 1)
        c.nop(2)
        e("%s v%d, v%d", swap, SUM, SUM + 2)
        e("%s v%d, v%d", swap, SUM + 1, SUM + 3)
        c.nop(1)
        e("v_pk_add_f32 %s, %s, %s", pr(SUM), pr(SUM), pr(SUM + 2))
    e("s_lshl_b32 s%d, s%d, 3", S_T, S_MB)
    e("s_add_u32 s%d, s%d, s%d", S_T, S_T, S_NB)
    e("s_lshl_b32 s%d, s%d, 9", S_T, S_T)
    e("s_lshl_b32 s%d, s%d, 7", S_T + 1, S_W)
    e("s_add_u32 s%d, s%d, s%d", S_T, S_T, S_T + 1)
    e("s_add_u32 s%d, s%d, 0x%x", S_T, S_T, L.ZST)
    e("v_lshlrev_b32 v%d, 3, v%d", T, V_L16)
    e("s_mov_b64 s[%d:%d], exec", S_T + 2, S_T + 3)
    e("s_mov_b64 exec, 0xffff")
    c.bstore(SUM, 2, T, R_WS, S_T, 0, "zst", "sc1")
    e("s_mov_b64 exec, s[%d:%d]", S_T + 2, S_T + 3)

def p3_z1_gelu(c):
    e = c.e
    T = 160
    e("v_lshlrev_b32 v176, 3, v%d", V_LANE)
    e("s_lshl_b32 s%d, s%d, 10", S_T + 1, S_W)
    e("s_add_u32 s%d, s%d, 0x%x", S_T + 1, S_T + 1, LDS_Z1)
    e("v_add_u32 v176, s%d, v176", S_T + 1)
    for j in range(4):
        e("s_add_u32 s%d, s%d, %d", S_T, S_W, j)
        e("s_and_b32 s%d, s%d, 3", S_T, S_T)
        e("s_lshl_b32 s%d, s%d, 12", S_T, S_T)
        e("v_add_u32 v177, s%d, v176", S_T)
        for sl in range(2):
            slot = 2 + sl
            acc = P3_ACC + (slot * 4 + j) * 4
            gelu_tile_bg(c, acc, slot, j, T, 2)
            e("v_cvt_pk_bf16_f32 v%d, v%d, v%d", acc, acc, acc + 1)
            e("v_cvt_pk_bf16_f32 v%d, v%d, v%d", acc + 1, acc + 2, acc + 3)
            c.lg.issue("ds_write_b64 v177, v[%d:%d] offset:%d" % (acc, acc + 1, sl * 512))

def p3_z2_finish(c):
    e = c.e; a = c.a
    T = 160; G = 180
    e("s_lshl_b32 s%d, s%d, 12", S_T, S_MB)
    e("s_add_u32 s%d, s%d, 0x%x", S_T, S_T, L.ZST)
    e("v_lshlrev_b32 v%d, 3, v%d", T, V_LANE)
    loop = a.newlabel("zp"); done = a.newlabel("zpd")
    e("s_mov_b32 s%d, 0", S_T + 1)
    a.label(loop)
    for n in range(8):
        e("buffer_load_dwordx2 v[%d:%d], v%d, s[%d:%d], s%d offen offset:%d sc1", G + 2 * n, G + 2 * n + 1, T, R_WS, R_WS + 3, S_T, 512 * n)
    e("s_waitcnt vmcnt(0)")
    c.vm.q = []
    e("v_min_f32 v%d, v%d, v%d", T + 1, G + 1, G + 3)
    for n in range(2, 8):
        e("v_min_f32 v%d, v%d, v%d", T + 1, T + 1, G + 2 * n + 1)
    e("v_cmp_gt_f32 vcc, 0, v%d", T + 1)
    e("s_nop 1")
    e("s_cmp_eq_u64 vcc, 0")
    e("s_cbranch_scc1 %s", done)
    e("s_add_u32 s%d, s%d, 1", S_T + 1, S_T + 1)
    e("s_cmp_lt_u32 s%d, 0x100000", S_T + 1)
    e("s_cbranch_scc1 %s", loop)
    a.label(done)
    c.fine("zpoll")
    for n in range(1, 8):
        e("v_pk_add_f32 %s, %s, %s", pr(G), pr(G), pr(G + 2 * n))
    import struct
    inv = struct.unpack("<I", struct.pack("<f", 1.0 / 896))[0]
    e("v_mul_f32 v%d, 0x%x, v%d", G, inv, G)
    e("v_mul_f32 v%d, 0x%x, v%d", G + 1, inv, G + 1)
    e("v_fma_f32 v%d, -v%d, v%d, v%d", G + 1, G, G, G + 1)
    e("v_max_f32 v%d, 0, v%d", G + 1, G + 1)
    e("v_add_f32 v%d, 0x3727c5ac, v%d", G + 1, G + 1)
    e("v_rsq_f32 v%d, v%d", G + 2, G + 1)
    e("s_nop 0")
    e("v_mul_f32 v%d, v%d, v%d", G + 3, G, G + 2)
    e("v_sub_f32 v%d, 0, v%d", G + 3, G + 3)
    e("s_lshl_b32 s%d, s%d, 9", S_T, S_W)
    e("s_add_u32 s%d, s%d, 0x%x", S_T, S_T, LDS_ZROW)
    e("v_add_u32 v%d, s%d, v%d", T + 1, S_T, T)
    c.lg.issue("ds_write_b64 v%d, v[%d:%d]" % (T + 1, G + 2, G + 3))
    c.lg.wait_all()
    e("v_lshlrev_b32 v%d, 3, v%d", T + 2, V_L16)
    e("v_add_u32 v%d, s%d, v%d", T + 2, S_T, T + 2)
    for j in range(4):
        e("s_add_u32 s%d, s%d, %d", S_T + 1, S_W, j)
        e("s_and_b32 s%d, s%d, 3", S_T + 1, S_T + 1)
        e("s_lshl_b32 s%d, s%d, 7", S_T + 1, S_T + 1)
        e("v_add_u32 v%d, s%d, v%d", T + 3, S_T + 1, T + 2)
        c.lg.issue("ds_read_b64 v[%d:%d], v%d" % (150 + 2 * j, 151 + 2 * j, T + 3))
    c.lg.wait_all()
    e("s_mul_i32 s%d, s%d, 5120", S_T, S_W)
    e("s_add_u32 s%d, s%d, 0x%x", S_T, S_T, LDS_ZT)
    e("v_mul_u32_u24 v%d, 40, v%d", T + 4, V_L16)
    e("v_lshl_add_u32 v%d, v%d, 3, v%d", T + 4, V_G, T + 4)
    e("v_add_u32 v%d, s%d, v%d", T + 4, S_T, T + 4)
    for j in range(4):
        R = 150 + 2 * j
        e("s_add_u32 s%d, s%d, %d", S_T + 1, S_W, j)
        e("s_and_b32 s%d, s%d, 3", S_T + 1, S_T + 1)
        e("s_mul_i32 s%d, s%d, 640", S_T + 1, S_T + 1)
        e("v_add_u32 v%d, s%d, v%d", T + 5, S_T + 1, T + 4)
        for slot in range(2):
            acc = P3_ACC + (slot * 4 + j) * 4
            for q in range(2):
                x = acc + 2 * q
                e("v_pk_fma_f32 %s, %s, %s, %s op_sel:[0,0,1] op_sel_hi:[1,0,1]", pr(x), pr(x), pr(R), pr(R))
            e("v_cvt_pk_bf16_f32 v%d, v%d, v%d", acc, acc, acc + 1)
            e("v_cvt_pk_bf16_f32 v%d, v%d, v%d", acc + 1, acc + 2, acc + 3)
            c.lg.issue("ds_write_b64 v%d, v[%d:%d] offset:%d" % (T + 5, acc, acc + 1, slot * 2560))
    c.lg.wait_all()
    e("v_lshrrev_b32 v%d, 2, v%d", T + 4, V_L16)
    e("v_lshl_add_u32 v%d, v%d, 2, v%d", T + 4, V_G, T + 4)
    e("v_mul_u32_u24 v%d, 40, v%d", T + 4, T + 4)
    e("v_and_b32 v%d, 3, v%d", T + 5, V_LANE)
    e("v_lshl_add_u32 v%d, v%d, 3, v%d", T + 4, T + 5, T + 4)
    e("v_add_u32 v%d, s%d, v%d", T + 4, S_T, T + 4)
    O = 96
    for slot in range(2):
        for pp in range(2):
            for hh in range(2):
                d = O + (slot * 2 + pp) * 4 + 2 * hh
                c.lg.issue("ds_read_b64_tr_b16 v[%d:%d], v%d offset:%d" % (d, d + 1, T + 4, slot * 2560 + (32 * pp + 16 * hh) * 40), "o%d%d" % (slot, pp))
    e("s_lshl_b32 s%d, s%d, 6", S_T, S_NB)
    e("s_lshl_b32 s%d, s%d, 1", S_T + 1, S_MB)
    e("s_add_u32 s%d, s%d, s%d", S_T, S_T, S_T + 1)
    e("s_mul_i32 s%d, s%d, 7", S_T, S_T)
    e("s_lshl_b32 s%d, s%d, 1", S_T + 1, S_W)
    e("s_add_u32 s%d, s%d, s%d", S_T, S_T, S_T + 1)
    e("s_lshl_b32 s%d, s%d, 10", S_T, S_T)
    e("s_add_u32 s%d, s%d, 0x%x", S_T, S_T, L.Z2N)
    e("v_lshlrev_b32 v%d, 4, v%d", T + 5, V_LANE)
    e("v_add_u32 v%d, 0x40000000, v%d", T + 6, T + 5)
    e("s_cmp_eq_u32 s%d, 3", S_W)
    e("s_cselect_b64 vcc, -1, 0")
    e("v_cndmask_b32 v%d, v%d, v%d, vcc", T + 6, T + 5, T + 6)
    for slot in range(2):
        for pp in range(2):
            e("s_add_u32 s%d, s%d, %d", S_T + 1, S_T, (pp * 7 + slot) * 1024)
            c.lg.wait("o%d%d" % (slot, pp))
            c.bstore(O + (slot * 2 + pp) * 4, 4, T + 5 + slot, R_WS, S_T + 1, 0, "st", "sc1")

class SpLoader:
    NST = 3
    base = 65536
    V_DMA = 200
    V_RD = 208
    S_LDS, S_K = 58, 59
    def __init__(self, c):
        self.c = c; self.issued = 0; self.read_ = 0
    def setup(self):
        c = self.c; e = c.e
        T = 212
        e("v_lshrrev_b32 v%d, 3, v%d", T, V_LANE)
        e("v_lshlrev_b32 v%d, 12, v%d", T, T)
        e("v_and_b32 v%d, 7, v%d", T + 1, V_LANE)
        e("v_xor_b32 v%d, v%d, v%d", T + 1, T + 1, V_G)
        e("v_xor_b32 v%d, 4, v%d", T + 2, T + 1)
        e("v_lshl_add_u32 v%d, v%d, 4, v%d", T + 1, T + 1, T)
        e("v_lshl_add_u32 v%d, v%d, 4, v%d", T + 2, T + 2, T)
        for i in range(8):
            jj = i // 2
            e("s_add_u32 s%d, s%d, %d", S_T, S_W, jj)
            e("s_and_b32 s%d, s%d, 3", S_T, S_T)
            e("s_lshl_b32 s%d, s%d, 16", S_T, S_T)
            e("s_add_u32 s%d, s%d, %d", S_T, S_T, (i % 2) * 8 * 4096)
            e("v_add_u32 v%d, s%d, v%d", self.V_DMA + i, S_T, T + 1 + (i % 2))
        e("s_mul_i32 s%d, s%d, %d", self.S_LDS, S_W, self.NST * 8192)
        e("s_add_u32 s%d, s%d, %d", self.S_LDS, self.S_LDS, self.base)
        e("v_lshrrev_b32 v%d, 1, v%d", T + 1, V_L16)
        e("v_lshrrev_b32 v%d, 1, v%d", T + 2, V_G)
        e("v_xor_b32 v%d, v%d, v%d", T + 1, T + 1, T + 2)
        e("v_and_b32 v%d, 1, v%d", T + 2, V_G)
        e("v_lshlrev_b32 v%d, 3, v%d", T + 2, T + 2)
        e("v_lshl_add_u32 v%d, v%d, 7, v%d", T + 2, V_L16, T + 2)
        e("v_add_u32 v%d, s%d, v%d", T + 2, self.S_LDS, T + 2)
        for kk in range(2):
            for hh in range(2):
                e("v_xor_b32 v%d, %d, v%d", T + 3, 4 * kk + 2 * hh, T + 1)
                e("v_lshl_add_u32 v%d, v%d, 4, v%d", self.V_RD + 2 * kk + hh, T + 3, T + 2)
        e("s_lshl_b32 s%d, s%d, 10", self.S_K, S_W)
    def rebase(self, newbase):
        c = self.c; e = c.e
        d = newbase - self.base
        e("s_add_u32 s%d, s%d, %d", self.S_LDS, self.S_LDS, d) if d >= 0 else e("s_sub_u32 s%d, s%d, %d", self.S_LDS, self.S_LDS, -d)
        for i in range(4):
            if d >= 0: e("v_add_u32 v%d, %d, v%d", self.V_RD + i, d, self.V_RD + i)
            else: e("v_subrev_u32 v%d, %d, v%d", self.V_RD + i, -d, self.V_RD + i)
        self.base = newbase
    def srd(self):
        c = self.c; e = c.e
        e("s_lshl_b32 s%d, s%d, 18", S_T, S_MB)
        c.srd(R_B, P_WSP, 0x40000, off_sreg=S_T)
    def ops(self, n):
        c = self.c; out = []
        for _ in range(n):
            dd = self.issued
            st = dd % self.NST
            for i in range(8):
                def f(dd=dd, st=st, i=i):
                    if i == 0:
                        c.e("s_lshr_b32 s%d, s%d, 1", S_X1, S_ROTZ)
                        c.e("s_add_u32 s%d, s%d, %d", S_X1, S_X1, dd)
                        c.e("s_and_b32 s%d, s%d, 7", S_X1, S_X1)
                        c.e("s_lshl_b32 s%d, s%d, 7", S_X1, S_X1)
                        c.e("s_add_u32 s%d, s%d, s%d", S_X1, S_X1, self.S_K)
                    c.dma(self.V_DMA + i, R_B, S_X1, self.S_LDS, st * 8192 + i * 1024, "S%d" % dd, c.opt.get("ntsp", ""))
                out.append(f)
            self.issued += 1
        return out
    def issue(self, n=1):
        for f in self.ops(n): f()
    def read(self, n):
        c = self.c
        for _ in range(n):
            dd = self.read_
            c.vm.wait("S%d" % dd)
            st = dd % self.NST
            for kk in range(2):
                for j in range(4):
                    for hh in range(2):
                        dst = A0 + ((dd * 2 + kk) * 4 + j) * 4 + 2 * hh
                        c.lg.issue("ds_read_b64 %s, v%d offset:%d" % (rr(dst, 2), self.V_RD + 2 * kk + hh, st * 8192 + j * 2048), "sl")
            self.read_ += 1
    def refill(self, n):
        self.c.lg.wait("sl")
        self.issue(n)

P4_ACC = 32
P4_ZB = 144
def p4_main(c, tail_ops):
    e = c.e
    NZ = 4
    e("v_lshlrev_b32 v29, 4, v%d", V_LANE)
    e("v_add_u32 v30, 0x1000, v29")
    e("s_lshl_b32 s%d, s%d, 6", 56, S_NB)
    e("s_lshl_b32 s%d, s%d, 4", 57, S_W)
    e("s_add_u32 s56, s56, s57")
    e("s_mul_i32 s56, s56, 7168")
    e("s_add_u32 s56, s56, 0x%x", L.Z2N)
    def issue_z(ks, ft):
        d, v, imm = P4_ZB + (ks % NZ) * 28 + 4 * ft, 29 + ft // 4, (ft % 4) * 1024
        if ft == 0:
            e("s_add_u32 s57, s%d, %d", S_ROTZ, ks)
            e("s_and_b32 s57, s57, 15")
            e("s_mul_i32 s57, s57, 7168")
            e("s_add_u32 s57, s57, s56")
        c.bload(d, 4, v, R_WS, 57, imm, "z%d" % ks, c.opt.get("zflag", "sc1"))
    for ks in range(NZ - 1):
        for ft in range(7): issue_z(ks, ft)
    for ks in range(16):
        c.vm.wait("z%d" % ks)
        if ks in (0, 4, 12): c.fine("p4k%d" % ks)
        nk = ks + NZ - 1
        m = 0; nf = 0
        for ft in range(7):
            for j in range(4):
                acc = P4_ACC + (ft * 4 + j) * 4
                cc = "0" if ks == 0 else "v[%d:%d]" % (acc, acc + 3)
                z = P4_ZB + (ks % NZ) * 28 + 4 * ft
                e("v_mfma_f32_16x16x32_bf16 v[%d:%d], v[%d:%d], %s, %s", acc, acc + 3, z, z + 3, rr(A0 + (ks * 4 + j) * 4, 4), cc)
                m += 1
                if nk < 16 and m % 4 == 0 and nf < 7:
                    issue_z(nk, nf); nf += 1
                if nk >= 16 and m % 3 == 0 and tail_ops:
                    tail_ops.pop(0)()
    while tail_ops: tail_ops.pop(0)()

def p4_reduce_epilogue(c):
    e = c.e
    T = 144
    e("s_lshl_b32 s%d, s%d, 2", S_T, S_MB)
    e("s_add_u32 s%d, s%d, s%d", S_T, S_T, S_W)
    e("s_lshl_b32 s%d, s%d, 5", S_T + 1, S_T)
    e("v_lshlrev_b32 v%d, 1, v%d", T, V_L16)
    e("v_add_u32 v%d, s%d, v%d", T, S_T + 1, T)
    c.vm.issue("global_load_ushort v%d, v%d, s[%d:%d]" % (V_BIAS, T, P_BSP, P_BSP + 1), "bias")
    e("s_mul_i32 s%d, s%d, 24576", S_T + 2, S_W)
    e("v_lshlrev_b32 v%d, 4, v%d", T + 1, V_LANE)
    e("v_add_u32 v%d, s%d, v%d", T + 2, S_T + 2, T + 1)
    c.nop(8)
    for j in range(1, 4):
        for ft in range(7):
            acc = P4_ACC + (ft * 4 + j) * 4
            c.lg.issue("ds_write_b128 v%d, v[%d:%d] offset:%d" % (T + 2, acc, acc + 3, (j - 1) * 7168 + ft * 1024))
    for j in range(1, 4):
        e("s_sub_u32 s%d, s%d, %d", S_T + 2, S_W, j)
        e("s_and_b32 s%d, s%d, 3", S_T + 2, S_T + 2)
        e("s_mul_i32 s%d, s%d, 24576", S_T + 2, S_T + 2)
        e("v_add_u32 v%d, s%d, v%d", T + 2 + j, S_T + 2, T + 1)
    c.lg.wait_all()
    e("s_barrier")
    R = 152
    for j in range(1, 4):
        for ft in range(7):
            d = R + (j - 1) * 28 + 4 * ft
            c.lg.issue("ds_read_b128 v[%d:%d], v%d offset:%d" % (d, d + 3, T + 2 + j, (j - 1) * 7168 + ft * 1024), "r%d" % j)
    Z1 = 236
    e("s_lshl_b32 s%d, s%d, 12", S_T + 2, S_W)
    e("s_add_u32 s%d, s%d, 0x%x", S_T + 2, S_T + 2, LDS_Z1)
    e("v_lshlrev_b32 v%d, 3, v%d", T + 6, V_LANE)
    e("v_add_u32 v%d, s%d, v%d", T + 6, S_T + 2, T + 6)
    for ft in range(7):
        c.lg.issue("ds_read_b64 v[%d:%d], v%d offset:%d" % (Z1 + 2 * ft, Z1 + 2 * ft + 1, T + 6, ft * 512), "z1")
    for j in range(1, 4):
        c.lg.wait("r%d" % j)
        for ft in range(7):
            acc = P4_ACC + (ft * 4) * 4
            d = R + (j - 1) * 28 + 4 * ft
            for q in range(2):
                e("v_pk_add_f32 %s, %s, %s", pr(acc + 2 * q), pr(acc + 2 * q), pr(d + 2 * q))
    c.lg.wait_all()
    e("s_barrier")

def p4_finish(c):
    e = c.e; a = c.a
    T = 144; Z1 = 236
    c.vm.wait("bias")
    e("v_lshlrev_b32 v%d, 16, v%d", V_BIAS, V_BIAS)
    e("s_lshl_b32 s%d, s%d, 2", S_T, S_MB)
    e("s_add_u32 s%d, s%d, s%d", S_T, S_T, S_W)
    e("s_mul_i32 s%d, s%d, %d", S_T, S_T, 28 * 1024)
    e("s_add_u32 s%d, s%d, 0x%x", S_T, S_T, L.PF)
    e("s_mul_i32 s%d, s%d, 7", S_T + 1, S_NB)
    e("s_lshr_b32 s%d, s%d, 1", S_T + 2, S_T + 1)
    e("s_lshl_b32 s%d, s%d, 10", S_T + 2, S_T + 2)
    e("s_add_u32 s%d, s%d, s%d", S_T, S_T, S_T + 2)
    e("v_lshlrev_b32 v%d, 4, v%d", T + 1, V_LANE)
    O = 152
    for ft in range(7):
        x = P4_ACC + ft * 16
        z = Z1 + 2 * ft; t = T + 2
        e("v_lshlrev_b32 v%d, 16, v%d", t, z)
        e("v_and_b32 v%d, 0xffff0000, v%d", t + 1, z)
        e("v_lshlrev_b32 v%d, 16, v%d", t + 2, z + 1)
        e("v_and_b32 v%d, 0xffff0000, v%d", t + 3, z + 1)
        for r in range(4): e("v_add_f32 v%d, v%d, v%d", x + r, x + r, V_BIAS)
        for q in range(2): e("v_pk_mul_f32 %s, %s, %s", pr(x + 2 * q), pr(x + 2 * q), pr(t + 2 * q))
        e("v_cvt_pk_bf16_f32 v%d, v%d, v%d", O + 2 * ft, x, x + 1)
        e("v_cvt_pk_bf16_f32 v%d, v%d, v%d", O + 2 * ft + 1, x + 2, x + 3)
    odd = a.newlabel("podd"); done = a.newlabel("pdone")
    e("s_bitcmp1_b32 s%d, 0", S_NB)
    e("s_cbranch_scc1 %s", odd)
    txt = lambda src, n, imm: "buffer_store_%s %s, v%d, s[%d:%d], s%d offen offset:%d sc1" % ({2: "dwordx2", 4: "dwordx4"}[n], rr(src, n), T + 1, R_WS, R_WS + 3, S_T, imm)
    for p in range(3): e(txt(O + 4 * p, 4, 1024 * p))
    e(txt(O + 12, 2, 3072))
    e("s_branch %s", done)
    a.label(odd)
    e(txt(O, 2, 8))
    for p in range(3):
        e("v_mov_b32 v%d, v%d", T + 4, O + 2 + 4 * p); e("v_mov_b32 v%d, v%d", T + 5, O + 3 + 4 * p)
        e("v_mov_b32 v%d, v%d", T + 6, O + 4 + 4 * p); e("v_mov_b32 v%d, v%d", T + 7, O + 5 + 4 * p)
        e(txt(T + 4, 4, 1024 * (p + 1)))
        e("s_nop 1")
    a.label(done)
    for _ in range(4): c.vm.q.append("st")

LDS_WO = 0
def p5_wout_ops(c):
    e = c.e
    e("v_lshlrev_b32 v31, 4, v%d", V_LANE)
    e("s_lshl_b32 s58, s%d, 2", S_NB)
    e("s_mul_i32 s58, s58, 28")
    e("s_mul_i32 s%d, s%d, 7", S_T, S_W)
    e("s_add_u32 s58, s58, s%d", S_T)
    e("s_lshl_b32 s58, s58, 10")
    e("s_add_u32 s58, s58, 0x%x", L.WOUTF)
    out = []
    for kl in range(7):
        for dt in range(4):
            def f(kl=kl, dt=dt):
                if dt == 0:
                    c.e("s_add_u32 s%d, s%d, %d", S_X0, S_ROT5, kl)
                    c.e("s_cmp_ge_u32 s%d, 7", S_X0)
                    c.e("s_cselect_b32 s%d, 7, 0", S_X1)
                    c.e("s_sub_u32 s%d, s%d, s%d", S_X0, S_X0, S_X1)
                    c.e("s_lshl_b32 s%d, s%d, 10", S_X0, S_X0)
                    c.e("s_add_u32 s%d, s%d, s58", S_X0, S_X0)
                c.e("s_add_u32 s%d, s%d, %d", S_T, S_X0, dt * 28 * 1024)
                c.bload(A0 + (kl * 4 + dt) * 4, 4, 31, R_WS, S_T, 0, "wo%d" % kl, "sc1")
            out.append(f)
    return out

P5_ACC = 32
P5_PF = 96
def p5_main(c):
    e = c.e
    T = 240
    e("v_lshlrev_b32 v%d, 4, v%d", T, V_LANE)
    e("v_add_u32 v%d, 0x1000, v%d", T + 1, T)
    for j in range(4):
        e("s_add_u32 s%d, s%d, %d", S_T, S_W, j)
        e("s_and_b32 s%d, s%d, 3", S_T, S_T)
        e("s_lshl_b32 s%d, s%d, 2", S_T + 1, S_MB)
        e("s_add_u32 s%d, s%d, s%d", S_T, S_T, S_T + 1)
        e("s_mul_i32 s%d, s%d, 28", S_T, S_T)
        e("s_mul_i32 s%d, s%d, 7", S_T + 1, S_W)
        e("s_add_u32 s%d, s%d, s%d", S_T, S_T, S_T + 1)
        e("s_lshl_b32 s%d, s%d, 10", S_T, S_T)
        e("s_add_u32 s%d, s%d, 0x%x", 52 + j, S_T, L.PF)
    for kl in range(7):
        e("s_add_u32 s%d, s%d, %d", S_X0, S_ROT5, kl)
        e("s_cmp_ge_u32 s%d, 7", S_X0)
        e("s_cselect_b32 s%d, 7, 0", S_X1)
        e("s_sub_u32 s%d, s%d, s%d", S_X0, S_X0, S_X1)
        e("s_lshl_b32 s%d, s%d, 10", S_X0, S_X0)
        for j in range(4):
            e("s_add_u32 s%d, s%d, s%d", S_T, S_X0, 52 + j)
            c.bload(P5_PF + (kl * 4 + j) * 4, 4, T, R_WS, S_T, 0, "p%d" % kl, "sc1")
    for kl in range(7):
        c.vm.wait("p%d" % kl, "wo%d" % kl)
        for dt in range(4):
            for j in range(4):
                acc = P5_ACC + (dt * 4 + j) * 4
                cc = "0" if kl == 0 else "v[%d:%d]" % (acc, acc + 3)
                p = P5_PF + (kl * 4 + j) * 4
                e("v_mfma_f32_16x16x32_bf16 v[%d:%d], %s, v[%d:%d], %s", acc, acc + 3, rr(A0 + (kl * 4 + dt) * 4, 4), p, p + 3, cc)

def p5_epilogue(c):
    e = c.e
    T = 240
    c.lg.wait_all()
    e("s_mul_i32 s%d, s%d, 28672", S_T + 2, S_W)
    e("v_lshlrev_b32 v%d, 4, v%d", T + 1, V_LANE)
    e("v_add_u32 v%d, s%d, v%d", T + 2, S_T + 2, T + 1)
    c.nop(8)
    for j in range(1, 4):
        for dt in range(4):
            acc = P5_ACC + (dt * 4 + j) * 4
            c.lg.issue("ds_write_b128 v%d, v[%d:%d] offset:%d" % (T + 2, acc, acc + 3, LDS_WO + (j - 1) * 4096 + dt * 1024))
    for j in range(1, 4):
        e("s_sub_u32 s%d, s%d, %d", S_T + 2, S_W, j)
        e("s_and_b32 s%d, s%d, 3", S_T + 2, S_T + 2)
        e("s_mul_i32 s%d, s%d, 28672", S_T + 2, S_T + 2)
        e("v_add_u32 v%d, s%d, v%d", T + 2 + j, S_T + 2, T + 1)
    c.lg.wait_all()
    e("s_barrier")
    R = 96
    for j in range(1, 4):
        for dt in range(4):
            d = R + (j - 1) * 16 + 4 * dt
            c.lg.issue("ds_read_b128 v[%d:%d], v%d offset:%d" % (d, d + 3, T + 2 + j, LDS_WO + (j - 1) * 4096 + dt * 1024), "r%d" % j)
    for j in range(1, 4):
        c.lg.wait("r%d" % j)
        for dt in range(4):
            acc = P5_ACC + dt * 16; d = R + (j - 1) * 16 + 4 * dt
            for q in range(2):
                e("v_pk_add_f32 %s, %s, %s", pr(acc + 2 * q), pr(acc + 2 * q), pr(d + 2 * q))
    O = 160
    for dt in range(4):
        acc = P5_ACC + dt * 16; h = V_HRES + 2 * dt; t = 152
        e("v_lshlrev_b32 v%d, 16, v%d", t, h)
        e("v_and_b32 v%d, 0xffff0000, v%d", t + 1, h)
        e("v_lshlrev_b32 v%d, 16, v%d", t + 2, h + 1)
        e("v_and_b32 v%d, 0xffff0000, v%d", t + 3, h + 1)
        for q in range(2):
            e("v_pk_add_f32 %s, %s, %s", pr(acc + 2 * q), pr(acc + 2 * q), pr(t + 2 * q))
        e("v_cvt_pk_bf16_f32 v%d, v%d, v%d", O + 2 * dt, acc, acc + 1)
        e("v_cvt_pk_bf16_f32 v%d, v%d, v%d", O + 2 * dt + 1, acc + 2, acc + 3)
    c.srd(R_A, P_OUT, 2 << 20)
    e("v_lshlrev_b32 v%d, 10, v%d", T, V_L16)
    e("v_and_b32 v%d, 1, v%d", T + 1, V_G)
    e("v_lshl_add_u32 v%d, v%d, 5, v%d", T, T + 1, T)
    e("v_lshrrev_b32 v%d, 1, v%d", T + 1, V_G)
    e("v_lshl_add_u32 v%d, v%d, 4, v%d", T, T + 1, T)
    e("s_lshl_b32 s%d, s%d, 2", S_T, S_MB)
    e("s_add_u32 s%d, s%d, s%d", S_T, S_T, S_W)
    e("s_lshl_b32 s%d, s%d, 14", S_T, S_T)
    e("s_lshl_b32 s%d, s%d, 7", S_T + 1, S_NB)
    e("s_add_u32 s%d, s%d, s%d", S_T, S_T, S_T + 1)
    for p in range(2):
        o = O + 4 * p
        c.nop(2)
        e("v_permlane16_swap_b32 v%d, v%d", o, o + 2)
        e("v_permlane16_swap_b32 v%d, v%d", o + 1, o + 3)
        c.bstore(o, 4, T, R_A, S_T, 64 * p, "out")

def touch_wsp(c, dd0, ndd, wq=S_W, tracked=True, V=145):
    e = c.e
    e("s_lshl_b32 s%d, s%d, 18", S_T, S_MB)
    e("s_and_b32 s%d, s%d, 3", S_T + 1, S_NB)
    e("s_lshl_b32 s%d, s%d, 16", S_T + 1, S_T + 1)
    e("s_add_u32 s%d, s%d, s%d", S_T, S_T, S_T + 1)
    e("s_lshl_b32 s%d, s%d, 10", S_T + 1, wq)
    e("s_add_u32 s%d, s%d, s%d", S_T, S_T, S_T + 1)
    c.srd(R_C, P_WSP, 8 << 20)
    e("s_lshr_b32 s%d, s%d, 1", S_T + 1, S_ROTZ)
    e("s_add_u32 s%d, s%d, %d", S_T + 1, S_T + 1, dd0)
    e("v_add_u32 v%d, s%d, v%d", V + 1, S_T + 1, V_G)
    e("v_and_b32 v%d, 7, v%d", V + 1, V + 1)
    e("v_lshlrev_b32 v%d, 12, v%d", V, V_L16)
    e("v_lshl_add_u32 v%d, v%d, 7, v%d", V, V + 1, V)
    e("v_cmp_gt_u32 vcc, %d, v%d", ndd, V_G)
    e("v_mov_b32 v%d, 0x40000000", V + 1)
    e("s_nop 0")
    e("v_cndmask_b32 v%d, v%d, v%d, vcc", V, V + 1, V)
    if tracked: c.bload(V_BIAS, 1, V, R_C, S_T, 0, "touch", c.opt.get("nttouch", ""))
    else: e("buffer_load_dword v%d, v%d, s[%d:%d], s%d offen", V_BIAS, V, R_C, R_C + 3, S_T)

def touch_z2n(c):
    e = c.e
    e("s_lshl_b32 s%d, s%d, 6", S_T, S_NB)
    e("s_lshl_b32 s%d, s%d, 4", S_T + 1, S_W)
    e("s_add_u32 s%d, s%d, s%d", S_T, S_T, S_T + 1)
    e("s_and_b32 s%d, s%d, 7", S_T + 1, S_MB)
    e("s_lshl_b32 s%d, s%d, 1", S_T + 1, S_T + 1)
    e("s_add_u32 s%d, s%d, s%d", S_T, S_T, S_T + 1)
    e("s_mul_i32 s%d, s%d, 7168", S_T, S_T)
    e("s_add_u32 s%d, s%d, 0x%x", S_T, S_T, L.Z2N)
    e("v_lshlrev_b32 v2, 7, v%d", V_LANE)
    c.bload(31, 1, 2, R_WS, S_T, 0, "touch", c.opt.get("zflag", "sc1"))
    e("v_add_u32 v2, 0x2000, v2")
    e("v_cmp_gt_u32 vcc, 48, v%d", V_LANE)
    e("v_mov_b32 v3, 0x40000000")
    e("s_nop 0")
    e("v_cndmask_b32 v2, v3, v2, vcc")
    c.bload(31, 1, 2, R_WS, S_T, 0, "touch", c.opt.get("zflag", "sc1"))
```

```python
import sys
from core import *
import ph12, ph345
KNAME = "sequential_preLN__ssm_conv_h3__mixer_gmlp__prompt_kernel"

def drain_arrive(c, line_sreg, line_imm, boot=False):
    c.vm.wait_all()
    c.lg.wait_all()
    c.e("s_barrier")
    if boot: ph12.wait_boot(c)
    c.arrive(line_sreg, line_imm)

def build(stop=99, stamps=False, fine=False, finer=False, **opt):
    body = Asm()
    c = Ctx(body, stamps)
    c.finestamps = fine
    c.finerstamps = finer
    c.opt = opt
    e = c.e
    kernel_begin(body, KNAME)
    ph12.setup(c)
    ph12.load_D_issue(c)
    ph12.bootstrap_a(c)
    WL = ph345.WLoader(c); SL = ph345.SpLoader(c)
    c.st.stamp("setup")
    ph12.p1_issue(c)
    ph12.p1_issue_x(c)
    ph12.bootstrap_b(c)
    ph12.p1_kv(c)
    ph12.load_D_finish(c)
    ph12.boot_flag_issue(c)
    c.finer("ust")
    ph12.p1_x(c)
    c.lg.wait_all()
    e("s_barrier")
    c.finer("xwork")
    ph12.p1_x_store(c)
    ph12.p1_issue_raw(c)
    ph345.wpre_issue(c)
    c.vm.wait("xst")
    c.finer("acks")
    ph12.boot_flag_check(c)
    e("s_barrier")
    c.garrive(L.C1_LINE)
    c.st.stamp("arr1")
    c.vm.wait("raw")
    c.lg.wait_all()
    e("s_barrier")
    c.finer("raw")
    ph12.toeplitz(c)
    c.finer("toep")
    c.vm.wait("wp")
    c.lg.wait_all()
    e("s_barrier")
    lw0 = body.newlabel("w0p"); ljoin = body.newlabel("w0j")
    e("s_cmp_eq_u32 s%d, 0", S_W)
    e("s_cbranch_scc1 %s", lw0)
    ph345.wpre_store3(c)
    e("s_waitcnt vmcnt(0)")
    e("s_branch %s", ljoin)
    body.label(lw0)
    c.gpoll(L.C1_LINE)
    body.label(ljoin)
    WL.setup()
    e("s_barrier")
    c.garrive(L.C1B_LINE)
    c.st.stamp("B1")
    ph12.p2_issue_u(c)
    sops = ph12.p2_stats_ops(c)
    c.vm.wait("ub")
    e("s_barrier")
    c.finer("ub")
    wl = WL.loads(0, 16)
    take = lambda n: [wl.pop(0) for _ in range(n)]
    def touch_block(dd0, n):
        l0 = body.newlabel("tb"); lt = body.newlabel("t0")
        e("s_cmp_eq_u32 s%d, 0", S_W)
        e("s_cbranch_scc1 %s", l0)
        ph345.touch_wsp(c, dd0, n, tracked=False, V=248)
        e("s_cmp_eq_u32 s%d, 1", S_W)
        e("s_cbranch_scc0 %s", lt)
        e("s_mov_b32 s%d, 0", S_X0)
        ph345.touch_wsp(c, dd0, n, wq=S_X0, tracked=False, V=248)
        body.label(lt)
        body.label(l0)
    def hk0():
        if opt.get('touch1', 1): touch_block(0, 4)
    def hk2(): c.gpoll(L.C1B_LINE, 242, 243, early=True)
    def hk3():
        c.gpoll(L.C1B_LINE, 242, 243, late=True)
        e("s_barrier")
    ph12.p2_main(c, {0: hk0, 2: hk2, 3: hk3}, {0: sops})
    c.st.stamp("p2main")
    c.bgq = take(20)
    ph12.p2_epilogue(c)
    c.finer("p2epi")
    c.bg_flush()
    for f in take(12): f()
    c.vm.wait("st")
    c.lg.wait_all()
    e("s_barrier")
    c.garrive(L.C2_LINE)
    c.st.stamp("arr2")
    ph345.p3_setup(c)
    WL.colsum_prep()
    for ks in range(8, 16):
        for f in take(4): f()
        WL.colsum(ks - 8, ks - 7)
    WL.colsum(8, 16)
    c.finer("wdone")
    SL.setup(); SL.srd()
    c.gpoll(L.C2_LINE)
    e("s_barrier")
    c.st.stamp("B2")
    ph345.p3_issue_h(c)
    s0 = SL.ops(3)
    ph345.p3_main(c, ({1: lambda: ph345.touch_wsp(c, 4, 4)} if opt.get('touch2', 1) else {}),
                  {10 + i: s0[4 * i:4 * i + 4] for i in range(6)})
    c.st.stamp("p3main")
    SL.read(3)
    c.lg.wait_all()
    e("s_barrier")
    SL.rebase(0)
    c.bgq = SL.ops(3)
    c.fine("hstats")
    ph345.p3_z2_gelu_publish(c)
    c.bg_flush()
    c.st.stamp("z2pub")
    SL.read(3)
    c.lg.wait("sl")
    c.fine("slr1")
    c.bgq = SL.ops(2)
    ph345.p3_z1_gelu(c)
    c.bg_flush()
    c.fine("z1")
    ph345.p3_z2_finish(c)
    c.st.stamp("p3done")
    SL.read(2)
    c.vm.wait("st")
    c.lg.wait_all()
    e("s_barrier")
    c.arrive(S_NB, L.C3_LINE)
    c.fine("arr3")
    c.lg.wait_all()
    c.poll(S_NB, L.C3_LINE, 1, 32)
    e("s_barrier")
    c.st.stamp("B3")
    tail = ph345.p5_wout_ops(c)
    ph345.p4_main(c, tail)
    c.st.stamp("p4main")
    ph345.p4_reduce_epilogue(c)
    c.fine("p4red")
    ph345.p4_finish(c)
    c.st.stamp("p4done")
    c.vm.wait("st")
    e("s_barrier")
    c.arrive(S_MB, L.C4_LINE)
    c.fine("arr4")
    c.poll(S_MB, L.C4_LINE, 1, 8)
    e("s_barrier")
    c.st.stamp("C4")
    ph345.p5_main(c)
    c.fine("p5main")
    ph345.p5_epilogue(c)
    c.vm.wait_all()
    c.st.stamp("end")
    c.st.stamp("real1", real=True)
    if opt.get('dbgout') is not None: flush_dbg(c.st, P_DBG, 2, S_W, opt['dbgout'], 32)
    else: c.st.flush(P_WS, L.STAMPS, 2, 32, S_T)
    body.label("KEND")
    e("s_endpgm")
    a = Asm()
    hdr = open("cdna_kernels/%s.s.ref" % KNAME.replace("_kernel", "")).read().split("\n")
    for ln in hdr:
        if ln.startswith("; @launch") or ln.startswith("; Override") or ln.startswith("; grid="): continue
        if not ln.startswith(";"): break
        a(ln)
    a("; @launch grid=(256,1,1) block=(256,1,1) lds=163840")
    a('.amdgcn_target "amdgcn-amd-amdhsa--gfx950"')
    a(".text")
    a(body.text())
    a('.section .rodata,"a"')
    a(".p2align 6")
    kernel_desc(a, KNAME, 512, sgprs=102, accum=256)
    return a.text(), c.st.names

if __name__ == "__main__":
    kw = eval("dict(%s)" % (sys.argv[2] if len(sys.argv) > 2 else ""))
    t, names = build(**kw)
    open(sys.argv[1], "w").write(t)
    open(sys.argv[1] + ".stamps", "w").write(",".join(names))
```

```python
class Asm:
    def __init__(self):
        self.lines = []
        self.uid = 0
    def __call__(self, s=""):
        for ln in s.split("\n"):
            self.lines.append(ln)
    def e(self, fmt, *a):
        self.lines.append("    " + (fmt % a if a else fmt))
    def label(self, name):
        self.lines.append(name + ":")
    def newlabel(self, base="L"):
        self.uid += 1
        return "%s_%d" % (base, self.uid)
    def text(self):
        return "\n".join(self.lines) + "\n"

def vr(base, n=1):
    return "v%d" % base if n == 1 else "v[%d:%d]" % (base, base + n - 1)
def ar(base, n=1):
    return "a%d" % base if n == 1 else "a[%d:%d]" % (base, base + n - 1)
def sr(base, n=1):
    return "s%d" % base if n == 1 else "s[%d:%d]" % (base, base + n - 1)
def rr(idx, n=1):
    if idx < 256:
        assert idx + n <= 256, (idx, n)
        return vr(idx, n)
    return ar(idx - 256, n)

def kernel_begin(a, name):
    a(".globl %s" % name)
    a(".p2align 8")
    a(".type %s,@function" % name)
    a.label(name)

def kernel_desc(a, name, vgprs, sgprs=96, accum=None, ygrid=False):
    if accum is None:
        accum = min(256, (vgprs + 3) // 4 * 4)
    a(".amdhsa_kernel %s" % name)
    a("  .amdhsa_next_free_vgpr %d" % vgprs)
    a("  .amdhsa_next_free_sgpr %d" % sgprs)
    a("  .amdhsa_accum_offset %d" % accum)
    a("  .amdhsa_group_segment_fixed_size 0")
    a("  .amdhsa_kernarg_size 112")
    a("  .amdhsa_user_sgpr_count 2")
    a("  .amdhsa_user_sgpr_kernarg_segment_ptr 1")
    a("  .amdhsa_system_sgpr_workgroup_id_x 1")
    a("  .amdhsa_float_denorm_mode_32 3")
    a("  .amdhsa_float_denorm_mode_16_64 3")
    a(".end_amdhsa_kernel")


class Stamps:
    def __init__(self, a, base=64, on=False, maxn=36):
        self.a, self.base, self.on, self.n, self.maxn = a, base, on, 0, maxn
        self.names = []
    def stamp(self, name, real=False):
        if not self.on or name in getattr(self, 'skip', ()): return
        assert self.n < self.maxn, "too many stamps"
        self.a.e("%s s[100:101]", "s_memrealtime" if real else "s_memtime")
        self.a.e("s_waitcnt lgkmcnt(0)")
        self.a.e("s_mov_b32 s%d, s100", self.base + self.n)
        self.n += 1
        self.names.append(name)
    def flush(self, s_ws, off, s_wg, vtmp, s_tmp):
        if not self.on: return
        a = self.a
        a.e("s_waitcnt vmcnt(0) lgkmcnt(0)")
        a.e("v_and_b32 v%d, 63, v0", vtmp)
        a.e("v_cmp_eq_u32 vcc, 0, v%d", vtmp)
        a.e("s_and_saveexec_b64 s[%d:%d], vcc", s_tmp + 2, s_tmp + 3)
        a.e("v_lshrrev_b32 v%d, 6, v0", vtmp)
        a.e("s_lshl_b32 s%d, s%d, 3", s_tmp, s_wg)
        a.e("v_add_u32 v%d, s%d, v%d", vtmp, s_tmp, vtmp)
        a.e("v_lshlrev_b32 v%d, 8, v%d", vtmp, vtmp)
        a.e("v_add_u32 v%d, 0x%x, v%d", vtmp, off, vtmp)
        for i in range(self.n):
            a.e("v_mov_b32 v%d, s%d", vtmp + 1, self.base + i)
            a.e("global_store_dword v%d, v%d, s[%d:%d] offset:%d", vtmp, vtmp + 1, s_ws, s_ws + 1, 4 * i)
            a.e("s_nop 1")
        a.e("s_waitcnt vmcnt(0)")
        a.e("s_mov_b64 exec, s[%d:%d]", s_tmp + 2, s_tmp + 3)

def flush_dbg(st, p_dbg, s_wg, s_w, wg, vtmp):
    a = st.a
    skip = a.newlabel("dbgf")
    a.e("s_cmp_eq_u32 s%d, %d", s_wg, wg)
    a.e("s_cbranch_scc0 %s", skip)
    a.e("s_cmp_eq_u32 s%d, 0", s_w)
    a.e("s_cbranch_scc0 %s", skip)
    a.e("v_mov_b32 v%d, 0", vtmp)
    n = st.n
    k = 1
    for i in range(2, n - 1):
        if k > 14: break
        a.e("s_sub_u32 s100, s%d, s%d", st.base + i, st.base + 1)
        a.e("v_mov_b32 v%d, s100", vtmp + 1)
        a.e("global_store_dword v%d, v%d, s[%d:%d] offset:%d", vtmp, vtmp + 1, p_dbg, p_dbg + 1, 4 * k)
        a.e("s_nop 1")
        k += 1
    a.e("s_sub_u32 s100, s%d, s%d", st.base + n - 1, st.base)
    a.e("v_mov_b32 v%d, s100", vtmp + 1)
    a.e("global_store_dword v%d, v%d, s[%d:%d] offset:60", vtmp, vtmp + 1, p_dbg, p_dbg + 1)
    a.e("s_waitcnt vmcnt(0)")
    a.label(skip)
```

```python
from core import *
import ph12

pr = lambda r: "v[%d:%d]" % (r, r + 1)
A0 = 256

LDS_WP = 83968
LDS_WOP = 83968 + 7168
def wpre_issue(c):
    e = c.e
    V = 240
    c.srd(R_A, P_WIN, 512 * 3584)
    e("s_and_b32 s%d, s2, 15", S_T)
    e("s_mul_i32 s%d, s%d, %d", S_T, S_T, 32 * 3584)
    e("s_lshr_b32 s%d, s2, 4", S_T + 1)
    e("s_mul_i32 s%d, s%d, 224", S_T + 1, S_T + 1)
    e("s_add_u32 s%d, s%d, s%d", S_T + 4, S_T, S_T + 1)
    for it in range(2):
        e("s_add_u32 s%d, s%d, %d", S_T, S_W, 4 * it)
        e("s_lshl_b32 s%d, s%d, 6", S_T + 1, S_T)
        e("v_add_u32 v%d, s%d, v%d", V, S_T + 1, V_LANE)
        e("v_mul_u32_u24 v%d, 4682, v%d", V + 1, V)
        e("v_lshrrev_b32 v%d, 16, v%d", V + 1, V + 1)
        e("v_mul_u32_u24 v%d, 14, v%d", V + 2, V + 1)
        e("v_sub_u32 v%d, v%d, v%d", V + 2, V, V + 2)
        e("v_mul_u32_u24 v%d, 3584, v%d", V + 1, V + 1)
        e("v_lshl_add_u32 v%d, v%d, 4, v%d", V + 1, V + 2, V + 1)
        e("v_cmp_gt_u32 vcc, 448, v%d", V)
        e("v_mov_b32 v%d, 0x40000000", V + 2)
        e("s_lshl_b32 s%d, s%d, 10", S_T + 1, S_T)
        e("v_cndmask_b32 v%d, v%d, v%d, vcc", V + 3 + it, V + 2, V + 1)
        e("s_cmp_eq_u32 s%d, 7", S_T)
        e("s_cselect_b32 s%d, 0x3000, s%d", S_T + 1, S_T + 1)
        c.dma(V + 3 + it, R_A, S_T + 4, S_T + 1, LDS_WP, "wp", c.opt.get("nt", ""))
    c.srd(R_B, P_WOUT, 896 * 1024)
    e("s_mul_i32 s%d, s2, 2341", S_T)
    e("s_lshr_b32 s%d, s%d, 16", S_T, S_T)
    e("s_mul_i32 s%d, s%d, 28", S_T + 1, S_T)
    e("s_sub_u32 s%d, s2, s%d", S_T + 1, S_T + 1)
    e("s_lshl_b32 s%d, s%d, 15", S_T + 2, S_T + 1)
    e("s_lshl_b32 s%d, s%d, 7", S_T + 3, S_T)
    e("s_add_u32 s%d, s%d, s%d", S_T + 2, S_T + 2, S_T + 3)
    e("s_lshl_b32 s%d, s%d, 13", S_T + 3, S_W)
    e("s_add_u32 s%d, s%d, s%d", S_T + 2, S_T + 2, S_T + 3)
    e("s_cmp_ge_u32 s2, 224")
    e("s_cselect_b32 s%d, 0x40000000, s%d", S_T + 2, S_T + 2)
    e("v_lshrrev_b32 v%d, 3, v%d", V, V_LANE)
    e("v_lshlrev_b32 v%d, 10, v%d", V, V)
    e("v_and_b32 v%d, 7, v%d", V + 1, V_LANE)
    e("v_lshlrev_b32 v%d, 1, v%d", V + 2, V_G)
    e("v_xor_b32 v%d, v%d, v%d", V + 1, V + 1, V + 2)
    e("v_lshl_add_u32 v%d, v%d, 4, v%d", V, V + 1, V)
    e("s_lshl_b32 s%d, s%d, 10", S_T + 3, S_W)
    c.dma(V, R_B, S_T + 2, S_T + 3, LDS_WOP, "wp", c.opt.get("nt", ""))

def wpre_store3(c):
    e = c.e; a = c.a
    V = 240; F = 176
    e("v_lshrrev_b32 v%d, 2, v%d", V, V_L16)
    e("v_lshl_add_u32 v%d, v%d, 2, v%d", V, V_G, V)
    e("v_mul_u32_u24 v%d, 224, v%d", V + 1, V)
    e("v_and_b32 v%d, 3, v%d", V + 2, V_LANE)
    e("v_lshl_add_u32 v%d, v%d, 3, v%d", V + 1, V + 2, V + 1)
    e("v_add_u32 v%d, 0x%x, v%d", V + 1, LDS_WP, V + 1)
    e("v_lshlrev_b32 v%d, 7, v%d", V + 2, V)
    e("v_and_b32 v%d, 1, v%d", V + 3, V_LANE)
    e("v_lshl_add_u32 v%d, v%d, 3, v%d", V + 2, V + 3, V + 2)
    e("v_bfe_u32 v%d, v%d, 1, 1", V + 3, V_LANE)
    e("v_lshl_add_u32 v%d, v%d, 4, v%d", V + 2, V + 3, V + 2)
    e("v_add_u32 v%d, 0x%x, v%d", V + 2, LDS_WOP, V + 2)
    e("v_and_b32 v%d, 1, v%d", V + 3, V_G)
    e("v_lshlrev_b32 v%d, 2, v%d", V + 3, V + 3)
    e("v_bfe_u32 v%d, v%d, 3, 1", V, V_LANE)
    e("v_lshl_add_u32 v%d, v%d, 1, v%d", V + 3, V, V + 3)
    e("v_lshlrev_b32 v%d, 4, v%d", V, V_LANE)
    e("s_lshr_b32 s52, s2, 4")
    e("s_mul_i32 s52, s52, 112")
    e("s_and_b32 s%d, s2, 15", S_T)
    e("s_add_u32 s52, s52, s%d", S_T)
    e("s_lshl_b32 s52, s52, 10")
    e("s_add_u32 s52, s52, 0x%x", L.WINF)
    e("s_mul_i32 s%d, s2, 2341", S_T)
    e("s_lshr_b32 s%d, s%d, 16", S_T, S_T)
    e("s_mul_i32 s%d, s%d, 28", S_T + 1, S_T)
    e("s_sub_u32 s%d, s2, s%d", S_T + 1, S_T + 1)
    e("s_mul_i32 s53, s%d, 112", S_T)
    e("s_add_u32 s53, s53, s%d", S_T + 1)
    e("s_lshl_b32 s53, s53, 10")
    e("s_add_u32 s53, s53, 0x%x", L.WOUTF)
    e("s_cmp_ge_u32 s2, 224")
    e("s_cselect_b32 s53, 0x40000000, s53")
    e("s_sub_u32 s54, s%d, 1", S_W)
    e("s_lshl_b32 s54, s54, 2")
    for sl in range(4):
        isw = a.newlabel("wq"); done = a.newlabel("wqd")
        f = F + 4 * sl
        e("s_add_u32 s55, s54, %d", sl)
        e("s_cmp_lt_u32 s55, 7")
        e("s_cbranch_scc1 %s", isw)
        e("s_sub_u32 s55, s55, 7")
        e("s_lshl_b32 s%d, s55, 1", S_T)
        e("v_xor_b32 v%d, s%d, v%d", V + 4, S_T, V + 3)
        e("v_lshl_add_u32 v%d, v%d, 4, v%d", V + 4, V + 4, V + 2)
        e("ds_read_b64_tr_b16 v[%d:%d], v%d", f, f + 1, V + 4)
        e("ds_read_b64_tr_b16 v[%d:%d], v%d offset:2048", f + 2, f + 3, V + 4)
        e("s_mul_i32 s%d, s55, %d", S_T, 28 * 1024)
        e("s_add_u32 s%d, s%d, s53", S_T, S_T)
        e("s_cmp_ge_u32 s55, 4")
        e("s_cselect_b32 s%d, 0x40000000, s%d", S_T, S_T)
        e("s_branch %s", done)
        a.label(isw)
        e("s_lshl_b32 s%d, s55, 5", S_T)
        e("v_add_u32 v%d, s%d, v%d", V + 4, S_T, V + 1)
        e("ds_read_b64_tr_b16 v[%d:%d], v%d", f, f + 1, V + 4)
        e("ds_read_b64_tr_b16 v[%d:%d], v%d offset:%d", f + 2, f + 3, V + 4, 16 * 224)
        e("s_lshl_b32 s%d, s55, 14", S_T)
        e("s_add_u32 s%d, s%d, s52", S_T, S_T)
        a.label(done)
        e("s_waitcnt lgkmcnt(0)")
        e("buffer_store_dwordx4 v[%d:%d], v%d, s[%d:%d], s%d offen sc1", f, f + 3, V, R_WS, R_WS + 3, S_T)

class WLoader:
    V0, V1 = 240, 241
    S0 = 58
    def __init__(self, c):
        self.c = c; self.issued = 0
    def setup(self):
        c = self.c; e = c.e
        e("v_lshlrev_b32 v%d, 4, v%d", self.V0, V_LANE)
        e("v_add_u32 v%d, 0x40000000, v%d", self.V1, self.V0)
        e("s_cmp_eq_u32 s%d, 3", S_W)
        e("s_cselect_b64 vcc, -1, 0")
        e("v_cndmask_b32 v%d, v%d, v%d, vcc", self.V1, self.V0, self.V1)
        e("s_mul_i32 s59, s%d, 7", S_NB)
        e("s_lshl_b32 s%d, s%d, 1", S_T, S_W)
        e("s_add_u32 s59, s59, s%d", S_T)
        e("s_lshl_b32 s59, s59, 14")
        e("s_add_u32 s59, s59, 0x%x", L.WINF)
        e("s_add_u32 s58, s59, %d", 56 * 16384)
    def loads(self, k0, k1):
        c = self.c; out = []
        for ks in range(k0, k1):
            for slot in range(4):
                def f(ks=ks, slot=slot):
                    base = 58 if slot < 2 else 59
                    if slot == 0:
                        c.e("s_add_u32 s%d, s%d, %d", S_X0, S_ROT, ks)
                        c.e("s_and_b32 s%d, s%d, 15", S_X0, S_X0)
                        c.e("s_lshl_b32 s%d, s%d, 10", S_X0, S_X0)
                    c.e("s_add_u32 s%d, s%d, s%d", S_T, base, S_X0)
                    if slot & 1: c.e("s_add_u32 s%d, s%d, 16384", S_T, S_T)
                    c.bload(A0 + (ks * 4 + slot) * 4, 4, self.V1 if (slot & 1) else self.V0, R_WS, S_T, 0, "W%d" % ks, "sc1")
                out.append(f)
        return out
    def colsum_prep(self):
        for r in range(4): self.c.e("v_mov_b32 v%d, 0x3f803f80", 244 + r)
        self.c.nop(2)
    def colsum(self, k0, k1):
        c = self.c; e = c.e
        c.vm.wait("W%d" % (k1 - 1))
        for ks in range(k0, k1):
            for slot in range(4):
                cc = "0" if ks == 0 else "v[%d:%d]" % (V_CS + 4 * slot, V_CS + 4 * slot + 3)
                e("v_mfma_f32_16x16x32_bf16 v[%d:%d], %s, v[244:247], %s", V_CS + 4 * slot, V_CS + 4 * slot + 3, rr(A0 + (ks * 4 + slot) * 4, 4), cc)

LDS_H = 0
LDS_WSPST = 0
LDS_ZT = 98304
LDS_ZS = 118784
LDS_HST = 126976
LDS_ZROW = 127488
LDS_Z1 = 147456

P3_ACC = 32
P3_HF = 96
P3_AS, P3_AG = 128, 132
P3_RD = 136
P3_ONE = 140

def p3_issue_h(c):
    e = c.e
    V = 144
    e("v_lshrrev_b32 v%d, 3, v%d", V, V_LANE)
    e("v_lshlrev_b32 v%d, 12, v%d", V, V)
    e("v_and_b32 v%d, 7, v%d", V + 1, V_LANE)
    e("v_lshlrev_b32 v%d, 1, v%d", V + 2, V_G)
    e("v_xor_b32 v%d, v%d, v%d", V + 1, V + 1, V + 2)
    e("v_lshl_add_u32 v%d, v%d, 4, v%d", V, V + 1, V)
    e("s_lshl_b32 s%d, s%d, 7", S_T + 1, S_MB)
    e("s_add_u32 s%d, s%d, 0x%x", S_T + 1, S_T + 1, L.HT)
    e("s_lshl_b32 s%d, s%d, 12", S_T + 3, S_W)
    for ch in range(4):
        e("s_add_u32 s%d, s%d, %d", S_T + 2, S_W, 4 * ch)
        e("s_add_u32 s%d, s%d, s%d", S_T + 2, S_T + 2, S_ROT)
        e("s_and_b32 s%d, s%d, 15", S_T + 2, S_T + 2)
        e("s_lshl_b32 s%d, s%d, 17", S_T + 2, S_T + 2)
        e("s_add_u32 s%d, s%d, s%d", S_T + 2, S_T + 2, S_T + 1)
        for i in range(4):
            e("s_add_u32 s%d, s%d, 0x%x", S_T, S_T + 2, 8 * i * 4096)
            c.dma(V, R_WS, S_T, S_T + 3, LDS_H + ch * 16384 + i * 1024, "h%d" % ch, "sc1")

def h_addr(c, dst, jrot):
    pass

def p3_setup(c):
    e = c.e
    T = 144
    e("v_lshrrev_b32 v%d, 2, v%d", T, V_L16)
    e("v_lshl_add_u32 v%d, v%d, 2, v%d", T + 1, V_G, T)
    e("v_lshlrev_b32 v%d, 7, v%d", T + 1, T + 1)
    e("v_and_b32 v%d, 1, v%d", T + 2, V_LANE)
    e("v_lshl_add_u32 v%d, v%d, 3, v%d", T + 1, T + 2, T + 1)
    e("v_bfe_u32 v%d, v%d, 1, 1", T + 2, V_LANE)
    e("v_lshl_add_u32 v%d, v%d, 4, v%d", T + 1, T + 2, T + 1)
    e("v_and_b32 v%d, 1, v%d", T + 2, V_G)
    e("v_lshlrev_b32 v%d, 2, v%d", T + 2, T + 2)
    e("v_lshrrev_b32 v%d, 1, v%d", T + 3, T)
    e("v_lshl_add_u32 v%d, v%d, 1, v%d", T + 2, T + 3, T + 2)
    for j in range(4):
        e("s_add_u32 s%d, s%d, %d", S_T, S_W, j)
        e("s_and_b32 s%d, s%d, 3", S_T, S_T)
        e("s_lshl_b32 s%d, s%d, 1", S_T, S_T)
        e("v_xor_b32 v%d, s%d, v%d", T + 3, S_T, T + 2)
        e("v_lshl_add_u32 v%d, v%d, 4, v%d", P3_RD + j, T + 3, T + 1)
    for r in range(4): e("v_mov_b32 v%d, 0x3f803f80", P3_ONE + r)

P3_SF = 164
def p3_main(c, hooks=None, inter=None):
    e = c.e; hooks = hooks or {}; inter = inter or {}
    def reads(ks):
        f = P3_HF + 16 * (ks & 1); out = []
        for j in range(4):
            for hh in range(2):
                out.append("ds_read_b64_tr_b16 v[%d:%d], v%d offset:%d" % (f + 4 * j + 2 * hh, f + 4 * j + 2 * hh + 1, P3_RD + j, LDS_H + ks * 4096 + hh * 2048))
        return out
    def sreads(kk):
        f = P3_SF + 4 * (kk & 7)
        return ["ds_read_b64_tr_b16 v[%d:%d], v%d offset:%d" % (f + 2 * hh, f + 2 * hh + 1, P3_RD, LDS_H + kk * 4096 + hh * 2048) for hh in range(2)]
    def smfma(kk):
        f = P3_SF + 4 * (kk & 7)
        cs = "0" if kk == 0 else "v[%d:%d]" % (P3_AS, P3_AS + 3)
        cg = "0" if kk == 0 else "v[%d:%d]" % (P3_AG, P3_AG + 3)
        e("v_mfma_f32_16x16x32_bf16 v[%d:%d], v[%d:%d], v[%d:%d], %s", P3_AS, P3_AS + 3, P3_ONE, P3_ONE + 3, f, f + 3, cs)
        e("v_mfma_f32_16x16x32_bf16 v[%d:%d], v[%d:%d], v[%d:%d], %s", P3_AG, P3_AG + 3, f, f + 3, f, f + 3, cg)
    for ks in range(16):
        if ks == 0:
            c.vm.wait("h0")
            c.lg.wait_all()
            e("s_barrier")
            for r in reads(0): c.lg.issue(r, "hf0")
        if ks == 3:
            c.vm.wait("h3")
            e("s_barrier")
        c.lg.wait("hf%d" % ks)
        if 4 <= ks <= 7: c.lg.wait("sf%d" % ks)
        if ks in (1, 4): c.fine("p3k%d" % ks)
        f = P3_HF + 16 * (ks & 1)
        nxt = [(r, "hf%d" % (ks + 1)) for r in reads(ks + 1)] if ks < 15 else []
        if 3 <= ks <= 6:
            i = ks - 3
            nxt = nxt + [(r, "sf%d" % (ks + 1)) for kk in range(4 * i, 4 * i + 4) for r in sreads(kk)]
        ops = list(inter.get(ks, []))
        m = 0
        for slot in range(4):
            for j in range(4):
                acc = P3_ACC + (slot * 4 + j) * 4
                cc = "0" if ks == 0 else "v[%d:%d]" % (acc, acc + 3)
                e("v_mfma_f32_16x16x32_bf16 v[%d:%d], %s, v[%d:%d], %s", acc, acc + 3, rr(A0 + (ks * 4 + slot) * 4, 4), f + 4 * j, f + 4 * j + 3, cc)
                if nxt:
                    r, t = nxt.pop(0); c.lg.issue(r, t)
                if m % 4 == 1 and ops: ops.pop(0)()
                m += 1
        while nxt:
            r, t = nxt.pop(0); c.lg.issue(r, t)
        while ops: ops.pop(0)()
        if 4 <= ks <= 7:
            i = ks - 4
            for kk in range(4 * i, 4 * i + 4): smfma(kk)
        if ks == 8: p3_hstats_a(c)
        if ks == 9: p3_hstats_b(c)
        if ks in hooks: hooks[ks]()
    e("s_lshl_b32 s%d, s%d, 1", S_T, S_NB)
    e("s_sub_u32 s%d, s%d, s%d", S_T, S_T, S_ROT)
    e("s_and_b32 s%d, s%d, 15", S_T, S_T)
    e("s_lshl_b32 s%d, s%d, 12", S_T, S_T)
    e("v_add_u32 v144, s%d, v%d", S_T, P3_RD)
    for dt in range(4):
        c.lg.issue("ds_read_b64_tr_b16 v[%d:%d], v144 offset:%d" % (V_HRES + 2 * dt, V_HRES + 2 * dt + 1, LDS_H + (dt >> 1) * 4096 + (dt & 1) * 2048), "hres")

LDS_HST2 = 163840 - 512
def p3_hstats_a(c):
    e = c.e
    T = 144
    e("v_and_b32 v%d, 3, v%d", T, V_L16)
    e("v_cmp_eq_u32 vcc, 1, v%d", T)
    e("v_cmp_eq_u32 s[%d:%d], 2, v%d", S_T + 2, S_T + 3, T)
    e("v_cmp_eq_u32 s[%d:%d], 3, v%d", S_T + 4, S_T + 5, T)
    e("v_cndmask_b32 v%d, v%d, v%d, vcc", T + 1, P3_AG, P3_AG + 1)
    e("v_cndmask_b32 v%d, v%d, v%d, s[%d:%d]", T + 1, T + 1, P3_AG + 2, S_T + 2, S_T + 3)
    e("v_cndmask_b32 v%d, v%d, v%d, s[%d:%d]", T + 1, T + 1, P3_AG + 3, S_T + 4, S_T + 5)
    e("v_mul_f32 v%d, 0x3b000000, v%d", T + 2, P3_AS)
    e("v_mul_f32 v%d, 0x3b000000, v%d", T + 1, T + 1)
    e("v_fma_f32 v%d, -v%d, v%d, v%d", T + 1, T + 2, T + 2, T + 1)
    e("v_max_f32 v%d, 0, v%d", T + 1, T + 1)
    e("v_add_f32 v%d, 0x3727c5ac, v%d", T + 1, T + 1)
    e("v_rsq_f32 v%d, v%d", T + 4, T + 1)
    e("v_lshrrev_b32 v%d, 2, v%d", T + 3, V_L16)
    e("v_mul_f32 v%d, v%d, v%d", T + 5, T + 4, T + 2)
    e("v_cmp_eq_u32 vcc, v%d, v%d", T + 3, V_G)
    e("s_lshl_b32 s%d, s%d, 7", S_T, S_W)
    e("s_add_u32 s%d, s%d, 0x%x", S_T, S_T, LDS_HST2)
    e("v_lshlrev_b32 v%d, 3, v%d", T + 3, V_L16)
    e("v_add_u32 v%d, s%d, v%d", T + 3, S_T, T + 3)
    e("s_and_saveexec_b64 s[%d:%d], vcc", S_T + 2, S_T + 3)
    c.lg.issue("ds_write_b64 v%d, v[%d:%d]" % (T + 3, T + 4, T + 5), "hs")
    e("s_mov_b64 exec, s[%d:%d]", S_T + 2, S_T + 3)

def p3_hstats_b(c):
    e = c.e
    T = 144
    c.lg.wait("hs")
    e("s_barrier")
    e("v_lshlrev_b32 v%d, 3, v%d", T + 3, V_L16)
    for j in range(4):
        e("s_add_u32 s%d, s%d, %d", S_T, S_W, j)
        e("s_and_b32 s%d, s%d, 3", S_T, S_T)
        e("s_lshl_b32 s%d, s%d, 7", S_T, S_T)
        e("s_add_u32 s%d, s%d, 0x%x", S_T, S_T, LDS_HST2)
        e("v_add_u32 v%d, s%d, v%d", T + 4, S_T, T + 3)
        c.lg.issue("ds_read_b64 v[%d:%d], v%d" % (150 + 2 * j, 151 + 2 * j, T + 4), "hs2")

GC0, GC1 = 60, 62
def gelu_consts(c):
    import struct
    f2u = lambda x: struct.unpack("<I", struct.pack("<f", x))[0]
    k = -2.0 * 0.7978845608028654 * 1.4426950408889634
    c.e("s_mov_b32 s60, 0x%x", f2u(k)); c.e("s_mov_b32 s61, 0x%x", f2u(k))
    c.e("s_mov_b32 s62, 0x%x", f2u(k * 0.044715)); c.e("s_mov_b32 s63, 0x%x", f2u(k * 0.044715))

def gelu_tile(c, acc, slot, j, T, nbg=0):
    e = c.e
    R = 150 + 2 * j
    if nbg >= 1: c.bg(1)
    for q in range(2):
        x = acc + 2 * q; cs = V_CS + 4 * slot + 2 * q; t = T + 8 * q
        e("v_pk_mul_f32 %s, %s, %s op_sel:[0,1] op_sel_hi:[1,1]", pr(t), pr(cs), pr(R))
    for q in range(2):
        x = acc + 2 * q; t = T + 8 * q
        e("v_pk_fma_f32 %s, %s, %s, %s op_sel_hi:[1,0,1] neg_lo:[0,0,1] neg_hi:[0,0,1]", pr(x), pr(x), pr(R), pr(t))
    for q in range(2):
        x = acc + 2 * q; t = T + 8 * q
        e("v_pk_mul_f32 %s, %s, %s", pr(t), pr(x), pr(x))
    for q in range(2):
        x = acc + 2 * q; t = T + 8 * q
        e("v_pk_fma_f32 %s, %s, s[62:63], %s", pr(t), pr(t), pr(t + 2))
    for q in range(2):
        x = acc + 2 * q; t = T + 8 * q
        e("v_pk_mul_f32 %s, %s, %s", pr(t), pr(t), pr(x))
    for q in range(2):
        t = T + 8 * q
        e("v_exp_f32 v%d, v%d", t, t); e("v_exp_f32 v%d, v%d", t + 1, t + 1)
    if nbg >= 2: c.bg(1)
    else: e("s_nop 0")
    e("s_nop 0")
    for q in range(2):
        t = T + 8 * q
        e("v_pk_add_f32 %s, %s, %s", pr(t), pr(t), pr(t + 4))
    for q in range(2):
        t = T + 8 * q
        e("v_rcp_f32 v%d, v%d", t, t); e("v_rcp_f32 v%d, v%d", t + 1, t + 1)
    if nbg >= 3: c.bg(1)
    e("s_nop 0")
    for q in range(2):
        x = acc + 2 * q; t = T + 8 * q
        e("v_pk_mul_f32 %s, %s, %s", pr(x), pr(x), pr(t))

def gelu_tile_bg(c, acc, slot, j, T, nbg):
    gelu_tile(c, acc, slot, j, T, nbg)

def gelu_setup(c, T):
    e = c.e
    gelu_consts(c)
    for q in range(2):
        t = T + 8 * q
        e("v_mov_b32 v%d, s60", t + 2); e("v_mov_b32 v%d, s60", t + 3)
        e("v_mov_b32 v%d, 1.0", t + 4); e("v_mov_b32 v%d, 1.0", t + 5)

def p3_z2_gelu_publish(c):
    e = c.e
    T = 160
    gelu_setup(c, T)
    SUM = 176
    for j in range(4):
        for slot in range(2):
            acc = P3_ACC + (slot * 4 + j) * 4
            gelu_tile_bg(c, acc, slot, j, T, 3)
            s0, q0 = SUM + 4 * j, SUM + 4 * j + 2
            if slot == 0:
                e("v_pk_add_f32 %s, %s, %s", pr(s0), pr(acc), pr(acc + 2))
                e("v_pk_mul_f32 %s, %s, %s", pr(q0), pr(acc), pr(acc))
            else:
                e("v_pk_add_f32 %s, %s, %s", pr(s0), pr(s0), pr(acc))
                e("v_pk_add_f32 %s, %s, %s", pr(s0), pr(s0), pr(acc + 2))
                e("v_pk_fma_f32 %s, %s, %s, %s", pr(q0), pr(acc), pr(acc), pr(q0))
            e("v_pk_fma_f32 %s, %s, %s, %s", pr(q0), pr(acc + 2), pr(acc + 2), pr(q0))
    e("s_lshl_b32 s%d, s%d, 11", S_T + 1, S_W)
    e("s_add_u32 s%d, s%d, 0x%x", S_T + 1, S_T + 1, LDS_ZS)
    e("v_lshlrev_b32 v%d, 9, v%d", T, V_G)
    e("v_lshl_add_u32 v%d, v%d, 3, v%d", T, V_L16, T)
    e("v_add_u32 v%d, s%d, v%d", T, S_T + 1, T)
    for j in range(4):
        s0, q0 = SUM + 4 * j, SUM + 4 * j + 2
        e("v_add_f32 v%d, v%d, v%d", s0, s0, s0 + 1)
        e("v_add_f32 v%d, v%d, v%d", s0 + 1, q0, q0 + 1)
        e("s_add_u32 s%d, s%d, %d", S_T, S_W, j)
        e("s_and_b32 s%d, s%d, 3", S_T, S_T)
        e("s_lshl_b32 s%d, s%d, 7", S_T, S_T)
        e("v_add_u32 v%d, s%d, v%d", T + 1, S_T, T)
        c.lg.issue("ds_write_b64 v%d, v[%d:%d]" % (T + 1, s0, s0 + 1))
    c.lg.wait_all()
    e("s_barrier")
    e("s_lshl_b32 s%d, s%d, 7", S_T, S_W)
    e("s_add_u32 s%d, s%d, 0x%x", S_T, S_T, LDS_ZS)
    e("v_lshlrev_b32 v%d, 9, v%d", T, V_G)
    e("v_lshl_add_u32 v%d, v%d, 3, v%d", T, V_L16, T)
    e("v_add_u32 v%d, s%d, v%d", T, S_T, T)
    for w in range(4):
        c.lg.issue("ds_read_b64 v[%d:%d], v%d offset:%d" % (SUM + 2 * w, SUM + 2 * w + 1, T, w * 2048))
    c.lg.wait_all()
    e("v_pk_add_f32 %s, %s, %s", pr(SUM), pr(SUM), pr(SUM + 2))
    e("v_pk_add_f32 %s, %s, %s", pr(SUM + 4), pr(SUM + 4), pr(SUM + 6))
    e("v_pk_add_f32 %s, %s, %s", pr(SUM), pr(SUM), pr(SUM + 4))
    for swap in ("v_permlane16_swap_b32", "v_permlane32_swap_b32"):
        e("v_mov_b32 v%d, v%d", SUM + 2, SUM)
        e("v_mov_b32 v%d, v%d", SUM + 3, SUM + 1)
        c.nop(2)
        e("%s v%d, v%d", swap, SUM, SUM + 2)
        e("%s v%d, v%d", swap, SUM + 1, SUM + 3)
        c.nop(1)
        e("v_pk_add_f32 %s, %s, %s", pr(SUM), pr(SUM), pr(SUM + 2))
    e("s_lshl_b32 s%d, s%d, 3", S_T, S_MB)
    e("s_add_u32 s%d, s%d, s%d", S_T, S_T, S_NB)
    e("s_lshl_b32 s%d, s%d, 9", S_T, S_T)
    e("s_lshl_b32 s%d, s%d, 7", S_T + 1, S_W)
    e("s_add_u32 s%d, s%d, s%d", S_T, S_T, S_T + 1)
    e("s_add_u32 s%d, s%d, 0x%x", S_T, S_T, L.ZST)
    e("v_lshlrev_b32 v%d, 3, v%d", T, V_L16)
    e("s_mov_b64 s[%d:%d], exec", S_T + 2, S_T + 3)
    e("s_mov_b64 exec, 0xffff")
    c.bstore(SUM, 2, T, R_WS, S_T, 0, "zst", "sc1")
    e("s_mov_b64 exec, s[%d:%d]", S_T + 2, S_T + 3)

def p3_z1_gelu(c):
    e = c.e
    T = 160
    e("v_lshlrev_b32 v176, 3, v%d", V_LANE)
    e("s_lshl_b32 s%d, s%d, 10", S_T + 1, S_W)
    e("s_add_u32 s%d, s%d, 0x%x", S_T + 1, S_T + 1, LDS_Z1)
    e("v_add_u32 v176, s%d, v176", S_T + 1)
    for j in range(4):
        e("s_add_u32 s%d, s%d, %d", S_T, S_W, j)
        e("s_and_b32 s%d, s%d, 3", S_T, S_T)
        e("s_lshl_b32 s%d, s%d, 12", S_T, S_T)
        e("v_add_u32 v177, s%d, v176", S_T)
        for sl in range(2):
            slot = 2 + sl
            acc = P3_ACC + (slot * 4 + j) * 4
            gelu_tile_bg(c, acc, slot, j, T, 3)
            e("v_cvt_pk_bf16_f32 v%d, v%d, v%d", acc, acc, acc + 1)
            e("v_cvt_pk_bf16_f32 v%d, v%d, v%d", acc + 1, acc + 2, acc + 3)
            c.lg.issue("ds_write_b64 v177, v[%d:%d] offset:%d" % (acc, acc + 1, sl * 512))

def p3_z2_finish(c):
    e = c.e; a = c.a
    T = 160; G = 180
    e("s_lshl_b32 s%d, s%d, 12", S_T, S_MB)
    e("s_add_u32 s%d, s%d, 0x%x", S_T, S_T, L.ZST)
    e("v_lshlrev_b32 v%d, 3, v%d", T, V_LANE)
    loop = a.newlabel("zp"); done = a.newlabel("zpd")
    e("s_mov_b32 s%d, 0", S_T + 1)
    a.label(loop)
    for n in range(8):
        e("buffer_load_dwordx2 v[%d:%d], v%d, s[%d:%d], s%d offen offset:%d sc1", G + 2 * n, G + 2 * n + 1, T, R_WS, R_WS + 3, S_T, 512 * n)
    e("s_waitcnt vmcnt(0)")
    c.vm.q = []
    e("v_min_f32 v%d, v%d, v%d", T + 1, G + 1, G + 3)
    for n in range(2, 8):
        e("v_min_f32 v%d, v%d, v%d", T + 1, T + 1, G + 2 * n + 1)
    e("v_cmp_gt_f32 vcc, 0, v%d", T + 1)
    e("s_nop 1")
    e("s_cmp_eq_u64 vcc, 0")
    e("s_cbranch_scc1 %s", done)
    e("s_add_u32 s%d, s%d, 1", S_T + 1, S_T + 1)
    e("s_cmp_lt_u32 s%d, 0x100000", S_T + 1)
    e("s_cbranch_scc1 %s", loop)
    a.label(done)
    c.fine("zpoll")
    for n in range(1, 8):
        e("v_pk_add_f32 %s, %s, %s", pr(G), pr(G), pr(G + 2 * n))
    import struct
    inv = struct.unpack("<I", struct.pack("<f", 1.0 / 896))[0]
    e("v_mul_f32 v%d, 0x%x, v%d", G, inv, G)
    e("v_mul_f32 v%d, 0x%x, v%d", G + 1, inv, G + 1)
    e("v_fma_f32 v%d, -v%d, v%d, v%d", G + 1, G, G, G + 1)
    e("v_max_f32 v%d, 0, v%d", G + 1, G + 1)
    e("v_add_f32 v%d, 0x3727c5ac, v%d", G + 1, G + 1)
    e("v_rsq_f32 v%d, v%d", G + 2, G + 1)
    e("s_nop 0")
    e("v_mul_f32 v%d, v%d, v%d", G + 3, G, G + 2)
    e("v_sub_f32 v%d, 0, v%d", G + 3, G + 3)
    e("s_lshl_b32 s%d, s%d, 9", S_T, S_W)
    e("s_add_u32 s%d, s%d, 0x%x", S_T, S_T, LDS_ZROW)
    e("v_add_u32 v%d, s%d, v%d", T + 1, S_T, T)
    c.lg.issue("ds_write_b64 v%d, v[%d:%d]" % (T + 1, G + 2, G + 3))
    c.lg.wait_all()
    e("v_lshlrev_b32 v%d, 3, v%d", T + 2, V_L16)
    e("v_add_u32 v%d, s%d, v%d", T + 2, S_T, T + 2)
    for j in range(4):
        e("s_add_u32 s%d, s%d, %d", S_T + 1, S_W, j)
        e("s_and_b32 s%d, s%d, 3", S_T + 1, S_T + 1)
        e("s_lshl_b32 s%d, s%d, 7", S_T + 1, S_T + 1)
        e("v_add_u32 v%d, s%d, v%d", T + 3, S_T + 1, T + 2)
        c.lg.issue("ds_read_b64 v[%d:%d], v%d" % (150 + 2 * j, 151 + 2 * j, T + 3))
    c.lg.wait_all()
    e("s_mul_i32 s%d, s%d, 5120", S_T, S_W)
    e("s_add_u32 s%d, s%d, 0x%x", S_T, S_T, LDS_ZT)
    e("v_mul_u32_u24 v%d, 40, v%d", T + 4, V_L16)
    e("v_lshl_add_u32 v%d, v%d, 3, v%d", T + 4, V_G, T + 4)
    e("v_add_u32 v%d, s%d, v%d", T + 4, S_T, T + 4)
    for j in range(4):
        R = 150 + 2 * j
        e("s_add_u32 s%d, s%d, %d", S_T + 1, S_W, j)
        e("s_and_b32 s%d, s%d, 3", S_T + 1, S_T + 1)
        e("s_mul_i32 s%d, s%d, 640", S_T + 1, S_T + 1)
        e("v_add_u32 v%d, s%d, v%d", T + 5, S_T + 1, T + 4)
        for slot in range(2):
            acc = P3_ACC + (slot * 4 + j) * 4
            for q in range(2):
                x = acc + 2 * q
                e("v_pk_fma_f32 %s, %s, %s, %s op_sel:[0,0,1] op_sel_hi:[1,0,1]", pr(x), pr(x), pr(R), pr(R))
            e("v_cvt_pk_bf16_f32 v%d, v%d, v%d", acc, acc, acc + 1)
            e("v_cvt_pk_bf16_f32 v%d, v%d, v%d", acc + 1, acc + 2, acc + 3)
            c.lg.issue("ds_write_b64 v%d, v[%d:%d] offset:%d" % (T + 5, acc, acc + 1, slot * 2560))
    c.lg.wait_all()
    e("v_lshrrev_b32 v%d, 2, v%d", T + 4, V_L16)
    e("v_lshl_add_u32 v%d, v%d, 2, v%d", T + 4, V_G, T + 4)
    e("v_mul_u32_u24 v%d, 40, v%d", T + 4, T + 4)
    e("v_and_b32 v%d, 3, v%d", T + 5, V_LANE)
    e("v_lshl_add_u32 v%d, v%d, 3, v%d", T + 4, T + 5, T + 4)
    e("v_add_u32 v%d, s%d, v%d", T + 4, S_T, T + 4)
    O = 96
    for slot in range(2):
        for pp in range(2):
            for hh in range(2):
                d = O + (slot * 2 + pp) * 4 + 2 * hh
                c.lg.issue("ds_read_b64_tr_b16 v[%d:%d], v%d offset:%d" % (d, d + 1, T + 4, slot * 2560 + (32 * pp + 16 * hh) * 40), "o%d%d" % (slot, pp))
    e("s_lshl_b32 s%d, s%d, 6", S_T, S_NB)
    e("s_lshl_b32 s%d, s%d, 1", S_T + 1, S_MB)
    e("s_add_u32 s%d, s%d, s%d", S_T, S_T, S_T + 1)
    e("s_mul_i32 s%d, s%d, 7", S_T, S_T)
    e("s_lshl_b32 s%d, s%d, 1", S_T + 1, S_W)
    e("s_add_u32 s%d, s%d, s%d", S_T, S_T, S_T + 1)
    e("s_lshl_b32 s%d, s%d, 10", S_T, S_T)
    e("s_add_u32 s%d, s%d, 0x%x", S_T, S_T, L.Z2N)
    e("v_lshlrev_b32 v%d, 4, v%d", T + 5, V_LANE)
    e("v_add_u32 v%d, 0x40000000, v%d", T + 6, T + 5)
    e("s_cmp_eq_u32 s%d, 3", S_W)
    e("s_cselect_b64 vcc, -1, 0")
    e("v_cndmask_b32 v%d, v%d, v%d, vcc", T + 6, T + 5, T + 6)
    for slot in range(2):
        for pp in range(2):
            e("s_add_u32 s%d, s%d, %d", S_T + 1, S_T, (pp * 7 + slot) * 1024)
            c.lg.wait("o%d%d" % (slot, pp))
            c.bstore(O + (slot * 2 + pp) * 4, 4, T + 5 + slot, R_WS, S_T + 1, 0, "st", "sc1")

class SpLoader:
    NST = 3
    base = 65536
    V_DMA = 200
    V_RD = 208
    S_LDS, S_K = 58, 59
    def __init__(self, c):
        self.c = c; self.issued = 0; self.read_ = 0
    def setup(self):
        c = self.c; e = c.e
        T = 212
        e("v_lshrrev_b32 v%d, 3, v%d", T, V_LANE)
        e("v_lshlrev_b32 v%d, 12, v%d", T, T)
        e("v_and_b32 v%d, 7, v%d", T + 1, V_LANE)
        e("v_xor_b32 v%d, v%d, v%d", T + 1, T + 1, V_G)
        e("v_xor_b32 v%d, 4, v%d", T + 2, T + 1)
        e("v_lshl_add_u32 v%d, v%d, 4, v%d", T + 1, T + 1, T)
        e("v_lshl_add_u32 v%d, v%d, 4, v%d", T + 2, T + 2, T)
        for i in range(8):
            jj = i // 2
            e("s_add_u32 s%d, s%d, %d", S_T, S_W, jj)
            e("s_and_b32 s%d, s%d, 3", S_T, S_T)
            e("s_lshl_b32 s%d, s%d, 16", S_T, S_T)
            e("s_add_u32 s%d, s%d, %d", S_T, S_T, (i % 2) * 8 * 4096)
            e("v_add_u32 v%d, s%d, v%d", self.V_DMA + i, S_T, T + 1 + (i % 2))
        e("s_mul_i32 s%d, s%d, %d", self.S_LDS, S_W, self.NST * 8192)
        e("s_add_u32 s%d, s%d, %d", self.S_LDS, self.S_LDS, self.base)
        e("v_lshrrev_b32 v%d, 1, v%d", T + 1, V_L16)
        e("v_lshrrev_b32 v%d, 1, v%d", T + 2, V_G)
        e("v_xor_b32 v%d, v%d, v%d", T + 1, T + 1, T + 2)
        e("v_and_b32 v%d, 1, v%d", T + 2, V_G)
        e("v_lshlrev_b32 v%d, 3, v%d", T + 2, T + 2)
        e("v_lshl_add_u32 v%d, v%d, 7, v%d", T + 2, V_L16, T + 2)
        e("v_add_u32 v%d, s%d, v%d", T + 2, self.S_LDS, T + 2)
        for kk in range(2):
            for hh in range(2):
                e("v_xor_b32 v%d, %d, v%d", T + 3, 4 * kk + 2 * hh, T + 1)
                e("v_lshl_add_u32 v%d, v%d, 4, v%d", self.V_RD + 2 * kk + hh, T + 3, T + 2)
        e("s_lshl_b32 s%d, s%d, 10", self.S_K, S_W)
    def rebase(self, newbase):
        c = self.c; e = c.e
        d = newbase - self.base
        e("s_add_u32 s%d, s%d, %d", self.S_LDS, self.S_LDS, d) if d >= 0 else e("s_sub_u32 s%d, s%d, %d", self.S_LDS, self.S_LDS, -d)
        for i in range(4):
            if d >= 0: e("v_add_u32 v%d, %d, v%d", self.V_RD + i, d, self.V_RD + i)
            else: e("v_subrev_u32 v%d, %d, v%d", self.V_RD + i, -d, self.V_RD + i)
        self.base = newbase
    def srd(self):
        c = self.c; e = c.e
        e("s_lshl_b32 s%d, s%d, 18", S_T, S_MB)
        c.srd(R_B, P_WSP, 0x40000, off_sreg=S_T)
    def ops(self, n):
        c = self.c; out = []
        for _ in range(n):
            dd = self.issued
            st = dd % self.NST
            for i in range(8):
                def f(dd=dd, st=st, i=i):
                    if i == 0:
                        c.e("s_lshr_b32 s%d, s%d, 1", S_X1, S_ROTZ)
                        c.e("s_add_u32 s%d, s%d, %d", S_X1, S_X1, dd)
                        c.e("s_and_b32 s%d, s%d, 7", S_X1, S_X1)
                        c.e("s_lshl_b32 s%d, s%d, 7", S_X1, S_X1)
                        c.e("s_add_u32 s%d, s%d, s%d", S_X1, S_X1, self.S_K)
                    c.dma(self.V_DMA + i, R_B, S_X1, self.S_LDS, st * 8192 + i * 1024, "S%d" % dd, c.opt.get("ntsp", ""))
                out.append(f)
            self.issued += 1
        return out
    def issue(self, n=1):
        for f in self.ops(n): f()
    def read(self, n):
        c = self.c
        for _ in range(n):
            dd = self.read_
            c.vm.wait("S%d" % dd)
            st = dd % self.NST
            for kk in range(2):
                for j in range(4):
                    for hh in range(2):
                        dst = A0 + ((dd * 2 + kk) * 4 + j) * 4 + 2 * hh
                        c.lg.issue("ds_read_b64 %s, v%d offset:%d" % (rr(dst, 2), self.V_RD + 2 * kk + hh, st * 8192 + j * 2048), "sl")
            self.read_ += 1
    def refill(self, n):
        self.c.lg.wait("sl")
        self.issue(n)

P4_ACC = 32
P4_ZB = 144
def p4_main(c, tail_ops):
    e = c.e
    NZ = 4
    e("v_lshlrev_b32 v29, 4, v%d", V_LANE)
    e("v_add_u32 v30, 0x1000, v29")
    e("s_lshl_b32 s%d, s%d, 6", 56, S_NB)
    e("s_lshl_b32 s%d, s%d, 4", 57, S_W)
    e("s_add_u32 s56, s56, s57")
    e("s_mul_i32 s56, s56, 7168")
    e("s_add_u32 s56, s56, 0x%x", L.Z2N)
    def issue_z(ks, ft):
        d, v, imm = P4_ZB + (ks % NZ) * 28 + 4 * ft, 29 + ft // 4, (ft % 4) * 1024
        if ft == 0:
            e("s_add_u32 s57, s%d, %d", S_ROTZ, ks)
            e("s_and_b32 s57, s57, 15")
            e("s_mul_i32 s57, s57, 7168")
            e("s_add_u32 s57, s57, s56")
        c.bload(d, 4, v, R_WS, 57, imm, "z%d" % ks, c.opt.get("zflag", "sc1"))
    for ks in range(NZ - 1):
        for ft in range(7): issue_z(ks, ft)
    T = 2
    e("s_mul_i32 s%d, s%d, 24576", S_T + 2, S_W)
    e("v_lshlrev_b32 v%d, 4, v%d", T + 1, V_LANE)
    e("v_add_u32 v%d, s%d, v%d", T, S_T + 2, T + 1)
    for ks in range(16):
        c.vm.wait("z%d" % ks)
        if ks in (0, 4, 12): c.fine("p4k%d" % ks)
        nk = ks + NZ - 1
        m = 0; nf = 0
        order = [(ft, j) for ft in range(7) for j in range(4)]
        if ks == 15:
            order = [(ft, j) for j in (1, 2, 3, 0) for ft in range(7)]
        pend = []
        for (ft, j) in order:
            acc = P4_ACC + (ft * 4 + j) * 4
            cc = "0" if ks == 0 else "v[%d:%d]" % (acc, acc + 3)
            z = P4_ZB + (ks % NZ) * 28 + 4 * ft
            e("v_mfma_f32_16x16x32_bf16 v[%d:%d], v[%d:%d], %s, %s", acc, acc + 3, z, z + 3, rr(A0 + (ks * 4 + j) * 4, 4), cc)
            m += 1
            if nk < 16 and m % 4 == 0 and nf < 7:
                issue_z(nk, nf); nf += 1
            if nk >= 16 and m % 4 == 0 and tail_ops:
                tail_ops.pop(0)()
            if ks == 15:
                if j != 0: pend.append((ft, j, m))
                while pend and m - pend[0][2] >= 8:
                    f2, j2, _ = pend.pop(0)
                    a2 = P4_ACC + (f2 * 4 + j2) * 4
                    c.lg.issue("ds_write_b128 v%d, v[%d:%d] offset:%d" % (T, a2, a2 + 3, (j2 - 1) * 7168 + f2 * 1024))
    c.p4_pend = pend
    c.bgq = tail_ops

def p4_reduce_epilogue(c):
    e = c.e
    T = 144
    e("s_lshl_b32 s%d, s%d, 2", S_T, S_MB)
    e("s_add_u32 s%d, s%d, s%d", S_T, S_T, S_W)
    e("s_lshl_b32 s%d, s%d, 5", S_T + 1, S_T)
    e("v_lshlrev_b32 v%d, 1, v%d", T, V_L16)
    e("v_add_u32 v%d, s%d, v%d", T, S_T + 1, T)
    c.vm.issue("global_load_ushort v%d, v%d, s[%d:%d]" % (V_BIAS, T, P_BSP, P_BSP + 1), "bias")
    c.nop(8)
    for (f2, j2, _) in c.p4_pend:
        a2 = P4_ACC + (f2 * 4 + j2) * 4
        c.lg.issue("ds_write_b128 v2, v[%d:%d] offset:%d" % (a2, a2 + 3, (j2 - 1) * 7168 + f2 * 1024))
    e("v_lshlrev_b32 v%d, 4, v%d", T + 1, V_LANE)
    for j in range(1, 4):
        e("s_sub_u32 s%d, s%d, %d", S_T + 2, S_W, j)
        e("s_and_b32 s%d, s%d, 3", S_T + 2, S_T + 2)
        e("s_mul_i32 s%d, s%d, 24576", S_T + 2, S_T + 2)
        e("v_add_u32 v%d, s%d, v%d", T + 2 + j, S_T + 2, T + 1)
    c.bg(2)
    c.lg.wait_all()
    e("s_barrier")
    R = 152
    for j in range(1, 4):
        for ft in range(7):
            d = R + (j - 1) * 28 + 4 * ft
            c.lg.issue("ds_read_b128 v[%d:%d], v%d offset:%d" % (d, d + 3, T + 2 + j, (j - 1) * 7168 + ft * 1024), "r%d" % j)
        c.bg(1)
    Z1 = 236
    e("s_lshl_b32 s%d, s%d, 12", S_T + 2, S_W)
    e("s_add_u32 s%d, s%d, 0x%x", S_T + 2, S_T + 2, LDS_Z1)
    e("v_lshlrev_b32 v%d, 3, v%d", T + 6, V_LANE)
    e("v_add_u32 v%d, s%d, v%d", T + 6, S_T + 2, T + 6)
    for ft in range(7):
        c.lg.issue("ds_read_b64 v[%d:%d], v%d offset:%d" % (Z1 + 2 * ft, Z1 + 2 * ft + 1, T + 6, ft * 512), "z1")
    for j in range(1, 4):
        c.lg.wait("r%d" % j)
        for ft in range(7):
            acc = P4_ACC + (ft * 4) * 4
            d = R + (j - 1) * 28 + 4 * ft
            for q in range(2):
                e("v_pk_add_f32 %s, %s, %s", pr(acc + 2 * q), pr(acc + 2 * q), pr(d + 2 * q))
        c.bg(1)
    c.bg_flush()
    c.lg.wait_all()

def p4_finish(c):
    e = c.e; a = c.a
    T = 144; Z1 = 236
    c.vm.wait("bias")
    e("v_lshlrev_b32 v%d, 16, v%d", V_BIAS, V_BIAS)
    e("s_lshl_b32 s%d, s%d, 2", S_T, S_MB)
    e("s_add_u32 s%d, s%d, s%d", S_T, S_T, S_W)
    e("s_mul_i32 s%d, s%d, %d", S_T, S_T, 28 * 1024)
    e("s_add_u32 s%d, s%d, 0x%x", S_T, S_T, L.PF)
    e("s_mul_i32 s%d, s%d, 7", S_T + 1, S_NB)
    e("s_lshr_b32 s%d, s%d, 1", S_T + 2, S_T + 1)
    e("s_lshl_b32 s%d, s%d, 10", S_T + 2, S_T + 2)
    e("s_add_u32 s%d, s%d, s%d", S_T, S_T, S_T + 2)
    e("v_lshlrev_b32 v%d, 4, v%d", T + 1, V_LANE)
    O = 152
    for ft in range(7):
        x = P4_ACC + ft * 16
        z = Z1 + 2 * ft; t = T + 2
        e("v_lshlrev_b32 v%d, 16, v%d", t, z)
        e("v_and_b32 v%d, 0xffff0000, v%d", t + 1, z)
        e("v_lshlrev_b32 v%d, 16, v%d", t + 2, z + 1)
        e("v_and_b32 v%d, 0xffff0000, v%d", t + 3, z + 1)
        for r in range(4): e("v_add_f32 v%d, v%d, v%d", x + r, x + r, V_BIAS)
        for q in range(2): e("v_pk_mul_f32 %s, %s, %s", pr(x + 2 * q), pr(x + 2 * q), pr(t + 2 * q))
        e("v_cvt_pk_bf16_f32 v%d, v%d, v%d", O + 2 * ft, x, x + 1)
        e("v_cvt_pk_bf16_f32 v%d, v%d, v%d", O + 2 * ft + 1, x + 2, x + 3)
    odd = a.newlabel("podd"); done = a.newlabel("pdone")
    e("s_bitcmp1_b32 s%d, 0", S_NB)
    e("s_cbranch_scc1 %s", odd)
    txt = lambda src, n, imm: "buffer_store_%s %s, v%d, s[%d:%d], s%d offen offset:%d sc1" % ({2: "dwordx2", 4: "dwordx4"}[n], rr(src, n), T + 1, R_WS, R_WS + 3, S_T, imm)
    for p in range(3): e(txt(O + 4 * p, 4, 1024 * p))
    e(txt(O + 12, 2, 3072))
    e("s_branch %s", done)
    a.label(odd)
    e(txt(O, 2, 8))
    for p in range(3):
        e("v_mov_b32 v%d, v%d", T + 4, O + 2 + 4 * p); e("v_mov_b32 v%d, v%d", T + 5, O + 3 + 4 * p)
        e("v_mov_b32 v%d, v%d", T + 6, O + 4 + 4 * p); e("v_mov_b32 v%d, v%d", T + 7, O + 5 + 4 * p)
        e(txt(T + 4, 4, 1024 * (p + 1)))
        e("s_nop 1")
    a.label(done)
    for _ in range(4): c.vm.q.append("st")

LDS_WO = 0
def p5_wout_ops(c):
    e = c.e
    e("v_lshlrev_b32 v31, 4, v%d", V_LANE)
    e("s_lshl_b32 s58, s%d, 2", S_NB)
    e("s_mul_i32 s58, s58, 28")
    e("s_mul_i32 s%d, s%d, 7", S_T, S_W)
    e("s_add_u32 s58, s58, s%d", S_T)
    e("s_lshl_b32 s58, s58, 10")
    e("s_add_u32 s58, s58, 0x%x", L.WOUTF)
    out = []
    for kl in range(7):
        for dt in range(4):
            def f(kl=kl, dt=dt):
                if dt == 0:
                    c.e("s_add_u32 s%d, s%d, %d", S_X0, S_ROT5, kl)
                    c.e("s_cmp_ge_u32 s%d, 7", S_X0)
                    c.e("s_cselect_b32 s%d, 7, 0", S_X1)
                    c.e("s_sub_u32 s%d, s%d, s%d", S_X0, S_X0, S_X1)
                    c.e("s_lshl_b32 s%d, s%d, 10", S_X0, S_X0)
                    c.e("s_add_u32 s%d, s%d, s58", S_X0, S_X0)
                c.e("s_add_u32 s%d, s%d, %d", S_T, S_X0, dt * 28 * 1024)
                c.bload(A0 + (kl * 4 + dt) * 4, 4, 31, R_WS, S_T, 0, "wo%d" % kl, "sc1")
            out.append(f)
    return out

P5_ACC = 32
P5_PF = 96
def p5_main(c):
    e = c.e
    T = 240
    e("v_lshlrev_b32 v%d, 4, v%d", T, V_LANE)
    e("v_add_u32 v%d, 0x1000, v%d", T + 1, T)
    for j in range(4):
        e("s_add_u32 s%d, s%d, %d", S_T, S_W, j)
        e("s_and_b32 s%d, s%d, 3", S_T, S_T)
        e("s_lshl_b32 s%d, s%d, 2", S_T + 1, S_MB)
        e("s_add_u32 s%d, s%d, s%d", S_T, S_T, S_T + 1)
        e("s_mul_i32 s%d, s%d, 28", S_T, S_T)
        e("s_mul_i32 s%d, s%d, 7", S_T + 1, S_W)
        e("s_add_u32 s%d, s%d, s%d", S_T, S_T, S_T + 1)
        e("s_lshl_b32 s%d, s%d, 10", S_T, S_T)
        e("s_add_u32 s%d, s%d, 0x%x", 52 + j, S_T, L.PF)
    for kl in range(7):
        e("s_add_u32 s%d, s%d, %d", S_X0, S_ROT5, kl)
        e("s_cmp_ge_u32 s%d, 7", S_X0)
        e("s_cselect_b32 s%d, 7, 0", S_X1)
        e("s_sub_u32 s%d, s%d, s%d", S_X0, S_X0, S_X1)
        e("s_lshl_b32 s%d, s%d, 10", S_X0, S_X0)
        for j in range(4):
            e("s_add_u32 s%d, s%d, s%d", S_T, S_X0, 52 + j)
            c.bload(P5_PF + (kl * 4 + j) * 4, 4, T, R_WS, S_T, 0, "p%d" % kl, "sc1")
    for kl in range(7):
        c.vm.wait("p%d" % kl, "wo%d" % kl)
        for dt in range(4):
            for j in range(4):
                acc = P5_ACC + (dt * 4 + j) * 4
                cc = "0" if kl == 0 else "v[%d:%d]" % (acc, acc + 3)
                p = P5_PF + (kl * 4 + j) * 4
                e("v_mfma_f32_16x16x32_bf16 v[%d:%d], %s, v[%d:%d], %s", acc, acc + 3, rr(A0 + (kl * 4 + dt) * 4, 4), p, p + 3, cc)

def p5_epilogue(c):
    e = c.e
    T = 240
    c.lg.wait_all()
    e("s_mul_i32 s%d, s%d, 28672", S_T + 2, S_W)
    e("v_lshlrev_b32 v%d, 4, v%d", T + 1, V_LANE)
    e("v_add_u32 v%d, s%d, v%d", T + 2, S_T + 2, T + 1)
    c.nop(8)
    for j in range(1, 4):
        for dt in range(4):
            acc = P5_ACC + (dt * 4 + j) * 4
            c.lg.issue("ds_write_b128 v%d, v[%d:%d] offset:%d" % (T + 2, acc, acc + 3, LDS_WO + (j - 1) * 4096 + dt * 1024))
    for j in range(1, 4):
        e("s_sub_u32 s%d, s%d, %d", S_T + 2, S_W, j)
        e("s_and_b32 s%d, s%d, 3", S_T + 2, S_T + 2)
        e("s_mul_i32 s%d, s%d, 28672", S_T + 2, S_T + 2)
        e("v_add_u32 v%d, s%d, v%d", T + 2 + j, S_T + 2, T + 1)
    c.lg.wait_all()
    e("s_barrier")
    R = 96
    for j in range(1, 4):
        for dt in range(4):
            d = R + (j - 1) * 16 + 4 * dt
            c.lg.issue("ds_read_b128 v[%d:%d], v%d offset:%d" % (d, d + 3, T + 2 + j, LDS_WO + (j - 1) * 4096 + dt * 1024), "r%d" % j)
    for j in range(1, 4):
        c.lg.wait("r%d" % j)
        for dt in range(4):
            acc = P5_ACC + dt * 16; d = R + (j - 1) * 16 + 4 * dt
            for q in range(2):
                e("v_pk_add_f32 %s, %s, %s", pr(acc + 2 * q), pr(acc + 2 * q), pr(d + 2 * q))
    O = 160
    for dt in range(4):
        acc = P5_ACC + dt * 16; h = V_HRES + 2 * dt; t = 152
        e("v_lshlrev_b32 v%d, 16, v%d", t, h)
        e("v_and_b32 v%d, 0xffff0000, v%d", t + 1, h)
        e("v_lshlrev_b32 v%d, 16, v%d", t + 2, h + 1)
        e("v_and_b32 v%d, 0xffff0000, v%d", t + 3, h + 1)
        for q in range(2):
            e("v_pk_add_f32 %s, %s, %s", pr(acc + 2 * q), pr(acc + 2 * q), pr(t + 2 * q))
        e("v_cvt_pk_bf16_f32 v%d, v%d, v%d", O + 2 * dt, acc, acc + 1)
        e("v_cvt_pk_bf16_f32 v%d, v%d, v%d", O + 2 * dt + 1, acc + 2, acc + 3)
    c.srd(R_A, P_OUT, 2 << 20)
    e("v_lshlrev_b32 v%d, 10, v%d", T, V_L16)
    e("v_and_b32 v%d, 1, v%d", T + 1, V_G)
    e("v_lshl_add_u32 v%d, v%d, 5, v%d", T, T + 1, T)
    e("v_lshrrev_b32 v%d, 1, v%d", T + 1, V_G)
    e("v_lshl_add_u32 v%d, v%d, 4, v%d", T, T + 1, T)
    e("s_lshl_b32 s%d, s%d, 2", S_T, S_MB)
    e("s_add_u32 s%d, s%d, s%d", S_T, S_T, S_W)
    e("s_lshl_b32 s%d, s%d, 14", S_T, S_T)
    e("s_lshl_b32 s%d, s%d, 7", S_T + 1, S_NB)
    e("s_add_u32 s%d, s%d, s%d", S_T, S_T, S_T + 1)
    for p in range(2):
        o = O + 4 * p
        c.nop(2)
        e("v_permlane16_swap_b32 v%d, v%d", o, o + 2)
        e("v_permlane16_swap_b32 v%d, v%d", o + 1, o + 3)
        c.bstore(o, 4, T, R_A, S_T, 64 * p, "out")

def touch_wsp(c, dd0, ndd, wq=S_W, tracked=True, V=145):
    e = c.e
    e("s_lshl_b32 s%d, s%d, 18", S_T, S_MB)
    e("s_and_b32 s%d, s%d, 3", S_T + 1, S_NB)
    e("s_lshl_b32 s%d, s%d, 16", S_T + 1, S_T + 1)
    e("s_add_u32 s%d, s%d, s%d", S_T, S_T, S_T + 1)
    e("s_lshl_b32 s%d, s%d, 10", S_T + 1, wq)
    e("s_add_u32 s%d, s%d, s%d", S_T, S_T, S_T + 1)
    c.srd(R_C, P_WSP, 8 << 20)
    e("s_lshr_b32 s%d, s%d, 1", S_T + 1, S_ROTZ)
    e("s_add_u32 s%d, s%d, %d", S_T + 1, S_T + 1, dd0)
    e("v_add_u32 v%d, s%d, v%d", V + 1, S_T + 1, V_G)
    e("v_and_b32 v%d, 7, v%d", V + 1, V + 1)
    e("v_lshlrev_b32 v%d, 12, v%d", V, V_L16)
    e("v_lshl_add_u32 v%d, v%d, 7, v%d", V, V + 1, V)
    e("v_cmp_gt_u32 vcc, %d, v%d", ndd, V_G)
    e("v_mov_b32 v%d, 0x40000000", V + 1)
    e("s_nop 0")
    e("v_cndmask_b32 v%d, v%d, v%d, vcc", V, V + 1, V)
    if tracked: c.bload(V_BIAS, 1, V, R_C, S_T, 0, "touch", c.opt.get("nttouch", ""))
    else: e("buffer_load_dword v%d, v%d, s[%d:%d], s%d offen", V_BIAS, V, R_C, R_C + 3, S_T)

def touch_z2n(c):
    e = c.e
    e("s_lshl_b32 s%d, s%d, 6", S_T, S_NB)
    e("s_lshl_b32 s%d, s%d, 4", S_T + 1, S_W)
    e("s_add_u32 s%d, s%d, s%d", S_T, S_T, S_T + 1)
    e("s_and_b32 s%d, s%d, 7", S_T + 1, S_MB)
    e("s_lshl_b32 s%d, s%d, 1", S_T + 1, S_T + 1)
    e("s_add_u32 s%d, s%d, s%d", S_T, S_T, S_T + 1)
    e("s_mul_i32 s%d, s%d, 7168", S_T, S_T)
    e("s_add_u32 s%d, s%d, 0x%x", S_T, S_T, L.Z2N)
    e("v_lshlrev_b32 v2, 7, v%d", V_LANE)
    c.bload(31, 1, 2, R_WS, S_T, 0, "touch", c.opt.get("zflag", "sc1"))
    e("v_add_u32 v2, 0x2000, v2")
    e("v_cmp_gt_u32 vcc, 48, v%d", V_LANE)
    e("v_mov_b32 v3, 0x40000000")
    e("s_nop 0")
    e("v_cndmask_b32 v2, v3, v2, vcc")
    c.bload(31, 1, 2, R_WS, S_T, 0, "touch", c.opt.get("zflag", "sc1"))
```

```python
import sys
from core import *
import ph12, ph345
KNAME = "sequential_preLN__ssm_conv_h3__mixer_gmlp__prompt_kernel"

def drain_arrive(c, line_sreg, line_imm, boot=False):
    c.vm.wait_all()
    c.lg.wait_all()
    c.e("s_barrier")
    if boot: ph12.wait_boot(c)
    c.arrive(line_sreg, line_imm)

def build(stop=99, stamps=False, fine=False, finer=False, skip=(), **opt):
    body = Asm()
    c = Ctx(body, stamps)
    c.finestamps = fine
    c.finerstamps = finer
    c.st.skip = set(skip)
    c.opt = opt
    e = c.e
    kernel_begin(body, KNAME)
    ph12.setup(c)
    ph12.load_D_issue(c)
    ph12.bootstrap_a(c)
    WL = ph345.WLoader(c); SL = ph345.SpLoader(c)
    c.st.stamp("setup")
    ph12.p1_issue(c)
    ph12.p1_issue_x(c)
    ph12.bootstrap_b(c)
    ph12.p1_kv(c)
    ph12.load_D_finish(c)
    ph12.boot_flag_issue(c)
    c.finer("ust")
    ph12.p1_x(c)
    c.lg.wait_all()
    e("s_barrier")
    c.finer("xwork")
    ph12.p1_x_store(c)
    ph12.p1_issue_raw(c)
    ph345.wpre_issue(c)
    c.vm.wait("xst")
    c.finer("acks")
    ph12.boot_flag_check(c)
    e("s_barrier")
    c.garrive(L.C1_LINE)
    c.st.stamp("arr1")
    c.vm.wait("raw")
    c.lg.wait_all()
    e("s_barrier")
    c.finer("raw")
    ph12.toeplitz(c)
    c.finer("toep")
    c.vm.wait("wp")
    c.lg.wait_all()
    e("s_barrier")
    lw0 = body.newlabel("w0p"); ljoin = body.newlabel("w0j")
    e("s_cmp_eq_u32 s%d, 0", S_W)
    e("s_cbranch_scc1 %s", lw0)
    ph345.wpre_store3(c)
    e("s_waitcnt vmcnt(0)")
    e("s_branch %s", ljoin)
    body.label(lw0)
    c.gpoll(L.C1_LINE)
    body.label(ljoin)
    WL.setup()
    e("s_barrier")
    c.garrive(L.C1B_LINE)
    c.st.stamp("B1")
    ph12.p2_issue_u(c)
    sops = ph12.p2_stats_ops(c)
    c.vm.wait("ub")
    e("s_barrier")
    c.finer("ub")
    wl = WL.loads(0, 16)
    take = lambda n: [wl.pop(0) for _ in range(n)]
    def touch_block(dd0, n):
        l0 = body.newlabel("tb"); lt = body.newlabel("t0")
        e("s_cmp_eq_u32 s%d, 0", S_W)
        e("s_cbranch_scc1 %s", l0)
        ph345.touch_wsp(c, dd0, n, tracked=False, V=248)
        e("s_cmp_eq_u32 s%d, 1", S_W)
        e("s_cbranch_scc0 %s", lt)
        e("s_mov_b32 s%d, 0", S_X0)
        ph345.touch_wsp(c, dd0, n, wq=S_X0, tracked=False, V=248)
        body.label(lt)
        body.label(l0)
    ck = opt.get("ck", 2)
    def hke(): c.gpoll(L.C1B_LINE, 242, 243, early=True)
    def hkl():
        c.gpoll(L.C1B_LINE, 242, 243, late=True)
        e("s_barrier")
        if opt.get('touch1', 1): touch_block(0, 4)
    nmain = 9 * (3 - ck)
    ph12.p2_main(c, {ck - 1: hke, ck: hkl}, dict([(0, sops)] + [(r, take(9)) for r in range(ck + 1, 4)]))
    c.st.stamp("p2main")
    c.bgq = take(8)
    ph12.p2_epilogue(c)
    c.finer("p2epi")
    c.bg_flush()
    for f in take(opt.get('nack', 14)): f()
    c.vm.wait("st")
    c.lg.wait_all()
    e("s_barrier")
    c.garrive(L.C2_LINE)
    c.st.stamp("arr2")
    ph345.p3_setup(c)
    WL.colsum_prep()
    nrest = len(wl) // 4
    assert len(wl) % 4 == 0 or True
    k = 0
    while wl:
        for f in take(min(4, len(wl))): f()
        WL.colsum(k, k + 1); k += 1
    WL.colsum(k, 16)
    c.finer("wdone")
    SL.setup(); SL.srd()
    c.gpoll(L.C2_LINE)
    e("s_barrier")
    c.st.stamp("B2")
    ph345.p3_issue_h(c)
    s0 = SL.ops(3)
    ph345.p3_main(c, ({1: lambda: ph345.touch_wsp(c, 4, 4)} if opt.get('touch2', 1) else {}),
                  {10 + i: s0[4 * i:4 * i + 4] for i in range(6)})
    c.st.stamp("p3main")
    SL.read(3)
    c.lg.wait_all()
    e("s_barrier")
    SL.rebase(0)
    c.fine("hstats")
    ph345.p3_z2_gelu_publish(c)
    c.st.stamp("z2pub")
    c.bgq = SL.ops(3)
    ph345.p3_z1_gelu(c)
    c.bg_flush()
    c.fine("z1")
    ph345.p3_z2_finish(c)
    c.st.stamp("p3done")
    SL.read(3)
    c.lg.wait("sl")
    s2 = SL.ops(2)
    for _ in range(8): s2.pop(0)()
    c.vm.wait("st")
    c.lg.wait_all()
    e("s_barrier")
    c.arrive(S_NB, L.C3_LINE)
    c.fine("arr3")
    for f in s2: f()
    SL.read(2)
    c.lg.wait_all()
    c.poll(S_NB, L.C3_LINE, 1, 32)
    e("s_barrier")
    c.st.stamp("B3")
    tail = ph345.p5_wout_ops(c)
    ph345.p4_main(c, tail)
    c.st.stamp("p4main")
    ph345.p4_reduce_epilogue(c)
    c.fine("p4red")
    ph345.p4_finish(c)
    c.st.stamp("p4done")
    c.vm.wait("st")
    e("s_barrier")
    c.arrive(S_MB, L.C4_LINE)
    c.fine("arr4")
    c.poll(S_MB, L.C4_LINE, 1, 8)
    e("s_barrier")
    c.st.stamp("C4")
    ph345.p5_main(c)
    c.fine("p5main")
    ph345.p5_epilogue(c)
    c.vm.wait_all()
    c.st.stamp("end")
    c.st.stamp("real1", real=True)
    if opt.get('dbgout') is not None: flush_dbg(c.st, P_DBG, 2, S_W, opt['dbgout'], 32)
    else: c.st.flush(P_WS, L.STAMPS, 2, 32, S_T)
    body.label("KEND")
    e("s_endpgm")
    a = Asm()
    hdr = open("cdna_kernels/%s.s.ref" % KNAME.replace("_kernel", "")).read().split("\n")
    for ln in hdr:
        if ln.startswith("; @launch") or ln.startswith("; Override") or ln.startswith("; grid="): continue
        if not ln.startswith(";"): break
        a(ln)
    a("; @launch grid=(256,1,1) block=(256,1,1) lds=163840")
    a('.amdgcn_target "amdgcn-amd-amdhsa--gfx950"')
    a(".text")
    a(body.text())
    a('.section .rodata,"a"')
    a(".p2align 6")
    kernel_desc(a, KNAME, 512, sgprs=102, accum=256)
    return a.text(), c.st.names

if __name__ == "__main__":
    kw = eval("dict(%s)" % (sys.argv[2] if len(sys.argv) > 2 else ""))
    t, names = build(**kw)
    open(sys.argv[1], "w").write(t)
    open(sys.argv[1] + ".stamps", "w").write(",".join(names))
```

```python
from core import *
pr = lambda r: "v[%d:%d]" % (r, r + 1)

LDS_COPY = 0
COPY_STRIDE = 4160
COPY_CH = 8 * COPY_STRIDE
LDS_T1, LDS_T2 = 0, 149504
LDS_UB = 66560
UB_CH = 4576
LDS_RAW = 75712
RAW_CH = 4128
LDS_WST = 83968

def setup(c):
    e = c.e; a = c.a
    e("s_cmp_ge_u32 s2, 256")
    e("s_cbranch_scc1 KEND")
    c.st.stamp("real0", real=True)
    c.st.stamp("start")
    e("s_load_dwordx8 s[4:11], s[0:1], 0")
    e("s_load_dwordx4 s[12:15], s[0:1], 32")
    e("s_load_dwordx8 s[16:23], s[0:1], 56")
    e("s_load_dwordx4 s[24:27], s[0:1], 88")
    e("s_load_dwordx2 s[28:29], s[0:1], 104")
    e("v_and_b32 v%d, 63, v0", V_LANE)
    e("v_lshrrev_b32 v29, 6, v0")
    e("v_and_b32 v%d, 15, v%d", V_L16, V_LANE)
    e("v_readfirstlane_b32 s%d, v29", S_W)
    e("v_lshrrev_b32 v%d, 4, v%d", V_G, V_LANE)
    e("s_and_b32 s%d, s2, 7", S_CG)
    e("s_lshr_b32 s%d, s2, 3", S_J)
    e("s_lshr_b32 s%d, s%d, 1", S_MB, S_CG)
    e("s_lshl_b32 s%d, s%d, 3", S_MB, S_MB)
    e("s_and_b32 s%d, s%d, 7", S_T, S_J)
    e("s_add_u32 s%d, s%d, s%d", S_MB, S_MB, S_T)
    e("s_and_b32 s%d, s%d, 1", S_NB, S_CG)
    e("s_lshl_b32 s%d, s%d, 2", S_NB, S_NB)
    e("s_lshr_b32 s%d, s%d, 3", S_T, S_J)
    e("s_add_u32 s%d, s%d, s%d", S_NB, S_NB, S_T)
    e("s_and_b32 s%d, s%d, 7", S_ROT, S_MB)
    e("s_lshl_b32 s%d, s%d, 1", S_ROT, S_ROT)
    e("s_lshl_b32 s%d, s%d, 1", S_ROT5, S_NB)
    e("s_add_u32 s%d, s%d, s%d", S_ROT5, S_ROT5, S_MB)
    e("s_mul_i32 s%d, s%d, 9363", S_T, S_ROT5)
    e("s_lshr_b32 s%d, s%d, 16", S_T, S_T)
    e("s_mul_i32 s%d, s%d, 7", S_T, S_T)
    e("s_sub_u32 s%d, s%d, s%d", S_ROT5, S_ROT5, S_T)
    e("s_mov_b32 s%d, s%d", S_ROTZ, S_ROT)
    if not c.opt.get("rotz", 0): e("s_mov_b32 s%d, 0", S_ROTZ)
    if not c.opt.get("rot", 0): e("s_mov_b32 s%d, 0", S_ROT)
    if not c.opt.get("rot5", 0): e("s_mov_b32 s%d, 0", S_ROT5)
    e("s_waitcnt lgkmcnt(0)")
    c.srd(R_WS, P_WS, L.WS_USED)

def bootstrap_a(c):
    e = c.e; a = c.a
    skip = a.newlabel("boot")
    e("s_cmp_eq_u32 s2, 0")
    e("s_cbranch_scc0 %s", skip)
    e("s_cmp_eq_u32 s%d, 3", S_W)
    e("s_cbranch_scc0 %s", skip)
    e("v_lshlrev_b32 v29, 8, v%d", V_LANE)
    e("v_add_u32 v29, 0x%x, v29", L.FLAGS)
    e("v_mov_b32 v30, 0")
    for i in range(4):
        e("global_store_dword v29, v30, s[%d:%d] sc1", P_WS, P_WS + 1)
        if i < 3: e("v_add_u32 v29, 0x4000, v29")
    a.label(skip)

def bootstrap_b(c):
    e = c.e; a = c.a
    skip = a.newlabel("boot")
    e("s_cmp_eq_u32 s2, 0")
    e("s_cbranch_scc0 %s", skip)
    e("s_cmp_eq_u32 s%d, 3", S_W)
    e("s_cbranch_scc0 %s", skip)
    e("s_waitcnt vmcnt(%d)", len(c.vm.q))
    e("v_mov_b32 v29, 0")
    e("v_mov_b32 v30, 1")
    e("s_mov_b64 s[%d:%d], exec", S_T + 2, S_T + 3)
    e("s_mov_b64 exec, 1")
    e("global_store_dword v29, v30, s[%d:%d] sc1", P_DBG, P_DBG + 1)
    e("s_mov_b64 exec, s[%d:%d]", S_T + 2, S_T + 3)
    a.label(skip)

V_BOOT = 31
def boot_flag_issue(c):
    c.e("v_mov_b32 v%d, 0", V_BOOT)
    c.vm.issue("global_load_dword v%d, v%d, s[%d:%d] sc1" % (V_BOOT, V_BOOT, P_DBG, P_DBG + 1), "boot")

def boot_flag_check(c):
    e = c.e; a = c.a
    skip = a.newlabel("wb"); loop = a.newlabel("wbl"); done = a.newlabel("wbd")
    c.vm.wait("boot")
    e("s_cmp_eq_u32 s%d, 0", S_W)
    e("s_cbranch_scc0 %s", skip)
    e("v_readfirstlane_b32 s%d, v%d", S_T, V_BOOT)
    e("s_mov_b32 s%d, 0", S_T + 1)
    e("s_nop 3")
    e("s_cmp_lg_u32 s%d, 0", S_T)
    e("s_cbranch_scc1 %s", done)
    e("v_mov_b32 v29, 0")
    a.label(loop)
    e("global_load_dword v30, v29, s[%d:%d] sc1", P_DBG, P_DBG + 1)
    e("s_waitcnt vmcnt(0)")
    e("v_readfirstlane_b32 s%d, v30", S_T)
    e("s_nop 3")
    e("s_cmp_lg_u32 s%d, 0", S_T)
    e("s_cbranch_scc1 %s", done)
    e("s_add_u32 s%d, s%d, 1", S_T + 1, S_T + 1)
    e("s_cmp_lt_u32 s%d, 0x200000", S_T + 1)
    e("s_cbranch_scc1 %s", loop)
    a.label(done)
    a.label(skip)

def p1_issue(c):
    e = c.e
    VK, VV, VX, VW, VS = 32, 52, 60, 68, 84
    VO = 92
    e("v_and_b32 v%d, 7, v0", VO)
    e("v_lshrrev_b32 v%d, 3, v0", VO + 1)
    e("s_lshl_b32 s%d, s%d, 16", S_T, S_J)
    e("s_lshl_b32 s%d, s%d, 7", S_T + 1, S_CG)
    e("s_add_u32 s%d, s%d, s%d", S_T, S_T, S_T + 1)
    e("v_lshlrev_b32 v%d, 11, v%d", VO + 2, VO + 1)
    e("v_lshl_add_u32 v%d, v%d, 4, v%d", VO + 2, VO, VO + 2)
    e("v_add_u32 v%d, s%d, v%d", VO + 2, S_T, VO + 2)
    c.srd(R_A, P_SHK, 4096)
    e("s_lshl_b32 s%d, s%d, 9", S_T, S_CG)
    e("v_lshlrev_b32 v%d, 6, v%d", VO + 6, VO)
    e("v_add_u32 v%d, s%d, v%d", VO + 6, S_T, VO + 6)
    c.srd(R_B, P_K, 2 << 20)
    c.srd(R_C, P_V, 2 << 20)
    for i in range(3):
        e("v_subrev_u32 v%d, %d, v%d", VO + 3 + i, (3 - i) * 1024, VO + 2)
    c.bload(VK + 12, 4, VO + 2, R_B, None, 0, "p1k", c.opt.get("nt", ""))
    c.bload(VK + 16, 4, VO + 2, R_B, None, 1024, "p1k", c.opt.get("nt", ""))
    c.bload(VV, 4, VO + 2, R_C, None, 0, "p1v", c.opt.get("nt", ""))
    c.bload(VV + 4, 4, VO + 2, R_C, None, 1024, "p1v", c.opt.get("nt", ""))
    for i in range(3):
        c.bload(VK + 4 * i, 4, VO + 3 + i, R_B, None, 0, "p1k", c.opt.get("nt", ""))
    for i in range(4):
        c.bload(VW + 4 * i, 4, VO + 6, R_A, None, 16 * i, "p1w")

def p1_issue_x(c):
    e = c.e
    VX, VS = 60, 84
    VO = 92
    e("v_lshlrev_b32 v%d, 4, v%d", VO + 7, V_LANE)
    c.srd(R_C, P_Q, 2 << 20)
    c.bload(VX, 4, VO + 2, R_C, None, 0, "p1x", c.opt.get("nt", ""))
    c.bload(VX + 4, 4, VO + 2, R_C, None, 1024, "p1x", c.opt.get("nt", ""))
    e("s_lshl_b32 s%d, s2, 3", S_T)
    e("s_lshl_b32 s%d, s%d, 1", S_T + 1, S_W)
    e("s_add_u32 s%d, s%d, s%d", S_T, S_T, S_T + 1)
    e("s_lshl_b32 s%d, s%d, 10", S_T, S_T)
    c.bload(VS, 4, VO + 7, R_C, S_T, 0, "p1s", c.opt.get("nt", ""))
    c.bload(VS + 4, 4, VO + 7, R_C, S_T, 1024, "p1s", c.opt.get("nt", ""))

def p1_issue_raw(c):
    e = c.e
    VO = 92
    e("v_lshlrev_b32 v%d, 4, v%d", VO + 7, V_LANE)
    c.srd(R_B, P_SSM, 2 << 20)
    e("s_lshl_b32 s%d, s%d, 6", S_T, S_CG)
    e("s_lshl_b32 s%d, s%d, 1", S_T + 1, S_J)
    e("s_add_u32 s%d, s%d, s%d", S_T, S_T, S_T + 1)
    e("s_lshr_b32 s%d, s%d, 1", S_T + 1, S_W)
    e("s_add_u32 s%d, s%d, s%d", S_T, S_T, S_T + 1)
    e("s_lshl_b32 s%d, s%d, 12", S_T, S_T)
    e("s_and_b32 s%d, s%d, 1", S_T + 2, S_W)
    e("s_lshl_b32 s%d, s%d, 11", S_T + 2, S_T + 2)
    e("s_add_u32 s%d, s%d, s%d", S_T, S_T, S_T + 2)
    e("s_mul_i32 s%d, s%d, %d", S_T + 1, S_T + 1, RAW_CH)
    e("s_add_u32 s%d, s%d, s%d", S_T + 1, S_T + 1, S_T + 2)
    c.dma(VO + 7, R_B, S_T, S_T + 1, LDS_RAW + 32, "raw", c.opt.get("nt", ""))
    e("s_add_u32 s%d, s%d, 1024", S_T, S_T)
    c.dma(VO + 7, R_B, S_T, S_T + 1, LDS_RAW + 32 + 1024, "raw", c.opt.get("nt", ""))
    e("v_mov_b32 v%d, 0", VO + 8)
    e("v_mov_b32 v%d, 0", VO + 9)
    e("v_lshrrev_b32 v%d, 2, v0", VO + 10)
    e("v_mul_u32_u24 v%d, %d, v%d", VO + 10, RAW_CH, VO + 10)
    e("v_and_b32 v%d, 3, v0", VO + 11)
    e("v_lshl_add_u32 v%d, v%d, 3, v%d", VO + 10, VO + 11, VO + 10)
    e("v_add_u32 v%d, 0x%x, v%d", VO + 10, LDS_RAW, VO + 10)
    e("v_cmp_gt_u32 vcc, 8, v0")
    e("s_and_saveexec_b64 s[%d:%d], vcc", S_T + 2, S_T + 3)
    c.lg.issue("ds_write_b64 v%d, v[%d:%d]" % (VO + 10, VO + 8, VO + 9))
    e("s_mov_b64 exec, s[%d:%d]", S_T + 2, S_T + 3)
    skip = c.a.newlabel("ubz")
    e("s_cmp_lt_u32 s%d, 2", S_W)
    e("s_cbranch_scc0 %s", skip)
    e("s_mul_i32 s%d, s%d, %d", S_T, S_W, UB_CH)
    e("s_add_u32 s%d, s%d, 0x%x", S_T, S_T, LDS_UB + 4096)
    e("v_lshlrev_b32 v%d, 3, v%d", VO + 10, V_LANE)
    e("v_add_u32 v%d, s%d, v%d", VO + 10, S_T, VO + 10)
    e("v_cmp_gt_u32 vcc, 60, v%d", V_LANE)
    e("s_and_saveexec_b64 s[%d:%d], vcc", S_T + 2, S_T + 3)
    e("ds_write_b64 v%d, v[%d:%d]", VO + 10, VO + 8, VO + 9)
    e("s_mov_b64 exec, s[%d:%d]", S_T + 2, S_T + 3)
    c.a.label(skip)

def p1_kv(c, mid=None):
    e = c.e
    VK, VV, VX, VW, VS = 32, 52, 60, 68, 84
    VO = 92
    KF = 104
    WF = 144
    KS = 176
    VF = 192
    PK = 208
    AD = 224
    c.vm.wait("p1w")
    c.fine("d_loaded")
    if mid: mid()
    for i in range(5):
        for d in range(4):
            e("v_lshlrev_b32 v%d, 16, v%d", KF + 8 * i + 2 * d, VK + 4 * i + d)
            e("v_and_b32 v%d, 0xffff0000, v%d", KF + 8 * i + 2 * d + 1, VK + 4 * i + d)
    for ch in range(8):
        for jj in range(2):
            e("v_lshlrev_b32 v%d, 16, v%d", WF + 8 * (2 * jj) + ch, VW + 2 * ch + jj)
            e("v_and_b32 v%d, 0xffff0000, v%d", WF + 8 * (2 * jj + 1) + ch, VW + 2 * ch + jj)
    for i in range(2):
        for d in range(4):
            e("v_lshlrev_b32 v%d, 16, v%d", VF + 8 * i + 2 * d, VV + 4 * i + d)
            e("v_and_b32 v%d, 0xffff0000, v%d", VF + 8 * i + 2 * d + 1, VV + 4 * i + d)
    for i in range(2):
        for j in range(4):
            for q in range(4):
                dst = KS + 8 * i + 2 * q
                ksrc = KF + 8 * (i + 3 - j) + 2 * q
                wsrc = WF + 8 * j + 2 * q
                if j == 0: e("v_pk_mul_f32 %s, %s, %s", pr(dst), pr(ksrc), pr(wsrc))
                else: e("v_pk_fma_f32 %s, %s, %s, %s", pr(dst), pr(ksrc), pr(wsrc), pr(dst))
    for i in range(2):
        for q in range(4):
            dst = KS + 8 * i + 2 * q
            e("v_pk_mul_f32 %s, %s, %s", pr(dst), pr(dst), pr(VF + 8 * i + 2 * q))
    for ch in range(8):
        e("v_cvt_pk_bf16_f32 v%d, v%d, v%d", PK + ch, KS + 8 + ch, KS + ch)
    e("v_lshlrev_b32 v%d, 2, v%d", AD + 2, VO)
    e("v_xor_b32 v%d, v%d, v%d", AD + 1, VO + 1, AD + 2)
    e("v_sub_u32 v%d, 31, v%d", AD, VO + 1)
    e("v_xor_b32 v%d, v%d, v%d", AD, AD, AD + 2)
    e("v_lshlrev_b32 v%d, 10, v%d", AD + 2, VO)
    e("v_lshl_add_u32 v%d, v%d, 2, v%d", AD, AD, AD + 2)
    e("v_lshl_add_u32 v%d, v%d, 2, v%d", AD + 1, AD + 1, AD + 2)
    for ch in range(8):
        c.lg.issue("ds_write_b32 v%d, v%d offset:%d" % (AD, PK + ch, LDS_T1 + ch * 128))
    c.lg.wait_all()
    e("s_barrier")
    c.fine("d_kv")
    RD = 128
    T = 232
    e("v_lshrrev_b32 v%d, 3, v0", T)
    e("v_lshrrev_b32 v%d, 3, v%d", T + 1, T)
    e("v_and_b32 v%d, 7, v0", T + 2)
    e("v_xor_b32 v%d, v%d, v%d", T + 3, T + 2, T + 1)
    e("v_xor_b32 v%d, 4, v%d", T + 4, T + 3)
    e("v_lshlrev_b32 v%d, 7, v%d", T + 5, T)
    e("v_lshl_add_u32 v%d, v%d, 4, v%d", T + 3, T + 3, T + 5)
    e("v_lshl_add_u32 v%d, v%d, 4, v%d", T + 4, T + 4, T + 5)
    c.lg.issue("ds_read_b128 v[%d:%d], v%d offset:%d" % (RD, RD + 3, T + 3, LDS_T1), "a")
    c.lg.issue("ds_read_b128 v[%d:%d], v%d offset:%d" % (RD + 4, RD + 7, T + 4, LDS_T1 + 4096), "b")
    e("v_lshlrev_b32 v%d, 12, v%d", T + 6, T)
    e("v_lshl_add_u32 v%d, v%d, 4, v%d", T + 6, T + 2, T + 6)
    e("v_add_u32 v%d, 0x20000, v%d", T + 7, T + 6)
    e("s_lshl_b32 s%d, s%d, 18", S_T, S_CG)
    e("s_lshl_b32 s%d, s%d, 7", S_T + 1, S_J)
    e("s_sub_u32 s%d, %d, s%d", S_T + 2, 1984 * 2, S_T + 1)
    e("s_add_u32 s%d, s%d, s%d", S_T + 2, S_T + 2, S_T)
    e("s_add_u32 s%d, s%d, 0x%x", S_T + 2, S_T + 2, L.UREV)
    c.lg.wait("a"); c.bstore(RD, 4, T + 6, R_WS, S_T + 2, 0, "ust", "sc1")
    c.lg.wait("b"); c.bstore(RD + 4, 4, T + 7, R_WS, S_T + 2, 0, "ust", "sc1")

def p1_x(c):
    e = c.e
    VK, VV, VX, VW, VS = 32, 52, 60, 68, 84
    VO = 92
    KF = 104
    WF = 144
    KS = 176
    VF = 192
    PK = 208
    AD = 224
    c.vm.wait("p1x", c.opt.get("nt", ""))
    e("s_mov_b32 s%d, 0x05040100", S_T)
    e("s_mov_b32 s%d, 0x07060302", S_T + 1)
    for ch in range(8):
        e("v_perm_b32 v%d, v%d, v%d, s%d", PK + 8 + ch, VX + 4 + ch // 2, VX + ch // 2, S_T + (ch & 1))
    e("v_lshlrev_b32 v%d, 2, v%d", AD + 2, VO)
    e("v_xor_b32 v%d, v%d, v%d", AD + 1, VO + 1, AD + 2)
    e("v_lshlrev_b32 v%d, 10, v%d", AD + 2, VO)
    e("v_lshl_add_u32 v%d, v%d, 2, v%d", AD + 1, AD + 1, AD + 2)
    e("v_add_u32 v%d, 0x%x, v%d", AD + 1, LDS_T2, AD + 1)
    for ch in range(8):
        c.lg.issue("ds_write_b32 v%d, v%d offset:%d" % (AD + 1, PK + 8 + ch, ch * 128))
    c.vm.wait("p1s", c.opt.get("nt", ""))
    SF = 104
    SA = 120
    for i in range(2):
        for d in range(4):
            e("v_lshlrev_b32 v%d, 16, v%d", SF + 8 * i + 2 * d, VS + 4 * i + d)
            e("v_and_b32 v%d, 0xffff0000, v%d", SF + 8 * i + 2 * d + 1, VS + 4 * i + d)
    for i in range(2):
        e("v_pk_add_f32 %s, %s, %s", pr(SA + 4 * i), pr(SF + 8 * i), pr(SF + 8 * i + 2))
        e("v_pk_add_f32 %s, %s, %s", pr(SA + 4 * i + 2), pr(SF + 8 * i + 4), pr(SF + 8 * i + 6))
    for i in range(2):
        e("v_pk_add_f32 %s, %s, %s", pr(SA + 4 * i), pr(SA + 4 * i), pr(SA + 4 * i + 2))
    for i in range(2):
        e("v_add_f32 v%d, v%d, v%d", SA + 4 * i, SA + 4 * i, SA + 4 * i + 1)
    def wave_sum2(r0, r1, s0, s1):
        for dpp in ("row_shr:1", "row_shr:2", "row_shr:4", "row_shr:8"):
            c.nop(1)
            e("v_add_f32_dpp v%d, v%d, v%d %s row_mask:0xf bank_mask:0xf bound_ctrl:0", r0, r0, r0, dpp)
            e("v_add_f32_dpp v%d, v%d, v%d %s row_mask:0xf bank_mask:0xf bound_ctrl:0", r1, r1, r1, dpp)
        for dpp, m in (("row_bcast:15", "0xa"), ("row_bcast:31", "0xc")):
            c.nop(1)
            e("v_add_f32_dpp v%d, v%d, v%d %s row_mask:%s bank_mask:0xf", r0, r0, r0, dpp, m)
            e("v_add_f32_dpp v%d, v%d, v%d %s row_mask:%s bank_mask:0xf", r1, r1, r1, dpp, m)
        c.nop(1)
        e("v_readlane_b32 s%d, v%d, 63", s0, r0)
        e("v_readlane_b32 s%d, v%d, 63", s1, r1)
    wave_sum2(SA, SA + 4, S_T + 4, S_T + 5)
    c.nop(2)
    e("v_mov_b32 v%d, 0x3b000000", SA + 8)
    e("v_mul_f32 v%d, s%d, v%d", SA + 9, S_T + 4, SA + 8)
    e("v_mul_f32 v%d, s%d, v%d", SA + 10, S_T + 5, SA + 8)
    for i in range(2):
        for q in range(8):
            e("v_sub_f32 v%d, v%d, v%d", SF + 8 * i + q, SF + 8 * i + q, SA + 9 + i)
    for i in range(2):
        e("v_pk_mul_f32 %s, %s, %s", pr(SA + 4 * i), pr(SF + 8 * i), pr(SF + 8 * i))
        for q in range(1, 4):
            e("v_pk_fma_f32 %s, %s, %s, %s", pr(SA + 4 * i), pr(SF + 8 * i + 2 * q), pr(SF + 8 * i + 2 * q), pr(SA + 4 * i))
    for i in range(2):
        e("v_add_f32 v%d, v%d, v%d", SA + 4 * i, SA + 4 * i, SA + 4 * i + 1)
    wave_sum2(SA, SA + 4, S_T + 4, S_T + 5)
    c.nop(2)
    e("v_mov_b32 v%d, 0x3727c5ac", SA + 11)
    e("v_fma_f32 v%d, s%d, v%d, v%d", SA, S_T + 4, SA + 8, SA + 11)
    e("v_fma_f32 v%d, s%d, v%d, v%d", SA + 2, S_T + 5, SA + 8, SA + 11)
    e("v_rsq_f32 v%d, v%d", SA, SA)
    e("v_rsq_f32 v%d, v%d", SA + 2, SA + 2)
    c.nop(1)
    e("v_mul_f32 v%d, v%d, v%d", SA + 1, SA + 9, SA)
    e("v_mul_f32 v%d, v%d, v%d", SA + 3, SA + 10, SA + 2)
    e("v_sub_f32 v%d, 0, v%d", SA + 1, SA + 1)
    e("v_sub_f32 v%d, 0, v%d", SA + 3, SA + 3)
    e("s_lshl_b32 s%d, s%d, 4", S_T, S_W)
    e("s_add_u32 s%d, s%d, 0x%x", S_T, S_T, LDS_T2 + 8192)
    e("v_mov_b32 v%d, s%d", SA + 12, S_T)
    e("s_mov_b64 s[%d:%d], exec", S_T + 2, S_T + 3)
    e("s_mov_b64 exec, 1")
    c.lg.issue("ds_write_b128 v%d, v[%d:%d]" % (SA + 12, SA, SA + 3))
    e("s_mov_b64 exec, s[%d:%d]", S_T + 2, S_T + 3)
    skip = c.a.newlabel("zs")
    e("s_cmp_eq_u32 s%d, 1", S_W)
    e("s_cbranch_scc0 %s", skip)
    e("s_lshl_b32 s%d, s%d, 3", S_T, S_MB)
    e("s_add_u32 s%d, s%d, s%d", S_T, S_T, S_NB)
    e("s_lshl_b32 s%d, s%d, 9", S_T, S_T)
    e("s_add_u32 s%d, s%d, 0x%x", S_T, S_T, L.ZST)
    e("v_lshlrev_b32 v%d, 3, v%d", SA + 12, V_LANE)
    e("v_mov_b32 v%d, 0", SA + 14)
    e("v_mov_b32 v%d, -1.0", SA + 15)
    e("buffer_store_dwordx2 v[%d:%d], v%d, s[%d:%d], s%d offen sc1", SA + 14, SA + 15, SA + 12, R_WS, R_WS + 3, S_T)
    c.a.label(skip)

def p1_x_store(c):
    e = c.e
    RD = 128; T = 232
    e("v_add_u32 v%d, 0x%x, v%d", T + 3, LDS_T2, T + 3)
    e("v_add_u32 v%d, 0x%x, v%d", T + 4, LDS_T2 + 4096, T + 4)
    c.lg.issue("ds_read_b128 v[%d:%d], v%d" % (RD + 8, RD + 11, T + 3), "c")
    c.lg.issue("ds_read_b128 v[%d:%d], v%d" % (RD + 12, RD + 15, T + 4), "d")
    e("s_lshl_b32 s%d, s%d, 18", S_T, S_CG)
    e("s_lshl_b32 s%d, s%d, 7", S_T + 1, S_J)
    e("s_add_u32 s%d, s%d, s%d", S_T + 3, S_T, S_T + 1)
    e("s_add_u32 s%d, s%d, 0x%x", S_T + 3, S_T + 3, L.XT)
    c.lg.wait("c"); c.bstore(RD + 8, 4, T + 6, R_WS, S_T + 3, 0, "xst", "sc1")
    c.lg.wait("d"); c.bstore(RD + 12, 4, T + 7, R_WS, S_T + 3, 0, "xst", "sc1")
    skip = c.a.newlabel("sst")
    e("s_cmp_eq_u32 s%d, 2", S_W)
    e("s_cbranch_scc0 %s", skip)
    e("v_lshlrev_b32 v%d, 4, v%d", RD, V_LANE)
    e("v_add_u32 v%d, 0x%x, v%d", RD + 1, LDS_T2 + 8192, RD)
    e("ds_read_b128 v[%d:%d], v%d", RD + 4, RD + 7, RD + 1)
    e("s_waitcnt lgkmcnt(0)")
    e("v_cmp_gt_u32 vcc, 4, v%d", V_LANE)
    e("s_nop 1")
    for r in range(4): e("v_cndmask_b32 v%d, 0, v%d, vcc", RD + 4 + r, RD + 4 + r)
    e("s_lshl_b32 s%d, s2, 7", S_T)
    e("s_add_u32 s%d, s%d, 0x%x", S_T, S_T, L.STAT1)
    e("s_mov_b64 s[%d:%d], exec", S_T + 2, S_T + 3)
    e("s_mov_b64 exec, 0xff")
    e("buffer_store_dwordx4 v[%d:%d], v%d, s[%d:%d], s%d offen sc1", RD + 4, RD + 7, RD, R_WS, R_WS + 3, S_T)
    e("s_mov_b64 exec, s[%d:%d]", S_T + 2, S_T + 3)
    c.a.label(skip)
    c.lg.q = []

def toeplitz(c):
    e = c.e
    AD = 104
    e("v_lshrrev_b32 v%d, 7, v0", AD)
    e("v_and_b32 v%d, 127, v0", AD + 1)
    e("v_mul_u32_u24 v%d, %d, v%d", AD + 2, RAW_CH, AD)
    e("v_lshl_add_u32 v%d, v%d, 4, v%d", AD + 2, AD + 1, AD + 2)
    e("v_add_u32 v%d, 0x%x, v%d", AD + 2, LDS_RAW, AD + 2)
    e("v_mul_u32_u24 v%d, %d, v%d", AD + 3, COPY_CH, AD)
    e("v_lshl_add_u32 v%d, v%d, 4, v%d", AD + 3, AD + 1, AD + 3)
    sets = [(112, 120, 128, 136), (144, 152, 160, 168), (176, 184, 192, 200)]
    def rd(k, roff):
        R = sets[k][0]
        c.lg.issue("ds_read_b128 v[%d:%d], v%d offset:%d" % (R, R + 3, AD + 2, roff), "r%d" % k)
        c.lg.issue("ds_read_b128 v[%d:%d], v%d offset:%d" % (R + 4, R + 7, AD + 2, roff + 16), "r%d" % k)
    def build(k, woff):
        R, O, AB, AO = sets[k]
        c.lg.wait("r%d" % k)
        for i in range(7):
            e("v_alignbit_b32 v%d, v%d, v%d, 16", AB + i, R + i + 1, R + i)
        for i in range(6):
            e("v_alignbit_b32 v%d, v%d, v%d, 16", AO + i, R + i + 2, R + i + 1)
        for i in range(6):
            e("v_mov_b32 v%d, v%d", O + i, R + i + 1)
        src = {0: AB, 1: O, 2: AO, 3: R + 2, 4: AB + 2, 5: O + 2, 6: AO + 2, 7: R + 4}
        for sft in (3, 7, 0, 4, 1, 5, 2, 6):
            c.lg.issue("ds_write_b128 v%d, v[%d:%d] offset:%d" % (AD + 3, src[sft], src[sft] + 3, LDS_COPY + sft * COPY_STRIDE + woff), "w")
    rd(0, 0); rd(1, 2048); rd(2, 4096)
    build(0, 0)
    build(1, 2048)
    e("v_cmp_eq_u32 vcc, 0, v%d", AD + 1)
    e("s_and_saveexec_b64 s[%d:%d], vcc", S_T + 2, S_T + 3)
    build(2, 4096)
    e("s_mov_b64 exec, s[%d:%d]", S_T + 2, S_T + 3)

P2_X, P2_ST = 200, 208
S_D = 56
def p2_issue_u(c):
    e = c.e
    VO = 32
    e("s_lshl_b32 s%d, s%d, 6", S_T, S_CG)
    e("s_lshl_b32 s%d, s%d, 1", S_T + 1, S_J)
    e("s_add_u32 s%d, s%d, s%d", S_T, S_T, S_T + 1)
    e("s_lshr_b32 s%d, s%d, 1", S_T + 1, S_W)
    e("s_add_u32 s%d, s%d, s%d", S_T, S_T, S_T + 1)
    e("s_lshl_b32 s57, s%d, 12", S_T)
    e("s_and_b32 s%d, s%d, 1", S_T + 2, S_W)
    e("s_lshl_b32 s%d, s%d, 11", S_T + 2, S_T + 2)
    e("s_add_u32 s%d, s57, s%d", S_T + 3, S_T + 2)
    e("s_add_u32 s%d, s%d, 0x%x", S_T + 3, S_T + 3, L.UREV)
    e("s_mul_i32 s%d, s%d, %d", S_T + 1, S_T + 1, UB_CH)
    e("s_add_u32 s%d, s%d, s%d", S_T + 1, S_T + 1, S_T + 2)
    e("v_lshlrev_b32 v%d, 4, v%d", VO, V_LANE)
    c.dma(VO, R_WS, S_T + 3, S_T + 1, LDS_UB, "ub", "sc1")
    e("s_add_u32 s%d, s%d, 1024", S_T + 3, S_T + 3)
    c.dma(VO, R_WS, S_T + 3, S_T + 1, LDS_UB + 1024, "ub", "sc1")

def load_D_issue(c):
    e = c.e
    e("s_lshl_b32 s%d, s%d, 6", S_T, S_CG)
    e("s_lshl_b32 s%d, s%d, 1", S_T + 1, S_J)
    e("s_add_u32 s%d, s%d, s%d", S_T, S_T, S_T + 1)
    e("s_lshl_b32 s%d, s%d, 1", S_T, S_T)
    e("s_load_dword s%d, s[%d:%d], s%d", S_D, P_D, P_D + 1, S_T)

def load_D_finish(c):
    e = c.e
    c.lg.wait_all()
    e("s_lshl_b32 s%d, s%d, 16", S_T, S_D)
    e("s_and_b32 s%d, s%d, 0xffff0000", S_T + 1, S_D)
    e("s_cmp_lt_u32 s%d, 2", S_W)
    e("s_cselect_b32 s%d, s%d, s%d", S_D, S_T, S_T + 1)

LDS_ST = 98304
def p2_stats_ops(c):
    e = c.e
    e("v_lshlrev_b32 v33, 5, v%d", V_L16)
    e("v_lshl_add_u32 v33, v%d, 3, v33", V_G)
    e("s_and_b32 s%d, s%d, 1", S_T, S_W)
    e("s_lshl_b32 s60, s%d, 11", S_T)
    e("s_add_u32 s60, s60, s57")
    e("s_add_u32 s60, s60, 0x%x", L.XT)
    e("v_and_b32 v39, 7, v%d", V_LANE)
    e("v_lshlrev_b32 v39, 8, v39")
    e("v_bfe_u32 v38, v%d, 4, 1", V_LANE)
    e("v_lshl_add_u32 v39, v38, 7, v39")
    e("v_bfe_u32 v38, v%d, 3, 1", V_LANE)
    e("v_lshl_add_u32 v39, v38, 5, v39")
    e("v_lshrrev_b32 v38, 5, v%d", V_LANE)
    e("v_lshl_add_u32 v39, v38, 4, v39")
    e("s_lshl_b32 s61, s%d, 12", S_W)
    e("s_lshl_b32 s62, s%d, 13", S_W)
    e("s_add_u32 s62, s62, 0x%x", L.STAT1)
    out = []
    for i in range(4):
        def f(i=i):
            c.e("s_add_u32 s%d, s62, %d", S_T, 2048 * i)
            c.dma(39, R_WS, S_T, 61, LDS_ST + 1024 * i, "stat", "sc1")
        out.append(f)
    for b in range(4):
        out.append(lambda b=b: c.bload(P2_X + 2 * b, 2, 33, R_WS, 60, 512 * b, "x", "sc1"))
    return out

def p2_stats_read(c):
    e = c.e
    e("v_and_b32 v39, 7, v%d", V_L16)
    e("v_lshlrev_b32 v39, 4, v39")
    e("v_lshl_add_u32 v39, v%d, 7, v39", V_G)
    e("v_lshrrev_b32 v38, 3, v%d", V_L16)
    e("v_lshl_add_u32 v39, v38, 10, v39")
    e("s_and_b32 s%d, s%d, 1", S_T, S_W)
    e("s_lshl_b32 s%d, s%d, 13", S_T, S_T)
    e("s_add_u32 s%d, s%d, 0x%x", S_T, S_T, LDS_ST)
    e("v_add_u32 v39, s%d, v39", S_T)
    for b in range(4):
        c.lg.issue("ds_read_b128 v[%d:%d], v39 offset:%d" % (P2_ST + 8 * b, P2_ST + 8 * b + 3, 2048 * b), "st2")
        c.lg.issue("ds_read_b128 v[%d:%d], v39 offset:%d" % (P2_ST + 8 * b + 4, P2_ST + 8 * b + 7, 2048 * b + 512), "st2")

def p2_main(c, hooks=None, inter=None):
    e = c.e; hooks = hooks or {}; inter = inter or {}
    FR = [40, 104]
    ACC = 168
    VA, VB = 34, 35
    e("v_and_b32 v%d, 7, v%d", VA, V_LANE)
    e("v_mul_u32_u24 v%d, %d, v%d", VA, COPY_STRIDE, VA)
    e("v_bfe_u32 v%d, v%d, 3, 1", VB, V_LANE)
    e("v_add_u32 v%d, v%d, v%d", VB, VB, V_G)
    e("v_lshl_add_u32 v%d, v%d, 4, v%d", VA, VB, VA)
    e("s_lshr_b32 s%d, s%d, 1", S_T, S_W)
    e("s_and_b32 s%d, s%d, 1", S_T + 1, S_W)
    e("s_mul_i32 s%d, s%d, %d", S_T + 2, S_T, COPY_CH)
    e("s_lshl_b32 s%d, s%d, 8", S_T + 3, S_T + 1)
    e("s_add_u32 s%d, s%d, s%d", S_T + 2, S_T + 2, S_T + 3)
    e("v_add_u32 v%d, s%d, v%d", VA, S_T + 2, VA)
    e("s_mul_i32 s%d, s%d, %d", S_T + 2, S_T, UB_CH)
    e("s_add_u32 s%d, s%d, s%d", S_T + 2, S_T + 2, S_T + 3)
    e("s_add_u32 s%d, s%d, %d", S_T + 2, S_T + 2, LDS_UB + 480)
    e("v_lshlrev_b32 v%d, 4, v%d", VB, V_G)
    e("v_lshlrev_b32 v36, 5, v%d", V_L16)
    e("v_sub_u32 v%d, v%d, v36", VB, VB)
    e("v_add_u32 v%d, s%d, v%d", VB, S_T + 2, VB)
    def reads(i):
        f = FR[i & 1]; out = []
        for x in range(8):
            out.append("ds_read_b128 v[%d:%d], v%d offset:%d" % (f + 4 * x, f + 4 * x + 3, VA, LDS_COPY + 64 * (i + 8 * x)))
            out.append("ds_read_b128 v[%d:%d], v%d offset:%d" % (f + 32 + 4 * x, f + 32 + 4 * x + 3, VB, 64 * i + 512 * (7 - x)))
        return out
    for r in reads(0): c.lg.issue(r)
    for i in range(4):
        c.lg.wait_all()
        f = FR[i & 1]
        nxt = reads(i + 1) if i < 3 else []
        m = 0
        for aa in range(8):
            for b in range(aa, 8):
                cc = "0" if (i == 0 and aa == 0) else "v[%d:%d]" % (ACC + 4 * b, ACC + 4 * b + 3)
                e("v_mfma_f32_16x16x32_bf16 v[%d:%d], v[%d:%d], v[%d:%d], %s", ACC + 4 * b, ACC + 4 * b + 3,
                  f + 4 * aa, f + 4 * aa + 3, f + 32 + 4 * (b - aa), f + 32 + 4 * (b - aa) + 3, cc)
                if m % 2 == 1 and nxt: c.lg.issue(nxt.pop(0))
                if m % (3 if i == 0 else 4) == 0 and inter.get(i): inter[i].pop(0)()
                m += 1
        while nxt: c.lg.issue(nxt.pop(0))
        while inter.get(i): inter[i].pop(0)()
        if i in hooks: hooks[i]()

def p2_epilogue(c):
    e = c.e; a = c.a
    ACC = 168; FIN = 40; TMP = 56; VO = 36
    LDS_RED = 0
    c.vm.wait("stat")
    c.lg.wait_all()
    e("s_barrier")
    p2_stats_read(c)
    e("v_lshlrev_b32 v%d, 4, v%d", VO, V_LANE)
    e("s_lshl_b32 s%d, s%d, 12", S_T, S_W)
    e("v_add_u32 v%d, s%d, v%d", VO + 1, S_T, VO)
    e("s_xor_b32 s%d, s%d, 1", S_T + 1, S_W)
    e("s_lshl_b32 s%d, s%d, 12", S_T + 1, S_T + 1)
    e("v_add_u32 v%d, s%d, v%d", VO + 2, S_T + 1, VO)
    l1 = a.newlabel("hf1"); l2 = a.newlabel("hfd")
    e("s_and_b32 s%d, s%d, 1", S_T, S_W)
    e("s_cmp_eq_u32 s%d, 1", S_T)
    e("s_cbranch_scc1 %s", l1)
    for hf, lab in ((0, None), (1, l1)):
        if lab: a.label(lab)
        own = range(4 * hf, 4 * hf + 4); exp = range(4 * (1 - hf), 4 * (1 - hf) + 4)
        for x, b in enumerate(exp):
            e("ds_write_b128 v%d, v[%d:%d] offset:%d", VO + 1, ACC + 4 * b, ACC + 4 * b + 3, LDS_RED + 1024 * x)
        for x, b in enumerate(own):
            for r in range(4):
                e("v_mov_b32 v%d, v%d", FIN + 4 * x + r, ACC + 4 * b + r)
        if hf == 0: e("s_branch %s", l2)
    a.label(l2)
    c.bg(2)
    e("s_waitcnt lgkmcnt(0)")
    e("s_barrier")
    c.bg(2)
    for x in range(4):
        c.lg.issue("ds_read_b128 v[%d:%d], v%d offset:%d" % (TMP + 4 * x, TMP + 4 * x + 3, VO + 2, LDS_RED + 1024 * x), "red")
    e("s_lshr_b32 s%d, s%d, 1", S_T, S_W)
    e("s_mul_i32 s%d, s%d, %d", S_T, S_T, UB_CH)
    e("s_and_b32 s%d, s%d, 1", S_T + 1, S_W)
    e("s_lshl_b32 s%d, s%d, 11", S_T + 1, S_T + 1)
    e("s_sub_u32 s%d, s%d, s%d", S_T, S_T, S_T + 1)
    e("s_add_u32 s%d, s%d, %d", S_T, S_T, LDS_UB + 4088 - 1536)
    e("v_lshlrev_b32 v%d, 5, v%d", VO + 3, V_L16)
    e("v_lshl_add_u32 v%d, v%d, 3, v%d", VO + 3, V_G, VO + 3)
    e("v_sub_u32 v%d, s%d, v%d", VO + 3, S_T, VO + 3)
    U = 72
    for b in range(4):
        c.lg.issue("ds_read_b64 v[%d:%d], v%d offset:%d" % (U + 2 * b, U + 2 * b + 1, VO + 3, 512 * (3 - b)), "u")
    c.lg.wait("red")
    for x in range(4):
        for q in range(2):
            e("v_pk_add_f32 %s, %s, %s", pr(FIN + 4 * x + 2 * q), pr(FIN + 4 * x + 2 * q), pr(TMP + 4 * x + 2 * q))
    c.lg.wait("u")
    c.vm.wait("x")
    UF = 80; XF = 84; XN = 88; OUT = 96
    for b in range(4):
        e("v_and_b32 v%d, 0xffff0000, v%d", UF + 0, U + 2 * b + 1)
        e("v_lshlrev_b32 v%d, 16, v%d", UF + 1, U + 2 * b + 1)
        e("v_and_b32 v%d, 0xffff0000, v%d", UF + 2, U + 2 * b)
        e("v_lshlrev_b32 v%d, 16, v%d", UF + 3, U + 2 * b)
        c.bg(1)
        e("v_lshlrev_b32 v%d, 16, v%d", XF + 0, P2_X + 2 * b)
        e("v_and_b32 v%d, 0xffff0000, v%d", XF + 1, P2_X + 2 * b)
        e("v_lshlrev_b32 v%d, 16, v%d", XF + 2, P2_X + 2 * b + 1)
        e("v_and_b32 v%d, 0xffff0000, v%d", XF + 3, P2_X + 2 * b + 1)
        for r in range(4):
            e("v_fma_f32 v%d, s%d, v%d, v%d", FIN + 4 * b + r, S_D, UF + r, FIN + 4 * b + r)
        c.bg(1)
        for r in range(4):
            e("v_fma_f32 v%d, v%d, v%d, v%d", XN + r, P2_ST + 8 * b + 2 * r, XF + r, P2_ST + 8 * b + 2 * r + 1)
        for r in range(4):
            e("v_fma_f32 v%d, v%d, v%d, v%d", XN + r, XN + r, FIN + 4 * b + r, XF + r)
        e("v_cvt_pk_bf16_f32 v%d, v%d, v%d", OUT + 2 * b, XN, XN + 1)
        e("v_cvt_pk_bf16_f32 v%d, v%d, v%d", OUT + 2 * b + 1, XN + 2, XN + 3)
        c.bg(1)
    e("v_and_b32 v%d, 1, v%d", VO, V_G)
    e("v_lshlrev_b32 v%d, 9, v%d", VO, VO)
    e("v_lshl_add_u32 v%d, v%d, 5, v%d", VO, V_L16, VO)
    e("v_lshrrev_b32 v%d, 1, v%d", VO + 1, V_G)
    e("v_lshl_add_u32 v%d, v%d, 4, v%d", VO, VO + 1, VO)
    e("s_and_b32 s%d, s%d, 1", S_T, S_W)
    e("s_lshl_b32 s%d, s%d, 11", S_T, S_T)
    e("s_add_u32 s%d, s%d, s57", S_T, S_T)
    e("s_add_u32 s%d, s%d, 0x%x", S_T, S_T, L.HT)
    for p in range(2):
        o = OUT + 4 * p
        c.nop(2)
        e("v_permlane16_swap_b32 v%d, v%d", o, o + 2)
        e("v_permlane16_swap_b32 v%d, v%d", o + 1, o + 3)
        c.bstore(o, 4, VO, R_WS, S_T, 1024 * p, "st", "sc1")
```

```python
from core import *
import ph12

pr = lambda r: "v[%d:%d]" % (r, r + 1)
A0 = 256

LDS_WP = 83968
LDS_WOP = 83968 + 7168
def wpre_issue(c):
    e = c.e
    V = 240
    c.srd(R_A, P_WIN, 512 * 3584)
    e("s_and_b32 s%d, s2, 15", S_T)
    e("s_mul_i32 s%d, s%d, %d", S_T, S_T, 32 * 3584)
    e("s_lshr_b32 s%d, s2, 4", S_T + 1)
    e("s_mul_i32 s%d, s%d, 224", S_T + 1, S_T + 1)
    e("s_add_u32 s%d, s%d, s%d", S_T + 4, S_T, S_T + 1)
    for it in range(2):
        e("s_add_u32 s%d, s%d, %d", S_T, S_W, 4 * it)
        e("s_lshl_b32 s%d, s%d, 6", S_T + 1, S_T)
        e("v_add_u32 v%d, s%d, v%d", V, S_T + 1, V_LANE)
        e("v_mul_u32_u24 v%d, 4682, v%d", V + 1, V)
        e("v_lshrrev_b32 v%d, 16, v%d", V + 1, V + 1)
        e("v_mul_u32_u24 v%d, 14, v%d", V + 2, V + 1)
        e("v_sub_u32 v%d, v%d, v%d", V + 2, V, V + 2)
        e("v_mul_u32_u24 v%d, 3584, v%d", V + 1, V + 1)
        e("v_lshl_add_u32 v%d, v%d, 4, v%d", V + 1, V + 2, V + 1)
        e("v_cmp_gt_u32 vcc, 448, v%d", V)
        e("v_mov_b32 v%d, 0x40000000", V + 2)
        e("s_lshl_b32 s%d, s%d, 10", S_T + 1, S_T)
        e("v_cndmask_b32 v%d, v%d, v%d, vcc", V + 3 + it, V + 2, V + 1)
        e("s_cmp_eq_u32 s%d, 7", S_T)
        e("s_cselect_b32 s%d, 0x3000, s%d", S_T + 1, S_T + 1)
        c.dma(V + 3 + it, R_A, S_T + 4, S_T + 1, LDS_WP, "wp", c.opt.get("nt", ""))
    c.srd(R_B, P_WOUT, 896 * 1024)
    e("s_mul_i32 s%d, s2, 2341", S_T)
    e("s_lshr_b32 s%d, s%d, 16", S_T, S_T)
    e("s_mul_i32 s%d, s%d, 28", S_T + 1, S_T)
    e("s_sub_u32 s%d, s2, s%d", S_T + 1, S_T + 1)
    e("s_lshl_b32 s%d, s%d, 15", S_T + 2, S_T + 1)
    e("s_lshl_b32 s%d, s%d, 7", S_T + 3, S_T)
    e("s_add_u32 s%d, s%d, s%d", S_T + 2, S_T + 2, S_T + 3)
    e("s_lshl_b32 s%d, s%d, 13", S_T + 3, S_W)
    e("s_add_u32 s%d, s%d, s%d", S_T + 2, S_T + 2, S_T + 3)
    e("s_cmp_ge_u32 s2, 224")
    e("s_cselect_b32 s%d, 0x40000000, s%d", S_T + 2, S_T + 2)
    e("v_lshrrev_b32 v%d, 3, v%d", V, V_LANE)
    e("v_lshlrev_b32 v%d, 10, v%d", V, V)
    e("v_and_b32 v%d, 7, v%d", V + 1, V_LANE)
    e("v_lshlrev_b32 v%d, 1, v%d", V + 2, V_G)
    e("v_xor_b32 v%d, v%d, v%d", V + 1, V + 1, V + 2)
    e("v_lshl_add_u32 v%d, v%d, 4, v%d", V, V + 1, V)
    e("s_lshl_b32 s%d, s%d, 10", S_T + 3, S_W)
    c.dma(V, R_B, S_T + 2, S_T + 3, LDS_WOP, "wp", c.opt.get("nt", ""))

def wpre_store3(c):
    e = c.e; a = c.a
    V = 240; F = 176
    e("v_lshrrev_b32 v%d, 2, v%d", V, V_L16)
    e("v_lshl_add_u32 v%d, v%d, 2, v%d", V, V_G, V)
    e("v_mul_u32_u24 v%d, 224, v%d", V + 1, V)
    e("v_and_b32 v%d, 3, v%d", V + 2, V_LANE)
    e("v_lshl_add_u32 v%d, v%d, 3, v%d", V + 1, V + 2, V + 1)
    e("v_add_u32 v%d, 0x%x, v%d", V + 1, LDS_WP, V + 1)
    e("v_lshlrev_b32 v%d, 7, v%d", V + 2, V)
    e("v_and_b32 v%d, 1, v%d", V + 3, V_LANE)
    e("v_lshl_add_u32 v%d, v%d, 3, v%d", V + 2, V + 3, V + 2)
    e("v_bfe_u32 v%d, v%d, 1, 1", V + 3, V_LANE)
    e("v_lshl_add_u32 v%d, v%d, 4, v%d", V + 2, V + 3, V + 2)
    e("v_add_u32 v%d, 0x%x, v%d", V + 2, LDS_WOP, V + 2)
    e("v_and_b32 v%d, 1, v%d", V + 3, V_G)
    e("v_lshlrev_b32 v%d, 2, v%d", V + 3, V + 3)
    e("v_bfe_u32 v%d, v%d, 3, 1", V, V_LANE)
    e("v_lshl_add_u32 v%d, v%d, 1, v%d", V + 3, V, V + 3)
    e("v_lshlrev_b32 v%d, 4, v%d", V, V_LANE)
    e("s_lshr_b32 s52, s2, 4")
    e("s_mul_i32 s52, s52, 112")
    e("s_and_b32 s%d, s2, 15", S_T)
    e("s_add_u32 s52, s52, s%d", S_T)
    e("s_lshl_b32 s52, s52, 10")
    e("s_add_u32 s52, s52, 0x%x", L.WINF)
    e("s_mul_i32 s%d, s2, 2341", S_T)
    e("s_lshr_b32 s%d, s%d, 16", S_T, S_T)
    e("s_mul_i32 s%d, s%d, 28", S_T + 1, S_T)
    e("s_sub_u32 s%d, s2, s%d", S_T + 1, S_T + 1)
    e("s_mul_i32 s53, s%d, 112", S_T)
    e("s_add_u32 s53, s53, s%d", S_T + 1)
    e("s_lshl_b32 s53, s53, 10")
    e("s_add_u32 s53, s53, 0x%x", L.WOUTF)
    e("s_cmp_ge_u32 s2, 224")
    e("s_cselect_b32 s53, 0x40000000, s53")
    e("s_sub_u32 s54, s%d, 1", S_W)
    e("s_lshl_b32 s54, s54, 2")
    for sl in range(4):
        isw = a.newlabel("wq"); done = a.newlabel("wqd")
        f = F + 4 * sl
        e("s_add_u32 s55, s54, %d", sl)
        e("s_cmp_lt_u32 s55, 7")
        e("s_cbranch_scc1 %s", isw)
        e("s_sub_u32 s55, s55, 7")
        e("s_lshl_b32 s%d, s55, 1", S_T)
        e("v_xor_b32 v%d, s%d, v%d", V + 4, S_T, V + 3)
        e("v_lshl_add_u32 v%d, v%d, 4, v%d", V + 4, V + 4, V + 2)
        e("ds_read_b64_tr_b16 v[%d:%d], v%d", f, f + 1, V + 4)
        e("ds_read_b64_tr_b16 v[%d:%d], v%d offset:2048", f + 2, f + 3, V + 4)
        e("s_mul_i32 s%d, s55, %d", S_T, 28 * 1024)
        e("s_add_u32 s%d, s%d, s53", S_T, S_T)
        e("s_cmp_ge_u32 s55, 4")
        e("s_cselect_b32 s%d, 0x40000000, s%d", S_T, S_T)
        e("s_branch %s", done)
        a.label(isw)
        e("s_lshl_b32 s%d, s55, 5", S_T)
        e("v_add_u32 v%d, s%d, v%d", V + 4, S_T, V + 1)
        e("ds_read_b64_tr_b16 v[%d:%d], v%d", f, f + 1, V + 4)
        e("ds_read_b64_tr_b16 v[%d:%d], v%d offset:%d", f + 2, f + 3, V + 4, 16 * 224)
        e("s_lshl_b32 s%d, s55, 14", S_T)
        e("s_add_u32 s%d, s%d, s52", S_T, S_T)
        a.label(done)
        e("s_waitcnt lgkmcnt(0)")
        e("buffer_store_dwordx4 v[%d:%d], v%d, s[%d:%d], s%d offen sc1", f, f + 3, V, R_WS, R_WS + 3, S_T)

class WLoader:
    V0, V1 = 240, 241
    S0 = 58
    def __init__(self, c):
        self.c = c; self.issued = 0
    def setup(self):
        c = self.c; e = c.e
        e("v_lshlrev_b32 v%d, 4, v%d", self.V0, V_LANE)
        e("v_add_u32 v%d, 0x40000000, v%d", self.V1, self.V0)
        e("s_cmp_eq_u32 s%d, 3", S_W)
        e("s_cselect_b64 vcc, -1, 0")
        e("v_cndmask_b32 v%d, v%d, v%d, vcc", self.V1, self.V0, self.V1)
        e("s_mul_i32 s59, s%d, 7", S_NB)
        e("s_lshl_b32 s%d, s%d, 1", S_T, S_W)
        e("s_add_u32 s59, s59, s%d", S_T)
        e("s_lshl_b32 s59, s59, 14")
        e("s_add_u32 s59, s59, 0x%x", L.WINF)
        e("s_add_u32 s58, s59, %d", 56 * 16384)
    def loads(self, k0, k1):
        c = self.c; out = []
        for ks in range(k0, k1):
            for slot in range(4):
                def f(ks=ks, slot=slot):
                    base = 58 if slot < 2 else 59
                    if slot == 0:
                        c.e("s_add_u32 s%d, s%d, %d", S_X0, S_ROT, ks)
                        c.e("s_and_b32 s%d, s%d, 15", S_X0, S_X0)
                        c.e("s_lshl_b32 s%d, s%d, 10", S_X0, S_X0)
                    c.e("s_add_u32 s%d, s%d, s%d", S_T, base, S_X0)
                    if slot & 1: c.e("s_add_u32 s%d, s%d, 16384", S_T, S_T)
                    c.bload(A0 + (ks * 4 + slot) * 4, 4, self.V1 if (slot & 1) else self.V0, R_WS, S_T, 0, "W%d" % ks, "sc1")
                out.append(f)
        return out
    def colsum_prep(self):
        for r in range(4): self.c.e("v_mov_b32 v%d, 0x3f803f80", 244 + r)
        self.c.nop(2)
    def colsum(self, k0, k1):
        c = self.c; e = c.e
        c.vm.wait("W%d" % (k1 - 1))
        for ks in range(k0, k1):
            for slot in range(4):
                cc = "0" if ks == 0 else "v[%d:%d]" % (V_CS + 4 * slot, V_CS + 4 * slot + 3)
                e("v_mfma_f32_16x16x32_bf16 v[%d:%d], %s, v[244:247], %s", V_CS + 4 * slot, V_CS + 4 * slot + 3, rr(A0 + (ks * 4 + slot) * 4, 4), cc)

LDS_H = 0
LDS_WSPST = 0
LDS_ZT = 98304
LDS_ZS = 118784
LDS_HST = 126976
LDS_ZROW = 127488
LDS_Z1 = 147456

P3_ACC = 32
P3_HF = 96
P3_AS, P3_AG = 128, 132
P3_RD = 136
P3_ONE = 140

def p3_issue_h(c):
    e = c.e
    V = 148
    e("v_lshrrev_b32 v%d, 3, v%d", V, V_LANE)
    e("v_lshlrev_b32 v%d, 12, v%d", V, V)
    e("v_and_b32 v%d, 7, v%d", V + 1, V_LANE)
    e("v_lshlrev_b32 v%d, 1, v%d", V + 2, V_G)
    e("v_xor_b32 v%d, v%d, v%d", V + 1, V + 1, V + 2)
    e("v_lshl_add_u32 v%d, v%d, 4, v%d", V, V + 1, V)
    e("s_lshl_b32 s60, s%d, 7", S_MB)
    e("s_add_u32 s60, s60, 0x%x", L.HT)
    e("s_lshl_b32 s61, s%d, 12", S_W)
    ops = []
    for ch in range(4):
        for i in range(4):
            def f(ch=ch, i=i):
                if i == 0:
                    e("s_add_u32 s62, s%d, %d", S_W, 4 * ch)
                    e("s_add_u32 s62, s62, s%d", S_ROT)
                    e("s_and_b32 s62, s62, 15")
                    e("s_lshl_b32 s62, s62, 17")
                    e("s_add_u32 s62, s62, s60")
                e("s_add_u32 s%d, s62, 0x%x", S_T, 8 * i * 4096)
                c.dma(V, R_WS, S_T, 61, LDS_H + ch * 16384 + i * 1024, "h%d" % ch, "sc1")
            ops.append(f)
    return ops

def h_addr(c, dst, jrot):
    pass

def p3_setup(c):
    e = c.e
    T = 144
    e("v_lshrrev_b32 v%d, 2, v%d", T, V_L16)
    e("v_lshl_add_u32 v%d, v%d, 2, v%d", T + 1, V_G, T)
    e("v_lshlrev_b32 v%d, 7, v%d", T + 1, T + 1)
    e("v_and_b32 v%d, 1, v%d", T + 2, V_LANE)
    e("v_lshl_add_u32 v%d, v%d, 3, v%d", T + 1, T + 2, T + 1)
    e("v_bfe_u32 v%d, v%d, 1, 1", T + 2, V_LANE)
    e("v_lshl_add_u32 v%d, v%d, 4, v%d", T + 1, T + 2, T + 1)
    e("v_and_b32 v%d, 1, v%d", T + 2, V_G)
    e("v_lshlrev_b32 v%d, 2, v%d", T + 2, T + 2)
    e("v_lshrrev_b32 v%d, 1, v%d", T + 3, T)
    e("v_lshl_add_u32 v%d, v%d, 1, v%d", T + 2, T + 3, T + 2)
    for j in range(4):
        e("s_add_u32 s%d, s%d, %d", S_T, S_W, j)
        e("s_and_b32 s%d, s%d, 3", S_T, S_T)
        e("s_lshl_b32 s%d, s%d, 1", S_T, S_T)
        e("v_xor_b32 v%d, s%d, v%d", T + 3, S_T, T + 2)
        e("v_lshl_add_u32 v%d, v%d, 4, v%d", P3_RD + j, T + 3, T + 1)
    for r in range(4): e("v_mov_b32 v%d, 0x3f803f80", P3_ONE + r)

P3_SF = 164
def p3_main(c, hooks=None, inter=None, late_cs=16):
    e = c.e; hooks = hooks or {}; inter = inter or {}
    def reads(ks):
        f = P3_HF + 16 * (ks & 1); out = []
        for j in range(4):
            for hh in range(2):
                out.append("ds_read_b64_tr_b16 v[%d:%d], v%d offset:%d" % (f + 4 * j + 2 * hh, f + 4 * j + 2 * hh + 1, P3_RD + j, LDS_H + ks * 4096 + hh * 2048))
        return out
    def sreads(kk):
        f = P3_SF + 4 * (kk & 7)
        return ["ds_read_b64_tr_b16 v[%d:%d], v%d offset:%d" % (f + 2 * hh, f + 2 * hh + 1, P3_RD, LDS_H + kk * 4096 + hh * 2048) for hh in range(2)]
    def smfma(kk):
        f = P3_SF + 4 * (kk & 7)
        cs = "0" if kk == 0 else "v[%d:%d]" % (P3_AS, P3_AS + 3)
        cg = "0" if kk == 0 else "v[%d:%d]" % (P3_AG, P3_AG + 3)
        e("v_mfma_f32_16x16x32_bf16 v[%d:%d], v[%d:%d], v[%d:%d], %s", P3_AS, P3_AS + 3, P3_ONE, P3_ONE + 3, f, f + 3, cs)
        e("v_mfma_f32_16x16x32_bf16 v[%d:%d], v[%d:%d], v[%d:%d], %s", P3_AG, P3_AG + 3, f, f + 3, f, f + 3, cg)
    for ks in range(16):
        if ks == 0:
            c.vm.wait("h0")
            c.lg.wait_all()
            e("s_barrier")
            for r in reads(0): c.lg.issue(r, "hf0")
        if ks == 3:
            c.vm.wait("h3")
            e("s_barrier")
        c.vm.wait("W%d" % ks)
        c.lg.wait("hf%d" % ks)
        if 4 <= ks <= 7: c.lg.wait("sf%d" % ks)
        if ks in (1, 4, 10): c.fine("p3k%d" % ks)
        f = P3_HF + 16 * (ks & 1)
        nxt = [(r, "hf%d" % (ks + 1)) for r in reads(ks + 1)] if ks < 15 else []
        if 3 <= ks <= 6:
            i = ks - 3
            nxt = nxt + [(r, "sf%d" % (ks + 1)) for kk in range(4 * i, 4 * i + 4) for r in sreads(kk)]
        ops = list(inter.get(ks, []))
        m = 0
        for slot in range(4):
            for j in range(4):
                acc = P3_ACC + (slot * 4 + j) * 4
                cc = "0" if ks == 0 else "v[%d:%d]" % (acc, acc + 3)
                e("v_mfma_f32_16x16x32_bf16 v[%d:%d], %s, v[%d:%d], %s", acc, acc + 3, rr(A0 + (ks * 4 + slot) * 4, 4), f + 4 * j, f + 4 * j + 3, cc)
                if nxt:
                    r, t = nxt.pop(0); c.lg.issue(r, t)
                if m % 4 == 1 and ops: ops.pop(0)()
                m += 1
        while nxt:
            r, t = nxt.pop(0); c.lg.issue(r, t)
        while ops: ops.pop(0)()
        if 4 <= ks <= 7:
            i = ks - 4
            for kk in range(4 * i, 4 * i + 4): smfma(kk)
        if ks >= late_cs:
            for slot in range(4):
                e("v_mfma_f32_16x16x32_bf16 v[%d:%d], %s, v[244:247], v[%d:%d]", V_CS + 4 * slot, V_CS + 4 * slot + 3, rr(A0 + (ks * 4 + slot) * 4, 4), V_CS + 4 * slot, V_CS + 4 * slot + 3)
        if ks == 8: p3_hstats_a(c)
        if ks == 9: p3_hstats_b(c)
        if ks in hooks: hooks[ks]()
    e("s_lshl_b32 s%d, s%d, 1", S_T, S_NB)
    e("s_sub_u32 s%d, s%d, s%d", S_T, S_T, S_ROT)
    e("s_and_b32 s%d, s%d, 15", S_T, S_T)
    e("s_lshl_b32 s%d, s%d, 12", S_T, S_T)
    e("v_add_u32 v144, s%d, v%d", S_T, P3_RD)
    for dt in range(4):
        c.lg.issue("ds_read_b64_tr_b16 v[%d:%d], v144 offset:%d" % (V_HRES + 2 * dt, V_HRES + 2 * dt + 1, LDS_H + (dt >> 1) * 4096 + (dt & 1) * 2048), "hres")

LDS_HST2 = 163840 - 512
def p3_hstats_a(c):
    e = c.e
    T = 144
    e("v_and_b32 v%d, 3, v%d", T, V_L16)
    e("v_cmp_eq_u32 vcc, 1, v%d", T)
    e("v_cmp_eq_u32 s[%d:%d], 2, v%d", S_T + 2, S_T + 3, T)
    e("v_cmp_eq_u32 s[%d:%d], 3, v%d", S_T + 4, S_T + 5, T)
    e("v_cndmask_b32 v%d, v%d, v%d, vcc", T + 1, P3_AG, P3_AG + 1)
    e("v_cndmask_b32 v%d, v%d, v%d, s[%d:%d]", T + 1, T + 1, P3_AG + 2, S_T + 2, S_T + 3)
    e("v_cndmask_b32 v%d, v%d, v%d, s[%d:%d]", T + 1, T + 1, P3_AG + 3, S_T + 4, S_T + 5)
    e("v_mul_f32 v%d, 0x3b000000, v%d", T + 2, P3_AS)
    e("v_mul_f32 v%d, 0x3b000000, v%d", T + 1, T + 1)
    e("v_fma_f32 v%d, -v%d, v%d, v%d", T + 1, T + 2, T + 2, T + 1)
    e("v_max_f32 v%d, 0, v%d", T + 1, T + 1)
    e("v_add_f32 v%d, 0x3727c5ac, v%d", T + 1, T + 1)
    e("v_rsq_f32 v%d, v%d", T + 4, T + 1)
    e("v_lshrrev_b32 v%d, 2, v%d", T + 3, V_L16)
    e("v_mul_f32 v%d, v%d, v%d", T + 5, T + 4, T + 2)
    e("v_cmp_eq_u32 vcc, v%d, v%d", T + 3, V_G)
    e("s_lshl_b32 s%d, s%d, 7", S_T, S_W)
    e("s_add_u32 s%d, s%d, 0x%x", S_T, S_T, LDS_HST2)
    e("v_lshlrev_b32 v%d, 3, v%d", T + 3, V_L16)
    e("v_add_u32 v%d, s%d, v%d", T + 3, S_T, T + 3)
    e("s_and_saveexec_b64 s[%d:%d], vcc", S_T + 2, S_T + 3)
    c.lg.issue("ds_write_b64 v%d, v[%d:%d]" % (T + 3, T + 4, T + 5), "hs")
    e("s_mov_b64 exec, s[%d:%d]", S_T + 2, S_T + 3)

def p3_hstats_b(c):
    e = c.e
    T = 144
    c.lg.wait("hs")
    e("s_barrier")
    e("v_lshlrev_b32 v%d, 3, v%d", T + 3, V_L16)
    for j in range(4):
        e("s_add_u32 s%d, s%d, %d", S_T, S_W, j)
        e("s_and_b32 s%d, s%d, 3", S_T, S_T)
        e("s_lshl_b32 s%d, s%d, 7", S_T, S_T)
        e("s_add_u32 s%d, s%d, 0x%x", S_T, S_T, LDS_HST2)
        e("v_add_u32 v%d, s%d, v%d", T + 4, S_T, T + 3)
        c.lg.issue("ds_read_b64 v[%d:%d], v%d" % (150 + 2 * j, 151 + 2 * j, T + 4), "hs2")

GC0, GC1 = 60, 62
def gelu_consts(c):
    import struct
    f2u = lambda x: struct.unpack("<I", struct.pack("<f", x))[0]
    k = -2.0 * 0.7978845608028654 * 1.4426950408889634
    c.e("s_mov_b32 s60, 0x%x", f2u(k)); c.e("s_mov_b32 s61, 0x%x", f2u(k))
    c.e("s_mov_b32 s62, 0x%x", f2u(k * 0.044715)); c.e("s_mov_b32 s63, 0x%x", f2u(k * 0.044715))

def gelu_tile(c, acc, slot, j, T, nbg=0):
    e = c.e
    R = 150 + 2 * j
    if nbg >= 1: c.bg(1)
    for q in range(2):
        x = acc + 2 * q; cs = V_CS + 4 * slot + 2 * q; t = T + 8 * q
        e("v_pk_mul_f32 %s, %s, %s op_sel:[0,1] op_sel_hi:[1,1]", pr(t), pr(cs), pr(R))
    for q in range(2):
        x = acc + 2 * q; t = T + 8 * q
        e("v_pk_fma_f32 %s, %s, %s, %s op_sel_hi:[1,0,1] neg_lo:[0,0,1] neg_hi:[0,0,1]", pr(x), pr(x), pr(R), pr(t))
    for q in range(2):
        x = acc + 2 * q; t = T + 8 * q
        e("v_pk_mul_f32 %s, %s, %s", pr(t), pr(x), pr(x))
    for q in range(2):
        x = acc + 2 * q; t = T + 8 * q
        e("v_pk_fma_f32 %s, %s, s[62:63], %s", pr(t), pr(t), pr(t + 2))
    for q in range(2):
        x = acc + 2 * q; t = T + 8 * q
        e("v_pk_mul_f32 %s, %s, %s", pr(t), pr(t), pr(x))
    for q in range(2):
        t = T + 8 * q
        e("v_exp_f32 v%d, v%d", t, t); e("v_exp_f32 v%d, v%d", t + 1, t + 1)
    if nbg >= 2: c.bg(1)
    else: e("s_nop 0")
    e("s_nop 0")
    for q in range(2):
        t = T + 8 * q
        e("v_pk_add_f32 %s, %s, %s", pr(t), pr(t), pr(t + 4))
    for q in range(2):
        t = T + 8 * q
        e("v_rcp_f32 v%d, v%d", t, t); e("v_rcp_f32 v%d, v%d", t + 1, t + 1)
    if nbg >= 3: c.bg(1)
    e("s_nop 0")
    for q in range(2):
        x = acc + 2 * q; t = T + 8 * q
        e("v_pk_mul_f32 %s, %s, %s", pr(x), pr(x), pr(t))

def gelu_tile_bg(c, acc, slot, j, T, nbg):
    gelu_tile(c, acc, slot, j, T, nbg)

def gelu_setup(c, T):
    e = c.e
    gelu_consts(c)
    for q in range(2):
        t = T + 8 * q
        e("v_mov_b32 v%d, s60", t + 2); e("v_mov_b32 v%d, s60", t + 3)
        e("v_mov_b32 v%d, 1.0", t + 4); e("v_mov_b32 v%d, 1.0", t + 5)

def p3_z2_gelu_publish(c):
    e = c.e
    T = 160
    gelu_setup(c, T)
    SUM = 176
    for j in range(4):
        for slot in range(2):
            acc = P3_ACC + (slot * 4 + j) * 4
            gelu_tile_bg(c, acc, slot, j, T, 3)
            s0, q0 = SUM + 4 * j, SUM + 4 * j + 2
            if slot == 0:
                e("v_pk_add_f32 %s, %s, %s", pr(s0), pr(acc), pr(acc + 2))
                e("v_pk_mul_f32 %s, %s, %s", pr(q0), pr(acc), pr(acc))
            else:
                e("v_pk_add_f32 %s, %s, %s", pr(s0), pr(s0), pr(acc))
                e("v_pk_add_f32 %s, %s, %s", pr(s0), pr(s0), pr(acc + 2))
                e("v_pk_fma_f32 %s, %s, %s, %s", pr(q0), pr(acc), pr(acc), pr(q0))
            e("v_pk_fma_f32 %s, %s, %s, %s", pr(q0), pr(acc + 2), pr(acc + 2), pr(q0))
    e("s_lshl_b32 s%d, s%d, 11", S_T + 1, S_W)
    e("s_add_u32 s%d, s%d, 0x%x", S_T + 1, S_T + 1, LDS_ZS)
    e("v_lshlrev_b32 v%d, 9, v%d", T, V_G)
    e("v_lshl_add_u32 v%d, v%d, 3, v%d", T, V_L16, T)
    e("v_add_u32 v%d, s%d, v%d", T, S_T + 1, T)
    for j in range(4):
        s0, q0 = SUM + 4 * j, SUM + 4 * j + 2
        e("v_add_f32 v%d, v%d, v%d", s0, s0, s0 + 1)
        e("v_add_f32 v%d, v%d, v%d", s0 + 1, q0, q0 + 1)
        e("s_add_u32 s%d, s%d, %d", S_T, S_W, j)
        e("s_and_b32 s%d, s%d, 3", S_T, S_T)
        e("s_lshl_b32 s%d, s%d, 7", S_T, S_T)
        e("v_add_u32 v%d, s%d, v%d", T + 1, S_T, T)
        c.lg.issue("ds_write_b64 v%d, v[%d:%d]" % (T + 1, s0, s0 + 1))
    c.lg.wait_all()
    e("s_barrier")
    e("s_lshl_b32 s%d, s%d, 7", S_T, S_W)
    e("s_add_u32 s%d, s%d, 0x%x", S_T, S_T, LDS_ZS)
    e("v_lshlrev_b32 v%d, 9, v%d", T, V_G)
    e("v_lshl_add_u32 v%d, v%d, 3, v%d", T, V_L16, T)
    e("v_add_u32 v%d, s%d, v%d", T, S_T, T)
    for w in range(4):
        c.lg.issue("ds_read_b64 v[%d:%d], v%d offset:%d" % (SUM + 2 * w, SUM + 2 * w + 1, T, w * 2048))
    c.lg.wait_all()
    e("v_pk_add_f32 %s, %s, %s", pr(SUM), pr(SUM), pr(SUM + 2))
    e("v_pk_add_f32 %s, %s, %s", pr(SUM + 4), pr(SUM + 4), pr(SUM + 6))
    e("v_pk_add_f32 %s, %s, %s", pr(SUM), pr(SUM), pr(SUM + 4))
    for swap in ("v_permlane16_swap_b32", "v_permlane32_swap_b32"):
        e("v_mov_b32 v%d, v%d", SUM + 2, SUM)
        e("v_mov_b32 v%d, v%d", SUM + 3, SUM + 1)
        c.nop(2)
        e("%s v%d, v%d", swap, SUM, SUM + 2)
        e("%s v%d, v%d", swap, SUM + 1, SUM + 3)
        c.nop(1)
        e("v_pk_add_f32 %s, %s, %s", pr(SUM), pr(SUM), pr(SUM + 2))
    e("s_lshl_b32 s%d, s%d, 3", S_T, S_MB)
    e("s_add_u32 s%d, s%d, s%d", S_T, S_T, S_NB)
    e("s_lshl_b32 s%d, s%d, 9", S_T, S_T)
    e("s_lshl_b32 s%d, s%d, 7", S_T + 1, S_W)
    e("s_add_u32 s%d, s%d, s%d", S_T, S_T, S_T + 1)
    e("s_add_u32 s%d, s%d, 0x%x", S_T, S_T, L.ZST)
    e("v_lshlrev_b32 v%d, 3, v%d", T, V_L16)
    e("s_mov_b64 s[%d:%d], exec", S_T + 2, S_T + 3)
    e("s_mov_b64 exec, 0xffff")
    c.bstore(SUM, 2, T, R_WS, S_T, 0, "zst", "sc1")
    e("s_mov_b64 exec, s[%d:%d]", S_T + 2, S_T + 3)

def p3_z1_gelu(c):
    e = c.e
    T = 160
    e("v_lshlrev_b32 v176, 3, v%d", V_LANE)
    e("s_lshl_b32 s%d, s%d, 10", S_T + 1, S_W)
    e("s_add_u32 s%d, s%d, 0x%x", S_T + 1, S_T + 1, LDS_Z1)
    e("v_add_u32 v176, s%d, v176", S_T + 1)
    for j in range(4):
        e("s_add_u32 s%d, s%d, %d", S_T, S_W, j)
        e("s_and_b32 s%d, s%d, 3", S_T, S_T)
        e("s_lshl_b32 s%d, s%d, 12", S_T, S_T)
        e("v_add_u32 v177, s%d, v176", S_T)
        for sl in range(2):
            slot = 2 + sl
            acc = P3_ACC + (slot * 4 + j) * 4
            gelu_tile_bg(c, acc, slot, j, T, 3)
            e("v_cvt_pk_bf16_f32 v%d, v%d, v%d", acc, acc, acc + 1)
            e("v_cvt_pk_bf16_f32 v%d, v%d, v%d", acc + 1, acc + 2, acc + 3)
            c.lg.issue("ds_write_b64 v177, v[%d:%d] offset:%d" % (acc, acc + 1, sl * 512))

def p3_z2_finish(c):
    e = c.e; a = c.a
    T = 160; G = 180
    e("s_lshl_b32 s%d, s%d, 12", S_T, S_MB)
    e("s_add_u32 s%d, s%d, 0x%x", S_T, S_T, L.ZST)
    e("v_lshlrev_b32 v%d, 3, v%d", T, V_LANE)
    loop = a.newlabel("zp"); done = a.newlabel("zpd")
    e("s_mov_b32 s%d, 0", S_T + 1)
    a.label(loop)
    for n in range(8):
        e("buffer_load_dwordx2 v[%d:%d], v%d, s[%d:%d], s%d offen offset:%d sc1", G + 2 * n, G + 2 * n + 1, T, R_WS, R_WS + 3, S_T, 512 * n)
    e("s_waitcnt vmcnt(0)")
    c.vm.q = []
    e("v_min_f32 v%d, v%d, v%d", T + 1, G + 1, G + 3)
    for n in range(2, 8):
        e("v_min_f32 v%d, v%d, v%d", T + 1, T + 1, G + 2 * n + 1)
    e("v_cmp_gt_f32 vcc, 0, v%d", T + 1)
    e("s_nop 1")
    e("s_cmp_eq_u64 vcc, 0")
    e("s_cbranch_scc1 %s", done)
    e("s_add_u32 s%d, s%d, 1", S_T + 1, S_T + 1)
    e("s_cmp_lt_u32 s%d, 0x100000", S_T + 1)
    e("s_cbranch_scc1 %s", loop)
    a.label(done)
    c.fine("zpoll")
    for n in range(1, 8):
        e("v_pk_add_f32 %s, %s, %s", pr(G), pr(G), pr(G + 2 * n))
    import struct
    inv = struct.unpack("<I", struct.pack("<f", 1.0 / 896))[0]
    e("v_mul_f32 v%d, 0x%x, v%d", G, inv, G)
    e("v_mul_f32 v%d, 0x%x, v%d", G + 1, inv, G + 1)
    e("v_fma_f32 v%d, -v%d, v%d, v%d", G + 1, G, G, G + 1)
    e("v_max_f32 v%d, 0, v%d", G + 1, G + 1)
    e("v_add_f32 v%d, 0x3727c5ac, v%d", G + 1, G + 1)
    e("v_rsq_f32 v%d, v%d", G + 2, G + 1)
    e("s_nop 0")
    e("v_mul_f32 v%d, v%d, v%d", G + 3, G, G + 2)
    e("v_sub_f32 v%d, 0, v%d", G + 3, G + 3)
    e("s_lshl_b32 s%d, s%d, 9", S_T, S_W)
    e("s_add_u32 s%d, s%d, 0x%x", S_T, S_T, LDS_ZROW)
    e("v_add_u32 v%d, s%d, v%d", T + 1, S_T, T)
    c.lg.issue("ds_write_b64 v%d, v[%d:%d]" % (T + 1, G + 2, G + 3))
    c.lg.wait_all()
    e("v_lshlrev_b32 v%d, 3, v%d", T + 2, V_L16)
    e("v_add_u32 v%d, s%d, v%d", T + 2, S_T, T + 2)
    for j in range(4):
        e("s_add_u32 s%d, s%d, %d", S_T + 1, S_W, j)
        e("s_and_b32 s%d, s%d, 3", S_T + 1, S_T + 1)
        e("s_lshl_b32 s%d, s%d, 7", S_T + 1, S_T + 1)
        e("v_add_u32 v%d, s%d, v%d", T + 3, S_T + 1, T + 2)
        c.lg.issue("ds_read_b64 v[%d:%d], v%d" % (150 + 2 * j, 151 + 2 * j, T + 3))
    c.lg.wait_all()
    e("s_mul_i32 s%d, s%d, 5120", S_T, S_W)
    e("s_add_u32 s%d, s%d, 0x%x", S_T, S_T, LDS_ZT)
    e("v_mul_u32_u24 v%d, 40, v%d", T + 4, V_L16)
    e("v_lshl_add_u32 v%d, v%d, 3, v%d", T + 4, V_G, T + 4)
    e("v_add_u32 v%d, s%d, v%d", T + 4, S_T, T + 4)
    for j in range(4):
        R = 150 + 2 * j
        e("s_add_u32 s%d, s%d, %d", S_T + 1, S_W, j)
        e("s_and_b32 s%d, s%d, 3", S_T + 1, S_T + 1)
        e("s_mul_i32 s%d, s%d, 640", S_T + 1, S_T + 1)
        e("v_add_u32 v%d, s%d, v%d", T + 5, S_T + 1, T + 4)
        for slot in range(2):
            acc = P3_ACC + (slot * 4 + j) * 4
            for q in range(2):
                x = acc + 2 * q
                e("v_pk_fma_f32 %s, %s, %s, %s op_sel:[0,0,1] op_sel_hi:[1,0,1]", pr(x), pr(x), pr(R), pr(R))
            e("v_cvt_pk_bf16_f32 v%d, v%d, v%d", acc, acc, acc + 1)
            e("v_cvt_pk_bf16_f32 v%d, v%d, v%d", acc + 1, acc + 2, acc + 3)
            c.lg.issue("ds_write_b64 v%d, v[%d:%d] offset:%d" % (T + 5, acc, acc + 1, slot * 2560))
    c.lg.wait_all()
    e("v_lshrrev_b32 v%d, 2, v%d", T + 4, V_L16)
    e("v_lshl_add_u32 v%d, v%d, 2, v%d", T + 4, V_G, T + 4)
    e("v_mul_u32_u24 v%d, 40, v%d", T + 4, T + 4)
    e("v_and_b32 v%d, 3, v%d", T + 5, V_LANE)
    e("v_lshl_add_u32 v%d, v%d, 3, v%d", T + 4, T + 5, T + 4)
    e("v_add_u32 v%d, s%d, v%d", T + 4, S_T, T + 4)
    O = 96
    for slot in range(2):
        for pp in range(2):
            for hh in range(2):
                d = O + (slot * 2 + pp) * 4 + 2 * hh
                c.lg.issue("ds_read_b64_tr_b16 v[%d:%d], v%d offset:%d" % (d, d + 1, T + 4, slot * 2560 + (32 * pp + 16 * hh) * 40), "o%d%d" % (slot, pp))
    e("s_lshl_b32 s%d, s%d, 6", S_T, S_NB)
    e("s_lshl_b32 s%d, s%d, 1", S_T + 1, S_MB)
    e("s_add_u32 s%d, s%d, s%d", S_T, S_T, S_T + 1)
    e("s_mul_i32 s%d, s%d, 7", S_T, S_T)
    e("s_lshl_b32 s%d, s%d, 1", S_T + 1, S_W)
    e("s_add_u32 s%d, s%d, s%d", S_T, S_T, S_T + 1)
    e("s_lshl_b32 s%d, s%d, 10", S_T, S_T)
    e("s_add_u32 s%d, s%d, 0x%x", S_T, S_T, L.Z2N)
    e("v_lshlrev_b32 v%d, 4, v%d", T + 5, V_LANE)
    e("v_add_u32 v%d, 0x40000000, v%d", T + 6, T + 5)
    e("s_cmp_eq_u32 s%d, 3", S_W)
    e("s_cselect_b64 vcc, -1, 0")
    e("v_cndmask_b32 v%d, v%d, v%d, vcc", T + 6, T + 5, T + 6)
    for slot in range(2):
        for pp in range(2):
            e("s_add_u32 s%d, s%d, %d", S_T + 1, S_T, (pp * 7 + slot) * 1024)
            c.lg.wait("o%d%d" % (slot, pp))
            c.bstore(O + (slot * 2 + pp) * 4, 4, T + 5 + slot, R_WS, S_T + 1, 0, "st", "sc1")

class SpLoader:
    NST = 3
    base = 65536
    V_DMA = 200
    V_RD = 208
    S_LDS, S_K = 56, 57
    def __init__(self, c):
        self.c = c; self.issued = 0; self.read_ = 0
    def setup(self):
        c = self.c; e = c.e
        T = 212
        e("v_lshrrev_b32 v%d, 3, v%d", T, V_LANE)
        e("v_lshlrev_b32 v%d, 12, v%d", T, T)
        e("v_and_b32 v%d, 7, v%d", T + 1, V_LANE)
        e("v_xor_b32 v%d, v%d, v%d", T + 1, T + 1, V_G)
        e("v_xor_b32 v%d, 4, v%d", T + 2, T + 1)
        e("v_lshl_add_u32 v%d, v%d, 4, v%d", T + 1, T + 1, T)
        e("v_lshl_add_u32 v%d, v%d, 4, v%d", T + 2, T + 2, T)
        for i in range(8):
            jj = i // 2
            e("s_add_u32 s%d, s%d, %d", S_T, S_W, jj)
            e("s_and_b32 s%d, s%d, 3", S_T, S_T)
            e("s_lshl_b32 s%d, s%d, 16", S_T, S_T)
            e("s_add_u32 s%d, s%d, %d", S_T, S_T, (i % 2) * 8 * 4096)
            e("v_add_u32 v%d, s%d, v%d", self.V_DMA + i, S_T, T + 1 + (i % 2))
        e("s_mul_i32 s%d, s%d, %d", self.S_LDS, S_W, self.NST * 8192)
        e("s_add_u32 s%d, s%d, %d", self.S_LDS, self.S_LDS, self.base)
        e("v_lshrrev_b32 v%d, 1, v%d", T + 1, V_L16)
        e("v_lshrrev_b32 v%d, 1, v%d", T + 2, V_G)
        e("v_xor_b32 v%d, v%d, v%d", T + 1, T + 1, T + 2)
        e("v_and_b32 v%d, 1, v%d", T + 2, V_G)
        e("v_lshlrev_b32 v%d, 3, v%d", T + 2, T + 2)
        e("v_lshl_add_u32 v%d, v%d, 7, v%d", T + 2, V_L16, T + 2)
        e("v_add_u32 v%d, s%d, v%d", T + 2, self.S_LDS, T + 2)
        for kk in range(2):
            for hh in range(2):
                e("v_xor_b32 v%d, %d, v%d", T + 3, 4 * kk + 2 * hh, T + 1)
                e("v_lshl_add_u32 v%d, v%d, 4, v%d", self.V_RD + 2 * kk + hh, T + 3, T + 2)
        e("s_lshl_b32 s%d, s%d, 10", self.S_K, S_W)
    def rebase(self, newbase):
        c = self.c; e = c.e
        d = newbase - self.base
        e("s_add_u32 s%d, s%d, %d", self.S_LDS, self.S_LDS, d) if d >= 0 else e("s_sub_u32 s%d, s%d, %d", self.S_LDS, self.S_LDS, -d)
        for i in range(4):
            if d >= 0: e("v_add_u32 v%d, %d, v%d", self.V_RD + i, d, self.V_RD + i)
            else: e("v_subrev_u32 v%d, %d, v%d", self.V_RD + i, -d, self.V_RD + i)
        self.base = newbase
    def srd(self):
        c = self.c; e = c.e
        e("s_lshl_b32 s%d, s%d, 18", S_T, S_MB)
        c.srd(R_B, P_WSP, 0x40000, off_sreg=S_T)
    def ops(self, n):
        c = self.c; out = []
        for _ in range(n):
            dd = self.issued
            st = dd % self.NST
            for i in range(8):
                def f(dd=dd, st=st, i=i):
                    if i == 0:
                        c.e("s_lshr_b32 s%d, s%d, 1", S_X1, S_ROTZ)
                        c.e("s_add_u32 s%d, s%d, %d", S_X1, S_X1, dd)
                        c.e("s_and_b32 s%d, s%d, 7", S_X1, S_X1)
                        c.e("s_lshl_b32 s%d, s%d, 7", S_X1, S_X1)
                        c.e("s_add_u32 s%d, s%d, s%d", S_X1, S_X1, self.S_K)
                    c.dma(self.V_DMA + i, R_B, S_X1, self.S_LDS, st * 8192 + i * 1024, "S%d" % dd, c.opt.get("ntsp", ""))
                out.append(f)
            self.issued += 1
        return out
    def issue(self, n=1):
        for f in self.ops(n): f()
    def read(self, n):
        c = self.c
        for _ in range(n):
            dd = self.read_
            c.vm.wait("S%d" % dd)
            st = dd % self.NST
            for kk in range(2):
                for j in range(4):
                    for hh in range(2):
                        dst = A0 + ((dd * 2 + kk) * 4 + j) * 4 + 2 * hh
                        c.lg.issue("ds_read_b64 %s, v%d offset:%d" % (rr(dst, 2), self.V_RD + 2 * kk + hh, st * 8192 + j * 2048), "sl")
            self.read_ += 1
    def refill(self, n):
        self.c.lg.wait("sl")
        self.issue(n)

P4_ACC = 32
P4_ZB = 144
def p4_main(c, tail_ops):
    e = c.e
    NZ = 4
    e("v_lshlrev_b32 v29, 4, v%d", V_LANE)
    e("v_add_u32 v30, 0x1000, v29")
    e("s_lshl_b32 s%d, s%d, 6", 56, S_NB)
    e("s_lshl_b32 s%d, s%d, 4", 57, S_W)
    e("s_add_u32 s56, s56, s57")
    e("s_mul_i32 s56, s56, 7168")
    e("s_add_u32 s56, s56, 0x%x", L.Z2N)
    def issue_z(ks, ft):
        d, v, imm = P4_ZB + (ks % NZ) * 28 + 4 * ft, 29 + ft // 4, (ft % 4) * 1024
        if ft == 0:
            e("s_add_u32 s57, s%d, %d", S_ROTZ, ks)
            e("s_and_b32 s57, s57, 15")
            e("s_mul_i32 s57, s57, 7168")
            e("s_add_u32 s57, s57, s56")
        c.bload(d, 4, v, R_WS, 57, imm, "z%d" % ks, c.opt.get("zflag", "sc1"))
    for ks in range(2):
        for ft in range(7): issue_z(ks, ft)
    T = 2
    e("s_mul_i32 s%d, s%d, 24576", S_T + 2, S_W)
    e("v_lshlrev_b32 v%d, 4, v%d", T + 1, V_LANE)
    e("v_add_u32 v%d, s%d, v%d", T, S_T + 2, T + 1)
    for ks in range(16):
        c.vm.wait("z%d" % ks)
        if ks in (0, 4, 12): c.fine("p4k%d" % ks)
        nk = ks + NZ - 1
        m = 0; nf = 0
        order = [(ft, j) for ft in range(7) for j in range(4)]
        if ks == 15:
            order = [(ft, j) for j in (1, 2, 3, 0) for ft in range(7)]
        pend = []
        for (ft, j) in order:
            acc = P4_ACC + (ft * 4 + j) * 4
            cc = "0" if ks == 0 else "v[%d:%d]" % (acc, acc + 3)
            z = P4_ZB + (ks % NZ) * 28 + 4 * ft
            e("v_mfma_f32_16x16x32_bf16 v[%d:%d], v[%d:%d], %s, %s", acc, acc + 3, z, z + 3, rr(A0 + (ks * 4 + j) * 4, 4), cc)
            m += 1
            if ks == 0 and m % 2 == 0 and nf < 14:
                issue_z(2 + nf // 7, nf % 7); nf += 1
            elif ks > 0 and nk < 16 and m % 4 == 0 and nf < 7:
                issue_z(nk, nf); nf += 1
            if nk >= 16 and m % 4 == 0 and tail_ops:
                tail_ops.pop(0)()
            if ks == 15:
                if j != 0: pend.append((ft, j, m))
                while pend and m - pend[0][2] >= 8:
                    f2, j2, _ = pend.pop(0)
                    a2 = P4_ACC + (f2 * 4 + j2) * 4
                    c.lg.issue("ds_write_b128 v%d, v[%d:%d] offset:%d" % (T, a2, a2 + 3, (j2 - 1) * 7168 + f2 * 1024))
    c.p4_pend = pend
    c.bgq = tail_ops

def p4_reduce_epilogue(c):
    e = c.e
    T = 144
    e("s_lshl_b32 s%d, s%d, 2", S_T, S_MB)
    e("s_add_u32 s%d, s%d, s%d", S_T, S_T, S_W)
    e("s_lshl_b32 s%d, s%d, 5", S_T + 1, S_T)
    e("v_lshlrev_b32 v%d, 1, v%d", T, V_L16)
    e("v_add_u32 v%d, s%d, v%d", T, S_T + 1, T)
    c.vm.issue("global_load_ushort v%d, v%d, s[%d:%d]" % (V_BIAS, T, P_BSP, P_BSP + 1), "bias")
    c.nop(8)
    for (f2, j2, _) in c.p4_pend:
        a2 = P4_ACC + (f2 * 4 + j2) * 4
        c.lg.issue("ds_write_b128 v2, v[%d:%d] offset:%d" % (a2, a2 + 3, (j2 - 1) * 7168 + f2 * 1024))
    e("v_lshlrev_b32 v%d, 4, v%d", T + 1, V_LANE)
    for j in range(1, 4):
        e("s_sub_u32 s%d, s%d, %d", S_T + 2, S_W, j)
        e("s_and_b32 s%d, s%d, 3", S_T + 2, S_T + 2)
        e("s_mul_i32 s%d, s%d, 24576", S_T + 2, S_T + 2)
        e("v_add_u32 v%d, s%d, v%d", T + 2 + j, S_T + 2, T + 1)
    c.bg(2)
    c.lg.wait_all()
    e("s_barrier")
    R = 152
    for j in range(1, 4):
        for ft in range(7):
            d = R + (j - 1) * 28 + 4 * ft
            c.lg.issue("ds_read_b128 v[%d:%d], v%d offset:%d" % (d, d + 3, T + 2 + j, (j - 1) * 7168 + ft * 1024), "r%d" % j)
        c.bg(1)
    Z1 = 236
    e("s_lshl_b32 s%d, s%d, 12", S_T + 2, S_W)
    e("s_add_u32 s%d, s%d, 0x%x", S_T + 2, S_T + 2, LDS_Z1)
    e("v_lshlrev_b32 v%d, 3, v%d", T + 6, V_LANE)
    e("v_add_u32 v%d, s%d, v%d", T + 6, S_T + 2, T + 6)
    for ft in range(7):
        c.lg.issue("ds_read_b64 v[%d:%d], v%d offset:%d" % (Z1 + 2 * ft, Z1 + 2 * ft + 1, T + 6, ft * 512), "z1")
    for j in range(1, 4):
        c.lg.wait("r%d" % j)
        for ft in range(7):
            acc = P4_ACC + (ft * 4) * 4
            d = R + (j - 1) * 28 + 4 * ft
            for q in range(2):
                e("v_pk_add_f32 %s, %s, %s", pr(acc + 2 * q), pr(acc + 2 * q), pr(d + 2 * q))
        c.bg(1)
    c.bg_flush()
    c.lg.wait_all()

def p4_finish(c):
    e = c.e; a = c.a
    T = 144; Z1 = 236
    c.vm.wait("bias")
    e("v_lshlrev_b32 v%d, 16, v%d", V_BIAS, V_BIAS)
    e("s_lshl_b32 s%d, s%d, 2", S_T, S_MB)
    e("s_add_u32 s%d, s%d, s%d", S_T, S_T, S_W)
    e("s_mul_i32 s%d, s%d, %d", S_T, S_T, 28 * 1024)
    e("s_add_u32 s%d, s%d, 0x%x", S_T, S_T, L.PF)
    e("s_mul_i32 s%d, s%d, 7", S_T + 1, S_NB)
    e("s_lshr_b32 s%d, s%d, 1", S_T + 2, S_T + 1)
    e("s_lshl_b32 s%d, s%d, 10", S_T + 2, S_T + 2)
    e("s_add_u32 s%d, s%d, s%d", S_T, S_T, S_T + 2)
    e("v_lshlrev_b32 v%d, 4, v%d", T + 1, V_LANE)
    O = 152
    for ft in range(7):
        x = P4_ACC + ft * 16
        z = Z1 + 2 * ft; t = T + 2
        e("v_lshlrev_b32 v%d, 16, v%d", t, z)
        e("v_and_b32 v%d, 0xffff0000, v%d", t + 1, z)
        e("v_lshlrev_b32 v%d, 16, v%d", t + 2, z + 1)
        e("v_and_b32 v%d, 0xffff0000, v%d", t + 3, z + 1)
        for r in range(4): e("v_add_f32 v%d, v%d, v%d", x + r, x + r, V_BIAS)
        for q in range(2): e("v_pk_mul_f32 %s, %s, %s", pr(x + 2 * q), pr(x + 2 * q), pr(t + 2 * q))
        e("v_cvt_pk_bf16_f32 v%d, v%d, v%d", O + 2 * ft, x, x + 1)
        e("v_cvt_pk_bf16_f32 v%d, v%d, v%d", O + 2 * ft + 1, x + 2, x + 3)
    odd = a.newlabel("podd"); done = a.newlabel("pdone")
    e("s_bitcmp1_b32 s%d, 0", S_NB)
    e("s_cbranch_scc1 %s", odd)
    txt = lambda src, n, imm: "buffer_store_%s %s, v%d, s[%d:%d], s%d offen offset:%d sc1" % ({2: "dwordx2", 4: "dwordx4"}[n], rr(src, n), T + 1, R_WS, R_WS + 3, S_T, imm)
    for p in range(3): e(txt(O + 4 * p, 4, 1024 * p))
    e(txt(O + 12, 2, 3072))
    e("s_branch %s", done)
    a.label(odd)
    e(txt(O, 2, 8))
    for p in range(3):
        e("v_mov_b32 v%d, v%d", T + 4, O + 2 + 4 * p); e("v_mov_b32 v%d, v%d", T + 5, O + 3 + 4 * p)
        e("v_mov_b32 v%d, v%d", T + 6, O + 4 + 4 * p); e("v_mov_b32 v%d, v%d", T + 7, O + 5 + 4 * p)
        e(txt(T + 4, 4, 1024 * (p + 1)))
        e("s_nop 1")
    a.label(done)
    for _ in range(4): c.vm.q.append("st")

LDS_WO = 0
def p5_wout_ops(c):
    e = c.e
    e("v_lshlrev_b32 v31, 4, v%d", V_LANE)
    e("s_lshl_b32 s58, s%d, 2", S_NB)
    e("s_mul_i32 s58, s58, 28")
    e("s_mul_i32 s%d, s%d, 7", S_T, S_W)
    e("s_add_u32 s58, s58, s%d", S_T)
    e("s_lshl_b32 s58, s58, 10")
    e("s_add_u32 s58, s58, 0x%x", L.WOUTF)
    out = []
    for kl in range(7):
        for dt in range(4):
            def f(kl=kl, dt=dt):
                if dt == 0:
                    c.e("s_add_u32 s%d, s%d, %d", S_X0, S_ROT5, kl)
                    c.e("s_cmp_ge_u32 s%d, 7", S_X0)
                    c.e("s_cselect_b32 s%d, 7, 0", S_X1)
                    c.e("s_sub_u32 s%d, s%d, s%d", S_X0, S_X0, S_X1)
                    c.e("s_lshl_b32 s%d, s%d, 10", S_X0, S_X0)
                    c.e("s_add_u32 s%d, s%d, s58", S_X0, S_X0)
                c.e("s_add_u32 s%d, s%d, %d", S_T, S_X0, dt * 28 * 1024)
                c.bload(A0 + (kl * 4 + dt) * 4, 4, 31, R_WS, S_T, 0, "wo%d" % kl, "sc1")
            out.append(f)
    return out

P5_ACC = 32
P5_PF = 96
def p5_main(c):
    e = c.e
    T = 240
    e("v_lshlrev_b32 v%d, 4, v%d", T, V_LANE)
    e("v_add_u32 v%d, 0x1000, v%d", T + 1, T)
    for j in range(4):
        e("s_add_u32 s%d, s%d, %d", S_T, S_W, j)
        e("s_and_b32 s%d, s%d, 3", S_T, S_T)
        e("s_lshl_b32 s%d, s%d, 2", S_T + 1, S_MB)
        e("s_add_u32 s%d, s%d, s%d", S_T, S_T, S_T + 1)
        e("s_mul_i32 s%d, s%d, 28", S_T, S_T)
        e("s_mul_i32 s%d, s%d, 7", S_T + 1, S_W)
        e("s_add_u32 s%d, s%d, s%d", S_T, S_T, S_T + 1)
        e("s_lshl_b32 s%d, s%d, 10", S_T, S_T)
        e("s_add_u32 s%d, s%d, 0x%x", 52 + j, S_T, L.PF)
    def pload(kl, j):
        if j == 0:
            e("s_add_u32 s%d, s%d, %d", S_X0, S_ROT5, kl)
            e("s_cmp_ge_u32 s%d, 7", S_X0)
            e("s_cselect_b32 s%d, 7, 0", S_X1)
            e("s_sub_u32 s%d, s%d, s%d", S_X0, S_X0, S_X1)
            e("s_lshl_b32 s%d, s%d, 10", S_X0, S_X0)
        e("s_add_u32 s%d, s%d, s%d", S_T, S_X0, 52 + j)
        c.bload(P5_PF + (kl * 4 + j) * 4, 4, T, R_WS, S_T, 0, "p%d" % kl, "sc1")
    AHEAD = 3
    for kl in range(AHEAD):
        for j in range(4): pload(kl, j)
    for kl in range(7):
        c.vm.wait("p%d" % kl, "wo%d" % kl)
        m = 0
        for dt in range(4):
            for j in range(4):
                acc = P5_ACC + (dt * 4 + j) * 4
                cc = "0" if kl == 0 else "v[%d:%d]" % (acc, acc + 3)
                p = P5_PF + (kl * 4 + j) * 4
                e("v_mfma_f32_16x16x32_bf16 v[%d:%d], %s, v[%d:%d], %s", acc, acc + 3, rr(A0 + (kl * 4 + dt) * 4, 4), p, p + 3, cc)
                m += 1
                if kl + AHEAD < 7 and m % 4 == 1: pload(kl + AHEAD, m // 4)

def p5_epilogue(c):
    e = c.e
    T = 240
    c.lg.wait_all()
    e("s_mul_i32 s%d, s%d, 28672", S_T + 2, S_W)
    e("v_lshlrev_b32 v%d, 4, v%d", T + 1, V_LANE)
    e("v_add_u32 v%d, s%d, v%d", T + 2, S_T + 2, T + 1)
    c.nop(8)
    for j in range(1, 4):
        for dt in range(4):
            acc = P5_ACC + (dt * 4 + j) * 4
            c.lg.issue("ds_write_b128 v%d, v[%d:%d] offset:%d" % (T + 2, acc, acc + 3, LDS_WO + (j - 1) * 4096 + dt * 1024))
    for j in range(1, 4):
        e("s_sub_u32 s%d, s%d, %d", S_T + 2, S_W, j)
        e("s_and_b32 s%d, s%d, 3", S_T + 2, S_T + 2)
        e("s_mul_i32 s%d, s%d, 28672", S_T + 2, S_T + 2)
        e("v_add_u32 v%d, s%d, v%d", T + 2 + j, S_T + 2, T + 1)
    c.lg.wait_all()
    e("s_barrier")
    R = 96
    for j in range(1, 4):
        for dt in range(4):
            d = R + (j - 1) * 16 + 4 * dt
            c.lg.issue("ds_read_b128 v[%d:%d], v%d offset:%d" % (d, d + 3, T + 2 + j, LDS_WO + (j - 1) * 4096 + dt * 1024), "r%d" % j)
    for j in range(1, 4):
        c.lg.wait("r%d" % j)
        for dt in range(4):
            acc = P5_ACC + dt * 16; d = R + (j - 1) * 16 + 4 * dt
            for q in range(2):
                e("v_pk_add_f32 %s, %s, %s", pr(acc + 2 * q), pr(acc + 2 * q), pr(d + 2 * q))
    O = 160
    for dt in range(4):
        acc = P5_ACC + dt * 16; h = V_HRES + 2 * dt; t = 152
        e("v_lshlrev_b32 v%d, 16, v%d", t, h)
        e("v_and_b32 v%d, 0xffff0000, v%d", t + 1, h)
        e("v_lshlrev_b32 v%d, 16, v%d", t + 2, h + 1)
        e("v_and_b32 v%d, 0xffff0000, v%d", t + 3, h + 1)
        for q in range(2):
            e("v_pk_add_f32 %s, %s, %s", pr(acc + 2 * q), pr(acc + 2 * q), pr(t + 2 * q))
        e("v_cvt_pk_bf16_f32 v%d, v%d, v%d", O + 2 * dt, acc, acc + 1)
        e("v_cvt_pk_bf16_f32 v%d, v%d, v%d", O + 2 * dt + 1, acc + 2, acc + 3)
    c.srd(R_A, P_OUT, 2 << 20)
    e("v_lshlrev_b32 v%d, 10, v%d", T, V_L16)
    e("v_and_b32 v%d, 1, v%d", T + 1, V_G)
    e("v_lshl_add_u32 v%d, v%d, 5, v%d", T, T + 1, T)
    e("v_lshrrev_b32 v%d, 1, v%d", T + 1, V_G)
    e("v_lshl_add_u32 v%d, v%d, 4, v%d", T, T + 1, T)
    e("s_lshl_b32 s%d, s%d, 2", S_T, S_MB)
    e("s_add_u32 s%d, s%d, s%d", S_T, S_T, S_W)
    e("s_lshl_b32 s%d, s%d, 14", S_T, S_T)
    e("s_lshl_b32 s%d, s%d, 7", S_T + 1, S_NB)
    e("s_add_u32 s%d, s%d, s%d", S_T, S_T, S_T + 1)
    for p in range(2):
        o = O + 4 * p
        c.nop(2)
        e("v_permlane16_swap_b32 v%d, v%d", o, o + 2)
        e("v_permlane16_swap_b32 v%d, v%d", o + 1, o + 3)
        c.bstore(o, 4, T, R_A, S_T, 64 * p, "out", c.opt.get("outflag", ""))

def touch_wsp(c, dd0, ndd, wq=S_W, tracked=True, V=145):
    e = c.e
    e("s_lshl_b32 s%d, s%d, 18", S_T, S_MB)
    e("s_and_b32 s%d, s%d, 3", S_T + 1, S_NB)
    e("s_lshl_b32 s%d, s%d, 16", S_T + 1, S_T + 1)
    e("s_add_u32 s%d, s%d, s%d", S_T, S_T, S_T + 1)
    e("s_lshl_b32 s%d, s%d, 10", S_T + 1, wq)
    e("s_add_u32 s%d, s%d, s%d", S_T, S_T, S_T + 1)
    c.srd(R_C, P_WSP, 8 << 20)
    e("s_lshr_b32 s%d, s%d, 1", S_T + 1, S_ROTZ)
    e("s_add_u32 s%d, s%d, %d", S_T + 1, S_T + 1, dd0)
    e("v_add_u32 v%d, s%d, v%d", V + 1, S_T + 1, V_G)
    e("v_and_b32 v%d, 7, v%d", V + 1, V + 1)
    e("v_lshlrev_b32 v%d, 12, v%d", V, V_L16)
    e("v_lshl_add_u32 v%d, v%d, 7, v%d", V, V + 1, V)
    e("v_cmp_gt_u32 vcc, %d, v%d", ndd, V_G)
    e("v_mov_b32 v%d, 0x40000000", V + 1)
    e("s_nop 0")
    e("v_cndmask_b32 v%d, v%d, v%d, vcc", V, V + 1, V)
    if tracked: c.bload(V_BIAS, 1, V, R_C, S_T, 0, "touch", c.opt.get("nttouch", ""))
    else: e("buffer_load_dword v%d, v%d, s[%d:%d], s%d offen", V_BIAS, V, R_C, R_C + 3, S_T)

def touch_z2n(c):
    e = c.e
    e("s_lshl_b32 s%d, s%d, 6", S_T, S_NB)
    e("s_lshl_b32 s%d, s%d, 4", S_T + 1, S_W)
    e("s_add_u32 s%d, s%d, s%d", S_T, S_T, S_T + 1)
    e("s_and_b32 s%d, s%d, 7", S_T + 1, S_MB)
    e("s_lshl_b32 s%d, s%d, 1", S_T + 1, S_T + 1)
    e("s_add_u32 s%d, s%d, s%d", S_T, S_T, S_T + 1)
    e("s_mul_i32 s%d, s%d, 7168", S_T, S_T)
    e("s_add_u32 s%d, s%d, 0x%x", S_T, S_T, L.Z2N)
    e("v_lshlrev_b32 v2, 7, v%d", V_LANE)
    c.bload(31, 1, 2, R_WS, S_T, 0, "touch", c.opt.get("zflag", "sc1"))
    e("v_add_u32 v2, 0x2000, v2")
    e("v_cmp_gt_u32 vcc, 48, v%d", V_LANE)
    e("v_mov_b32 v3, 0x40000000")
    e("s_nop 0")
    e("v_cndmask_b32 v2, v3, v2, vcc")
    c.bload(31, 1, 2, R_WS, S_T, 0, "touch", c.opt.get("zflag", "sc1"))
```

```python
import sys
from core import *
import ph12, ph345
KNAME = "sequential_preLN__ssm_conv_h3__mixer_gmlp__prompt_kernel"

def drain_arrive(c, line_sreg, line_imm, boot=False):
    c.vm.wait_all()
    c.lg.wait_all()
    c.e("s_barrier")
    if boot: ph12.wait_boot(c)
    c.arrive(line_sreg, line_imm)

def build(stop=99, stamps=False, fine=False, finer=False, skip=(), **opt):
    body = Asm()
    c = Ctx(body, stamps)
    c.finestamps = fine
    c.finerstamps = finer
    c.st.skip = set(skip)
    c.opt = opt
    e = c.e
    kernel_begin(body, KNAME)
    ph12.setup(c)
    ph12.load_D_issue(c)
    ph12.bootstrap_a(c)
    WL = ph345.WLoader(c); SL = ph345.SpLoader(c)
    c.st.stamp("setup")
    ph12.p1_issue(c)
    ph12.p1_issue_x(c)
    ph12.bootstrap_b(c)
    ph12.p1_kv(c)
    ph12.load_D_finish(c)
    ph12.boot_flag_issue(c)
    c.finer("ust")
    ph12.p1_x(c)
    c.lg.wait_all()
    e("s_barrier")
    c.finer("xwork")
    ph12.p1_x_store(c)
    ph12.p1_issue_raw(c)
    ph345.wpre_issue(c)
    c.vm.wait("xst")
    c.finer("acks")
    ph12.boot_flag_check(c)
    e("s_barrier")
    c.garrive(L.C1_LINE)
    c.st.stamp("arr1")
    c.vm.wait("raw")
    c.lg.wait_all()
    e("s_barrier")
    c.finer("raw")
    ph12.toeplitz(c)
    c.finer("toep")
    c.vm.wait("wp")
    c.lg.wait_all()
    e("s_barrier")
    lw0 = body.newlabel("w0p"); ljoin = body.newlabel("w0j")
    e("s_cmp_eq_u32 s%d, 0", S_W)
    e("s_cbranch_scc1 %s", lw0)
    ph345.wpre_store3(c)
    e("s_waitcnt vmcnt(0)")
    e("s_branch %s", ljoin)
    body.label(lw0)
    c.gpoll(L.C1_LINE)
    body.label(ljoin)
    WL.setup()
    e("s_barrier")
    c.garrive(L.C1B_LINE)
    c.st.stamp("B1")
    ph12.p2_issue_u(c)
    sops = ph12.p2_stats_ops(c)
    c.vm.wait("ub")
    e("s_barrier")
    c.finer("ub")
    wl = WL.loads(0, 16)
    take = lambda n: [wl.pop(0) for _ in range(n)]
    def touch_block(dd0, n):
        l0 = body.newlabel("tb"); lt = body.newlabel("t0")
        e("s_cmp_eq_u32 s%d, 0", S_W)
        e("s_cbranch_scc1 %s", l0)
        ph345.touch_wsp(c, dd0, n, tracked=False, V=248)
        e("s_cmp_eq_u32 s%d, 1", S_W)
        e("s_cbranch_scc0 %s", lt)
        e("s_mov_b32 s%d, 0", S_X0)
        ph345.touch_wsp(c, dd0, n, wq=S_X0, tracked=False, V=248)
        body.label(lt)
        body.label(l0)
    ck = opt.get("ck", 2)
    def hke(): c.gpoll(L.C1B_LINE, 242, 243, early=True)
    def hkl():
        c.gpoll(L.C1B_LINE, 242, 243, late=True)
        e("s_barrier")
        if opt.get('touch1', 1): touch_block(0, 4)
    nmain = 9 * (3 - ck)
    ph12.p2_main(c, {ck - 1: hke, ck: hkl}, dict([(0, sops)] + [(r, take(9)) for r in range(ck + 1, 4)]))
    c.st.stamp("p2main")
    c.bgq = take(8)
    ph12.p2_epilogue(c)
    c.finer("p2epi")
    c.bg_flush()
    for f in take(opt.get('nack', 14)): f()
    c.vm.wait("st")
    c.lg.wait_all()
    e("s_barrier")
    c.garrive(L.C2_LINE)
    c.st.stamp("arr2")
    ph345.p3_setup(c)
    WL.colsum_prep()
    late = opt.get("late", 10)
    nlate = 4 * (16 - late)
    k = 0
    while len(wl) > nlate:
        for f in take(min(4, len(wl) - nlate)): f()
        WL.colsum(k, k + 1); k += 1
    WL.colsum(k, late)
    c.finer("wdone")
    SL.setup(); SL.srd()
    c.gpoll(L.C2_LINE)
    e("s_barrier")
    c.st.stamp("B2")
    hops = ph345.p3_issue_h(c)
    for f in hops[:8]: f()
    s0 = SL.ops(3)
    inter = {10 + i: s0[4 * i:4 * i + 4] for i in range(6)}
    inter[0] = hops[8:12]; inter[1] = hops[12:16]
    for i in range(16 - late):
        inter[2 + i] = take(4)
    ph345.p3_main(c, ({opt.get('t2k', 8): lambda: ph345.touch_wsp(c, 4, 4)} if opt.get('touch2', 1) else {}), inter, late_cs=late)
    c.st.stamp("p3main")
    SL.read(3)
    c.lg.wait_all()
    e("s_barrier")
    SL.rebase(0)
    c.fine("hstats")
    ph345.p3_z2_gelu_publish(c)
    c.st.stamp("z2pub")
    c.bgq = SL.ops(3)
    ph345.p3_z1_gelu(c)
    c.bg_flush()
    c.fine("z1")
    ph345.p3_z2_finish(c)
    c.st.stamp("p3done")
    SL.read(3)
    c.lg.wait("sl")
    c.fine("slr2")
    s2 = SL.ops(2)
    for _ in range(8): s2.pop(0)()
    c.vm.wait("st")
    c.lg.wait_all()
    e("s_barrier")
    c.arrive(S_NB, L.C3_LINE)
    c.fine("arr3")
    for f in s2: f()
    SL.read(2)
    c.lg.wait_all()
    c.fine("slr3")
    c.poll(S_NB, L.C3_LINE, 1, 32)
    e("s_barrier")
    c.st.stamp("B3")
    tail = ph345.p5_wout_ops(c)
    ph345.p4_main(c, tail)
    c.st.stamp("p4main")
    ph345.p4_reduce_epilogue(c)
    c.fine("p4red")
    ph345.p4_finish(c)
    c.st.stamp("p4done")
    c.vm.wait("st")
    e("s_barrier")
    c.arrive(S_MB, L.C4_LINE)
    c.fine("arr4")
    c.poll(S_MB, L.C4_LINE, 1, 8)
    e("s_barrier")
    c.st.stamp("C4")
    ph345.p5_main(c)
    c.fine("p5main")
    ph345.p5_epilogue(c)
    if stamps or opt.get("endwait", 1): c.vm.wait_all()
    c.st.stamp("end")
    c.st.stamp("real1", real=True)
    if opt.get('dbgout') is not None: flush_dbg(c.st, P_DBG, 2, S_W, opt['dbgout'], 32)
    else: c.st.flush(P_WS, L.STAMPS, 2, 32, S_T)
    body.label("KEND")
    e("s_endpgm")
    a = Asm()
    hdr = open("cdna_kernels/%s.s.ref" % KNAME.replace("_kernel", "")).read().split("\n")
    for ln in hdr:
        if ln.startswith("; @launch") or ln.startswith("; Override") or ln.startswith("; grid="): continue
        if not ln.startswith(";"): break
        a(ln)
    a("; @launch grid=(256,1,1) block=(256,1,1) lds=163840")
    a('.amdgcn_target "amdgcn-amd-amdhsa--gfx950"')
    a(".text")
    a(body.text())
    a('.section .rodata,"a"')
    a(".p2align 6")
    kernel_desc(a, KNAME, 512, sgprs=102, accum=256)
    return a.text(), c.st.names

if __name__ == "__main__":
    kw = eval("dict(%s)" % (sys.argv[2] if len(sys.argv) > 2 else ""))
    t, names = build(**kw)
    open(sys.argv[1], "w").write(t)
    open(sys.argv[1] + ".stamps", "w").write(",".join(names))
```

```python
from core import *
pr = lambda r: "v[%d:%d]" % (r, r + 1)

LDS_COPY = 0
COPY_STRIDE = 4160
COPY_CH = 8 * COPY_STRIDE
LDS_T1, LDS_T2 = 0, 149504
LDS_UB = 66560
UB_CH = 4576
LDS_RAW = 75712
RAW_CH = 4128
LDS_WST = 83968

def setup(c):
    e = c.e; a = c.a
    e("s_cmp_ge_u32 s2, 256")
    e("s_cbranch_scc1 KEND")
    c.st.stamp("real0", real=True)
    c.st.stamp("start")
    e("s_load_dwordx8 s[4:11], s[0:1], 0")
    e("s_load_dwordx4 s[12:15], s[0:1], 32")
    e("s_load_dwordx8 s[16:23], s[0:1], 56")
    e("s_load_dwordx4 s[24:27], s[0:1], 88")
    e("s_load_dwordx2 s[28:29], s[0:1], 104")
    e("v_and_b32 v%d, 63, v0", V_LANE)
    e("v_lshrrev_b32 v29, 6, v0")
    e("v_and_b32 v%d, 15, v%d", V_L16, V_LANE)
    e("v_readfirstlane_b32 s%d, v29", S_W)
    e("v_lshrrev_b32 v%d, 4, v%d", V_G, V_LANE)
    e("s_and_b32 s%d, s2, 7", S_CG)
    e("s_lshr_b32 s%d, s2, 3", S_J)
    e("s_lshr_b32 s%d, s%d, 1", S_MB, S_CG)
    e("s_lshl_b32 s%d, s%d, 3", S_MB, S_MB)
    e("s_and_b32 s%d, s%d, 7", S_T, S_J)
    e("s_add_u32 s%d, s%d, s%d", S_MB, S_MB, S_T)
    e("s_and_b32 s%d, s%d, 1", S_NB, S_CG)
    e("s_lshl_b32 s%d, s%d, 2", S_NB, S_NB)
    e("s_lshr_b32 s%d, s%d, 3", S_T, S_J)
    e("s_add_u32 s%d, s%d, s%d", S_NB, S_NB, S_T)
    e("s_and_b32 s%d, s%d, 7", S_ROT, S_MB)
    e("s_lshl_b32 s%d, s%d, 1", S_ROT, S_ROT)
    e("s_lshl_b32 s%d, s%d, 1", S_ROT5, S_NB)
    e("s_add_u32 s%d, s%d, s%d", S_ROT5, S_ROT5, S_MB)
    e("s_mul_i32 s%d, s%d, 9363", S_T, S_ROT5)
    e("s_lshr_b32 s%d, s%d, 16", S_T, S_T)
    e("s_mul_i32 s%d, s%d, 7", S_T, S_T)
    e("s_sub_u32 s%d, s%d, s%d", S_ROT5, S_ROT5, S_T)
    rz = c.opt.get("rotz", 0)
    if rz == 0: e("s_mov_b32 s%d, 0", S_ROTZ)
    elif rz == 8: e("s_mov_b32 s%d, s%d", S_ROTZ, S_ROT)
    else:
        e("s_and_b32 s%d, s%d, %d", S_ROTZ, S_MB, rz - 1)
        e("s_lshl_b32 s%d, s%d, %d", S_ROTZ, S_ROTZ, {2: 3, 4: 2}[rz])
    if not c.opt.get("rot", 0): e("s_mov_b32 s%d, 0", S_ROT)
    if not c.opt.get("rot5", 0): e("s_mov_b32 s%d, 0", S_ROT5)
    e("s_waitcnt lgkmcnt(0)")
    c.srd(R_WS, P_WS, L.WS_USED)

def bootstrap_a(c):
    e = c.e; a = c.a
    skip = a.newlabel("boot")
    e("s_cmp_eq_u32 s2, 0")
    e("s_cbranch_scc0 %s", skip)
    e("s_cmp_eq_u32 s%d, 3", S_W)
    e("s_cbranch_scc0 %s", skip)
    e("v_lshlrev_b32 v29, 8, v%d", V_LANE)
    e("v_add_u32 v29, 0x%x, v29", L.FLAGS)
    e("v_mov_b32 v30, 0")
    for i in range(4):
        e("global_store_dword v29, v30, s[%d:%d] sc1", P_WS, P_WS + 1)
        if i < 3: e("v_add_u32 v29, 0x4000, v29")
    a.label(skip)

def bootstrap_b(c):
    e = c.e; a = c.a
    skip = a.newlabel("boot")
    e("s_cmp_eq_u32 s2, 0")
    e("s_cbranch_scc0 %s", skip)
    e("s_cmp_eq_u32 s%d, 3", S_W)
    e("s_cbranch_scc0 %s", skip)
    e("s_waitcnt vmcnt(%d)", len(c.vm.q))
    e("v_mov_b32 v29, 0")
    e("v_mov_b32 v30, 1")
    e("s_mov_b64 s[%d:%d], exec", S_T + 2, S_T + 3)
    e("s_mov_b64 exec, 1")
    e("global_store_dword v29, v30, s[%d:%d] sc1", P_DBG, P_DBG + 1)
    e("s_mov_b64 exec, s[%d:%d]", S_T + 2, S_T + 3)
    a.label(skip)

V_BOOT = 31
def boot_flag_issue(c):
    c.e("v_mov_b32 v%d, 0", V_BOOT)
    c.vm.issue("global_load_dword v%d, v%d, s[%d:%d] sc1" % (V_BOOT, V_BOOT, P_DBG, P_DBG + 1), "boot")

def boot_flag_check(c):
    e = c.e; a = c.a
    skip = a.newlabel("wb"); loop = a.newlabel("wbl"); done = a.newlabel("wbd")
    c.vm.wait("boot")
    e("s_cmp_eq_u32 s%d, 0", S_W)
    e("s_cbranch_scc0 %s", skip)
    e("v_readfirstlane_b32 s%d, v%d", S_T, V_BOOT)
    e("s_mov_b32 s%d, 0", S_T + 1)
    e("s_nop 3")
    e("s_cmp_lg_u32 s%d, 0", S_T)
    e("s_cbranch_scc1 %s", done)
    e("v_mov_b32 v29, 0")
    a.label(loop)
    e("global_load_dword v30, v29, s[%d:%d] sc1", P_DBG, P_DBG + 1)
    e("s_waitcnt vmcnt(0)")
    e("v_readfirstlane_b32 s%d, v30", S_T)
    e("s_nop 3")
    e("s_cmp_lg_u32 s%d, 0", S_T)
    e("s_cbranch_scc1 %s", done)
    e("s_add_u32 s%d, s%d, 1", S_T + 1, S_T + 1)
    e("s_cmp_lt_u32 s%d, 0x200000", S_T + 1)
    e("s_cbranch_scc1 %s", loop)
    a.label(done)
    a.label(skip)

def p1_issue(c):
    e = c.e
    VK, VV, VX, VW, VS = 32, 52, 60, 68, 84
    VO = 92
    e("v_and_b32 v%d, 7, v0", VO)
    e("v_lshrrev_b32 v%d, 3, v0", VO + 1)
    e("s_lshl_b32 s%d, s%d, 16", S_T, S_J)
    e("s_lshl_b32 s%d, s%d, 7", S_T + 1, S_CG)
    e("s_add_u32 s%d, s%d, s%d", S_T, S_T, S_T + 1)
    e("v_lshlrev_b32 v%d, 11, v%d", VO + 2, VO + 1)
    e("v_lshl_add_u32 v%d, v%d, 4, v%d", VO + 2, VO, VO + 2)
    e("v_add_u32 v%d, s%d, v%d", VO + 2, S_T, VO + 2)
    c.srd(R_A, P_SHK, 4096)
    e("s_lshl_b32 s%d, s%d, 9", S_T, S_CG)
    e("v_lshlrev_b32 v%d, 6, v%d", VO + 6, VO)
    e("v_add_u32 v%d, s%d, v%d", VO + 6, S_T, VO + 6)
    c.srd(R_B, P_K, 2 << 20)
    c.srd(R_C, P_V, 2 << 20)
    for i in range(3):
        e("v_subrev_u32 v%d, %d, v%d", VO + 3 + i, (3 - i) * 1024, VO + 2)
    c.bload(VK + 12, 4, VO + 2, R_B, None, 0, "p1k", c.opt.get("nt", ""))
    c.bload(VK + 16, 4, VO + 2, R_B, None, 1024, "p1k", c.opt.get("nt", ""))
    c.bload(VV, 4, VO + 2, R_C, None, 0, "p1v", c.opt.get("nt", ""))
    c.bload(VV + 4, 4, VO + 2, R_C, None, 1024, "p1v", c.opt.get("nt", ""))
    for i in range(3):
        c.bload(VK + 4 * i, 4, VO + 3 + i, R_B, None, 0, "p1k", c.opt.get("nt", ""))
    for i in range(4):
        c.bload(VW + 4 * i, 4, VO + 6, R_A, None, 16 * i, "p1w")

def p1_issue_x(c):
    e = c.e
    VX, VS = 60, 84
    VO = 92
    e("v_lshlrev_b32 v%d, 4, v%d", VO + 7, V_LANE)
    c.srd(R_C, P_Q, 2 << 20)
    c.bload(VX, 4, VO + 2, R_C, None, 0, "p1x", c.opt.get("nt", ""))
    c.bload(VX + 4, 4, VO + 2, R_C, None, 1024, "p1x", c.opt.get("nt", ""))
    e("s_lshl_b32 s%d, s2, 3", S_T)
    e("s_lshl_b32 s%d, s%d, 1", S_T + 1, S_W)
    e("s_add_u32 s%d, s%d, s%d", S_T, S_T, S_T + 1)
    e("s_lshl_b32 s%d, s%d, 10", S_T, S_T)
    c.bload(VS, 4, VO + 7, R_C, S_T, 0, "p1s", c.opt.get("nt", ""))
    c.bload(VS + 4, 4, VO + 7, R_C, S_T, 1024, "p1s", c.opt.get("nt", ""))

def p1_issue_raw(c):
    e = c.e
    VO = 92
    e("v_lshlrev_b32 v%d, 4, v%d", VO + 7, V_LANE)
    c.srd(R_B, P_SSM, 2 << 20)
    e("s_lshl_b32 s%d, s%d, 6", S_T, S_CG)
    e("s_lshl_b32 s%d, s%d, 1", S_T + 1, S_J)
    e("s_add_u32 s%d, s%d, s%d", S_T, S_T, S_T + 1)
    e("s_lshr_b32 s%d, s%d, 1", S_T + 1, S_W)
    e("s_add_u32 s%d, s%d, s%d", S_T, S_T, S_T + 1)
    e("s_lshl_b32 s%d, s%d, 12", S_T, S_T)
    e("s_and_b32 s%d, s%d, 1", S_T + 2, S_W)
    e("s_lshl_b32 s%d, s%d, 11", S_T + 2, S_T + 2)
    e("s_add_u32 s%d, s%d, s%d", S_T, S_T, S_T + 2)
    e("s_mul_i32 s%d, s%d, %d", S_T + 1, S_T + 1, RAW_CH)
    e("s_add_u32 s%d, s%d, s%d", S_T + 1, S_T + 1, S_T + 2)
    c.dma(VO + 7, R_B, S_T, S_T + 1, LDS_RAW + 32, "raw", c.opt.get("nt", ""))
    e("s_add_u32 s%d, s%d, 1024", S_T, S_T)
    c.dma(VO + 7, R_B, S_T, S_T + 1, LDS_RAW + 32 + 1024, "raw", c.opt.get("nt", ""))
    e("v_mov_b32 v%d, 0", VO + 8)
    e("v_mov_b32 v%d, 0", VO + 9)
    e("v_lshrrev_b32 v%d, 2, v0", VO + 10)
    e("v_mul_u32_u24 v%d, %d, v%d", VO + 10, RAW_CH, VO + 10)
    e("v_and_b32 v%d, 3, v0", VO + 11)
    e("v_lshl_add_u32 v%d, v%d, 3, v%d", VO + 10, VO + 11, VO + 10)
    e("v_add_u32 v%d, 0x%x, v%d", VO + 10, LDS_RAW, VO + 10)
    e("v_cmp_gt_u32 vcc, 8, v0")
    e("s_and_saveexec_b64 s[%d:%d], vcc", S_T + 2, S_T + 3)
    c.lg.issue("ds_write_b64 v%d, v[%d:%d]" % (VO + 10, VO + 8, VO + 9))
    e("s_mov_b64 exec, s[%d:%d]", S_T + 2, S_T + 3)
    skip = c.a.newlabel("ubz")
    e("s_cmp_lt_u32 s%d, 2", S_W)
    e("s_cbranch_scc0 %s", skip)
    e("s_mul_i32 s%d, s%d, %d", S_T, S_W, UB_CH)
    e("s_add_u32 s%d, s%d, 0x%x", S_T, S_T, LDS_UB + 4096)
    e("v_lshlrev_b32 v%d, 3, v%d", VO + 10, V_LANE)
    e("v_add_u32 v%d, s%d, v%d", VO + 10, S_T, VO + 10)
    e("v_cmp_gt_u32 vcc, 60, v%d", V_LANE)
    e("s_and_saveexec_b64 s[%d:%d], vcc", S_T + 2, S_T + 3)
    e("ds_write_b64 v%d, v[%d:%d]", VO + 10, VO + 8, VO + 9)
    e("s_mov_b64 exec, s[%d:%d]", S_T + 2, S_T + 3)
    c.a.label(skip)

def p1_kv(c, mid=None):
    e = c.e
    VK, VV, VX, VW, VS = 32, 52, 60, 68, 84
    VO = 92
    KF = 104
    WF = 144
    KS = 176
    VF = 192
    PK = 208
    AD = 224
    c.vm.wait("p1w")
    c.fine("d_loaded")
    if mid: mid()
    for i in range(5):
        for d in range(4):
            e("v_lshlrev_b32 v%d, 16, v%d", KF + 8 * i + 2 * d, VK + 4 * i + d)
            e("v_and_b32 v%d, 0xffff0000, v%d", KF + 8 * i + 2 * d + 1, VK + 4 * i + d)
    for ch in range(8):
        for jj in range(2):
            e("v_lshlrev_b32 v%d, 16, v%d", WF + 8 * (2 * jj) + ch, VW + 2 * ch + jj)
            e("v_and_b32 v%d, 0xffff0000, v%d", WF + 8 * (2 * jj + 1) + ch, VW + 2 * ch + jj)
    for i in range(2):
        for d in range(4):
            e("v_lshlrev_b32 v%d, 16, v%d", VF + 8 * i + 2 * d, VV + 4 * i + d)
            e("v_and_b32 v%d, 0xffff0000, v%d", VF + 8 * i + 2 * d + 1, VV + 4 * i + d)
    for i in range(2):
        for j in range(4):
            for q in range(4):
                dst = KS + 8 * i + 2 * q
                ksrc = KF + 8 * (i + 3 - j) + 2 * q
                wsrc = WF + 8 * j + 2 * q
                if j == 0: e("v_pk_mul_f32 %s, %s, %s", pr(dst), pr(ksrc), pr(wsrc))
                else: e("v_pk_fma_f32 %s, %s, %s, %s", pr(dst), pr(ksrc), pr(wsrc), pr(dst))
    for i in range(2):
        for q in range(4):
            dst = KS + 8 * i + 2 * q
            e("v_pk_mul_f32 %s, %s, %s", pr(dst), pr(dst), pr(VF + 8 * i + 2 * q))
    for ch in range(8):
        e("v_cvt_pk_bf16_f32 v%d, v%d, v%d", PK + ch, KS + 8 + ch, KS + ch)
    e("v_lshlrev_b32 v%d, 2, v%d", AD + 2, VO)
    e("v_xor_b32 v%d, v%d, v%d", AD + 1, VO + 1, AD + 2)
    e("v_sub_u32 v%d, 31, v%d", AD, VO + 1)
    e("v_xor_b32 v%d, v%d, v%d", AD, AD, AD + 2)
    e("v_lshlrev_b32 v%d, 10, v%d", AD + 2, VO)
    e("v_lshl_add_u32 v%d, v%d, 2, v%d", AD, AD, AD + 2)
    e("v_lshl_add_u32 v%d, v%d, 2, v%d", AD + 1, AD + 1, AD + 2)
    for ch in range(8):
        c.lg.issue("ds_write_b32 v%d, v%d offset:%d" % (AD, PK + ch, LDS_T1 + ch * 128))
    c.lg.wait_all()
    e("s_barrier")
    c.fine("d_kv")
    RD = 128
    T = 232
    e("v_lshrrev_b32 v%d, 3, v0", T)
    e("v_lshrrev_b32 v%d, 3, v%d", T + 1, T)
    e("v_and_b32 v%d, 7, v0", T + 2)
    e("v_xor_b32 v%d, v%d, v%d", T + 3, T + 2, T + 1)
    e("v_xor_b32 v%d, 4, v%d", T + 4, T + 3)
    e("v_lshlrev_b32 v%d, 7, v%d", T + 5, T)
    e("v_lshl_add_u32 v%d, v%d, 4, v%d", T + 3, T + 3, T + 5)
    e("v_lshl_add_u32 v%d, v%d, 4, v%d", T + 4, T + 4, T + 5)
    c.lg.issue("ds_read_b128 v[%d:%d], v%d offset:%d" % (RD, RD + 3, T + 3, LDS_T1), "a")
    c.lg.issue("ds_read_b128 v[%d:%d], v%d offset:%d" % (RD + 4, RD + 7, T + 4, LDS_T1 + 4096), "b")
    e("v_lshlrev_b32 v%d, 12, v%d", T + 6, T)
    e("v_lshl_add_u32 v%d, v%d, 4, v%d", T + 6, T + 2, T + 6)
    e("v_add_u32 v%d, 0x20000, v%d", T + 7, T + 6)
    e("s_lshl_b32 s%d, s%d, 18", S_T, S_CG)
    e("s_lshl_b32 s%d, s%d, 7", S_T + 1, S_J)
    e("s_sub_u32 s%d, %d, s%d", S_T + 2, 1984 * 2, S_T + 1)
    e("s_add_u32 s%d, s%d, s%d", S_T + 2, S_T + 2, S_T)
    e("s_add_u32 s%d, s%d, 0x%x", S_T + 2, S_T + 2, L.UREV)
    c.lg.wait("a"); c.bstore(RD, 4, T + 6, R_WS, S_T + 2, 0, "ust", "sc1")
    c.lg.wait("b"); c.bstore(RD + 4, 4, T + 7, R_WS, S_T + 2, 0, "ust", "sc1")

def p1_x(c):
    e = c.e
    VK, VV, VX, VW, VS = 32, 52, 60, 68, 84
    VO = 92
    KF = 104
    WF = 144
    KS = 176
    VF = 192
    PK = 208
    AD = 224
    c.vm.wait("p1x", c.opt.get("nt", ""))
    e("s_mov_b32 s%d, 0x05040100", S_T)
    e("s_mov_b32 s%d, 0x07060302", S_T + 1)
    for ch in range(8):
        e("v_perm_b32 v%d, v%d, v%d, s%d", PK + 8 + ch, VX + 4 + ch // 2, VX + ch // 2, S_T + (ch & 1))
    e("v_lshlrev_b32 v%d, 2, v%d", AD + 2, VO)
    e("v_xor_b32 v%d, v%d, v%d", AD + 1, VO + 1, AD + 2)
    e("v_lshlrev_b32 v%d, 10, v%d", AD + 2, VO)
    e("v_lshl_add_u32 v%d, v%d, 2, v%d", AD + 1, AD + 1, AD + 2)
    e("v_add_u32 v%d, 0x%x, v%d", AD + 1, LDS_T2, AD + 1)
    for ch in range(8):
        c.lg.issue("ds_write_b32 v%d, v%d offset:%d" % (AD + 1, PK + 8 + ch, ch * 128))
    c.vm.wait("p1s", c.opt.get("nt", ""))
    SF = 104
    SA = 120
    for i in range(2):
        for d in range(4):
            e("v_lshlrev_b32 v%d, 16, v%d", SF + 8 * i + 2 * d, VS + 4 * i + d)
            e("v_and_b32 v%d, 0xffff0000, v%d", SF + 8 * i + 2 * d + 1, VS + 4 * i + d)
    for i in range(2):
        e("v_pk_add_f32 %s, %s, %s", pr(SA + 4 * i), pr(SF + 8 * i), pr(SF + 8 * i + 2))
        e("v_pk_add_f32 %s, %s, %s", pr(SA + 4 * i + 2), pr(SF + 8 * i + 4), pr(SF + 8 * i + 6))
    for i in range(2):
        e("v_pk_add_f32 %s, %s, %s", pr(SA + 4 * i), pr(SA + 4 * i), pr(SA + 4 * i + 2))
    for i in range(2):
        e("v_add_f32 v%d, v%d, v%d", SA + 4 * i, SA + 4 * i, SA + 4 * i + 1)
    def wave_sum2(r0, r1, s0, s1):
        for dpp in ("row_shr:1", "row_shr:2", "row_shr:4", "row_shr:8"):
            c.nop(1)
            e("v_add_f32_dpp v%d, v%d, v%d %s row_mask:0xf bank_mask:0xf bound_ctrl:0", r0, r0, r0, dpp)
            e("v_add_f32_dpp v%d, v%d, v%d %s row_mask:0xf bank_mask:0xf bound_ctrl:0", r1, r1, r1, dpp)
        for dpp, m in (("row_bcast:15", "0xa"), ("row_bcast:31", "0xc")):
            c.nop(1)
            e("v_add_f32_dpp v%d, v%d, v%d %s row_mask:%s bank_mask:0xf", r0, r0, r0, dpp, m)
            e("v_add_f32_dpp v%d, v%d, v%d %s row_mask:%s bank_mask:0xf", r1, r1, r1, dpp, m)
        c.nop(1)
        e("v_readlane_b32 s%d, v%d, 63", s0, r0)
        e("v_readlane_b32 s%d, v%d, 63", s1, r1)
    wave_sum2(SA, SA + 4, S_T + 4, S_T + 5)
    c.nop(2)
    e("v_mov_b32 v%d, 0x3b000000", SA + 8)
    e("v_mul_f32 v%d, s%d, v%d", SA + 9, S_T + 4, SA + 8)
    e("v_mul_f32 v%d, s%d, v%d", SA + 10, S_T + 5, SA + 8)
    for i in range(2):
        for q in range(8):
            e("v_sub_f32 v%d, v%d, v%d", SF + 8 * i + q, SF + 8 * i + q, SA + 9 + i)
    for i in range(2):
        e("v_pk_mul_f32 %s, %s, %s", pr(SA + 4 * i), pr(SF + 8 * i), pr(SF + 8 * i))
        for q in range(1, 4):
            e("v_pk_fma_f32 %s, %s, %s, %s", pr(SA + 4 * i), pr(SF + 8 * i + 2 * q), pr(SF + 8 * i + 2 * q), pr(SA + 4 * i))
    for i in range(2):
        e("v_add_f32 v%d, v%d, v%d", SA + 4 * i, SA + 4 * i, SA + 4 * i + 1)
    wave_sum2(SA, SA + 4, S_T + 4, S_T + 5)
    c.nop(2)
    e("v_mov_b32 v%d, 0x3727c5ac", SA + 11)
    e("v_fma_f32 v%d, s%d, v%d, v%d", SA, S_T + 4, SA + 8, SA + 11)
    e("v_fma_f32 v%d, s%d, v%d, v%d", SA + 2, S_T + 5, SA + 8, SA + 11)
    e("v_rsq_f32 v%d, v%d", SA, SA)
    e("v_rsq_f32 v%d, v%d", SA + 2, SA + 2)
    c.nop(1)
    e("v_mul_f32 v%d, v%d, v%d", SA + 1, SA + 9, SA)
    e("v_mul_f32 v%d, v%d, v%d", SA + 3, SA + 10, SA + 2)
    e("v_sub_f32 v%d, 0, v%d", SA + 1, SA + 1)
    e("v_sub_f32 v%d, 0, v%d", SA + 3, SA + 3)
    e("s_lshl_b32 s%d, s%d, 4", S_T, S_W)
    e("s_add_u32 s%d, s%d, 0x%x", S_T, S_T, LDS_T2 + 8192)
    e("v_mov_b32 v%d, s%d", SA + 12, S_T)
    e("s_mov_b64 s[%d:%d], exec", S_T + 2, S_T + 3)
    e("s_mov_b64 exec, 1")
    c.lg.issue("ds_write_b128 v%d, v[%d:%d]" % (SA + 12, SA, SA + 3))
    e("s_mov_b64 exec, s[%d:%d]", S_T + 2, S_T + 3)

def p1_x_store3(c):
    e = c.e
    RD = 128; T = 232
    OOB = 0x40000000
    e("s_sub_u32 s%d, s%d, 1", S_T, S_W)
    e("s_lshl_b32 s%d, s%d, 6", S_T, S_T)
    e("s_cmp_eq_u32 s%d, 0", S_W)
    e("s_cselect_b32 s%d, 0x1000, s%d", S_T, S_T)
    e("s_lshl_b32 s%d, s%d, 18", S_T + 1, S_CG)
    e("s_lshl_b32 s%d, s%d, 7", S_T + 2, S_J)
    e("s_add_u32 s%d, s%d, s%d", S_T + 3, S_T + 1, S_T + 2)
    e("s_add_u32 s%d, s%d, 0x%x", S_T + 3, S_T + 3, L.XT)
    for r in range(3):
        P, D, Q, LA, GO = T, T + 1, T + 2, T + 3, T + 4 + r
        e("v_add_u32 v%d, s%d, v%d", P, S_T, V_LANE)
        if r: e("v_add_u32 v%d, %d, v%d", P, 192 * r, P)
        e("v_lshrrev_b32 v%d, 3, v%d", D, P)
        e("v_and_b32 v%d, 63, v%d", D, D)
        e("v_and_b32 v%d, 7, v%d", Q, P)
        e("v_lshrrev_b32 v%d, 3, v%d", LA, D)
        e("v_xor_b32 v%d, v%d, v%d", LA, LA, Q)
        e("v_lshlrev_b32 v%d, 4, v%d", LA, LA)
        e("v_lshl_add_u32 v%d, v%d, 7, v%d", LA, D, LA)
        e("v_add_u32 v%d, 0x%x, v%d", LA, LDS_T2, LA)
        c.lg.issue("ds_read_b128 v[%d:%d], v%d" % (RD + 4 * r, RD + 4 * r + 3, LA), "x%d" % r)
        e("v_lshlrev_b32 v%d, 12, v%d", GO, D)
        e("v_lshl_add_u32 v%d, v%d, 4, v%d", GO, Q, GO)
        e("v_cmp_gt_u32 vcc, 512, v%d", P)
        e("v_mov_b32 v%d, 0x%x", Q, OOB)
        e("s_nop 0")
        e("v_cndmask_b32 v%d, v%d, v%d, vcc", GO, Q, GO)
    e("v_lshlrev_b32 v%d, 4, v%d", T, V_LANE)
    e("v_and_b32 v%d, 0x70, v%d", T + 1, T)
    e("v_add_u32 v%d, 0x%x, v%d", T + 1, LDS_T2 + 8192, T + 1)
    c.lg.issue("ds_read_b128 v[%d:%d], v%d" % (RD + 12, RD + 15, T + 1), "s")
    for r in range(3):
        c.lg.wait("x%d" % r); c.bstore(RD + 4 * r, 4, T + 4 + r, R_WS, S_T + 3, 0, "xst", "sc1")
    c.lg.wait("s")
    e("v_cmp_gt_u32 vcc, 4, v%d", V_LANE)
    e("s_cmp_eq_u32 s%d, 2", S_W)
    e("s_cselect_b32 s%d, 8, 0", S_T + 1)
    for r in range(4): e("v_cndmask_b32 v%d, 0, v%d, vcc", RD + 12 + r, RD + 12 + r)
    e("v_cmp_gt_u32 vcc, s%d, v%d", S_T + 1, V_LANE)
    e("v_mov_b32 v%d, 0x%x", T + 1, OOB)
    e("s_lshl_b32 s%d, s2, 7", S_T)
    e("v_cndmask_b32 v%d, v%d, v%d, vcc", T, T + 1, T)
    e("s_add_u32 s%d, s%d, 0x%x", S_T, S_T, L.STAT1)
    c.bstore(RD + 12, 4, T, R_WS, S_T, 0, "xst", "sc1")
    e("s_lshl_b32 s%d, s%d, 3", S_T, S_MB)
    e("s_add_u32 s%d, s%d, s%d", S_T, S_T, S_NB)
    e("s_lshl_b32 s%d, s%d, 9", S_T, S_T)
    e("s_add_u32 s%d, s%d, 0x%x", S_T, S_T, L.ZST)
    e("s_cmp_eq_u32 s%d, 1", S_W)
    e("s_cselect_b32 s%d, s%d, 0x%x", S_T, S_T, OOB)
    e("v_lshlrev_b32 v%d, 3, v%d", T + 2, V_LANE)
    e("v_mov_b32 v%d, 0", RD)
    e("v_mov_b32 v%d, -1.0", RD + 1)
    c.bstore(RD, 2, T + 2, R_WS, S_T, 0, "xst", "sc1")

def toeplitz(c):
    e = c.e
    AD = 104
    e("v_lshrrev_b32 v%d, 7, v0", AD)
    e("v_and_b32 v%d, 127, v0", AD + 1)
    e("v_mul_u32_u24 v%d, %d, v%d", AD + 2, RAW_CH, AD)
    e("v_lshl_add_u32 v%d, v%d, 4, v%d", AD + 2, AD + 1, AD + 2)
    e("v_add_u32 v%d, 0x%x, v%d", AD + 2, LDS_RAW, AD + 2)
    e("v_mul_u32_u24 v%d, %d, v%d", AD + 3, COPY_CH, AD)
    e("v_lshl_add_u32 v%d, v%d, 4, v%d", AD + 3, AD + 1, AD + 3)
    sets = [(112, 120, 128, 136), (144, 152, 160, 168), (176, 184, 192, 200)]
    def rd(k, roff):
        R = sets[k][0]
        c.lg.issue("ds_read_b128 v[%d:%d], v%d offset:%d" % (R, R + 3, AD + 2, roff), "r%d" % k)
        c.lg.issue("ds_read_b128 v[%d:%d], v%d offset:%d" % (R + 4, R + 7, AD + 2, roff + 16), "r%d" % k)
    def build(k, woff):
        R, O, AB, AO = sets[k]
        c.lg.wait("r%d" % k)
        for i in range(7):
            e("v_alignbit_b32 v%d, v%d, v%d, 16", AB + i, R + i + 1, R + i)
        for i in range(6):
            e("v_alignbit_b32 v%d, v%d, v%d, 16", AO + i, R + i + 2, R + i + 1)
        for i in range(6):
            e("v_mov_b32 v%d, v%d", O + i, R + i + 1)
        src = {0: AB, 1: O, 2: AO, 3: R + 2, 4: AB + 2, 5: O + 2, 6: AO + 2, 7: R + 4}
        for sft in (3, 7, 0, 4, 1, 5, 2, 6):
            c.lg.issue("ds_write_b128 v%d, v[%d:%d] offset:%d" % (AD + 3, src[sft], src[sft] + 3, LDS_COPY + sft * COPY_STRIDE + woff), "w")
    rd(0, 0); rd(1, 2048); rd(2, 4096)
    build(0, 0)
    build(1, 2048)
    e("v_cmp_eq_u32 vcc, 0, v%d", AD + 1)
    e("s_and_saveexec_b64 s[%d:%d], vcc", S_T + 2, S_T + 3)
    build(2, 4096)
    e("s_mov_b64 exec, s[%d:%d]", S_T + 2, S_T + 3)

P2_X, P2_ST = 200, 208
S_D = 56
def p2_issue_u(c):
    e = c.e
    VO = 32
    e("s_lshl_b32 s%d, s%d, 6", S_T, S_CG)
    e("s_lshl_b32 s%d, s%d, 1", S_T + 1, S_J)
    e("s_add_u32 s%d, s%d, s%d", S_T, S_T, S_T + 1)
    e("s_lshr_b32 s%d, s%d, 1", S_T + 1, S_W)
    e("s_add_u32 s%d, s%d, s%d", S_T, S_T, S_T + 1)
    e("s_lshl_b32 s57, s%d, 12", S_T)
    e("s_and_b32 s%d, s%d, 1", S_T + 2, S_W)
    e("s_lshl_b32 s%d, s%d, 11", S_T + 2, S_T + 2)
    e("s_add_u32 s%d, s57, s%d", S_T + 3, S_T + 2)
    e("s_add_u32 s%d, s%d, 0x%x", S_T + 3, S_T + 3, L.UREV)
    e("s_mul_i32 s%d, s%d, %d", S_T + 1, S_T + 1, UB_CH)
    e("s_add_u32 s%d, s%d, s%d", S_T + 1, S_T + 1, S_T + 2)
    e("v_lshlrev_b32 v%d, 4, v%d", VO, V_LANE)
    c.dma(VO, R_WS, S_T + 3, S_T + 1, LDS_UB, "ub", "sc1")
    e("s_add_u32 s%d, s%d, 1024", S_T + 3, S_T + 3)
    c.dma(VO, R_WS, S_T + 3, S_T + 1, LDS_UB + 1024, "ub", "sc1")

def load_D_issue(c):
    e = c.e
    e("s_lshl_b32 s%d, s%d, 6", S_T, S_CG)
    e("s_lshl_b32 s%d, s%d, 1", S_T + 1, S_J)
    e("s_add_u32 s%d, s%d, s%d", S_T, S_T, S_T + 1)
    e("s_lshl_b32 s%d, s%d, 1", S_T, S_T)
    e("s_load_dword s%d, s[%d:%d], s%d", S_D, P_D, P_D + 1, S_T)

def load_D_finish(c):
    e = c.e
    c.lg.wait_all()
    e("s_lshl_b32 s%d, s%d, 16", S_T, S_D)
    e("s_and_b32 s%d, s%d, 0xffff0000", S_T + 1, S_D)
    e("s_cmp_lt_u32 s%d, 2", S_W)
    e("s_cselect_b32 s%d, s%d, s%d", S_D, S_T, S_T + 1)

LDS_ST = 98304
def p2_stats_ops(c):
    e = c.e
    e("v_lshlrev_b32 v33, 5, v%d", V_L16)
    e("v_lshl_add_u32 v33, v%d, 3, v33", V_G)
    e("s_and_b32 s%d, s%d, 1", S_T, S_W)
    e("s_lshl_b32 s60, s%d, 11", S_T)
    e("s_add_u32 s60, s60, s57")
    e("s_add_u32 s60, s60, 0x%x", L.XT)
    e("v_and_b32 v39, 7, v%d", V_LANE)
    e("v_lshlrev_b32 v39, 8, v39")
    e("v_bfe_u32 v38, v%d, 4, 1", V_LANE)
    e("v_lshl_add_u32 v39, v38, 7, v39")
    e("v_bfe_u32 v38, v%d, 3, 1", V_LANE)
    e("v_lshl_add_u32 v39, v38, 5, v39")
    e("v_lshrrev_b32 v38, 5, v%d", V_LANE)
    e("v_lshl_add_u32 v39, v38, 4, v39")
    e("s_lshl_b32 s61, s%d, 12", S_W)
    e("s_lshl_b32 s62, s%d, 13", S_W)
    e("s_add_u32 s62, s62, 0x%x", L.STAT1)
    out = []
    for i in range(4):
        def f(i=i):
            c.e("s_add_u32 s%d, s62, %d", S_T, 2048 * i)
            c.dma(39, R_WS, S_T, 61, LDS_ST + 1024 * i, "stat", "sc1")
        out.append(f)
    for b in range(4):
        out.append(lambda b=b: c.bload(P2_X + 2 * b, 2, 33, R_WS, 60, 512 * b, "x", "sc1"))
    return out

def p2_stats_read(c):
    e = c.e
    e("v_and_b32 v39, 7, v%d", V_L16)
    e("v_lshlrev_b32 v39, 4, v39")
    e("v_lshl_add_u32 v39, v%d, 7, v39", V_G)
    e("v_lshrrev_b32 v38, 3, v%d", V_L16)
    e("v_lshl_add_u32 v39, v38, 10, v39")
    e("s_and_b32 s%d, s%d, 1", S_T, S_W)
    e("s_lshl_b32 s%d, s%d, 13", S_T, S_T)
    e("s_add_u32 s%d, s%d, 0x%x", S_T, S_T, LDS_ST)
    e("v_add_u32 v39, s%d, v39", S_T)
    for b in range(4):
        c.lg.issue("ds_read_b128 v[%d:%d], v39 offset:%d" % (P2_ST + 8 * b, P2_ST + 8 * b + 3, 2048 * b), "st2")
        c.lg.issue("ds_read_b128 v[%d:%d], v39 offset:%d" % (P2_ST + 8 * b + 4, P2_ST + 8 * b + 7, 2048 * b + 512), "st2")

def p2_main(c, hooks=None, inter=None):
    e = c.e; hooks = hooks or {}; inter = inter or {}
    FR = [40, 104]
    ACC = 168
    VA, VB = 34, 35
    e("v_and_b32 v%d, 7, v%d", VA, V_LANE)
    e("v_mul_u32_u24 v%d, %d, v%d", VA, COPY_STRIDE, VA)
    e("v_bfe_u32 v%d, v%d, 3, 1", VB, V_LANE)
    e("v_add_u32 v%d, v%d, v%d", VB, VB, V_G)
    e("v_lshl_add_u32 v%d, v%d, 4, v%d", VA, VB, VA)
    e("s_lshr_b32 s%d, s%d, 1", S_T, S_W)
    e("s_and_b32 s%d, s%d, 1", S_T + 1, S_W)
    e("s_mul_i32 s%d, s%d, %d", S_T + 2, S_T, COPY_CH)
    e("s_lshl_b32 s%d, s%d, 8", S_T + 3, S_T + 1)
    e("s_add_u32 s%d, s%d, s%d", S_T + 2, S_T + 2, S_T + 3)
    e("v_add_u32 v%d, s%d, v%d", VA, S_T + 2, VA)
    e("s_mul_i32 s%d, s%d, %d", S_T + 2, S_T, UB_CH)
    e("s_add_u32 s%d, s%d, s%d", S_T + 2, S_T + 2, S_T + 3)
    e("s_add_u32 s%d, s%d, %d", S_T + 2, S_T + 2, LDS_UB + 480)
    e("v_lshlrev_b32 v%d, 4, v%d", VB, V_G)
    e("v_lshlrev_b32 v36, 5, v%d", V_L16)
    e("v_sub_u32 v%d, v%d, v36", VB, VB)
    e("v_add_u32 v%d, s%d, v%d", VB, S_T + 2, VB)
    def reads(i):
        f = FR[i & 1]; out = []
        for x in range(8):
            out.append("ds_read_b128 v[%d:%d], v%d offset:%d" % (f + 4 * x, f + 4 * x + 3, VA, LDS_COPY + 64 * (i + 8 * x)))
            out.append("ds_read_b128 v[%d:%d], v%d offset:%d" % (f + 32 + 4 * x, f + 32 + 4 * x + 3, VB, 64 * i + 512 * (7 - x)))
        return out
    for r in reads(0): c.lg.issue(r)
    for i in range(4):
        c.lg.wait_all()
        f = FR[i & 1]
        nxt = reads(i + 1) if i < 3 else []
        m = 0
        for aa in range(8):
            for b in range(aa, 8):
                cc = "0" if (i == 0 and aa == 0) else "v[%d:%d]" % (ACC + 4 * b, ACC + 4 * b + 3)
                e("v_mfma_f32_16x16x32_bf16 v[%d:%d], v[%d:%d], v[%d:%d], %s", ACC + 4 * b, ACC + 4 * b + 3,
                  f + 4 * aa, f + 4 * aa + 3, f + 32 + 4 * (b - aa), f + 32 + 4 * (b - aa) + 3, cc)
                if m % 2 == 1 and nxt: c.lg.issue(nxt.pop(0))
                if m % (3 if i == 0 else 4) == 0 and inter.get(i): inter[i].pop(0)()
                m += 1
        while nxt: c.lg.issue(nxt.pop(0))
        while inter.get(i): inter[i].pop(0)()
        if i in hooks: hooks[i]()

def p2_epilogue(c):
    e = c.e; a = c.a
    ACC = 168; FIN = 40; TMP = 56; VO = 36
    LDS_RED = 0
    c.vm.wait("stat")
    c.lg.wait_all()
    e("s_barrier")
    p2_stats_read(c)
    e("v_lshlrev_b32 v%d, 4, v%d", VO, V_LANE)
    e("s_lshl_b32 s%d, s%d, 12", S_T, S_W)
    e("v_add_u32 v%d, s%d, v%d", VO + 1, S_T, VO)
    e("s_xor_b32 s%d, s%d, 1", S_T + 1, S_W)
    e("s_lshl_b32 s%d, s%d, 12", S_T + 1, S_T + 1)
    e("v_add_u32 v%d, s%d, v%d", VO + 2, S_T + 1, VO)
    l1 = a.newlabel("hf1"); l2 = a.newlabel("hfd")
    e("s_and_b32 s%d, s%d, 1", S_T, S_W)
    e("s_cmp_eq_u32 s%d, 1", S_T)
    e("s_cbranch_scc1 %s", l1)
    for hf, lab in ((0, None), (1, l1)):
        if lab: a.label(lab)
        own = range(4 * hf, 4 * hf + 4); exp = range(4 * (1 - hf), 4 * (1 - hf) + 4)
        for x, b in enumerate(exp):
            e("ds_write_b128 v%d, v[%d:%d] offset:%d", VO + 1, ACC + 4 * b, ACC + 4 * b + 3, LDS_RED + 1024 * x)
        for x, b in enumerate(own):
            for r in range(4):
                e("v_mov_b32 v%d, v%d", FIN + 4 * x + r, ACC + 4 * b + r)
        if hf == 0: e("s_branch %s", l2)
    a.label(l2)
    c.bg(2)
    e("s_waitcnt lgkmcnt(0)")
    e("s_barrier")
    c.bg(2)
    for x in range(4):
        c.lg.issue("ds_read_b128 v[%d:%d], v%d offset:%d" % (TMP + 4 * x, TMP + 4 * x + 3, VO + 2, LDS_RED + 1024 * x), "red")
    e("s_lshr_b32 s%d, s%d, 1", S_T, S_W)
    e("s_mul_i32 s%d, s%d, %d", S_T, S_T, UB_CH)
    e("s_and_b32 s%d, s%d, 1", S_T + 1, S_W)
    e("s_lshl_b32 s%d, s%d, 11", S_T + 1, S_T + 1)
    e("s_sub_u32 s%d, s%d, s%d", S_T, S_T, S_T + 1)
    e("s_add_u32 s%d, s%d, %d", S_T, S_T, LDS_UB + 4088 - 1536)
    e("v_lshlrev_b32 v%d, 5, v%d", VO + 3, V_L16)
    e("v_lshl_add_u32 v%d, v%d, 3, v%d", VO + 3, V_G, VO + 3)
    e("v_sub_u32 v%d, s%d, v%d", VO + 3, S_T, VO + 3)
    U = 72
    for b in range(4):
        c.lg.issue("ds_read_b64 v[%d:%d], v%d offset:%d" % (U + 2 * b, U + 2 * b + 1, VO + 3, 512 * (3 - b)), "u")
    c.lg.wait("red")
    for x in range(4):
        for q in range(2):
            e("v_pk_add_f32 %s, %s, %s", pr(FIN + 4 * x + 2 * q), pr(FIN + 4 * x + 2 * q), pr(TMP + 4 * x + 2 * q))
    c.lg.wait("u")
    c.vm.wait("x")
    UF = 80; XF = 84; XN = 88; OUT = 96
    for b in range(4):
        e("v_and_b32 v%d, 0xffff0000, v%d", UF + 0, U + 2 * b + 1)
        e("v_lshlrev_b32 v%d, 16, v%d", UF + 1, U + 2 * b + 1)
        e("v_and_b32 v%d, 0xffff0000, v%d", UF + 2, U + 2 * b)
        e("v_lshlrev_b32 v%d, 16, v%d", UF + 3, U + 2 * b)
        c.bg(1)
        e("v_lshlrev_b32 v%d, 16, v%d", XF + 0, P2_X + 2 * b)
        e("v_and_b32 v%d, 0xffff0000, v%d", XF + 1, P2_X + 2 * b)
        e("v_lshlrev_b32 v%d, 16, v%d", XF + 2, P2_X + 2 * b + 1)
        e("v_and_b32 v%d, 0xffff0000, v%d", XF + 3, P2_X + 2 * b + 1)
        for r in range(4):
            e("v_fma_f32 v%d, s%d, v%d, v%d", FIN + 4 * b + r, S_D, UF + r, FIN + 4 * b + r)
        c.bg(1)
        for r in range(4):
            e("v_fma_f32 v%d, v%d, v%d, v%d", XN + r, P2_ST + 8 * b + 2 * r, XF + r, P2_ST + 8 * b + 2 * r + 1)
        for r in range(4):
            e("v_fma_f32 v%d, v%d, v%d, v%d", XN + r, XN + r, FIN + 4 * b + r, XF + r)
        e("v_cvt_pk_bf16_f32 v%d, v%d, v%d", OUT + 2 * b, XN, XN + 1)
        e("v_cvt_pk_bf16_f32 v%d, v%d, v%d", OUT + 2 * b + 1, XN + 2, XN + 3)
        c.bg(1)
    e("v_and_b32 v%d, 1, v%d", VO, V_G)
    e("v_lshlrev_b32 v%d, 9, v%d", VO, VO)
    e("v_lshl_add_u32 v%d, v%d, 5, v%d", VO, V_L16, VO)
    e("v_lshrrev_b32 v%d, 1, v%d", VO + 1, V_G)
    e("v_lshl_add_u32 v%d, v%d, 4, v%d", VO, VO + 1, VO)
    e("s_and_b32 s%d, s%d, 1", S_T, S_W)
    e("s_lshl_b32 s%d, s%d, 11", S_T, S_T)
    e("s_add_u32 s%d, s%d, s57", S_T, S_T)
    e("s_add_u32 s%d, s%d, 0x%x", S_T, S_T, L.HT)
    for p in range(2):
        o = OUT + 4 * p
        c.nop(2)
        e("v_permlane16_swap_b32 v%d, v%d", o, o + 2)
        e("v_permlane16_swap_b32 v%d, v%d", o + 1, o + 3)
        c.bstore(o, 4, VO, R_WS, S_T, 1024 * p, "st", "sc1")
```

```python
from core import *
import ph12

pr = lambda r: "v[%d:%d]" % (r, r + 1)
A0 = 256

LDS_WP = 83968
LDS_WOP = 83968 + 7168
def wpre_issue(c):
    e = c.e
    V = 240
    c.srd(R_A, P_WIN, 512 * 3584)
    e("s_and_b32 s%d, s2, 15", S_T)
    e("s_mul_i32 s%d, s%d, %d", S_T, S_T, 32 * 3584)
    e("s_lshr_b32 s%d, s2, 4", S_T + 1)
    e("s_mul_i32 s%d, s%d, 224", S_T + 1, S_T + 1)
    e("s_add_u32 s%d, s%d, s%d", S_T + 4, S_T, S_T + 1)
    for it in range(2):
        e("s_add_u32 s%d, s%d, %d", S_T, S_W, 4 * it)
        e("s_lshl_b32 s%d, s%d, 6", S_T + 1, S_T)
        e("v_add_u32 v%d, s%d, v%d", V, S_T + 1, V_LANE)
        e("v_mul_u32_u24 v%d, 4682, v%d", V + 1, V)
        e("v_lshrrev_b32 v%d, 16, v%d", V + 1, V + 1)
        e("v_mul_u32_u24 v%d, 14, v%d", V + 2, V + 1)
        e("v_sub_u32 v%d, v%d, v%d", V + 2, V, V + 2)
        e("v_mul_u32_u24 v%d, 3584, v%d", V + 1, V + 1)
        e("v_lshl_add_u32 v%d, v%d, 4, v%d", V + 1, V + 2, V + 1)
        e("v_cmp_gt_u32 vcc, 448, v%d", V)
        e("v_mov_b32 v%d, 0x40000000", V + 2)
        e("s_lshl_b32 s%d, s%d, 10", S_T + 1, S_T)
        e("v_cndmask_b32 v%d, v%d, v%d, vcc", V + 3 + it, V + 2, V + 1)
        e("s_cmp_eq_u32 s%d, 7", S_T)
        e("s_cselect_b32 s%d, 0x3000, s%d", S_T + 1, S_T + 1)
        c.dma(V + 3 + it, R_A, S_T + 4, S_T + 1, LDS_WP, "wp", c.opt.get("nt", ""))
    c.srd(R_B, P_WOUT, 896 * 1024)
    e("s_mul_i32 s%d, s2, 2341", S_T)
    e("s_lshr_b32 s%d, s%d, 16", S_T, S_T)
    e("s_mul_i32 s%d, s%d, 28", S_T + 1, S_T)
    e("s_sub_u32 s%d, s2, s%d", S_T + 1, S_T + 1)
    e("s_lshl_b32 s%d, s%d, 15", S_T + 2, S_T + 1)
    e("s_lshl_b32 s%d, s%d, 7", S_T + 3, S_T)
    e("s_add_u32 s%d, s%d, s%d", S_T + 2, S_T + 2, S_T + 3)
    e("s_lshl_b32 s%d, s%d, 13", S_T + 3, S_W)
    e("s_add_u32 s%d, s%d, s%d", S_T + 2, S_T + 2, S_T + 3)
    e("s_cmp_ge_u32 s2, 224")
    e("s_cselect_b32 s%d, 0x40000000, s%d", S_T + 2, S_T + 2)
    e("v_lshrrev_b32 v%d, 3, v%d", V, V_LANE)
    e("v_lshlrev_b32 v%d, 10, v%d", V, V)
    e("v_and_b32 v%d, 7, v%d", V + 1, V_LANE)
    e("v_lshlrev_b32 v%d, 1, v%d", V + 2, V_G)
    e("v_xor_b32 v%d, v%d, v%d", V + 1, V + 1, V + 2)
    e("v_lshl_add_u32 v%d, v%d, 4, v%d", V, V + 1, V)
    e("s_lshl_b32 s%d, s%d, 10", S_T + 3, S_W)
    c.dma(V, R_B, S_T + 2, S_T + 3, LDS_WOP, "wp", c.opt.get("nt", ""))

def wpre_store3(c):
    e = c.e; a = c.a
    V = 240; F = 176
    e("v_lshrrev_b32 v%d, 2, v%d", V, V_L16)
    e("v_lshl_add_u32 v%d, v%d, 2, v%d", V, V_G, V)
    e("v_mul_u32_u24 v%d, 224, v%d", V + 1, V)
    e("v_and_b32 v%d, 3, v%d", V + 2, V_LANE)
    e("v_lshl_add_u32 v%d, v%d, 3, v%d", V + 1, V + 2, V + 1)
    e("v_add_u32 v%d, 0x%x, v%d", V + 1, LDS_WP, V + 1)
    e("v_lshlrev_b32 v%d, 7, v%d", V + 2, V)
    e("v_and_b32 v%d, 1, v%d", V + 3, V_LANE)
    e("v_lshl_add_u32 v%d, v%d, 3, v%d", V + 2, V + 3, V + 2)
    e("v_bfe_u32 v%d, v%d, 1, 1", V + 3, V_LANE)
    e("v_lshl_add_u32 v%d, v%d, 4, v%d", V + 2, V + 3, V + 2)
    e("v_add_u32 v%d, 0x%x, v%d", V + 2, LDS_WOP, V + 2)
    e("v_and_b32 v%d, 1, v%d", V + 3, V_G)
    e("v_lshlrev_b32 v%d, 2, v%d", V + 3, V + 3)
    e("v_bfe_u32 v%d, v%d, 3, 1", V, V_LANE)
    e("v_lshl_add_u32 v%d, v%d, 1, v%d", V + 3, V, V + 3)
    e("v_lshlrev_b32 v%d, 4, v%d", V, V_LANE)
    e("s_lshr_b32 s52, s2, 4")
    e("s_mul_i32 s52, s52, 112")
    e("s_and_b32 s%d, s2, 15", S_T)
    e("s_add_u32 s52, s52, s%d", S_T)
    e("s_lshl_b32 s52, s52, 10")
    e("s_add_u32 s52, s52, 0x%x", L.WINF)
    e("s_mul_i32 s%d, s2, 2341", S_T)
    e("s_lshr_b32 s%d, s%d, 16", S_T, S_T)
    e("s_mul_i32 s%d, s%d, 28", S_T + 1, S_T)
    e("s_sub_u32 s%d, s2, s%d", S_T + 1, S_T + 1)
    e("s_mul_i32 s53, s%d, 112", S_T)
    e("s_add_u32 s53, s53, s%d", S_T + 1)
    e("s_lshl_b32 s53, s53, 10")
    e("s_add_u32 s53, s53, 0x%x", L.WOUTF)
    e("s_cmp_ge_u32 s2, 224")
    e("s_cselect_b32 s53, 0x40000000, s53")
    e("s_sub_u32 s54, s%d, 1", S_W)
    e("s_lshl_b32 s54, s54, 2")
    e("s_cmp_eq_u32 s%d, 0", S_W)
    e("s_cselect_b32 s54, 11, s54")
    for sl in range(4):
        isw = a.newlabel("wq"); done = a.newlabel("wqd")
        f = F + 4 * sl
        e("s_add_u32 s55, s54, %d", sl)
        e("s_cmp_lt_u32 s55, 7")
        e("s_cbranch_scc1 %s", isw)
        e("s_sub_u32 s55, s55, 7")
        e("s_lshl_b32 s%d, s55, 1", S_T)
        e("s_and_b32 s%d, s%d, 7", S_T, S_T)
        e("v_xor_b32 v%d, s%d, v%d", V + 4, S_T, V + 3)
        e("v_lshl_add_u32 v%d, v%d, 4, v%d", V + 4, V + 4, V + 2)
        e("ds_read_b64_tr_b16 v[%d:%d], v%d", f, f + 1, V + 4)
        e("ds_read_b64_tr_b16 v[%d:%d], v%d offset:2048", f + 2, f + 3, V + 4)
        e("s_mul_i32 s%d, s55, %d", S_T, 28 * 1024)
        e("s_add_u32 s%d, s%d, s53", S_T, S_T)
        e("s_cmp_ge_u32 s55, 4")
        e("s_cselect_b32 s%d, 0x40000000, s%d", S_T, S_T)
        e("s_branch %s", done)
        a.label(isw)
        e("s_lshl_b32 s%d, s55, 5", S_T)
        e("v_add_u32 v%d, s%d, v%d", V + 4, S_T, V + 1)
        e("ds_read_b64_tr_b16 v[%d:%d], v%d", f, f + 1, V + 4)
        e("ds_read_b64_tr_b16 v[%d:%d], v%d offset:%d", f + 2, f + 3, V + 4, 16 * 224)
        e("s_lshl_b32 s%d, s55, 14", S_T)
        e("s_add_u32 s%d, s%d, s52", S_T, S_T)
        a.label(done)
        e("s_waitcnt lgkmcnt(0)")
        c.bstore(f, 4, V, R_WS, S_T, 0, "wst", "sc1")

class WLoader:
    V0, V1 = 240, 241
    S0 = 58
    def __init__(self, c):
        self.c = c; self.issued = 0
    def setup(self):
        c = self.c; e = c.e
        e("v_lshlrev_b32 v%d, 4, v%d", self.V0, V_LANE)
        e("v_add_u32 v%d, 0x40000000, v%d", self.V1, self.V0)
        e("s_cmp_eq_u32 s%d, 3", S_W)
        e("s_cselect_b64 vcc, -1, 0")
        e("v_cndmask_b32 v%d, v%d, v%d, vcc", self.V1, self.V0, self.V1)
        e("s_mul_i32 s59, s%d, 7", S_NB)
        e("s_lshl_b32 s%d, s%d, 1", S_T, S_W)
        e("s_add_u32 s59, s59, s%d", S_T)
        e("s_lshl_b32 s59, s59, 14")
        e("s_add_u32 s59, s59, 0x%x", L.WINF)
        e("s_add_u32 s58, s59, %d", 56 * 16384)
    def loads(self, k0, k1):
        c = self.c; out = []
        for ks in range(k0, k1):
            for slot in range(4):
                def f(ks=ks, slot=slot):
                    base = 58 if slot < 2 else 59
                    if slot == 0:
                        c.e("s_add_u32 s%d, s%d, %d", S_X0, S_ROT, ks)
                        c.e("s_and_b32 s%d, s%d, 15", S_X0, S_X0)
                        c.e("s_lshl_b32 s%d, s%d, 10", S_X0, S_X0)
                    c.e("s_add_u32 s%d, s%d, s%d", S_T, base, S_X0)
                    if slot & 1: c.e("s_add_u32 s%d, s%d, 16384", S_T, S_T)
                    c.bload(A0 + (ks * 4 + slot) * 4, 4, self.V1 if (slot & 1) else self.V0, R_WS, S_T, 0, "W%d" % ks, "sc1")
                out.append(f)
        return out
    def colsum_prep(self):
        for r in range(4): self.c.e("v_mov_b32 v%d, 0x3f803f80", 244 + r)
        self.c.nop(2)
    def colsum(self, k0, k1):
        c = self.c; e = c.e
        c.vm.wait("W%d" % (k1 - 1))
        for ks in range(k0, k1):
            for slot in range(4):
                cc = "0" if ks == 0 else "v[%d:%d]" % (V_CS + 4 * slot, V_CS + 4 * slot + 3)
                e("v_mfma_f32_16x16x32_bf16 v[%d:%d], %s, v[244:247], %s", V_CS + 4 * slot, V_CS + 4 * slot + 3, rr(A0 + (ks * 4 + slot) * 4, 4), cc)

LDS_H = 0
LDS_WSPST = 0
LDS_ZT = 16384
LDS_ZS = 36864
LDS_HST = 126976
LDS_ZROW = 45056
LDS_Z1 = 0
LDS_RED4 = 65536

P3_ACC = 32
P3_HF = 96
P3_AS, P3_AG = 128, 132
P3_RD = 136
P3_ONE = 140

def p3_issue_h(c):
    e = c.e
    V = 148
    e("v_lshrrev_b32 v%d, 3, v%d", V, V_LANE)
    e("v_lshlrev_b32 v%d, 12, v%d", V, V)
    e("v_and_b32 v%d, 7, v%d", V + 1, V_LANE)
    e("v_lshlrev_b32 v%d, 1, v%d", V + 2, V_G)
    e("v_xor_b32 v%d, v%d, v%d", V + 1, V + 1, V + 2)
    e("v_lshl_add_u32 v%d, v%d, 4, v%d", V, V + 1, V)
    e("s_lshl_b32 s60, s%d, 7", S_MB)
    e("s_add_u32 s60, s60, 0x%x", L.HT)
    e("s_lshl_b32 s61, s%d, 12", S_W)
    ops = []
    for ch in range(4):
        for i in range(4):
            def f(ch=ch, i=i):
                if i == 0:
                    e("s_add_u32 s62, s%d, %d", S_W, 4 * ch)
                    e("s_add_u32 s62, s62, s%d", S_ROT)
                    e("s_and_b32 s62, s62, 15")
                    e("s_lshl_b32 s62, s62, 17")
                    e("s_add_u32 s62, s62, s60")
                e("s_add_u32 s%d, s62, 0x%x", S_T, 8 * i * 4096)
                c.dma(V, R_WS, S_T, 61, LDS_H + ch * 16384 + i * 1024, "h%d" % ch, "sc1")
            ops.append(f)
    return ops

def h_addr(c, dst, jrot):
    pass

def p3_setup(c):
    e = c.e
    T = 144
    e("v_lshrrev_b32 v%d, 2, v%d", T, V_L16)
    e("v_lshl_add_u32 v%d, v%d, 2, v%d", T + 1, V_G, T)
    e("v_lshlrev_b32 v%d, 7, v%d", T + 1, T + 1)
    e("v_and_b32 v%d, 1, v%d", T + 2, V_LANE)
    e("v_lshl_add_u32 v%d, v%d, 3, v%d", T + 1, T + 2, T + 1)
    e("v_bfe_u32 v%d, v%d, 1, 1", T + 2, V_LANE)
    e("v_lshl_add_u32 v%d, v%d, 4, v%d", T + 1, T + 2, T + 1)
    e("v_and_b32 v%d, 1, v%d", T + 2, V_G)
    e("v_lshlrev_b32 v%d, 2, v%d", T + 2, T + 2)
    e("v_lshrrev_b32 v%d, 1, v%d", T + 3, T)
    e("v_lshl_add_u32 v%d, v%d, 1, v%d", T + 2, T + 3, T + 2)
    for j in range(4):
        e("s_add_u32 s%d, s%d, %d", S_T, S_W, j)
        e("s_and_b32 s%d, s%d, 3", S_T, S_T)
        e("s_lshl_b32 s%d, s%d, 1", S_T, S_T)
        e("v_xor_b32 v%d, s%d, v%d", T + 3, S_T, T + 2)
        e("v_lshl_add_u32 v%d, v%d, 4, v%d", P3_RD + j, T + 3, T + 1)
    for r in range(4): e("v_mov_b32 v%d, 0x3f803f80", P3_ONE + r)

P3_SF = 164
def p3_main(c, hooks=None, inter=None, late_cs=16):
    e = c.e; hooks = hooks or {}; inter = inter or {}
    def reads(ks):
        f = P3_HF + 16 * (ks & 1); out = []
        for j in range(4):
            for hh in range(2):
                out.append("ds_read_b64_tr_b16 v[%d:%d], v%d offset:%d" % (f + 4 * j + 2 * hh, f + 4 * j + 2 * hh + 1, P3_RD + j, LDS_H + ks * 4096 + hh * 2048))
        return out
    def sreads(kk):
        f = P3_SF + 4 * (kk & 7)
        return ["ds_read_b64_tr_b16 v[%d:%d], v%d offset:%d" % (f + 2 * hh, f + 2 * hh + 1, P3_RD, LDS_H + kk * 4096 + hh * 2048) for hh in range(2)]
    def smfma(kk):
        f = P3_SF + 4 * (kk & 7)
        cs = "0" if kk == 0 else "v[%d:%d]" % (P3_AS, P3_AS + 3)
        cg = "0" if kk == 0 else "v[%d:%d]" % (P3_AG, P3_AG + 3)
        e("v_mfma_f32_16x16x32_bf16 v[%d:%d], v[%d:%d], v[%d:%d], %s", P3_AS, P3_AS + 3, P3_ONE, P3_ONE + 3, f, f + 3, cs)
        e("v_mfma_f32_16x16x32_bf16 v[%d:%d], v[%d:%d], v[%d:%d], %s", P3_AG, P3_AG + 3, f, f + 3, f, f + 3, cg)
    for ks in range(16):
        if ks == 0:
            c.vm.wait("h0")
            c.lg.wait_all()
            e("s_barrier")
            for r in reads(0): c.lg.issue(r, "hf0")
        if ks == 3:
            c.vm.wait("h3")
            e("s_barrier")
        c.vm.wait("W%d" % ks)
        c.lg.wait("hf%d" % ks)
        if 4 <= ks <= 7: c.lg.wait("sf%d" % ks)
        if ks in (1, 4, 10): c.fine("p3k%d" % ks)
        f = P3_HF + 16 * (ks & 1)
        nxt = [(r, "hf%d" % (ks + 1)) for r in reads(ks + 1)] if ks < 15 else []
        if 3 <= ks <= 6:
            i = ks - 3
            nxt = nxt + [(r, "sf%d" % (ks + 1)) for kk in range(4 * i, 4 * i + 4) for r in sreads(kk)]
        ops = list(inter.get(ks, []))
        m = 0
        for slot in range(4):
            for j in range(4):
                acc = P3_ACC + (slot * 4 + j) * 4
                cc = "0" if ks == 0 else "v[%d:%d]" % (acc, acc + 3)
                e("v_mfma_f32_16x16x32_bf16 v[%d:%d], %s, v[%d:%d], %s", acc, acc + 3, rr(A0 + (ks * 4 + slot) * 4, 4), f + 4 * j, f + 4 * j + 3, cc)
                if nxt:
                    r, t = nxt.pop(0); c.lg.issue(r, t)
                if m % 4 == 1 and ops: ops.pop(0)()
                m += 1
        while nxt:
            r, t = nxt.pop(0); c.lg.issue(r, t)
        while ops: ops.pop(0)()
        if 4 <= ks <= 7:
            i = ks - 4
            for kk in range(4 * i, 4 * i + 4): smfma(kk)
        if ks >= late_cs:
            for slot in range(4):
                e("v_mfma_f32_16x16x32_bf16 v[%d:%d], %s, v[244:247], v[%d:%d]", V_CS + 4 * slot, V_CS + 4 * slot + 3, rr(A0 + (ks * 4 + slot) * 4, 4), V_CS + 4 * slot, V_CS + 4 * slot + 3)
        if ks == 8: p3_hstats_a(c)
        if ks == 9: p3_hstats_b(c)
        if ks in hooks: hooks[ks]()
    e("s_lshl_b32 s%d, s%d, 1", S_T, S_NB)
    e("s_sub_u32 s%d, s%d, s%d", S_T, S_T, S_ROT)
    e("s_and_b32 s%d, s%d, 15", S_T, S_T)
    e("s_lshl_b32 s%d, s%d, 12", S_T, S_T)
    e("s_lshl_b32 s%d, s%d, 11", S_T + 1, S_W)
    e("s_add_u32 s%d, s%d, s%d", S_T, S_T, S_T + 1)
    for j in range(4):
        e("v_add_u32 v%d, s%d, v%d", 144 + j, S_T, P3_RD + j)
    for j in range(4):
        c.lg.issue("ds_read_b64_tr_b16 v[%d:%d], v%d offset:%d" % (V_HRES + 2 * j, V_HRES + 2 * j + 1, 144 + j, LDS_H), "hres")

LDS_HST2 = 163840 - 512
def p3_hstats_a(c):
    e = c.e
    T = 144
    e("v_and_b32 v%d, 3, v%d", T, V_L16)
    e("v_cmp_eq_u32 vcc, 1, v%d", T)
    e("v_cmp_eq_u32 s[%d:%d], 2, v%d", S_T + 2, S_T + 3, T)
    e("v_cmp_eq_u32 s[%d:%d], 3, v%d", S_T + 4, S_T + 5, T)
    e("v_cndmask_b32 v%d, v%d, v%d, vcc", T + 1, P3_AG, P3_AG + 1)
    e("v_cndmask_b32 v%d, v%d, v%d, s[%d:%d]", T + 1, T + 1, P3_AG + 2, S_T + 2, S_T + 3)
    e("v_cndmask_b32 v%d, v%d, v%d, s[%d:%d]", T + 1, T + 1, P3_AG + 3, S_T + 4, S_T + 5)
    e("v_mul_f32 v%d, 0x3b000000, v%d", T + 2, P3_AS)
    e("v_mul_f32 v%d, 0x3b000000, v%d", T + 1, T + 1)
    e("v_fma_f32 v%d, -v%d, v%d, v%d", T + 1, T + 2, T + 2, T + 1)
    e("v_max_f32 v%d, 0, v%d", T + 1, T + 1)
    e("v_add_f32 v%d, 0x3727c5ac, v%d", T + 1, T + 1)
    e("v_rsq_f32 v%d, v%d", T + 4, T + 1)
    e("v_lshrrev_b32 v%d, 2, v%d", T + 3, V_L16)
    e("v_mul_f32 v%d, v%d, v%d", T + 5, T + 4, T + 2)
    e("v_cmp_eq_u32 vcc, v%d, v%d", T + 3, V_G)
    e("s_lshl_b32 s%d, s%d, 7", S_T, S_W)
    e("s_add_u32 s%d, s%d, 0x%x", S_T, S_T, LDS_HST2)
    e("v_lshlrev_b32 v%d, 3, v%d", T + 3, V_L16)
    e("v_add_u32 v%d, s%d, v%d", T + 3, S_T, T + 3)
    e("s_and_saveexec_b64 s[%d:%d], vcc", S_T + 2, S_T + 3)
    c.lg.issue("ds_write_b64 v%d, v[%d:%d]" % (T + 3, T + 4, T + 5), "hs")
    e("s_mov_b64 exec, s[%d:%d]", S_T + 2, S_T + 3)

def p3_hstats_b(c):
    e = c.e
    T = 144
    c.lg.wait("hs")
    e("s_barrier")
    e("v_lshlrev_b32 v%d, 3, v%d", T + 3, V_L16)
    for j in range(4):
        e("s_add_u32 s%d, s%d, %d", S_T, S_W, j)
        e("s_and_b32 s%d, s%d, 3", S_T, S_T)
        e("s_lshl_b32 s%d, s%d, 7", S_T, S_T)
        e("s_add_u32 s%d, s%d, 0x%x", S_T, S_T, LDS_HST2)
        e("v_add_u32 v%d, s%d, v%d", T + 4, S_T, T + 3)
        c.lg.issue("ds_read_b64 v[%d:%d], v%d" % (150 + 2 * j, 151 + 2 * j, T + 4), "hs2")

GC0, GC1 = 60, 62
def gelu_consts(c):
    import struct
    f2u = lambda x: struct.unpack("<I", struct.pack("<f", x))[0]
    k = -2.0 * 0.7978845608028654 * 1.4426950408889634
    c.e("s_mov_b32 s60, 0x%x", f2u(k)); c.e("s_mov_b32 s61, 0x%x", f2u(k))
    c.e("s_mov_b32 s62, 0x%x", f2u(k * 0.044715)); c.e("s_mov_b32 s63, 0x%x", f2u(k * 0.044715))

def gelu_tile(c, acc, slot, j, T, nbg=0):
    e = c.e
    R = 150 + 2 * j
    if nbg >= 1: c.bg(1)
    for q in range(2):
        x = acc + 2 * q; cs = V_CS + 4 * slot + 2 * q; t = T + 8 * q
        e("v_pk_mul_f32 %s, %s, %s op_sel:[0,1] op_sel_hi:[1,1]", pr(t), pr(cs), pr(R))
    for q in range(2):
        x = acc + 2 * q; t = T + 8 * q
        e("v_pk_fma_f32 %s, %s, %s, %s op_sel_hi:[1,0,1] neg_lo:[0,0,1] neg_hi:[0,0,1]", pr(x), pr(x), pr(R), pr(t))
    for q in range(2):
        x = acc + 2 * q; t = T + 8 * q
        e("v_pk_mul_f32 %s, %s, %s", pr(t), pr(x), pr(x))
    for q in range(2):
        x = acc + 2 * q; t = T + 8 * q
        e("v_pk_fma_f32 %s, %s, s[62:63], %s", pr(t), pr(t), pr(t + 2))
    for q in range(2):
        x = acc + 2 * q; t = T + 8 * q
        e("v_pk_mul_f32 %s, %s, %s", pr(t), pr(t), pr(x))
    for q in range(2):
        t = T + 8 * q
        e("v_exp_f32 v%d, v%d", t, t); e("v_exp_f32 v%d, v%d", t + 1, t + 1)
    if nbg >= 2: c.bg(1)
    else: e("s_nop 0")
    e("s_nop 0")
    for q in range(2):
        t = T + 8 * q
        e("v_pk_add_f32 %s, %s, %s", pr(t), pr(t), pr(t + 4))
    for q in range(2):
        t = T + 8 * q
        e("v_rcp_f32 v%d, v%d", t, t); e("v_rcp_f32 v%d, v%d", t + 1, t + 1)
    if nbg >= 3: c.bg(1)
    e("s_nop 0")
    for q in range(2):
        x = acc + 2 * q; t = T + 8 * q
        e("v_pk_mul_f32 %s, %s, %s", pr(x), pr(x), pr(t))

def gelu_tile_bg(c, acc, slot, j, T, nbg):
    gelu_tile(c, acc, slot, j, T, nbg)

def gelu_setup(c, T):
    e = c.e
    gelu_consts(c)
    for q in range(2):
        t = T + 8 * q
        e("v_mov_b32 v%d, s60", t + 2); e("v_mov_b32 v%d, s60", t + 3)
        e("v_mov_b32 v%d, 1.0", t + 4); e("v_mov_b32 v%d, 1.0", t + 5)

def p3_z2_gelu_publish(c):
    e = c.e
    T = 160
    gelu_setup(c, T)
    SUM = 176
    for j in range(4):
        for slot in range(2):
            acc = P3_ACC + (slot * 4 + j) * 4
            gelu_tile_bg(c, acc, slot, j, T, 3)
            s0, q0 = SUM + 4 * j, SUM + 4 * j + 2
            if slot == 0:
                e("v_pk_add_f32 %s, %s, %s", pr(s0), pr(acc), pr(acc + 2))
                e("v_pk_mul_f32 %s, %s, %s", pr(q0), pr(acc), pr(acc))
            else:
                e("v_pk_add_f32 %s, %s, %s", pr(s0), pr(s0), pr(acc))
                e("v_pk_add_f32 %s, %s, %s", pr(s0), pr(s0), pr(acc + 2))
                e("v_pk_fma_f32 %s, %s, %s, %s", pr(q0), pr(acc), pr(acc), pr(q0))
            e("v_pk_fma_f32 %s, %s, %s, %s", pr(q0), pr(acc + 2), pr(acc + 2), pr(q0))
    c.lg.wait_all()
    e("s_barrier")
    e("s_lshl_b32 s%d, s%d, 11", S_T + 1, S_W)
    e("s_add_u32 s%d, s%d, 0x%x", S_T + 1, S_T + 1, LDS_ZS)
    e("v_lshlrev_b32 v%d, 9, v%d", T, V_G)
    e("v_lshl_add_u32 v%d, v%d, 3, v%d", T, V_L16, T)
    e("v_add_u32 v%d, s%d, v%d", T, S_T + 1, T)
    for j in range(4):
        s0, q0 = SUM + 4 * j, SUM + 4 * j + 2
        e("v_add_f32 v%d, v%d, v%d", s0, s0, s0 + 1)
        e("v_add_f32 v%d, v%d, v%d", s0 + 1, q0, q0 + 1)
        e("s_add_u32 s%d, s%d, %d", S_T, S_W, j)
        e("s_and_b32 s%d, s%d, 3", S_T, S_T)
        e("s_lshl_b32 s%d, s%d, 7", S_T, S_T)
        e("v_add_u32 v%d, s%d, v%d", T + 1, S_T, T)
        c.lg.issue("ds_write_b64 v%d, v[%d:%d]" % (T + 1, s0, s0 + 1))
    c.lg.wait_all()
    e("s_barrier")
    e("s_lshl_b32 s%d, s%d, 7", S_T, S_W)
    e("s_add_u32 s%d, s%d, 0x%x", S_T, S_T, LDS_ZS)
    e("v_lshlrev_b32 v%d, 9, v%d", T, V_G)
    e("v_lshl_add_u32 v%d, v%d, 3, v%d", T, V_L16, T)
    e("v_add_u32 v%d, s%d, v%d", T, S_T, T)
    for w in range(4):
        c.lg.issue("ds_read_b64 v[%d:%d], v%d offset:%d" % (SUM + 2 * w, SUM + 2 * w + 1, T, w * 2048))
    c.lg.wait_all()
    e("v_pk_add_f32 %s, %s, %s", pr(SUM), pr(SUM), pr(SUM + 2))
    e("v_pk_add_f32 %s, %s, %s", pr(SUM + 4), pr(SUM + 4), pr(SUM + 6))
    e("v_pk_add_f32 %s, %s, %s", pr(SUM), pr(SUM), pr(SUM + 4))
    for swap in ("v_permlane16_swap_b32", "v_permlane32_swap_b32"):
        e("v_mov_b32 v%d, v%d", SUM + 2, SUM)
        e("v_mov_b32 v%d, v%d", SUM + 3, SUM + 1)
        c.nop(2)
        e("%s v%d, v%d", swap, SUM, SUM + 2)
        e("%s v%d, v%d", swap, SUM + 1, SUM + 3)
        c.nop(1)
        e("v_pk_add_f32 %s, %s, %s", pr(SUM), pr(SUM), pr(SUM + 2))
    e("s_lshl_b32 s%d, s%d, 3", S_T, S_MB)
    e("s_add_u32 s%d, s%d, s%d", S_T, S_T, S_NB)
    e("s_lshl_b32 s%d, s%d, 9", S_T, S_T)
    e("s_lshl_b32 s%d, s%d, 7", S_T + 1, S_W)
    e("s_add_u32 s%d, s%d, s%d", S_T, S_T, S_T + 1)
    e("s_add_u32 s%d, s%d, 0x%x", S_T, S_T, L.ZST)
    e("v_lshlrev_b32 v%d, 3, v%d", T, V_L16)
    e("s_mov_b64 s[%d:%d], exec", S_T + 2, S_T + 3)
    e("s_mov_b64 exec, 0xffff")
    c.bstore(SUM, 2, T, R_WS, S_T, 0, "zst", "sc1")
    e("s_mov_b64 exec, s[%d:%d]", S_T + 2, S_T + 3)

def p3_z1_gelu(c):
    e = c.e
    T = 160
    e("v_lshlrev_b32 v176, 3, v%d", V_LANE)
    e("s_lshl_b32 s%d, s%d, 10", S_T + 1, S_W)
    e("s_add_u32 s%d, s%d, 0x%x", S_T + 1, S_T + 1, LDS_Z1)
    e("v_add_u32 v176, s%d, v176", S_T + 1)
    for j in range(4):
        e("s_add_u32 s%d, s%d, %d", S_T, S_W, j)
        e("s_and_b32 s%d, s%d, 3", S_T, S_T)
        e("s_lshl_b32 s%d, s%d, 12", S_T, S_T)
        e("v_add_u32 v177, s%d, v176", S_T)
        for sl in range(2):
            slot = 2 + sl
            acc = P3_ACC + (slot * 4 + j) * 4
            gelu_tile_bg(c, acc, slot, j, T, 3)
            e("v_cvt_pk_bf16_f32 v%d, v%d, v%d", acc, acc, acc + 1)
            e("v_cvt_pk_bf16_f32 v%d, v%d, v%d", acc + 1, acc + 2, acc + 3)
            c.lg.issue("ds_write_b64 v177, v[%d:%d] offset:%d" % (acc, acc + 1, sl * 512))

def p3_z2_finish(c):
    e = c.e; a = c.a
    T = 160; G = 180
    e("s_lshl_b32 s%d, s%d, 12", S_T, S_MB)
    e("s_add_u32 s%d, s%d, 0x%x", S_T, S_T, L.ZST)
    e("v_lshlrev_b32 v%d, 3, v%d", T, V_LANE)
    loop = a.newlabel("zp"); done = a.newlabel("zpd")
    e("s_mov_b32 s%d, 0", S_T + 1)
    a.label(loop)
    for n in range(8):
        e("buffer_load_dwordx2 v[%d:%d], v%d, s[%d:%d], s%d offen offset:%d sc1", G + 2 * n, G + 2 * n + 1, T, R_WS, R_WS + 3, S_T, 512 * n)
    e("s_waitcnt vmcnt(0)")
    c.vm.q = []
    e("v_min_f32 v%d, v%d, v%d", T + 1, G + 1, G + 3)
    for n in range(2, 8):
        e("v_min_f32 v%d, v%d, v%d", T + 1, T + 1, G + 2 * n + 1)
    e("v_cmp_gt_f32 vcc, 0, v%d", T + 1)
    e("s_nop 1")
    e("s_cmp_eq_u64 vcc, 0")
    e("s_cbranch_scc1 %s", done)
    e("s_add_u32 s%d, s%d, 1", S_T + 1, S_T + 1)
    e("s_cmp_lt_u32 s%d, 0x100000", S_T + 1)
    e("s_cbranch_scc1 %s", loop)
    a.label(done)
    c.fine("zpoll")
    for n in range(1, 8):
        e("v_pk_add_f32 %s, %s, %s", pr(G), pr(G), pr(G + 2 * n))
    import struct
    inv = struct.unpack("<I", struct.pack("<f", 1.0 / 896))[0]
    e("v_mul_f32 v%d, 0x%x, v%d", G, inv, G)
    e("v_mul_f32 v%d, 0x%x, v%d", G + 1, inv, G + 1)
    e("v_fma_f32 v%d, -v%d, v%d, v%d", G + 1, G, G, G + 1)
    e("v_max_f32 v%d, 0, v%d", G + 1, G + 1)
    e("v_add_f32 v%d, 0x3727c5ac, v%d", G + 1, G + 1)
    e("v_rsq_f32 v%d, v%d", G + 2, G + 1)
    e("s_nop 0")
    e("v_mul_f32 v%d, v%d, v%d", G + 3, G, G + 2)
    e("v_sub_f32 v%d, 0, v%d", G + 3, G + 3)
    e("s_lshl_b32 s%d, s%d, 9", S_T, S_W)
    e("s_add_u32 s%d, s%d, 0x%x", S_T, S_T, LDS_ZROW)
    e("v_add_u32 v%d, s%d, v%d", T + 1, S_T, T)
    c.lg.issue("ds_write_b64 v%d, v[%d:%d]" % (T + 1, G + 2, G + 3))
    c.lg.wait_all()
    e("v_lshlrev_b32 v%d, 3, v%d", T + 2, V_L16)
    e("v_add_u32 v%d, s%d, v%d", T + 2, S_T, T + 2)
    for j in range(4):
        e("s_add_u32 s%d, s%d, %d", S_T + 1, S_W, j)
        e("s_and_b32 s%d, s%d, 3", S_T + 1, S_T + 1)
        e("s_lshl_b32 s%d, s%d, 7", S_T + 1, S_T + 1)
        e("v_add_u32 v%d, s%d, v%d", T + 3, S_T + 1, T + 2)
        c.lg.issue("ds_read_b64 v[%d:%d], v%d" % (150 + 2 * j, 151 + 2 * j, T + 3))
    c.lg.wait_all()
    e("s_mul_i32 s%d, s%d, 5120", S_T, S_W)
    e("s_add_u32 s%d, s%d, 0x%x", S_T, S_T, LDS_ZT)
    e("v_mul_u32_u24 v%d, 40, v%d", T + 4, V_L16)
    e("v_lshl_add_u32 v%d, v%d, 3, v%d", T + 4, V_G, T + 4)
    e("v_add_u32 v%d, s%d, v%d", T + 4, S_T, T + 4)
    for j in range(4):
        R = 150 + 2 * j
        e("s_add_u32 s%d, s%d, %d", S_T + 1, S_W, j)
        e("s_and_b32 s%d, s%d, 3", S_T + 1, S_T + 1)
        e("s_mul_i32 s%d, s%d, 640", S_T + 1, S_T + 1)
        e("v_add_u32 v%d, s%d, v%d", T + 5, S_T + 1, T + 4)
        for slot in range(2):
            acc = P3_ACC + (slot * 4 + j) * 4
            for q in range(2):
                x = acc + 2 * q
                e("v_pk_fma_f32 %s, %s, %s, %s op_sel:[0,0,1] op_sel_hi:[1,0,1]", pr(x), pr(x), pr(R), pr(R))
            e("v_cvt_pk_bf16_f32 v%d, v%d, v%d", acc, acc, acc + 1)
            e("v_cvt_pk_bf16_f32 v%d, v%d, v%d", acc + 1, acc + 2, acc + 3)
            c.lg.issue("ds_write_b64 v%d, v[%d:%d] offset:%d" % (T + 5, acc, acc + 1, slot * 2560))
    c.lg.wait_all()
    e("v_lshrrev_b32 v%d, 2, v%d", T + 4, V_L16)
    e("v_lshl_add_u32 v%d, v%d, 2, v%d", T + 4, V_G, T + 4)
    e("v_mul_u32_u24 v%d, 40, v%d", T + 4, T + 4)
    e("v_and_b32 v%d, 3, v%d", T + 5, V_LANE)
    e("v_lshl_add_u32 v%d, v%d, 3, v%d", T + 4, T + 5, T + 4)
    e("v_add_u32 v%d, s%d, v%d", T + 4, S_T, T + 4)
    O = 96
    for slot in range(2):
        for pp in range(2):
            for hh in range(2):
                d = O + (slot * 2 + pp) * 4 + 2 * hh
                c.lg.issue("ds_read_b64_tr_b16 v[%d:%d], v%d offset:%d" % (d, d + 1, T + 4, slot * 2560 + (32 * pp + 16 * hh) * 40), "o%d%d" % (slot, pp))
    e("s_lshl_b32 s%d, s%d, 6", S_T, S_NB)
    e("s_lshl_b32 s%d, s%d, 1", S_T + 1, S_MB)
    e("s_add_u32 s%d, s%d, s%d", S_T, S_T, S_T + 1)
    e("s_mul_i32 s%d, s%d, 7", S_T, S_T)
    e("s_lshl_b32 s%d, s%d, 1", S_T + 1, S_W)
    e("s_add_u32 s%d, s%d, s%d", S_T, S_T, S_T + 1)
    e("s_lshl_b32 s%d, s%d, 10", S_T, S_T)
    e("s_add_u32 s%d, s%d, 0x%x", S_T, S_T, L.Z2N)
    e("v_lshlrev_b32 v%d, 4, v%d", T + 5, V_LANE)
    e("v_add_u32 v%d, 0x40000000, v%d", T + 6, T + 5)
    e("s_cmp_eq_u32 s%d, 3", S_W)
    e("s_cselect_b64 vcc, -1, 0")
    e("v_cndmask_b32 v%d, v%d, v%d, vcc", T + 6, T + 5, T + 6)
    for slot in range(2):
        for pp in range(2):
            e("s_add_u32 s%d, s%d, %d", S_T + 1, S_T, (pp * 7 + slot) * 1024)
            c.lg.wait("o%d%d" % (slot, pp))
            c.bstore(O + (slot * 2 + pp) * 4, 4, T + 5 + slot, R_WS, S_T + 1, 0, "st", "sc1")

class SpLoader:
    NST = 3
    base = 65536
    V_DMA = 200
    V_RD = 208
    S_LDS, S_K = 56, 57
    def __init__(self, c):
        self.c = c; self.issued = 0; self.read_ = 0
    def setup(self):
        c = self.c; e = c.e
        T = 212
        e("v_lshrrev_b32 v%d, 3, v%d", T, V_LANE)
        e("v_lshlrev_b32 v%d, 12, v%d", T, T)
        e("v_and_b32 v%d, 7, v%d", T + 1, V_LANE)
        e("v_xor_b32 v%d, v%d, v%d", T + 1, T + 1, V_G)
        e("v_xor_b32 v%d, 4, v%d", T + 2, T + 1)
        e("v_lshl_add_u32 v%d, v%d, 4, v%d", T + 1, T + 1, T)
        e("v_lshl_add_u32 v%d, v%d, 4, v%d", T + 2, T + 2, T)
        for i in range(8):
            jj = i // 2
            e("s_add_u32 s%d, s%d, %d", S_T, S_W, jj)
            e("s_and_b32 s%d, s%d, 3", S_T, S_T)
            e("s_lshl_b32 s%d, s%d, 16", S_T, S_T)
            e("s_add_u32 s%d, s%d, %d", S_T, S_T, (i % 2) * 8 * 4096)
            e("v_add_u32 v%d, s%d, v%d", self.V_DMA + i, S_T, T + 1 + (i % 2))
        e("s_mul_i32 s%d, s%d, %d", self.S_LDS, S_W, self.NST * 8192)
        e("s_add_u32 s%d, s%d, %d", self.S_LDS, self.S_LDS, self.base)
        e("v_lshrrev_b32 v%d, 1, v%d", T + 1, V_L16)
        e("v_lshrrev_b32 v%d, 1, v%d", T + 2, V_G)
        e("v_xor_b32 v%d, v%d, v%d", T + 1, T + 1, T + 2)
        e("v_and_b32 v%d, 1, v%d", T + 2, V_G)
        e("v_lshlrev_b32 v%d, 3, v%d", T + 2, T + 2)
        e("v_lshl_add_u32 v%d, v%d, 7, v%d", T + 2, V_L16, T + 2)
        e("v_add_u32 v%d, s%d, v%d", T + 2, self.S_LDS, T + 2)
        for kk in range(2):
            for hh in range(2):
                e("v_xor_b32 v%d, %d, v%d", T + 3, 4 * kk + 2 * hh, T + 1)
                e("v_lshl_add_u32 v%d, v%d, 4, v%d", self.V_RD + 2 * kk + hh, T + 3, T + 2)
        e("s_lshl_b32 s%d, s%d, 10", self.S_K, S_W)
    def rebase(self, newbase):
        c = self.c; e = c.e
        d = newbase - self.base
        e("s_add_u32 s%d, s%d, %d", self.S_LDS, self.S_LDS, d) if d >= 0 else e("s_sub_u32 s%d, s%d, %d", self.S_LDS, self.S_LDS, -d)
        for i in range(4):
            if d >= 0: e("v_add_u32 v%d, %d, v%d", self.V_RD + i, d, self.V_RD + i)
            else: e("v_subrev_u32 v%d, %d, v%d", self.V_RD + i, -d, self.V_RD + i)
        self.base = newbase
    def srd(self):
        c = self.c; e = c.e
        e("s_lshl_b32 s%d, s%d, 18", S_T, S_MB)
        c.srd(R_B, P_WSP, 0x40000, off_sreg=S_T)
    def ops(self, n):
        c = self.c; out = []
        for _ in range(n):
            dd = self.issued
            st = dd % self.NST
            for i in range(8):
                def f(dd=dd, st=st, i=i):
                    if i == 0:
                        c.e("s_lshr_b32 s%d, s%d, 1", S_X1, S_ROTZ)
                        c.e("s_add_u32 s%d, s%d, %d", S_X1, S_X1, dd)
                        c.e("s_and_b32 s%d, s%d, 7", S_X1, S_X1)
                        c.e("s_lshl_b32 s%d, s%d, 7", S_X1, S_X1)
                        c.e("s_add_u32 s%d, s%d, s%d", S_X1, S_X1, self.S_K)
                    c.dma(self.V_DMA + i, R_B, S_X1, self.S_LDS, st * 8192 + i * 1024, "S%d" % dd, c.opt.get("ntsp", ""))
                out.append(f)
            self.issued += 1
        return out
    def issue(self, n=1):
        for f in self.ops(n): f()
    def read(self, n):
        c = self.c
        for _ in range(n):
            dd = self.read_
            c.vm.wait("S%d" % dd)
            st = dd % self.NST
            for kk in range(2):
                for j in range(4):
                    for hh in range(2):
                        dst = A0 + ((dd * 2 + kk) * 4 + j) * 4 + 2 * hh
                        c.lg.issue("ds_read_b64 %s, v%d offset:%d" % (rr(dst, 2), self.V_RD + 2 * kk + hh, st * 8192 + j * 2048), "sl")
            self.read_ += 1
    def refill(self, n):
        self.c.lg.wait("sl")
        self.issue(n)

P4_ACC = 32
P4_ZB = 144
def p4_main(c, tail_ops):
    e = c.e
    NZ = 4
    e("v_lshlrev_b32 v29, 4, v%d", V_LANE)
    e("v_add_u32 v30, 0x1000, v29")
    e("s_lshl_b32 s%d, s%d, 6", 56, S_NB)
    e("s_lshl_b32 s%d, s%d, 4", 57, S_W)
    e("s_add_u32 s56, s56, s57")
    e("s_mul_i32 s56, s56, 7168")
    e("s_add_u32 s56, s56, 0x%x", L.Z2N)
    def issue_z(ks, ft):
        d, v, imm = P4_ZB + (ks % NZ) * 28 + 4 * ft, 29 + ft // 4, (ft % 4) * 1024
        if ft == 0:
            e("s_add_u32 s57, s%d, %d", S_ROTZ, ks)
            e("s_and_b32 s57, s57, 15")
            e("s_mul_i32 s57, s57, 7168")
            e("s_add_u32 s57, s57, s56")
        c.bload(d, 4, v, R_WS, 57, imm, "z%d" % ks, c.opt.get("zflag", "sc1"))
    for ks in range(2):
        for ft in range(7): issue_z(ks, ft)
    T = 2
    e("s_mul_i32 s%d, s%d, 24576", S_T + 2, S_W)
    e("s_add_u32 s%d, s%d, %d", S_T + 2, S_T + 2, LDS_RED4)
    e("v_lshlrev_b32 v%d, 4, v%d", T + 1, V_LANE)
    e("v_add_u32 v%d, s%d, v%d", T, S_T + 2, T + 1)
    for ks in range(16):
        c.vm.wait("z%d" % ks)
        if ks in (0, 4, 12): c.fine("p4k%d" % ks)
        nk = ks + NZ - 1
        m = 0; nf = 0
        order = [(ft, j) for ft in range(7) for j in range(4)]
        if ks == 15:
            order = [(ft, j) for j in (1, 2, 3, 0) for ft in range(7)]
        pend = []
        for (ft, j) in order:
            acc = P4_ACC + (ft * 4 + j) * 4
            cc = "0" if ks == 0 else "v[%d:%d]" % (acc, acc + 3)
            z = P4_ZB + (ks % NZ) * 28 + 4 * ft
            e("v_mfma_f32_16x16x32_bf16 v[%d:%d], v[%d:%d], %s, %s", acc, acc + 3, z, z + 3, rr(A0 + (ks * 4 + j) * 4, 4), cc)
            m += 1
            if ks == 0 and m % 2 == 0 and nf < 14:
                issue_z(2 + nf // 7, nf % 7); nf += 1
            elif ks > 0 and nk < 16 and m % 4 == 0 and nf < 7:
                issue_z(nk, nf); nf += 1
            if nk >= 16 and m % 4 == 0 and tail_ops:
                tail_ops.pop(0)()
            if ks == 15:
                if j != 0: pend.append((ft, j, m))
                while pend and m - pend[0][2] >= 8:
                    f2, j2, _ = pend.pop(0)
                    a2 = P4_ACC + (f2 * 4 + j2) * 4
                    c.lg.issue("ds_write_b128 v%d, v[%d:%d] offset:%d" % (T, a2, a2 + 3, (j2 - 1) * 7168 + f2 * 1024))
    c.p4_pend = pend
    c.bgq = tail_ops

def p4_reduce_epilogue(c):
    e = c.e
    T = 144
    e("s_lshl_b32 s%d, s%d, 2", S_T, S_MB)
    e("s_add_u32 s%d, s%d, s%d", S_T, S_T, S_W)
    e("s_lshl_b32 s%d, s%d, 5", S_T + 1, S_T)
    e("v_lshlrev_b32 v%d, 1, v%d", T, V_L16)
    e("v_add_u32 v%d, s%d, v%d", T, S_T + 1, T)
    c.vm.issue("global_load_ushort v%d, v%d, s[%d:%d]" % (V_BIAS, T, P_BSP, P_BSP + 1), "bias")
    c.nop(8)
    for (f2, j2, _) in c.p4_pend:
        a2 = P4_ACC + (f2 * 4 + j2) * 4
        c.lg.issue("ds_write_b128 v2, v[%d:%d] offset:%d" % (a2, a2 + 3, (j2 - 1) * 7168 + f2 * 1024))
    e("v_lshlrev_b32 v%d, 4, v%d", T + 1, V_LANE)
    for j in range(1, 4):
        e("s_sub_u32 s%d, s%d, %d", S_T + 2, S_W, j)
        e("s_and_b32 s%d, s%d, 3", S_T + 2, S_T + 2)
        e("s_mul_i32 s%d, s%d, 24576", S_T + 2, S_T + 2)
        e("s_add_u32 s%d, s%d, %d", S_T + 2, S_T + 2, LDS_RED4)
        e("v_add_u32 v%d, s%d, v%d", T + 2 + j, S_T + 2, T + 1)
    c.bg(2)
    c.lg.wait_all()
    e("s_barrier")
    R = 152
    for j in range(1, 4):
        for ft in range(7):
            d = R + (j - 1) * 28 + 4 * ft
            c.lg.issue("ds_read_b128 v[%d:%d], v%d offset:%d" % (d, d + 3, T + 2 + j, (j - 1) * 7168 + ft * 1024), "r%d" % j)
        c.bg(1)
    Z1 = 236
    e("s_lshl_b32 s%d, s%d, 12", S_T + 2, S_W)
    e("s_add_u32 s%d, s%d, 0x%x", S_T + 2, S_T + 2, LDS_Z1)
    e("v_lshlrev_b32 v%d, 3, v%d", T + 6, V_LANE)
    e("v_add_u32 v%d, s%d, v%d", T + 6, S_T + 2, T + 6)
    for ft in range(7):
        c.lg.issue("ds_read_b64 v[%d:%d], v%d offset:%d" % (Z1 + 2 * ft, Z1 + 2 * ft + 1, T + 6, ft * 512), "z1")
    for j in range(1, 4):
        c.lg.wait("r%d" % j)
        for ft in range(7):
            acc = P4_ACC + (ft * 4) * 4
            d = R + (j - 1) * 28 + 4 * ft
            for q in range(2):
                e("v_pk_add_f32 %s, %s, %s", pr(acc + 2 * q), pr(acc + 2 * q), pr(d + 2 * q))
        c.bg(1)
    c.bg_flush()
    c.lg.wait_all()

def p4_finish(c):
    e = c.e; a = c.a
    T = 144; Z1 = 236
    c.vm.wait("bias")
    e("v_lshlrev_b32 v%d, 16, v%d", V_BIAS, V_BIAS)
    e("s_lshl_b32 s%d, s%d, 2", S_T, S_MB)
    e("s_add_u32 s%d, s%d, s%d", S_T, S_T, S_W)
    e("s_mul_i32 s%d, s%d, %d", S_T, S_T, 28 * 1024)
    e("s_add_u32 s%d, s%d, 0x%x", S_T, S_T, L.PF)
    e("s_mul_i32 s%d, s%d, 7", S_T + 1, S_NB)
    e("s_lshr_b32 s%d, s%d, 1", S_T + 2, S_T + 1)
    e("s_lshl_b32 s%d, s%d, 10", S_T + 2, S_T + 2)
    e("s_add_u32 s%d, s%d, s%d", S_T, S_T, S_T + 2)
    e("v_lshlrev_b32 v%d, 4, v%d", T + 1, V_LANE)
    O = 152
    for ft in range(7):
        x = P4_ACC + ft * 16
        z = Z1 + 2 * ft; t = T + 2
        e("v_lshlrev_b32 v%d, 16, v%d", t, z)
        e("v_and_b32 v%d, 0xffff0000, v%d", t + 1, z)
        e("v_lshlrev_b32 v%d, 16, v%d", t + 2, z + 1)
        e("v_and_b32 v%d, 0xffff0000, v%d", t + 3, z + 1)
        for r in range(4): e("v_add_f32 v%d, v%d, v%d", x + r, x + r, V_BIAS)
        for q in range(2): e("v_pk_mul_f32 %s, %s, %s", pr(x + 2 * q), pr(x + 2 * q), pr(t + 2 * q))
        e("v_cvt_pk_bf16_f32 v%d, v%d, v%d", O + 2 * ft, x, x + 1)
        e("v_cvt_pk_bf16_f32 v%d, v%d, v%d", O + 2 * ft + 1, x + 2, x + 3)
    odd = a.newlabel("podd"); done = a.newlabel("pdone")
    e("s_bitcmp1_b32 s%d, 0", S_NB)
    e("s_cbranch_scc1 %s", odd)
    txt = lambda src, n, imm: "buffer_store_%s %s, v%d, s[%d:%d], s%d offen offset:%d sc1" % ({2: "dwordx2", 4: "dwordx4"}[n], rr(src, n), T + 1, R_WS, R_WS + 3, S_T, imm)
    for p in range(3): e(txt(O + 4 * p, 4, 1024 * p))
    e(txt(O + 12, 2, 3072))
    e("s_branch %s", done)
    a.label(odd)
    e(txt(O, 2, 8))
    for p in range(3):
        e("v_mov_b32 v%d, v%d", T + 4, O + 2 + 4 * p); e("v_mov_b32 v%d, v%d", T + 5, O + 3 + 4 * p)
        e("v_mov_b32 v%d, v%d", T + 6, O + 4 + 4 * p); e("v_mov_b32 v%d, v%d", T + 7, O + 5 + 4 * p)
        e(txt(T + 4, 4, 1024 * (p + 1)))
        e("s_nop 1")
    a.label(done)
    for _ in range(4): c.vm.q.append("st")

LDS_WO = 0
def p5_wout_ops(c):
    e = c.e
    e("v_lshlrev_b32 v31, 4, v%d", V_LANE)
    e("s_lshl_b32 s58, s%d, 2", S_NB)
    e("s_add_u32 s58, s58, s%d", S_W)
    e("s_mul_i32 s58, s58, %d", 28 * 1024)
    e("s_add_u32 s58, s58, 0x%x", L.WOUTF)
    out = []
    for kf in range(28):
        def f(kf=kf):
            if kf % 4 == 0: c.e("s_add_u32 s%d, s58, %d", S_X0, kf * 1024)
            c.bload(A0 + kf * 4, 4, 31, R_WS, S_X0, (kf % 4) * 1024, "wo%d" % (kf // 7), "sc1")
        out.append(f)
    return out

P5_ACC = 32
P5_PF = 48
LDS_P = 0
def p5_main(c):
    e = c.e
    T = 240
    e("v_lshlrev_b32 v%d, 4, v%d", T, V_LANE)
    e("s_lshl_b32 s52, s%d, 2", S_MB)
    e("s_add_u32 s52, s52, s%d", S_W)
    e("s_mul_i32 s52, s52, %d", 28 * 1024)
    e("s_add_u32 s52, s52, 0x%x", L.PF)
    e("s_mul_i32 s53, s%d, %d", S_W, 28 * 1024)
    def pdma(kf):
        e("s_add_u32 s%d, s52, %d", S_T, kf * 1024)
        c.dma(T, R_WS, S_T, 53, LDS_P + kf * 1024, "p%d" % (kf // 7), "sc1")
    for kf in range(14): pdma(kf)
    for j in range(4):
        e("s_add_u32 s%d, s%d, %d", S_T + 1, S_W, j)
        e("s_and_b32 s%d, s%d, 3", S_T + 1, S_T + 1)
        e("s_mul_i32 s%d, s%d, %d", S_T + 1, S_T + 1, 28 * 1024)
        e("v_add_u32 v%d, s%d, v%d", T + 1 + j, S_T + 1, T)
    LA = 3
    def reads(kf):
        f = P5_PF + 16 * (kf & 3)
        return ["ds_read_b128 v[%d:%d], v%d offset:%d" % (f + 4 * j, f + 4 * j + 3, T + 1 + j, LDS_P + kf * 1024) for j in range(4)]
    later = list(range(14, 28))
    c.vm.wait("p0", "wo0")
    e("s_barrier")
    for k in range(LA):
        for r in reads(k): c.lg.issue(r, "pf%d" % k)
    for kf in range(28):
        nk = kf + LA
        if nk < 28 and nk % 7 == 0:
            c.vm.wait("p%d" % (nk // 7))
            e("s_barrier")
        if kf % 7 == 0: c.vm.wait("wo%d" % (kf // 7))
        c.lg.wait("pf%d" % kf)
        f = P5_PF + 16 * (kf & 3)
        nxt = reads(nk) if nk < 28 else []
        for j in range(4):
            acc = P5_ACC + 4 * j
            cc = "0" if kf == 0 else "v[%d:%d]" % (acc, acc + 3)
            e("v_mfma_f32_16x16x32_bf16 v[%d:%d], %s, v[%d:%d], %s", acc, acc + 3, rr(A0 + kf * 4, 4), f + 4 * j, f + 4 * j + 3, cc)
            if nxt: c.lg.issue(nxt.pop(0), "pf%d" % nk)
        if later and kf < 14: pdma(later.pop(0))

def p5_epilogue(c):
    e = c.e
    T = 240
    c.nop(8)
    O = 120
    for j in range(4):
        acc = P5_ACC + 4 * j; h = V_HRES + 2 * j; t = 112
        e("v_lshlrev_b32 v%d, 16, v%d", t, h)
        e("v_and_b32 v%d, 0xffff0000, v%d", t + 1, h)
        e("v_lshlrev_b32 v%d, 16, v%d", t + 2, h + 1)
        e("v_and_b32 v%d, 0xffff0000, v%d", t + 3, h + 1)
        for q in range(2):
            e("v_pk_add_f32 %s, %s, %s", pr(acc + 2 * q), pr(acc + 2 * q), pr(t + 2 * q))
        e("v_cvt_pk_bf16_f32 v%d, v%d, v%d", O + 2 * j, acc, acc + 1)
        e("v_cvt_pk_bf16_f32 v%d, v%d, v%d", O + 2 * j + 1, acc + 2, acc + 3)
    c.srd(R_A, P_OUT, 2 << 20)
    e("s_lshl_b32 s%d, s%d, 16", S_T, S_MB)
    e("s_lshl_b32 s%d, s%d, 7", S_T + 1, S_NB)
    e("s_add_u32 s%d, s%d, s%d", S_T, S_T, S_T + 1)
    e("s_lshl_b32 s%d, s%d, 5", S_T + 1, S_W)
    e("s_add_u32 s%d, s%d, s%d", S_T, S_T, S_T + 1)
    e("v_lshlrev_b32 v%d, 10, v%d", T, V_L16)
    e("v_lshrrev_b32 v%d, 1, v%d", T + 1, V_G)
    e("v_lshl_add_u32 v%d, v%d, 4, v%d", T, T + 1, T)
    e("v_and_b32 v%d, 1, v%d", T + 1, V_G)
    e("v_add_u32 v%d, s%d, v%d", T + 1, S_W, T + 1)
    for p in range(2):
        o = O + 4 * p
        e("v_add_u32 v%d, %d, v%d", T + 2, 2 * p, T + 1)
        e("v_and_b32 v%d, 3, v%d", T + 2, T + 2)
        e("v_lshl_add_u32 v%d, v%d, 14, v%d", T + 3 + p, T + 2, T)
        c.nop(1)
        e("v_permlane16_swap_b32 v%d, v%d", o, o + 2)
        e("v_permlane16_swap_b32 v%d, v%d", o + 1, o + 3)
        c.bstore(o, 4, T + 3 + p, R_A, S_T, 0, "out", c.opt.get("outflag", ""))

def touch_wsp(c, dd0, ndd, wq=S_W, tracked=True, V=145):
    e = c.e
    e("s_lshl_b32 s%d, s%d, 18", S_T, S_MB)
    e("s_and_b32 s%d, s%d, 3", S_T + 1, S_NB)
    e("s_lshl_b32 s%d, s%d, 16", S_T + 1, S_T + 1)
    e("s_add_u32 s%d, s%d, s%d", S_T, S_T, S_T + 1)
    e("s_lshl_b32 s%d, s%d, 10", S_T + 1, wq)
    e("s_add_u32 s%d, s%d, s%d", S_T, S_T, S_T + 1)
    c.srd(R_C, P_WSP, 8 << 20)
    e("s_lshr_b32 s%d, s%d, 1", S_T + 1, S_ROTZ)
    e("s_add_u32 s%d, s%d, %d", S_T + 1, S_T + 1, dd0)
    e("v_add_u32 v%d, s%d, v%d", V + 1, S_T + 1, V_G)
    e("v_and_b32 v%d, 7, v%d", V + 1, V + 1)
    e("v_lshlrev_b32 v%d, 12, v%d", V, V_L16)
    e("v_lshl_add_u32 v%d, v%d, 7, v%d", V, V + 1, V)
    e("v_cmp_gt_u32 vcc, %d, v%d", ndd, V_G)
    e("v_mov_b32 v%d, 0x40000000", V + 1)
    e("s_nop 0")
    e("v_cndmask_b32 v%d, v%d, v%d, vcc", V, V + 1, V)
    if tracked: c.bload(V_BIAS, 1, V, R_C, S_T, 0, "touch", c.opt.get("nttouch", ""))
    else: e("buffer_load_dword v%d, v%d, s[%d:%d], s%d offen", V_BIAS, V, R_C, R_C + 3, S_T)

def touch_z2n(c):
    e = c.e
    e("s_lshl_b32 s%d, s%d, 6", S_T, S_NB)
    e("s_lshl_b32 s%d, s%d, 4", S_T + 1, S_W)
    e("s_add_u32 s%d, s%d, s%d", S_T, S_T, S_T + 1)
    e("s_and_b32 s%d, s%d, 7", S_T + 1, S_MB)
    e("s_lshl_b32 s%d, s%d, 1", S_T + 1, S_T + 1)
    e("s_add_u32 s%d, s%d, s%d", S_T, S_T, S_T + 1)
    e("s_mul_i32 s%d, s%d, 7168", S_T, S_T)
    e("s_add_u32 s%d, s%d, 0x%x", S_T, S_T, L.Z2N)
    e("v_lshlrev_b32 v2, 7, v%d", V_LANE)
    c.bload(31, 1, 2, R_WS, S_T, 0, "touch", c.opt.get("zflag", "sc1"))
    e("v_add_u32 v2, 0x2000, v2")
    e("v_cmp_gt_u32 vcc, 48, v%d", V_LANE)
    e("v_mov_b32 v3, 0x40000000")
    e("s_nop 0")
    e("v_cndmask_b32 v2, v3, v2, vcc")
    c.bload(31, 1, 2, R_WS, S_T, 0, "touch", c.opt.get("zflag", "sc1"))
```

```python
import sys
from core import *
import ph12, ph345
KNAME = "sequential_preLN__ssm_conv_h3__mixer_gmlp__prompt_kernel"

def drain_arrive(c, line_sreg, line_imm, boot=False):
    c.vm.wait_all()
    c.lg.wait_all()
    c.e("s_barrier")
    if boot: ph12.wait_boot(c)
    c.arrive(line_sreg, line_imm)

def build(stop=99, stamps=False, fine=False, finer=False, skip=(), **opt):
    body = Asm()
    c = Ctx(body, stamps)
    c.finestamps = fine
    c.finerstamps = finer
    c.st.skip = set(skip)
    c.opt = opt
    e = c.e
    kernel_begin(body, KNAME)
    ph12.setup(c)
    ph12.load_D_issue(c)
    ph12.bootstrap_a(c)
    WL = ph345.WLoader(c); SL = ph345.SpLoader(c)
    c.st.stamp("setup")
    flowB = opt.get("flowB", 2)
    ph12.p1_issue(c)
    if flowB == 1: ph345.wpre_issue(c)
    ph12.p1_issue_x(c)
    if flowB == 2: ph345.wpre_issue(c)
    ph12.bootstrap_b(c)
    ph12.p1_kv(c)
    ph12.load_D_finish(c)
    ph12.boot_flag_issue(c)
    c.finer("ust")
    ph12.p1_x(c)
    if flowB: c.vm.wait("wp")
    c.lg.wait_all()
    e("s_barrier")
    c.finer("xwork")
    ph12.p1_x_store3(c)
    if flowB: ph345.wpre_store3(c)
    ph12.p1_issue_raw(c)
    if not flowB: ph345.wpre_issue(c)
    c.vm.wait("wst" if flowB else "xst")
    c.finer("acks")
    ph12.boot_flag_check(c)
    e("s_barrier")
    c.garrive(L.C1_LINE)
    c.st.stamp("arr1")
    c.vm.wait("raw")
    c.lg.wait_all()
    e("s_barrier")
    c.finer("raw")
    ph12.toeplitz(c)
    c.finer("toep")
    if not flowB:
        c.vm.wait("wp")
        c.lg.wait_all()
        e("s_barrier")
        ph345.wpre_store3(c)
    WL.setup()
    c.lg.wait_all()
    c.gpoll(L.C1_LINE)
    if not flowB: c.vm.wait("wst")
    e("s_barrier")
    if not flowB: c.garrive(L.C1B_LINE)
    c.st.stamp("B1")
    ph12.p2_issue_u(c)
    sops = ph12.p2_stats_ops(c)
    c.vm.wait("ub")
    e("s_barrier")
    c.finer("ub")
    wl = WL.loads(0, 16)
    take = lambda n: [wl.pop(0) for _ in range(n)]
    def touch_block(dd0, n):
        l0 = body.newlabel("tb"); lt = body.newlabel("t0")
        e("s_cmp_eq_u32 s%d, 0", S_W)
        e("s_cbranch_scc1 %s", l0)
        ph345.touch_wsp(c, dd0, n, tracked=False, V=248)
        e("s_cmp_eq_u32 s%d, 1", S_W)
        e("s_cbranch_scc0 %s", lt)
        e("s_mov_b32 s%d, 0", S_X0)
        ph345.touch_wsp(c, dd0, n, wq=S_X0, tracked=False, V=248)
        body.label(lt)
        body.label(l0)
    ck = opt.get("ck", 2)
    def hke(): c.gpoll(L.C1B_LINE, 242, 243, early=True)
    def hkl():
        c.gpoll(L.C1B_LINE, 242, 243, late=True)
        e("s_barrier")
        if opt.get('touch1', 0): touch_block(0, 4)
    if flowB:
        nw = opt.get("nw", 8)
        def hkt():
            if opt.get('touch1', 0): touch_block(0, 4)
        ph12.p2_main(c, {opt.get("tk", 2): hkt}, {0: sops, 1: take(nw), 2: take(nw), 3: take(nw)})
    else:
        ph12.p2_main(c, {ck - 1: hke, ck: hkl}, dict([(0, sops)] + [(r, take(9)) for r in range(ck + 1, 4)]))
    c.st.stamp("p2main")
    c.bgq = take(min(8, max(0, len(wl) - 4 * (16 - opt.get('late', 16)))))
    ph12.p2_epilogue(c)
    c.finer("p2epi")
    c.bg_flush()
    for f in take(min(opt.get('nack', 14), max(0, len(wl) - 4 * (16 - opt.get('late', 16))))): f()
    c.vm.wait("st")
    c.lg.wait_all()
    e("s_barrier")
    c.garrive(L.C2_LINE)
    c.st.stamp("arr2")
    ph345.p3_setup(c)
    WL.colsum_prep()
    late = opt.get("late", 16)
    nlate = 4 * (16 - late)
    k = 0
    while len(wl) > nlate:
        for f in take(min(4, len(wl) - nlate)): f()
        WL.colsum(k, k + 1); k += 1
    WL.colsum(k, late)
    c.finer("wdone")
    SL.setup(); SL.srd()
    c.gpoll(L.C2_LINE)
    e("s_barrier")
    c.st.stamp("B2")
    hops = ph345.p3_issue_h(c)
    for f in hops[:8]: f()
    s0 = SL.ops(3)
    sl0 = opt.get("sl0", 12)
    inter = {}
    nper = -(-24 // (16 - sl0))
    for i in range(16 - sl0): inter[sl0 + i] = s0[nper * i:nper * (i + 1)]
    inter[0] = hops[8:12]; inter[1] = hops[12:16]
    for i in range(16 - late):
        inter[2 + i] = inter.get(2 + i, []) + take(4)
    hk3m = {}
    if opt.get('t2both', 1):
        hk3m[opt.get('t2k', 1)] = lambda: (ph345.touch_wsp(c, 0, 4), ph345.touch_wsp(c, 4, 4))
    elif opt.get('touch2', 1):
        hk3m[opt.get('t2k', 8)] = lambda: ph345.touch_wsp(c, 4, 4)
    ph345.p3_main(c, hk3m, inter, late_cs=late)
    c.st.stamp("p3main")
    c.lg.wait("hs2")
    c.fine("hstats")
    ph345.p3_z2_gelu_publish(c)
    c.st.stamp("z2pub")
    SL.read(3)
    c.lg.wait("sl")
    c.fine("slr1")
    c.bgq = SL.ops(3)
    ph345.p3_z1_gelu(c)
    c.bg_flush()
    c.fine("z1")
    ph345.p3_z2_finish(c)
    c.st.stamp("p3done")
    SL.read(3)
    c.lg.wait("sl")
    c.fine("slr2")
    s2 = SL.ops(2)
    for _ in range(8): s2.pop(0)()
    c.vm.wait("st")
    c.lg.wait_all()
    e("s_barrier")
    c.arrive(S_NB, L.C3_LINE)
    c.fine("arr3")
    for f in s2: f()
    SL.read(2)
    c.lg.wait_all()
    c.fine("slr3")
    c.poll(S_NB, L.C3_LINE, 1, 32)
    e("s_barrier")
    c.st.stamp("B3")
    tail = ph345.p5_wout_ops(c)
    ph345.p4_main(c, tail)
    c.st.stamp("p4main")
    ph345.p4_reduce_epilogue(c)
    c.fine("p4red")
    ph345.p4_finish(c)
    c.st.stamp("p4done")
    c.bg(opt.get("nwo1", 14))
    c.vm.wait("st")
    e("s_barrier")
    c.arrive(S_MB, L.C4_LINE)
    c.fine("arr4")
    c.bg_flush()
    c.poll(S_MB, L.C4_LINE, 1, 8)
    e("s_barrier")
    c.st.stamp("C4")
    ph345.p5_main(c)
    c.fine("p5main")
    ph345.p5_epilogue(c)
    if stamps or opt.get("endwait", 0): c.vm.wait_all()
    c.st.stamp("end")
    c.st.stamp("real1", real=True)
    if opt.get('dbgout') is not None: flush_dbg(c.st, P_DBG, 2, S_W, opt['dbgout'], 32)
    else: c.st.flush(P_WS, L.STAMPS, 2, 32, S_T)
    body.label("KEND")
    e("s_endpgm")
    a = Asm()
    hdr = open("cdna_kernels/%s.s.ref" % KNAME.replace("_kernel", "")).read().split("\n")
    for ln in hdr:
        if ln.startswith("; @launch") or ln.startswith("; Override") or ln.startswith("; grid="): continue
        if not ln.startswith(";"): break
        a(ln)
    a("; @launch grid=(256,1,1) block=(256,1,1) lds=163840")
    a('.amdgcn_target "amdgcn-amd-amdhsa--gfx950"')
    a(".text")
    a(body.text())
    a('.section .rodata,"a"')
    a(".p2align 6")
    kernel_desc(a, KNAME, 512, sgprs=102, accum=256)
    return a.text(), c.st.names

if __name__ == "__main__":
    kw = eval("dict(%s)" % (sys.argv[2] if len(sys.argv) > 2 else ""))
    t, names = build(**kw)
    open(sys.argv[1], "w").write(t)
    open(sys.argv[1] + ".stamps", "w").write(",".join(names))
```

```python
from core import *
import ph12

pr = lambda r: "v[%d:%d]" % (r, r + 1)
A0 = 256

LDS_WP = 83968
LDS_WOP = 83968 + 7168
def wpre_issue(c):
    e = c.e
    V = 240
    c.srd(R_A, P_WIN, 512 * 3584)
    e("s_and_b32 s%d, s2, 15", S_T)
    e("s_mul_i32 s%d, s%d, %d", S_T, S_T, 32 * 3584)
    e("s_lshr_b32 s%d, s2, 4", S_T + 1)
    e("s_mul_i32 s%d, s%d, 224", S_T + 1, S_T + 1)
    e("s_add_u32 s%d, s%d, s%d", S_T + 4, S_T, S_T + 1)
    for it in range(2):
        e("s_add_u32 s%d, s%d, %d", S_T, S_W, 4 * it)
        e("s_lshl_b32 s%d, s%d, 6", S_T + 1, S_T)
        e("v_add_u32 v%d, s%d, v%d", V, S_T + 1, V_LANE)
        e("v_mul_u32_u24 v%d, 4682, v%d", V + 1, V)
        e("v_lshrrev_b32 v%d, 16, v%d", V + 1, V + 1)
        e("v_mul_u32_u24 v%d, 14, v%d", V + 2, V + 1)
        e("v_sub_u32 v%d, v%d, v%d", V + 2, V, V + 2)
        e("v_mul_u32_u24 v%d, 3584, v%d", V + 1, V + 1)
        e("v_lshl_add_u32 v%d, v%d, 4, v%d", V + 1, V + 2, V + 1)
        e("v_cmp_gt_u32 vcc, 448, v%d", V)
        e("v_mov_b32 v%d, 0x40000000", V + 2)
        e("s_lshl_b32 s%d, s%d, 10", S_T + 1, S_T)
        e("v_cndmask_b32 v%d, v%d, v%d, vcc", V + 3 + it, V + 2, V + 1)
        e("s_cmp_eq_u32 s%d, 7", S_T)
        e("s_cselect_b32 s%d, 0x3000, s%d", S_T + 1, S_T + 1)
        c.dma(V + 3 + it, R_A, S_T + 4, S_T + 1, LDS_WP, "wp", c.opt.get("nt", ""))
    c.srd(R_B, P_WOUT, 896 * 1024)
    e("s_mul_i32 s%d, s2, 2341", S_T)
    e("s_lshr_b32 s%d, s%d, 16", S_T, S_T)
    e("s_mul_i32 s%d, s%d, 28", S_T + 1, S_T)
    e("s_sub_u32 s%d, s2, s%d", S_T + 1, S_T + 1)
    e("s_lshl_b32 s%d, s%d, 15", S_T + 2, S_T + 1)
    e("s_lshl_b32 s%d, s%d, 7", S_T + 3, S_T)
    e("s_add_u32 s%d, s%d, s%d", S_T + 2, S_T + 2, S_T + 3)
    e("s_lshl_b32 s%d, s%d, 13", S_T + 3, S_W)
    e("s_add_u32 s%d, s%d, s%d", S_T + 2, S_T + 2, S_T + 3)
    e("s_cmp_ge_u32 s2, 224")
    e("s_cselect_b32 s%d, 0x40000000, s%d", S_T + 2, S_T + 2)
    e("v_lshrrev_b32 v%d, 3, v%d", V, V_LANE)
    e("v_lshlrev_b32 v%d, 10, v%d", V, V)
    e("v_and_b32 v%d, 7, v%d", V + 1, V_LANE)
    e("v_lshlrev_b32 v%d, 1, v%d", V + 2, V_G)
    e("v_xor_b32 v%d, v%d, v%d", V + 1, V + 1, V + 2)
    e("v_lshl_add_u32 v%d, v%d, 4, v%d", V, V + 1, V)
    e("s_lshl_b32 s%d, s%d, 10", S_T + 3, S_W)
    c.dma(V, R_B, S_T + 2, S_T + 3, LDS_WOP, "wp", c.opt.get("nt", ""))

def wpre_store3(c):
    e = c.e; a = c.a
    V = 240; F = 176
    e("v_lshrrev_b32 v%d, 2, v%d", V, V_L16)
    e("v_lshl_add_u32 v%d, v%d, 2, v%d", V, V_G, V)
    e("v_mul_u32_u24 v%d, 224, v%d", V + 1, V)
    e("v_and_b32 v%d, 3, v%d", V + 2, V_LANE)
    e("v_lshl_add_u32 v%d, v%d, 3, v%d", V + 1, V + 2, V + 1)
    e("v_add_u32 v%d, 0x%x, v%d", V + 1, LDS_WP, V + 1)
    e("v_lshlrev_b32 v%d, 7, v%d", V + 2, V)
    e("v_and_b32 v%d, 1, v%d", V + 3, V_LANE)
    e("v_lshl_add_u32 v%d, v%d, 3, v%d", V + 2, V + 3, V + 2)
    e("v_bfe_u32 v%d, v%d, 1, 1", V + 3, V_LANE)
    e("v_lshl_add_u32 v%d, v%d, 4, v%d", V + 2, V + 3, V + 2)
    e("v_add_u32 v%d, 0x%x, v%d", V + 2, LDS_WOP, V + 2)
    e("v_and_b32 v%d, 1, v%d", V + 3, V_G)
    e("v_lshlrev_b32 v%d, 2, v%d", V + 3, V + 3)
    e("v_bfe_u32 v%d, v%d, 3, 1", V, V_LANE)
    e("v_lshl_add_u32 v%d, v%d, 1, v%d", V + 3, V, V + 3)
    e("v_lshlrev_b32 v%d, 4, v%d", V, V_LANE)
    e("s_lshr_b32 s52, s2, 4")
    e("s_mul_i32 s52, s52, 112")
    e("s_and_b32 s%d, s2, 15", S_T)
    e("s_add_u32 s52, s52, s%d", S_T)
    e("s_lshl_b32 s52, s52, 10")
    e("s_add_u32 s52, s52, 0x%x", L.WINF)
    e("s_mul_i32 s%d, s2, 2341", S_T)
    e("s_lshr_b32 s%d, s%d, 16", S_T, S_T)
    e("s_mul_i32 s%d, s%d, 28", S_T + 1, S_T)
    e("s_sub_u32 s%d, s2, s%d", S_T + 1, S_T + 1)
    e("s_mul_i32 s53, s%d, 112", S_T)
    e("s_add_u32 s53, s53, s%d", S_T + 1)
    e("s_lshl_b32 s53, s53, 10")
    e("s_add_u32 s53, s53, 0x%x", L.WOUTF)
    e("s_cmp_ge_u32 s2, 224")
    e("s_cselect_b32 s53, 0x40000000, s53")
    e("s_sub_u32 s54, s%d, 1", S_W)
    e("s_lshl_b32 s54, s54, 2")
    e("s_cmp_eq_u32 s%d, 0", S_W)
    e("s_cselect_b32 s54, 11, s54")
    for sl in range(4):
        isw = a.newlabel("wq"); done = a.newlabel("wqd")
        f = F + 4 * sl
        e("s_add_u32 s55, s54, %d", sl)
        e("s_cmp_lt_u32 s55, 7")
        e("s_cbranch_scc1 %s", isw)
        e("s_sub_u32 s55, s55, 7")
        e("s_lshl_b32 s%d, s55, 1", S_T)
        e("s_and_b32 s%d, s%d, 7", S_T, S_T)
        e("v_xor_b32 v%d, s%d, v%d", V + 4, S_T, V + 3)
        e("v_lshl_add_u32 v%d, v%d, 4, v%d", V + 4, V + 4, V + 2)
        e("ds_read_b64_tr_b16 v[%d:%d], v%d", f, f + 1, V + 4)
        e("ds_read_b64_tr_b16 v[%d:%d], v%d offset:2048", f + 2, f + 3, V + 4)
        e("s_mul_i32 s%d, s55, %d", S_T, 28 * 1024)
        e("s_add_u32 s%d, s%d, s53", S_T, S_T)
        e("s_cmp_ge_u32 s55, 4")
        e("s_cselect_b32 s%d, 0x40000000, s%d", S_T, S_T)
        e("s_branch %s", done)
        a.label(isw)
        e("s_lshl_b32 s%d, s55, 5", S_T)
        e("v_add_u32 v%d, s%d, v%d", V + 4, S_T, V + 1)
        e("ds_read_b64_tr_b16 v[%d:%d], v%d", f, f + 1, V + 4)
        e("ds_read_b64_tr_b16 v[%d:%d], v%d offset:%d", f + 2, f + 3, V + 4, 16 * 224)
        e("s_lshl_b32 s%d, s55, 14", S_T)
        e("s_add_u32 s%d, s%d, s52", S_T, S_T)
        a.label(done)
        e("s_waitcnt lgkmcnt(0)")
        c.bstore(f, 4, V, R_WS, S_T, 0, "wst", "sc1")

class WLoader:
    V0, V1 = 240, 241
    S0 = 58
    def __init__(self, c):
        self.c = c; self.issued = 0
    def setup(self):
        c = self.c; e = c.e
        e("v_lshlrev_b32 v%d, 4, v%d", self.V0, V_LANE)
        e("v_add_u32 v%d, 0x40000000, v%d", self.V1, self.V0)
        e("s_cmp_eq_u32 s%d, 3", S_W)
        e("s_cselect_b64 vcc, -1, 0")
        e("v_cndmask_b32 v%d, v%d, v%d, vcc", self.V1, self.V0, self.V1)
        e("s_mul_i32 s59, s%d, 7", S_NB)
        e("s_lshl_b32 s%d, s%d, 1", S_T, S_W)
        e("s_add_u32 s59, s59, s%d", S_T)
        e("s_lshl_b32 s59, s59, 14")
        e("s_add_u32 s59, s59, 0x%x", L.WINF)
        e("s_add_u32 s58, s59, %d", 56 * 16384)
    def loads(self, k0, k1):
        c = self.c; out = []
        for ks in range(k0, k1):
            for slot in range(4):
                def f(ks=ks, slot=slot):
                    base = 58 if slot < 2 else 59
                    if slot == 0:
                        c.e("s_add_u32 s%d, s%d, %d", S_X0, S_ROT, ks)
                        c.e("s_and_b32 s%d, s%d, 15", S_X0, S_X0)
                        c.e("s_lshl_b32 s%d, s%d, 10", S_X0, S_X0)
                    c.e("s_add_u32 s%d, s%d, s%d", S_T, base, S_X0)
                    if slot & 1: c.e("s_add_u32 s%d, s%d, 16384", S_T, S_T)
                    c.bload(A0 + (ks * 4 + slot) * 4, 4, self.V1 if (slot & 1) else self.V0, R_WS, S_T, 0, "W%d" % ks, "sc1")
                out.append(f)
        return out
    def colsum_prep(self):
        for r in range(4): self.c.e("v_mov_b32 v%d, 0x3f803f80", 244 + r)
        self.c.nop(2)
    def colsum(self, k0, k1):
        c = self.c; e = c.e
        c.vm.wait("W%d" % (k1 - 1))
        for ks in range(k0, k1):
            for slot in range(4):
                cc = "0" if ks == 0 else "v[%d:%d]" % (V_CS + 4 * slot, V_CS + 4 * slot + 3)
                e("v_mfma_f32_16x16x32_bf16 v[%d:%d], %s, v[244:247], %s", V_CS + 4 * slot, V_CS + 4 * slot + 3, rr(A0 + (ks * 4 + slot) * 4, 4), cc)

LDS_H = 0
LDS_WSPST = 0
LDS_ZT = 16384
LDS_ZS = 36864
LDS_HST = 126976
LDS_ZROW = 45056
LDS_Z1 = 0
LDS_RED4 = 65536

P3_ACC = 32
P3_HF = 96
P3_AS, P3_AG = 128, 132
P3_RD = 136
P3_ONE = 140

def p3_issue_h(c):
    e = c.e
    V = 148
    e("v_lshrrev_b32 v%d, 3, v%d", V, V_LANE)
    e("v_lshlrev_b32 v%d, 12, v%d", V, V)
    e("v_and_b32 v%d, 7, v%d", V + 1, V_LANE)
    e("v_lshlrev_b32 v%d, 1, v%d", V + 2, V_G)
    e("v_xor_b32 v%d, v%d, v%d", V + 1, V + 1, V + 2)
    e("v_lshl_add_u32 v%d, v%d, 4, v%d", V, V + 1, V)
    e("s_lshl_b32 s60, s%d, 7", S_MB)
    e("s_add_u32 s60, s60, 0x%x", L.HT)
    e("s_lshl_b32 s61, s%d, 12", S_W)
    ops = []
    for ch in range(4):
        for i in range(4):
            def f(ch=ch, i=i):
                if i == 0:
                    e("s_add_u32 s62, s%d, %d", S_W, 4 * ch)
                    e("s_add_u32 s62, s62, s%d", S_ROT)
                    e("s_and_b32 s62, s62, 15")
                    e("s_lshl_b32 s62, s62, 17")
                    e("s_add_u32 s62, s62, s60")
                e("s_add_u32 s%d, s62, 0x%x", S_T, 8 * i * 4096)
                c.dma(V, R_WS, S_T, 61, LDS_H + ch * 16384 + i * 1024, "h%d" % ch, "sc1")
            ops.append(f)
    return ops

def h_addr(c, dst, jrot):
    pass

def p3_setup(c):
    e = c.e
    T = 144
    e("v_lshrrev_b32 v%d, 2, v%d", T, V_L16)
    e("v_lshl_add_u32 v%d, v%d, 2, v%d", T + 1, V_G, T)
    e("v_lshlrev_b32 v%d, 7, v%d", T + 1, T + 1)
    e("v_and_b32 v%d, 1, v%d", T + 2, V_LANE)
    e("v_lshl_add_u32 v%d, v%d, 3, v%d", T + 1, T + 2, T + 1)
    e("v_bfe_u32 v%d, v%d, 1, 1", T + 2, V_LANE)
    e("v_lshl_add_u32 v%d, v%d, 4, v%d", T + 1, T + 2, T + 1)
    e("v_and_b32 v%d, 1, v%d", T + 2, V_G)
    e("v_lshlrev_b32 v%d, 2, v%d", T + 2, T + 2)
    e("v_lshrrev_b32 v%d, 1, v%d", T + 3, T)
    e("v_lshl_add_u32 v%d, v%d, 1, v%d", T + 2, T + 3, T + 2)
    for j in range(4):
        e("s_add_u32 s%d, s%d, %d", S_T, S_W, j)
        e("s_and_b32 s%d, s%d, 3", S_T, S_T)
        e("s_lshl_b32 s%d, s%d, 1", S_T, S_T)
        e("v_xor_b32 v%d, s%d, v%d", T + 3, S_T, T + 2)
        e("v_lshl_add_u32 v%d, v%d, 4, v%d", P3_RD + j, T + 3, T + 1)
    for r in range(4): e("v_mov_b32 v%d, 0x3f803f80", P3_ONE + r)

P3_SF = 164
def p3_main(c, hooks=None, inter=None, late_cs=16):
    e = c.e; hooks = hooks or {}; inter = inter or {}
    def reads(ks):
        f = P3_HF + 16 * (ks & 1); out = []
        for j in range(4):
            for hh in range(2):
                out.append("ds_read_b64_tr_b16 v[%d:%d], v%d offset:%d" % (f + 4 * j + 2 * hh, f + 4 * j + 2 * hh + 1, P3_RD + j, LDS_H + ks * 4096 + hh * 2048))
        return out
    def sreads(kk):
        f = P3_SF + 4 * (kk & 7)
        return ["ds_read_b64_tr_b16 v[%d:%d], v%d offset:%d" % (f + 2 * hh, f + 2 * hh + 1, P3_RD, LDS_H + kk * 4096 + hh * 2048) for hh in range(2)]
    def smfma(kk):
        f = P3_SF + 4 * (kk & 7)
        cs = "0" if kk == 0 else "v[%d:%d]" % (P3_AS, P3_AS + 3)
        cg = "0" if kk == 0 else "v[%d:%d]" % (P3_AG, P3_AG + 3)
        e("v_mfma_f32_16x16x32_bf16 v[%d:%d], v[%d:%d], v[%d:%d], %s", P3_AS, P3_AS + 3, P3_ONE, P3_ONE + 3, f, f + 3, cs)
        e("v_mfma_f32_16x16x32_bf16 v[%d:%d], v[%d:%d], v[%d:%d], %s", P3_AG, P3_AG + 3, f, f + 3, f, f + 3, cg)
    for ks in range(16):
        if ks == 0:
            c.vm.wait("h0")
            c.lg.wait_all()
            e("s_barrier")
            for r in reads(0): c.lg.issue(r, "hf0")
        if ks == 3:
            c.vm.wait("h3")
            e("s_barrier")
        c.vm.wait("W%d" % ks)
        c.lg.wait("hf%d" % ks)
        if 4 <= ks <= 7: c.lg.wait("sf%d" % ks)
        if ks in (1, 4, 10): c.fine("p3k%d" % ks)
        f = P3_HF + 16 * (ks & 1)
        nxt = [(r, "hf%d" % (ks + 1)) for r in reads(ks + 1)] if ks < 15 else []
        if 3 <= ks <= 6:
            i = ks - 3
            nxt = nxt + [(r, "sf%d" % (ks + 1)) for kk in range(4 * i, 4 * i + 4) for r in sreads(kk)]
        ops = list(inter.get(ks, []))
        m = 0
        for slot in range(4):
            for j in range(4):
                acc = P3_ACC + (slot * 4 + j) * 4
                cc = "0" if ks == 0 else "v[%d:%d]" % (acc, acc + 3)
                e("v_mfma_f32_16x16x32_bf16 v[%d:%d], %s, v[%d:%d], %s", acc, acc + 3, rr(A0 + (ks * 4 + slot) * 4, 4), f + 4 * j, f + 4 * j + 3, cc)
                if nxt:
                    r, t = nxt.pop(0); c.lg.issue(r, t)
                if m % 4 == 1 and ops: ops.pop(0)()
                m += 1
        while nxt:
            r, t = nxt.pop(0); c.lg.issue(r, t)
        while ops: ops.pop(0)()
        if 4 <= ks <= 7:
            i = ks - 4
            for kk in range(4 * i, 4 * i + 4): smfma(kk)
        if ks >= late_cs:
            for slot in range(4):
                e("v_mfma_f32_16x16x32_bf16 v[%d:%d], %s, v[244:247], v[%d:%d]", V_CS + 4 * slot, V_CS + 4 * slot + 3, rr(A0 + (ks * 4 + slot) * 4, 4), V_CS + 4 * slot, V_CS + 4 * slot + 3)
        if ks == 8: p3_hstats_a(c)
        if ks == 9: p3_hstats_b(c)
        if ks in hooks: hooks[ks]()
    e("s_lshr_b32 s%d, s%d, 1", S_T, S_NB)
    e("s_lshl_b32 s%d, s%d, 2", S_T, S_T)
    e("s_add_u32 s%d, s%d, s%d", S_T, S_T, S_W)
    e("s_sub_u32 s%d, s%d, s%d", S_T, S_T, S_ROT)
    e("s_and_b32 s%d, s%d, 15", S_T, S_T)
    e("s_lshl_b32 s%d, s%d, 12", S_T, S_T)
    for u in range(2):
        e("s_and_b32 s%d, s%d, 1", S_T + 1, S_NB)
        e("s_lshl_b32 s%d, s%d, 1", S_T + 1, S_T + 1)
        e("s_add_u32 s%d, s%d, %d", S_T + 1, S_T + 1, u)
        e("s_xor_b32 s%d, s%d, s%d", S_T + 1, S_T + 1, S_W)
        e("s_lshl_b32 s%d, s%d, 5", S_T + 1, S_T + 1)
        e("v_xor_b32 v%d, s%d, v%d", 144 + u, S_T + 1, P3_RD)
        e("v_add_u32 v%d, s%d, v%d", 144 + u, S_T, 144 + u)
    for u in range(2):
        for i in range(2):
            x = 2 * u + i
            c.lg.issue("ds_read_b64_tr_b16 v[%d:%d], v%d offset:%d" % (V_HRES + 2 * x, V_HRES + 2 * x + 1, 144 + u, LDS_H + i * 2048), "hres")

LDS_HST2 = 163840 - 512
def p3_hstats_a(c):
    e = c.e
    T = 144
    e("v_and_b32 v%d, 3, v%d", T, V_L16)
    e("v_cmp_eq_u32 vcc, 1, v%d", T)
    e("v_cmp_eq_u32 s[%d:%d], 2, v%d", S_T + 2, S_T + 3, T)
    e("v_cmp_eq_u32 s[%d:%d], 3, v%d", S_T + 4, S_T + 5, T)
    e("v_cndmask_b32 v%d, v%d, v%d, vcc", T + 1, P3_AG, P3_AG + 1)
    e("v_cndmask_b32 v%d, v%d, v%d, s[%d:%d]", T + 1, T + 1, P3_AG + 2, S_T + 2, S_T + 3)
    e("v_cndmask_b32 v%d, v%d, v%d, s[%d:%d]", T + 1, T + 1, P3_AG + 3, S_T + 4, S_T + 5)
    e("v_mul_f32 v%d, 0x3b000000, v%d", T + 2, P3_AS)
    e("v_mul_f32 v%d, 0x3b000000, v%d", T + 1, T + 1)
    e("v_fma_f32 v%d, -v%d, v%d, v%d", T + 1, T + 2, T + 2, T + 1)
    e("v_max_f32 v%d, 0, v%d", T + 1, T + 1)
    e("v_add_f32 v%d, 0x3727c5ac, v%d", T + 1, T + 1)
    e("v_rsq_f32 v%d, v%d", T + 4, T + 1)
    e("v_lshrrev_b32 v%d, 2, v%d", T + 3, V_L16)
    e("v_mul_f32 v%d, v%d, v%d", T + 5, T + 4, T + 2)
    e("v_cmp_eq_u32 vcc, v%d, v%d", T + 3, V_G)
    e("s_lshl_b32 s%d, s%d, 7", S_T, S_W)
    e("s_add_u32 s%d, s%d, 0x%x", S_T, S_T, LDS_HST2)
    e("v_lshlrev_b32 v%d, 3, v%d", T + 3, V_L16)
    e("v_add_u32 v%d, s%d, v%d", T + 3, S_T, T + 3)
    e("s_and_saveexec_b64 s[%d:%d], vcc", S_T + 2, S_T + 3)
    c.lg.issue("ds_write_b64 v%d, v[%d:%d]" % (T + 3, T + 4, T + 5), "hs")
    e("s_mov_b64 exec, s[%d:%d]", S_T + 2, S_T + 3)

def p3_hstats_b(c):
    e = c.e
    T = 144
    c.lg.wait("hs")
    e("s_barrier")
    e("v_lshlrev_b32 v%d, 3, v%d", T + 3, V_L16)
    for j in range(4):
        e("s_add_u32 s%d, s%d, %d", S_T, S_W, j)
        e("s_and_b32 s%d, s%d, 3", S_T, S_T)
        e("s_lshl_b32 s%d, s%d, 7", S_T, S_T)
        e("s_add_u32 s%d, s%d, 0x%x", S_T, S_T, LDS_HST2)
        e("v_add_u32 v%d, s%d, v%d", T + 4, S_T, T + 3)
        c.lg.issue("ds_read_b64 v[%d:%d], v%d" % (150 + 2 * j, 151 + 2 * j, T + 4), "hs2")

GC0, GC1 = 60, 62
def gelu_consts(c):
    import struct
    f2u = lambda x: struct.unpack("<I", struct.pack("<f", x))[0]
    k = -2.0 * 0.7978845608028654 * 1.4426950408889634
    c.e("s_mov_b32 s60, 0x%x", f2u(k)); c.e("s_mov_b32 s61, 0x%x", f2u(k))
    c.e("s_mov_b32 s62, 0x%x", f2u(k * 0.044715)); c.e("s_mov_b32 s63, 0x%x", f2u(k * 0.044715))

def gelu_tile(c, acc, slot, j, T, nbg=0):
    e = c.e
    R = 150 + 2 * j
    if nbg >= 1: c.bg(1)
    for q in range(2):
        x = acc + 2 * q; cs = V_CS + 4 * slot + 2 * q; t = T + 8 * q
        e("v_pk_mul_f32 %s, %s, %s op_sel:[0,1] op_sel_hi:[1,1]", pr(t), pr(cs), pr(R))
    for q in range(2):
        x = acc + 2 * q; t = T + 8 * q
        e("v_pk_fma_f32 %s, %s, %s, %s op_sel_hi:[1,0,1] neg_lo:[0,0,1] neg_hi:[0,0,1]", pr(x), pr(x), pr(R), pr(t))
    for q in range(2):
        x = acc + 2 * q; t = T + 8 * q
        e("v_pk_mul_f32 %s, %s, %s", pr(t), pr(x), pr(x))
    for q in range(2):
        x = acc + 2 * q; t = T + 8 * q
        e("v_pk_fma_f32 %s, %s, s[62:63], %s", pr(t), pr(t), pr(t + 2))
    for q in range(2):
        x = acc + 2 * q; t = T + 8 * q
        e("v_pk_mul_f32 %s, %s, %s", pr(t), pr(t), pr(x))
    for q in range(2):
        t = T + 8 * q
        e("v_exp_f32 v%d, v%d", t, t); e("v_exp_f32 v%d, v%d", t + 1, t + 1)
    if nbg >= 2: c.bg(1)
    else: e("s_nop 0")
    e("s_nop 0")
    for q in range(2):
        t = T + 8 * q
        e("v_pk_add_f32 %s, %s, %s", pr(t), pr(t), pr(t + 4))
    for q in range(2):
        t = T + 8 * q
        e("v_rcp_f32 v%d, v%d", t, t); e("v_rcp_f32 v%d, v%d", t + 1, t + 1)
    if nbg >= 3: c.bg(1)
    e("s_nop 0")
    for q in range(2):
        x = acc + 2 * q; t = T + 8 * q
        e("v_pk_mul_f32 %s, %s, %s", pr(x), pr(x), pr(t))

def gelu_tile_bg(c, acc, slot, j, T, nbg):
    gelu_tile(c, acc, slot, j, T, nbg)

def gelu_setup(c, T):
    e = c.e
    gelu_consts(c)
    for q in range(2):
        t = T + 8 * q
        e("v_mov_b32 v%d, s60", t + 2); e("v_mov_b32 v%d, s60", t + 3)
        e("v_mov_b32 v%d, 1.0", t + 4); e("v_mov_b32 v%d, 1.0", t + 5)

def p3_z2_gelu_publish(c):
    e = c.e
    T = 160
    gelu_setup(c, T)
    SUM = 176
    for j in range(4):
        for slot in range(2):
            acc = P3_ACC + (slot * 4 + j) * 4
            gelu_tile_bg(c, acc, slot, j, T, 3)
            s0, q0 = SUM + 4 * j, SUM + 4 * j + 2
            if slot == 0:
                e("v_pk_add_f32 %s, %s, %s", pr(s0), pr(acc), pr(acc + 2))
                e("v_pk_mul_f32 %s, %s, %s", pr(q0), pr(acc), pr(acc))
            else:
                e("v_pk_add_f32 %s, %s, %s", pr(s0), pr(s0), pr(acc))
                e("v_pk_add_f32 %s, %s, %s", pr(s0), pr(s0), pr(acc + 2))
                e("v_pk_fma_f32 %s, %s, %s, %s", pr(q0), pr(acc), pr(acc), pr(q0))
            e("v_pk_fma_f32 %s, %s, %s, %s", pr(q0), pr(acc + 2), pr(acc + 2), pr(q0))
    c.lg.wait_all()
    e("s_barrier")
    e("s_lshl_b32 s%d, s%d, 11", S_T + 1, S_W)
    e("s_add_u32 s%d, s%d, 0x%x", S_T + 1, S_T + 1, LDS_ZS)
    e("v_lshlrev_b32 v%d, 9, v%d", T, V_G)
    e("v_lshl_add_u32 v%d, v%d, 3, v%d", T, V_L16, T)
    e("v_add_u32 v%d, s%d, v%d", T, S_T + 1, T)
    for j in range(4):
        s0, q0 = SUM + 4 * j, SUM + 4 * j + 2
        e("v_add_f32 v%d, v%d, v%d", s0, s0, s0 + 1)
        e("v_add_f32 v%d, v%d, v%d", s0 + 1, q0, q0 + 1)
        e("s_add_u32 s%d, s%d, %d", S_T, S_W, j)
        e("s_and_b32 s%d, s%d, 3", S_T, S_T)
        e("s_lshl_b32 s%d, s%d, 7", S_T, S_T)
        e("v_add_u32 v%d, s%d, v%d", T + 1, S_T, T)
        c.lg.issue("ds_write_b64 v%d, v[%d:%d]" % (T + 1, s0, s0 + 1))
    c.lg.wait_all()
    e("s_barrier")
    e("s_lshl_b32 s%d, s%d, 7", S_T, S_W)
    e("s_add_u32 s%d, s%d, 0x%x", S_T, S_T, LDS_ZS)
    e("v_lshlrev_b32 v%d, 9, v%d", T, V_G)
    e("v_lshl_add_u32 v%d, v%d, 3, v%d", T, V_L16, T)
    e("v_add_u32 v%d, s%d, v%d", T, S_T, T)
    for w in range(4):
        c.lg.issue("ds_read_b64 v[%d:%d], v%d offset:%d" % (SUM + 2 * w, SUM + 2 * w + 1, T, w * 2048))
    c.lg.wait_all()
    e("v_pk_add_f32 %s, %s, %s", pr(SUM), pr(SUM), pr(SUM + 2))
    e("v_pk_add_f32 %s, %s, %s", pr(SUM + 4), pr(SUM + 4), pr(SUM + 6))
    e("v_pk_add_f32 %s, %s, %s", pr(SUM), pr(SUM), pr(SUM + 4))
    for swap in ("v_permlane16_swap_b32", "v_permlane32_swap_b32"):
        e("v_mov_b32 v%d, v%d", SUM + 2, SUM)
        e("v_mov_b32 v%d, v%d", SUM + 3, SUM + 1)
        c.nop(2)
        e("%s v%d, v%d", swap, SUM, SUM + 2)
        e("%s v%d, v%d", swap, SUM + 1, SUM + 3)
        c.nop(1)
        e("v_pk_add_f32 %s, %s, %s", pr(SUM), pr(SUM), pr(SUM + 2))
    e("s_lshl_b32 s%d, s%d, 3", S_T, S_MB)
    e("s_add_u32 s%d, s%d, s%d", S_T, S_T, S_NB)
    e("s_lshl_b32 s%d, s%d, 9", S_T, S_T)
    e("s_lshl_b32 s%d, s%d, 7", S_T + 1, S_W)
    e("s_add_u32 s%d, s%d, s%d", S_T, S_T, S_T + 1)
    e("s_add_u32 s%d, s%d, 0x%x", S_T, S_T, L.ZST)
    e("v_lshlrev_b32 v%d, 3, v%d", T, V_L16)
    e("s_mov_b64 s[%d:%d], exec", S_T + 2, S_T + 3)
    e("s_mov_b64 exec, 0xffff")
    c.bstore(SUM, 2, T, R_WS, S_T, 0, "zst", "sc1")
    e("s_mov_b64 exec, s[%d:%d]", S_T + 2, S_T + 3)

def p3_z1_gelu(c):
    e = c.e
    T = 160
    e("v_lshlrev_b32 v176, 3, v%d", V_LANE)
    e("s_lshl_b32 s%d, s%d, 10", S_T + 1, S_W)
    e("s_add_u32 s%d, s%d, 0x%x", S_T + 1, S_T + 1, LDS_Z1)
    e("v_add_u32 v176, s%d, v176", S_T + 1)
    for j in range(4):
        e("s_add_u32 s%d, s%d, %d", S_T, S_W, j)
        e("s_and_b32 s%d, s%d, 3", S_T, S_T)
        e("s_lshl_b32 s%d, s%d, 12", S_T, S_T)
        e("v_add_u32 v177, s%d, v176", S_T)
        for sl in range(2):
            slot = 2 + sl
            acc = P3_ACC + (slot * 4 + j) * 4
            gelu_tile_bg(c, acc, slot, j, T, 3)
            e("v_cvt_pk_bf16_f32 v%d, v%d, v%d", acc, acc, acc + 1)
            e("v_cvt_pk_bf16_f32 v%d, v%d, v%d", acc + 1, acc + 2, acc + 3)
            c.lg.issue("ds_write_b64 v177, v[%d:%d] offset:%d" % (acc, acc + 1, sl * 512))

def p3_z2_finish(c):
    e = c.e; a = c.a
    T = 160; G = 180
    e("s_lshl_b32 s%d, s%d, 12", S_T, S_MB)
    e("s_add_u32 s%d, s%d, 0x%x", S_T, S_T, L.ZST)
    e("v_lshlrev_b32 v%d, 3, v%d", T, V_LANE)
    loop = a.newlabel("zp"); done = a.newlabel("zpd")
    e("s_mov_b32 s%d, 0", S_T + 1)
    a.label(loop)
    for n in range(8):
        e("buffer_load_dwordx2 v[%d:%d], v%d, s[%d:%d], s%d offen offset:%d sc1", G + 2 * n, G + 2 * n + 1, T, R_WS, R_WS + 3, S_T, 512 * n)
    e("s_waitcnt vmcnt(0)")
    c.vm.q = []
    e("v_min_f32 v%d, v%d, v%d", T + 1, G + 1, G + 3)
    for n in range(2, 8):
        e("v_min_f32 v%d, v%d, v%d", T + 1, T + 1, G + 2 * n + 1)
    if "Z" in c.opt.get("nopoll", ()): e("v_cmp_gt_f32 vcc, v%d, v%d", T + 1, T + 1)
    else: e("v_cmp_gt_f32 vcc, 0, v%d", T + 1)
    e("s_nop 1")
    e("s_cmp_eq_u64 vcc, 0")
    e("s_cbranch_scc1 %s", done)
    e("s_add_u32 s%d, s%d, 1", S_T + 1, S_T + 1)
    e("s_cmp_lt_u32 s%d, 0x100000", S_T + 1)
    e("s_cbranch_scc1 %s", loop)
    a.label(done)
    c.fine("zpoll")
    for n in range(1, 8):
        e("v_pk_add_f32 %s, %s, %s", pr(G), pr(G), pr(G + 2 * n))
    import struct
    inv = struct.unpack("<I", struct.pack("<f", 1.0 / 896))[0]
    e("v_mul_f32 v%d, 0x%x, v%d", G, inv, G)
    e("v_mul_f32 v%d, 0x%x, v%d", G + 1, inv, G + 1)
    e("v_fma_f32 v%d, -v%d, v%d, v%d", G + 1, G, G, G + 1)
    e("v_max_f32 v%d, 0, v%d", G + 1, G + 1)
    e("v_add_f32 v%d, 0x3727c5ac, v%d", G + 1, G + 1)
    e("v_rsq_f32 v%d, v%d", G + 2, G + 1)
    e("s_nop 0")
    e("v_mul_f32 v%d, v%d, v%d", G + 3, G, G + 2)
    e("v_sub_f32 v%d, 0, v%d", G + 3, G + 3)
    e("s_lshl_b32 s%d, s%d, 9", S_T, S_W)
    e("s_add_u32 s%d, s%d, 0x%x", S_T, S_T, LDS_ZROW)
    e("v_add_u32 v%d, s%d, v%d", T + 1, S_T, T)
    c.lg.issue("ds_write_b64 v%d, v[%d:%d]" % (T + 1, G + 2, G + 3))
    c.lg.wait_all()
    e("v_lshlrev_b32 v%d, 3, v%d", T + 2, V_L16)
    e("v_add_u32 v%d, s%d, v%d", T + 2, S_T, T + 2)
    for j in range(4):
        e("s_add_u32 s%d, s%d, %d", S_T + 1, S_W, j)
        e("s_and_b32 s%d, s%d, 3", S_T + 1, S_T + 1)
        e("s_lshl_b32 s%d, s%d, 7", S_T + 1, S_T + 1)
        e("v_add_u32 v%d, s%d, v%d", T + 3, S_T + 1, T + 2)
        c.lg.issue("ds_read_b64 v[%d:%d], v%d" % (150 + 2 * j, 151 + 2 * j, T + 3))
    c.lg.wait_all()
    e("s_mul_i32 s%d, s%d, 5120", S_T, S_W)
    e("s_add_u32 s%d, s%d, 0x%x", S_T, S_T, LDS_ZT)
    e("v_mul_u32_u24 v%d, 40, v%d", T + 4, V_L16)
    e("v_lshl_add_u32 v%d, v%d, 3, v%d", T + 4, V_G, T + 4)
    e("v_add_u32 v%d, s%d, v%d", T + 4, S_T, T + 4)
    for j in range(4):
        R = 150 + 2 * j
        e("s_add_u32 s%d, s%d, %d", S_T + 1, S_W, j)
        e("s_and_b32 s%d, s%d, 3", S_T + 1, S_T + 1)
        e("s_mul_i32 s%d, s%d, 640", S_T + 1, S_T + 1)
        e("v_add_u32 v%d, s%d, v%d", T + 5, S_T + 1, T + 4)
        for slot in range(2):
            acc = P3_ACC + (slot * 4 + j) * 4
            for q in range(2):
                x = acc + 2 * q
                e("v_pk_fma_f32 %s, %s, %s, %s op_sel:[0,0,1] op_sel_hi:[1,0,1]", pr(x), pr(x), pr(R), pr(R))
            e("v_cvt_pk_bf16_f32 v%d, v%d, v%d", acc, acc, acc + 1)
            e("v_cvt_pk_bf16_f32 v%d, v%d, v%d", acc + 1, acc + 2, acc + 3)
            c.lg.issue("ds_write_b64 v%d, v[%d:%d] offset:%d" % (T + 5, acc, acc + 1, slot * 2560))
    c.lg.wait_all()
    e("v_lshrrev_b32 v%d, 2, v%d", T + 4, V_L16)
    e("v_lshl_add_u32 v%d, v%d, 2, v%d", T + 4, V_G, T + 4)
    e("v_mul_u32_u24 v%d, 40, v%d", T + 4, T + 4)
    e("v_and_b32 v%d, 3, v%d", T + 5, V_LANE)
    e("v_lshl_add_u32 v%d, v%d, 3, v%d", T + 4, T + 5, T + 4)
    e("v_add_u32 v%d, s%d, v%d", T + 4, S_T, T + 4)
    O = 96
    for slot in range(2):
        for pp in range(2):
            for hh in range(2):
                d = O + (slot * 2 + pp) * 4 + 2 * hh
                c.lg.issue("ds_read_b64_tr_b16 v[%d:%d], v%d offset:%d" % (d, d + 1, T + 4, slot * 2560 + (32 * pp + 16 * hh) * 40), "o%d%d" % (slot, pp))
    e("s_lshl_b32 s%d, s%d, 6", S_T, S_NB)
    e("s_lshl_b32 s%d, s%d, 1", S_T + 1, S_MB)
    e("s_add_u32 s%d, s%d, s%d", S_T, S_T, S_T + 1)
    e("s_mul_i32 s%d, s%d, 7", S_T, S_T)
    e("s_lshl_b32 s%d, s%d, 1", S_T + 1, S_W)
    e("s_add_u32 s%d, s%d, s%d", S_T, S_T, S_T + 1)
    e("s_lshl_b32 s%d, s%d, 10", S_T, S_T)
    e("s_add_u32 s%d, s%d, 0x%x", S_T, S_T, L.Z2N)
    e("v_lshlrev_b32 v%d, 4, v%d", T + 5, V_LANE)
    e("v_add_u32 v%d, 0x40000000, v%d", T + 6, T + 5)
    e("s_cmp_eq_u32 s%d, 3", S_W)
    e("s_cselect_b64 vcc, -1, 0")
    e("v_cndmask_b32 v%d, v%d, v%d, vcc", T + 6, T + 5, T + 6)
    for slot in range(2):
        for pp in range(2):
            e("s_add_u32 s%d, s%d, %d", S_T + 1, S_T, (pp * 7 + slot) * 1024)
            c.lg.wait("o%d%d" % (slot, pp))
            c.bstore(O + (slot * 2 + pp) * 4, 4, T + 5 + slot, R_WS, S_T + 1, 0, "st", "sc1")

class SpLoader:
    NST = 3
    base = 65536
    V_DMA = 200
    V_RD = 208
    S_LDS, S_K = 56, 57
    def __init__(self, c):
        self.c = c; self.issued = 0; self.read_ = 0
    def setup(self):
        c = self.c; e = c.e
        T = 212
        e("v_lshrrev_b32 v%d, 3, v%d", T, V_LANE)
        e("v_lshlrev_b32 v%d, 12, v%d", T, T)
        e("v_and_b32 v%d, 7, v%d", T + 1, V_LANE)
        e("v_xor_b32 v%d, v%d, v%d", T + 1, T + 1, V_G)
        e("v_xor_b32 v%d, 4, v%d", T + 2, T + 1)
        e("v_lshl_add_u32 v%d, v%d, 4, v%d", T + 1, T + 1, T)
        e("v_lshl_add_u32 v%d, v%d, 4, v%d", T + 2, T + 2, T)
        for i in range(8):
            jj = i // 2
            e("s_add_u32 s%d, s%d, %d", S_T, S_W, jj)
            e("s_and_b32 s%d, s%d, 3", S_T, S_T)
            e("s_lshl_b32 s%d, s%d, 16", S_T, S_T)
            e("s_add_u32 s%d, s%d, %d", S_T, S_T, (i % 2) * 8 * 4096)
            e("v_add_u32 v%d, s%d, v%d", self.V_DMA + i, S_T, T + 1 + (i % 2))
        e("s_mul_i32 s%d, s%d, %d", self.S_LDS, S_W, self.NST * 8192)
        e("s_add_u32 s%d, s%d, %d", self.S_LDS, self.S_LDS, self.base)
        e("v_lshrrev_b32 v%d, 1, v%d", T + 1, V_L16)
        e("v_lshrrev_b32 v%d, 1, v%d", T + 2, V_G)
        e("v_xor_b32 v%d, v%d, v%d", T + 1, T + 1, T + 2)
        e("v_and_b32 v%d, 1, v%d", T + 2, V_G)
        e("v_lshlrev_b32 v%d, 3, v%d", T + 2, T + 2)
        e("v_lshl_add_u32 v%d, v%d, 7, v%d", T + 2, V_L16, T + 2)
        e("v_add_u32 v%d, s%d, v%d", T + 2, self.S_LDS, T + 2)
        for kk in range(2):
            for hh in range(2):
                e("v_xor_b32 v%d, %d, v%d", T + 3, 4 * kk + 2 * hh, T + 1)
                e("v_lshl_add_u32 v%d, v%d, 4, v%d", self.V_RD + 2 * kk + hh, T + 3, T + 2)
        e("s_lshl_b32 s%d, s%d, 10", self.S_K, S_W)
    def rebase(self, newbase):
        c = self.c; e = c.e
        d = newbase - self.base
        e("s_add_u32 s%d, s%d, %d", self.S_LDS, self.S_LDS, d) if d >= 0 else e("s_sub_u32 s%d, s%d, %d", self.S_LDS, self.S_LDS, -d)
        for i in range(4):
            if d >= 0: e("v_add_u32 v%d, %d, v%d", self.V_RD + i, d, self.V_RD + i)
            else: e("v_subrev_u32 v%d, %d, v%d", self.V_RD + i, -d, self.V_RD + i)
        self.base = newbase
    def srd(self):
        c = self.c; e = c.e
        e("s_lshl_b32 s%d, s%d, 18", S_T, S_MB)
        c.srd(R_B, P_WSP, 0x40000, off_sreg=S_T)
    def ops(self, n):
        c = self.c; out = []
        for _ in range(n):
            dd = self.issued
            st = dd % self.NST
            for i in range(8):
                def f(dd=dd, st=st, i=i):
                    if i == 0:
                        c.e("s_lshr_b32 s%d, s%d, 1", S_X1, S_ROTZ)
                        c.e("s_add_u32 s%d, s%d, %d", S_X1, S_X1, dd)
                        c.e("s_and_b32 s%d, s%d, 7", S_X1, S_X1)
                        c.e("s_lshl_b32 s%d, s%d, 7", S_X1, S_X1)
                        c.e("s_add_u32 s%d, s%d, s%d", S_X1, S_X1, self.S_K)
                    c.dma(self.V_DMA + i, R_B, S_X1, self.S_LDS, st * 8192 + i * 1024, "S%d" % dd, c.opt.get("ntsp", ""))
                out.append(f)
            self.issued += 1
        return out
    def issue(self, n=1):
        for f in self.ops(n): f()
    def read(self, n):
        c = self.c
        for _ in range(n):
            dd = self.read_
            c.vm.wait("S%d" % dd)
            st = dd % self.NST
            for kk in range(2):
                for j in range(4):
                    for hh in range(2):
                        dst = A0 + ((dd * 2 + kk) * 4 + j) * 4 + 2 * hh
                        c.lg.issue("ds_read_b64 %s, v%d offset:%d" % (rr(dst, 2), self.V_RD + 2 * kk + hh, st * 8192 + j * 2048), "sl")
            self.read_ += 1
    def refill(self, n):
        self.c.lg.wait("sl")
        self.issue(n)

P4_ACC = 32
P4_ZB = 144
def p4_main(c, tail_ops):
    e = c.e
    NZ = 4
    e("v_lshlrev_b32 v29, 4, v%d", V_LANE)
    e("v_add_u32 v30, 0x1000, v29")
    e("s_lshl_b32 s%d, s%d, 6", 56, S_NB)
    e("s_lshl_b32 s%d, s%d, 4", 57, S_W)
    e("s_add_u32 s56, s56, s57")
    e("s_mul_i32 s56, s56, 7168")
    e("s_add_u32 s56, s56, 0x%x", L.Z2N)
    def issue_z(ks, ft):
        d, v, imm = P4_ZB + (ks % NZ) * 28 + 4 * ft, 29 + ft // 4, (ft % 4) * 1024
        if ft == 0:
            e("s_add_u32 s57, s%d, %d", S_ROTZ, ks)
            e("s_and_b32 s57, s57, 15")
            e("s_mul_i32 s57, s57, 7168")
            e("s_add_u32 s57, s57, s56")
        c.bload(d, 4, v, R_WS, 57, imm, "z%d" % ks, c.opt.get("zflag", "sc1"))
    for ks in range(2):
        for ft in range(7): issue_z(ks, ft)
    T = 2
    e("s_mul_i32 s%d, s%d, 24576", S_T + 2, S_W)
    e("s_add_u32 s%d, s%d, %d", S_T + 2, S_T + 2, LDS_RED4)
    e("v_lshlrev_b32 v%d, 4, v%d", T + 1, V_LANE)
    e("v_add_u32 v%d, s%d, v%d", T, S_T + 2, T + 1)
    for ks in range(16):
        c.vm.wait("z%d" % ks)
        if ks in (0, 4, 12): c.fine("p4k%d" % ks)
        nk = ks + NZ - 1
        m = 0; nf = 0
        order = [(ft, j) for ft in range(7) for j in range(4)]
        if ks == 15:
            order = [(ft, j) for j in (1, 2, 3, 0) for ft in range(7)]
        pend = []
        for (ft, j) in order:
            acc = P4_ACC + (ft * 4 + j) * 4
            cc = "0" if ks == 0 else "v[%d:%d]" % (acc, acc + 3)
            z = P4_ZB + (ks % NZ) * 28 + 4 * ft
            e("v_mfma_f32_16x16x32_bf16 v[%d:%d], v[%d:%d], %s, %s", acc, acc + 3, z, z + 3, rr(A0 + (ks * 4 + j) * 4, 4), cc)
            m += 1
            if ks == 0 and m % 2 == 0 and nf < 14:
                issue_z(2 + nf // 7, nf % 7); nf += 1
            elif ks > 0 and nk < 16 and m % 4 == 0 and nf < 7:
                issue_z(nk, nf); nf += 1
            if nk >= 16 and m % 4 == 0 and tail_ops:
                tail_ops.pop(0)()
            if ks == 15:
                if j != 0: pend.append((ft, j, m))
                while pend and m - pend[0][2] >= 8:
                    f2, j2, _ = pend.pop(0)
                    a2 = P4_ACC + (f2 * 4 + j2) * 4
                    c.lg.issue("ds_write_b128 v%d, v[%d:%d] offset:%d" % (T, a2, a2 + 3, (j2 - 1) * 7168 + f2 * 1024))
    c.p4_pend = pend
    c.bgq = tail_ops

def p4_reduce_epilogue(c):
    e = c.e
    T = 144
    e("s_lshl_b32 s%d, s%d, 2", S_T, S_MB)
    e("s_add_u32 s%d, s%d, s%d", S_T, S_T, S_W)
    e("s_lshl_b32 s%d, s%d, 5", S_T + 1, S_T)
    e("v_lshlrev_b32 v%d, 1, v%d", T, V_L16)
    e("v_add_u32 v%d, s%d, v%d", T, S_T + 1, T)
    c.vm.issue("global_load_ushort v%d, v%d, s[%d:%d]" % (V_BIAS, T, P_BSP, P_BSP + 1), "bias")
    c.nop(8)
    for (f2, j2, _) in c.p4_pend:
        a2 = P4_ACC + (f2 * 4 + j2) * 4
        c.lg.issue("ds_write_b128 v2, v[%d:%d] offset:%d" % (a2, a2 + 3, (j2 - 1) * 7168 + f2 * 1024))
    e("v_lshlrev_b32 v%d, 4, v%d", T + 1, V_LANE)
    for j in range(1, 4):
        e("s_sub_u32 s%d, s%d, %d", S_T + 2, S_W, j)
        e("s_and_b32 s%d, s%d, 3", S_T + 2, S_T + 2)
        e("s_mul_i32 s%d, s%d, 24576", S_T + 2, S_T + 2)
        e("s_add_u32 s%d, s%d, %d", S_T + 2, S_T + 2, LDS_RED4)
        e("v_add_u32 v%d, s%d, v%d", T + 2 + j, S_T + 2, T + 1)
    c.bg(2)
    c.lg.wait_all()
    e("s_barrier")
    R = 152
    for j in range(1, 4):
        for ft in range(7):
            d = R + (j - 1) * 28 + 4 * ft
            c.lg.issue("ds_read_b128 v[%d:%d], v%d offset:%d" % (d, d + 3, T + 2 + j, (j - 1) * 7168 + ft * 1024), "r%d" % j)
        c.bg(1)
    Z1 = 236
    e("s_lshl_b32 s%d, s%d, 12", S_T + 2, S_W)
    e("s_add_u32 s%d, s%d, 0x%x", S_T + 2, S_T + 2, LDS_Z1)
    e("v_lshlrev_b32 v%d, 3, v%d", T + 6, V_LANE)
    e("v_add_u32 v%d, s%d, v%d", T + 6, S_T + 2, T + 6)
    for ft in range(7):
        c.lg.issue("ds_read_b64 v[%d:%d], v%d offset:%d" % (Z1 + 2 * ft, Z1 + 2 * ft + 1, T + 6, ft * 512), "z1")
    for j in range(1, 4):
        c.lg.wait("r%d" % j)
        for ft in range(7):
            acc = P4_ACC + (ft * 4) * 4
            d = R + (j - 1) * 28 + 4 * ft
            for q in range(2):
                e("v_pk_add_f32 %s, %s, %s", pr(acc + 2 * q), pr(acc + 2 * q), pr(d + 2 * q))
        c.bg(1)
    c.lg.wait_all()

def p4_finish(c):
    e = c.e; a = c.a
    T = 144; Z1 = 236
    c.vm.wait("bias")
    e("v_lshlrev_b32 v%d, 16, v%d", V_BIAS, V_BIAS)
    e("s_lshl_b32 s%d, s%d, 2", S_T, S_MB)
    e("s_add_u32 s%d, s%d, s%d", S_T, S_T, S_W)
    e("s_mul_i32 s%d, s%d, %d", S_T, S_T, 28 * 1024)
    e("s_add_u32 s%d, s%d, 0x%x", S_T, S_T, L.PF)
    e("s_mul_i32 s%d, s%d, 7", S_T + 1, S_NB)
    e("s_lshr_b32 s%d, s%d, 1", S_T + 2, S_T + 1)
    e("s_lshl_b32 s%d, s%d, 10", S_T + 2, S_T + 2)
    e("s_add_u32 s%d, s%d, s%d", S_T, S_T, S_T + 2)
    e("v_lshlrev_b32 v%d, 4, v%d", T + 1, V_LANE)
    O = 152
    for ft in range(7):
        x = P4_ACC + ft * 16
        z = Z1 + 2 * ft; t = T + 2
        e("v_lshlrev_b32 v%d, 16, v%d", t, z)
        e("v_and_b32 v%d, 0xffff0000, v%d", t + 1, z)
        e("v_lshlrev_b32 v%d, 16, v%d", t + 2, z + 1)
        e("v_and_b32 v%d, 0xffff0000, v%d", t + 3, z + 1)
        for r in range(4): e("v_add_f32 v%d, v%d, v%d", x + r, x + r, V_BIAS)
        for q in range(2): e("v_pk_mul_f32 %s, %s, %s", pr(x + 2 * q), pr(x + 2 * q), pr(t + 2 * q))
        e("v_cvt_pk_bf16_f32 v%d, v%d, v%d", O + 2 * ft, x, x + 1)
        e("v_cvt_pk_bf16_f32 v%d, v%d, v%d", O + 2 * ft + 1, x + 2, x + 3)
    odd = a.newlabel("podd"); done = a.newlabel("pdone")
    e("s_bitcmp1_b32 s%d, 0", S_NB)
    e("s_cbranch_scc1 %s", odd)
    txt = lambda src, n, imm: "buffer_store_%s %s, v%d, s[%d:%d], s%d offen offset:%d sc1" % ({2: "dwordx2", 4: "dwordx4"}[n], rr(src, n), T + 1, R_WS, R_WS + 3, S_T, imm)
    for p in range(3): e(txt(O + 4 * p, 4, 1024 * p))
    e(txt(O + 12, 2, 3072))
    e("s_branch %s", done)
    a.label(odd)
    e(txt(O, 2, 8))
    for p in range(3):
        e("v_mov_b32 v%d, v%d", T + 4, O + 2 + 4 * p); e("v_mov_b32 v%d, v%d", T + 5, O + 3 + 4 * p)
        e("v_mov_b32 v%d, v%d", T + 6, O + 4 + 4 * p); e("v_mov_b32 v%d, v%d", T + 7, O + 5 + 4 * p)
        e(txt(T + 4, 4, 1024 * (p + 1)))
        e("s_nop 1")
    a.label(done)
    for _ in range(4): c.vm.q.append("st")

LDS_WO = 0
def p5_wout_ops(c):
    e = c.e
    e("v_lshlrev_b32 v31, 4, v%d", V_LANE)
    e("s_lshr_b32 s58, s%d, 1", S_NB)
    e("s_lshl_b32 s58, s58, 2")
    e("s_add_u32 s58, s58, s%d", S_W)
    e("s_mul_i32 s58, s58, %d", 2 * 28 * 1024)
    e("s_add_u32 s58, s58, 0x%x", L.WOUTF)
    out = []
    for kf in range(28):
        for i in range(2):
            def f(kf=kf, i=i):
                c.e("s_add_u32 s%d, s58, %d", S_X0, (i * 28 + kf) * 1024)
                c.bload(A0 + (kf * 2 + i) * 4, 4, 31, R_WS, S_X0, 0, "wo%d" % (kf // 8), "sc1")
            out.append(f)
    return out

P5_ACC = 32
P5_PF = 48
LDS_P = 0
def p5_main(c):
    e = c.e
    T = 240
    e("v_lshlrev_b32 v%d, 4, v%d", T, V_LANE)
    e("s_lshl_b32 s52, s%d, 2", S_MB)
    e("s_and_b32 s%d, s%d, 1", S_T, S_NB)
    e("s_lshl_b32 s%d, s%d, 1", S_T, S_T)
    e("s_add_u32 s52, s52, s%d", S_T)
    e("s_and_b32 s%d, s%d, 1", S_T, S_W)
    e("s_add_u32 s52, s52, s%d", S_T)
    e("s_mul_i32 s52, s52, 28")
    e("s_mul_i32 s53, s%d, 28", S_T)
    e("s_lshr_b32 s%d, s%d, 1", S_T, S_W)
    e("s_add_u32 s52, s52, s%d", S_T)
    e("s_add_u32 s53, s53, s%d", S_T)
    e("s_lshl_b32 s52, s52, 10")
    e("s_add_u32 s52, s52, 0x%x", L.PF)
    e("s_lshl_b32 s53, s53, 10")
    def pdma(q):
        e("s_add_u32 s%d, s52, %d", S_T, q * 2048)
        c.dma(T, R_WS, S_T, 53, LDS_P + q * 2048, "p%d" % (q // 4), "sc1")
    for q in range(8): pdma(q)
    LA = 3
    def reads(kf):
        f = P5_PF + 8 * (kf & 3)
        return ["ds_read_b128 v[%d:%d], v%d offset:%d" % (f + 4 * u, f + 4 * u + 3, T, LDS_P + (u * 28 + kf) * 1024) for u in range(2)]
    later = list(range(8, 14))
    c.vm.wait("p0", "wo0")
    e("s_barrier")
    for k in range(LA):
        for r in reads(k): c.lg.issue(r, "pf%d" % k)
    for kf in range(28):
        nk = kf + LA
        if nk < 28 and nk % 8 == 0:
            c.vm.wait("p%d" % (nk // 8))
            e("s_barrier")
        if kf % 8 == 0: c.vm.wait("wo%d" % (kf // 8))
        c.lg.wait("pf%d" % kf)
        f = P5_PF + 8 * (kf & 3)
        nxt = reads(nk) if nk < 28 else []
        for u in range(2):
            for i in range(2):
                acc = P5_ACC + 4 * (2 * u + i)
                cc = "0" if kf == 0 else "v[%d:%d]" % (acc, acc + 3)
                e("v_mfma_f32_16x16x32_bf16 v[%d:%d], %s, v[%d:%d], %s", acc, acc + 3, rr(A0 + (kf * 2 + i) * 4, 4), f + 4 * u, f + 4 * u + 3, cc)
            if nxt: c.lg.issue(nxt.pop(0), "pf%d" % nk)
        if later and kf < 6: pdma(later.pop(0))

def p5_epilogue(c):
    e = c.e
    T = 240
    c.nop(8)
    O = 120
    for x in range(4):
        acc = P5_ACC + 4 * x; h = V_HRES + 2 * x; t = 112
        e("v_lshlrev_b32 v%d, 16, v%d", t, h)
        e("v_and_b32 v%d, 0xffff0000, v%d", t + 1, h)
        e("v_lshlrev_b32 v%d, 16, v%d", t + 2, h + 1)
        e("v_and_b32 v%d, 0xffff0000, v%d", t + 3, h + 1)
        for q in range(2):
            e("v_pk_add_f32 %s, %s, %s", pr(acc + 2 * q), pr(acc + 2 * q), pr(t + 2 * q))
        e("v_cvt_pk_bf16_f32 v%d, v%d, v%d", O + 2 * x, acc, acc + 1)
        e("v_cvt_pk_bf16_f32 v%d, v%d, v%d", O + 2 * x + 1, acc + 2, acc + 3)
    c.srd(R_A, P_OUT, 2 << 20)
    e("s_lshl_b32 s%d, s%d, 16", S_T, S_MB)
    e("s_and_b32 s%d, s%d, 1", S_T + 1, S_NB)
    e("s_lshl_b32 s%d, s%d, 15", S_T + 1, S_T + 1)
    e("s_add_u32 s%d, s%d, s%d", S_T, S_T, S_T + 1)
    e("s_lshr_b32 s%d, s%d, 1", S_T + 1, S_NB)
    e("s_lshl_b32 s%d, s%d, 8", S_T + 1, S_T + 1)
    e("s_add_u32 s%d, s%d, s%d", S_T, S_T, S_T + 1)
    e("s_lshl_b32 s%d, s%d, 6", S_T + 1, S_W)
    e("s_add_u32 s%d, s%d, s%d", S_T, S_T, S_T + 1)
    e("v_lshlrev_b32 v%d, 10, v%d", T, V_L16)
    e("v_and_b32 v%d, 1, v%d", T + 1, V_G)
    e("v_lshl_add_u32 v%d, v%d, 5, v%d", T, T + 1, T)
    e("v_lshrrev_b32 v%d, 1, v%d", T + 1, V_G)
    e("v_lshl_add_u32 v%d, v%d, 4, v%d", T, T + 1, T)
    for u in range(2):
        o = O + 4 * u
        if u: e("s_add_u32 s%d, s%d, 16384", S_T, S_T)
        c.nop(2)
        e("v_permlane16_swap_b32 v%d, v%d", o, o + 2)
        e("v_permlane16_swap_b32 v%d, v%d", o + 1, o + 3)
        c.bstore(o, 4, T, R_A, S_T, 0, "out", c.opt.get("outflag", ""))

def touch_wsp(c, dd0, ndd, wq=S_W, tracked=True, V=145):
    e = c.e
    e("s_lshl_b32 s%d, s%d, 18", S_T, S_MB)
    e("s_and_b32 s%d, s%d, 3", S_T + 1, S_NB)
    e("s_lshl_b32 s%d, s%d, 16", S_T + 1, S_T + 1)
    e("s_add_u32 s%d, s%d, s%d", S_T, S_T, S_T + 1)
    e("s_lshl_b32 s%d, s%d, 10", S_T + 1, wq)
    e("s_add_u32 s%d, s%d, s%d", S_T, S_T, S_T + 1)
    c.srd(R_C, P_WSP, 8 << 20)
    e("s_lshr_b32 s%d, s%d, 1", S_T + 1, S_ROTZ)
    e("s_add_u32 s%d, s%d, %d", S_T + 1, S_T + 1, dd0)
    e("v_add_u32 v%d, s%d, v%d", V + 1, S_T + 1, V_G)
    e("v_and_b32 v%d, 7, v%d", V + 1, V + 1)
    e("v_lshlrev_b32 v%d, 12, v%d", V, V_L16)
    e("v_lshl_add_u32 v%d, v%d, 7, v%d", V, V + 1, V)
    e("v_cmp_gt_u32 vcc, %d, v%d", ndd, V_G)
    e("v_mov_b32 v%d, 0x40000000", V + 1)
    e("s_nop 0")
    e("v_cndmask_b32 v%d, v%d, v%d, vcc", V, V + 1, V)
    if tracked: c.bload(V_BIAS, 1, V, R_C, S_T, 0, "touch", c.opt.get("nttouch", ""))
    else: e("buffer_load_dword v%d, v%d, s[%d:%d], s%d offen", V_BIAS, V, R_C, R_C + 3, S_T)

def touch_z2n(c):
    e = c.e
    e("s_lshl_b32 s%d, s%d, 6", S_T, S_NB)
    e("s_lshl_b32 s%d, s%d, 4", S_T + 1, S_W)
    e("s_add_u32 s%d, s%d, s%d", S_T, S_T, S_T + 1)
    e("s_and_b32 s%d, s%d, 7", S_T + 1, S_MB)
    e("s_lshl_b32 s%d, s%d, 1", S_T + 1, S_T + 1)
    e("s_add_u32 s%d, s%d, s%d", S_T, S_T, S_T + 1)
    e("s_mul_i32 s%d, s%d, 7168", S_T, S_T)
    e("s_add_u32 s%d, s%d, 0x%x", S_T, S_T, L.Z2N)
    e("v_lshlrev_b32 v2, 7, v%d", V_LANE)
    c.bload(31, 1, 2, R_WS, S_T, 0, "touch", c.opt.get("zflag", "sc1"))
    e("v_add_u32 v2, 0x2000, v2")
    e("v_cmp_gt_u32 vcc, 48, v%d", V_LANE)
    e("v_mov_b32 v3, 0x40000000")
    e("s_nop 0")
    e("v_cndmask_b32 v2, v3, v2, vcc")
    c.bload(31, 1, 2, R_WS, S_T, 0, "touch", c.opt.get("zflag", "sc1"))
```

```python
from core import *
import ph12

pr = lambda r: "v[%d:%d]" % (r, r + 1)
A0 = 256

LDS_WP = 83968
LDS_WOP = 83968 + 7168
def wpre_issue(c):
    e = c.e
    V = 240
    c.srd(R_A, P_WIN, 512 * 3584)
    e("s_and_b32 s%d, s2, 15", S_T)
    e("s_mul_i32 s%d, s%d, %d", S_T, S_T, 32 * 3584)
    e("s_lshr_b32 s%d, s2, 4", S_T + 1)
    e("s_mul_i32 s%d, s%d, 224", S_T + 1, S_T + 1)
    e("s_add_u32 s%d, s%d, s%d", S_T + 4, S_T, S_T + 1)
    for it in range(2):
        e("s_add_u32 s%d, s%d, %d", S_T, S_W, 4 * it)
        e("s_lshl_b32 s%d, s%d, 6", S_T + 1, S_T)
        e("v_add_u32 v%d, s%d, v%d", V, S_T + 1, V_LANE)
        e("v_mul_u32_u24 v%d, 4682, v%d", V + 1, V)
        e("v_lshrrev_b32 v%d, 16, v%d", V + 1, V + 1)
        e("v_mul_u32_u24 v%d, 14, v%d", V + 2, V + 1)
        e("v_sub_u32 v%d, v%d, v%d", V + 2, V, V + 2)
        e("v_mul_u32_u24 v%d, 3584, v%d", V + 1, V + 1)
        e("v_lshl_add_u32 v%d, v%d, 4, v%d", V + 1, V + 2, V + 1)
        e("v_cmp_gt_u32 vcc, 448, v%d", V)
        e("v_mov_b32 v%d, 0x40000000", V + 2)
        e("s_lshl_b32 s%d, s%d, 10", S_T + 1, S_T)
        e("v_cndmask_b32 v%d, v%d, v%d, vcc", V + 3 + it, V + 2, V + 1)
        e("s_cmp_eq_u32 s%d, 7", S_T)
        e("s_cselect_b32 s%d, 0x3000, s%d", S_T + 1, S_T + 1)
        c.dma(V + 3 + it, R_A, S_T + 4, S_T + 1, LDS_WP, "wp", c.opt.get("nt", ""))
    c.srd(R_B, P_WOUT, 896 * 1024)
    e("s_mul_i32 s%d, s2, 2341", S_T)
    e("s_lshr_b32 s%d, s%d, 16", S_T, S_T)
    e("s_mul_i32 s%d, s%d, 28", S_T + 1, S_T)
    e("s_sub_u32 s%d, s2, s%d", S_T + 1, S_T + 1)
    e("s_lshl_b32 s%d, s%d, 15", S_T + 2, S_T + 1)
    e("s_lshl_b32 s%d, s%d, 7", S_T + 3, S_T)
    e("s_add_u32 s%d, s%d, s%d", S_T + 2, S_T + 2, S_T + 3)
    e("s_lshl_b32 s%d, s%d, 13", S_T + 3, S_W)
    e("s_add_u32 s%d, s%d, s%d", S_T + 2, S_T + 2, S_T + 3)
    e("s_cmp_ge_u32 s2, 224")
    e("s_cselect_b32 s%d, 0x40000000, s%d", S_T + 2, S_T + 2)
    e("v_lshrrev_b32 v%d, 3, v%d", V, V_LANE)
    e("v_lshlrev_b32 v%d, 10, v%d", V, V)
    e("v_and_b32 v%d, 7, v%d", V + 1, V_LANE)
    e("v_lshlrev_b32 v%d, 1, v%d", V + 2, V_G)
    e("v_xor_b32 v%d, v%d, v%d", V + 1, V + 1, V + 2)
    e("v_lshl_add_u32 v%d, v%d, 4, v%d", V, V + 1, V)
    e("s_lshl_b32 s%d, s%d, 10", S_T + 3, S_W)
    c.dma(V, R_B, S_T + 2, S_T + 3, LDS_WOP, "wp", c.opt.get("nt", ""))

def wpre_store3(c):
    e = c.e; a = c.a
    V = 240; F = 176
    e("v_lshrrev_b32 v%d, 2, v%d", V, V_L16)
    e("v_lshl_add_u32 v%d, v%d, 2, v%d", V, V_G, V)
    e("v_mul_u32_u24 v%d, 224, v%d", V + 1, V)
    e("v_and_b32 v%d, 3, v%d", V + 2, V_LANE)
    e("v_lshl_add_u32 v%d, v%d, 3, v%d", V + 1, V + 2, V + 1)
    e("v_add_u32 v%d, 0x%x, v%d", V + 1, LDS_WP, V + 1)
    e("v_lshlrev_b32 v%d, 7, v%d", V + 2, V)
    e("v_and_b32 v%d, 1, v%d", V + 3, V_LANE)
    e("v_lshl_add_u32 v%d, v%d, 3, v%d", V + 2, V + 3, V + 2)
    e("v_bfe_u32 v%d, v%d, 1, 1", V + 3, V_LANE)
    e("v_lshl_add_u32 v%d, v%d, 4, v%d", V + 2, V + 3, V + 2)
    e("v_add_u32 v%d, 0x%x, v%d", V + 2, LDS_WOP, V + 2)
    e("v_and_b32 v%d, 1, v%d", V + 3, V_G)
    e("v_lshlrev_b32 v%d, 2, v%d", V + 3, V + 3)
    e("v_bfe_u32 v%d, v%d, 3, 1", V, V_LANE)
    e("v_lshl_add_u32 v%d, v%d, 1, v%d", V + 3, V, V + 3)
    e("v_lshlrev_b32 v%d, 4, v%d", V, V_LANE)
    e("s_lshr_b32 s52, s2, 4")
    e("s_mul_i32 s52, s52, 112")
    e("s_and_b32 s%d, s2, 15", S_T)
    e("s_add_u32 s52, s52, s%d", S_T)
    e("s_lshl_b32 s52, s52, 10")
    e("s_add_u32 s52, s52, 0x%x", L.WINF)
    e("s_mul_i32 s%d, s2, 2341", S_T)
    e("s_lshr_b32 s%d, s%d, 16", S_T, S_T)
    e("s_mul_i32 s%d, s%d, 28", S_T + 1, S_T)
    e("s_sub_u32 s%d, s2, s%d", S_T + 1, S_T + 1)
    e("s_mul_i32 s53, s%d, 112", S_T)
    e("s_add_u32 s53, s53, s%d", S_T + 1)
    e("s_lshl_b32 s53, s53, 10")
    e("s_add_u32 s53, s53, 0x%x", L.WOUTF)
    e("s_cmp_ge_u32 s2, 224")
    e("s_cselect_b32 s53, 0x40000000, s53")
    e("s_sub_u32 s54, s%d, 1", S_W)
    e("s_lshl_b32 s54, s54, 2")
    e("s_cmp_eq_u32 s%d, 0", S_W)
    e("s_cselect_b32 s54, 11, s54")
    for sl in range(4):
        isw = a.newlabel("wq"); done = a.newlabel("wqd")
        f = F + 4 * sl
        e("s_add_u32 s55, s54, %d", sl)
        e("s_cmp_lt_u32 s55, 7")
        e("s_cbranch_scc1 %s", isw)
        e("s_sub_u32 s55, s55, 7")
        e("s_lshl_b32 s%d, s55, 1", S_T)
        e("s_and_b32 s%d, s%d, 7", S_T, S_T)
        e("v_xor_b32 v%d, s%d, v%d", V + 4, S_T, V + 3)
        e("v_lshl_add_u32 v%d, v%d, 4, v%d", V + 4, V + 4, V + 2)
        e("ds_read_b64_tr_b16 v[%d:%d], v%d", f, f + 1, V + 4)
        e("ds_read_b64_tr_b16 v[%d:%d], v%d offset:2048", f + 2, f + 3, V + 4)
        e("s_mul_i32 s%d, s55, %d", S_T, 28 * 1024)
        e("s_add_u32 s%d, s%d, s53", S_T, S_T)
        e("s_cmp_ge_u32 s55, 4")
        e("s_cselect_b32 s%d, 0x40000000, s%d", S_T, S_T)
        e("s_branch %s", done)
        a.label(isw)
        e("s_lshl_b32 s%d, s55, 5", S_T)
        e("v_add_u32 v%d, s%d, v%d", V + 4, S_T, V + 1)
        e("ds_read_b64_tr_b16 v[%d:%d], v%d", f, f + 1, V + 4)
        e("ds_read_b64_tr_b16 v[%d:%d], v%d offset:%d", f + 2, f + 3, V + 4, 16 * 224)
        e("s_lshl_b32 s%d, s55, 14", S_T)
        e("s_add_u32 s%d, s%d, s52", S_T, S_T)
        a.label(done)
        e("s_waitcnt lgkmcnt(0)")
        c.bstore(f, 4, V, R_WS, S_T, 0, "wst", "sc1")

class WLoader:
    V0, V1 = 240, 241
    S0 = 58
    def __init__(self, c):
        self.c = c; self.issued = 0
    def setup(self):
        c = self.c; e = c.e
        e("v_lshlrev_b32 v%d, 4, v%d", self.V0, V_LANE)
        e("v_add_u32 v%d, 0x40000000, v%d", self.V1, self.V0)
        e("s_cmp_eq_u32 s%d, 3", S_W)
        e("s_cselect_b64 vcc, -1, 0")
        e("v_cndmask_b32 v%d, v%d, v%d, vcc", self.V1, self.V0, self.V1)
        e("s_mul_i32 s59, s%d, 7", S_NB)
        e("s_lshl_b32 s%d, s%d, 1", S_T, S_W)
        e("s_add_u32 s59, s59, s%d", S_T)
        e("s_lshl_b32 s59, s59, 14")
        e("s_add_u32 s59, s59, 0x%x", L.WINF)
        e("s_add_u32 s58, s59, %d", 56 * 16384)
    def loads(self, k0, k1):
        c = self.c; out = []
        for ks in range(k0, k1):
            for slot in range(4):
                def f(ks=ks, slot=slot):
                    base = 58 if slot < 2 else 59
                    if slot == 0:
                        c.e("s_add_u32 s%d, s%d, %d", S_X0, S_ROT, ks)
                        c.e("s_and_b32 s%d, s%d, 15", S_X0, S_X0)
                        c.e("s_lshl_b32 s%d, s%d, 10", S_X0, S_X0)
                    c.e("s_add_u32 s%d, s%d, s%d", S_T, base, S_X0)
                    if slot & 1: c.e("s_add_u32 s%d, s%d, 16384", S_T, S_T)
                    c.bload(A0 + (ks * 4 + slot) * 4, 4, self.V1 if (slot & 1) else self.V0, R_WS, S_T, 0, "W%d" % ks, "sc1")
                out.append(f)
        return out
    def colsum_prep(self):
        for r in range(4): self.c.e("v_mov_b32 v%d, 0x3f803f80", 244 + r)
        self.c.nop(2)
    def colsum(self, k0, k1):
        c = self.c; e = c.e
        c.vm.wait("W%d" % (k1 - 1))
        for ks in range(k0, k1):
            for slot in range(4):
                cc = "0" if ks == 0 else "v[%d:%d]" % (V_CS + 4 * slot, V_CS + 4 * slot + 3)
                e("v_mfma_f32_16x16x32_bf16 v[%d:%d], %s, v[244:247], %s", V_CS + 4 * slot, V_CS + 4 * slot + 3, rr(A0 + (ks * 4 + slot) * 4, 4), cc)

LDS_H = 0
LDS_WSPST = 0
LDS_ZT = 16384
LDS_ZS = 36864
LDS_HST = 126976
LDS_ZROW = 45056
LDS_Z1 = 0
LDS_RED4 = 65536

P3_ACC = 32
P3_HF = 96
P3_AS, P3_AG = 128, 132
P3_RD = 136
P3_ONE = 140

def p3_issue_h(c):
    e = c.e
    V = 148
    e("v_lshrrev_b32 v%d, 3, v%d", V, V_LANE)
    e("v_lshlrev_b32 v%d, 12, v%d", V, V)
    e("v_and_b32 v%d, 7, v%d", V + 1, V_LANE)
    e("v_lshlrev_b32 v%d, 1, v%d", V + 2, V_G)
    e("v_xor_b32 v%d, v%d, v%d", V + 1, V + 1, V + 2)
    e("v_lshl_add_u32 v%d, v%d, 4, v%d", V, V + 1, V)
    e("s_lshl_b32 s60, s%d, 7", S_MB)
    e("s_add_u32 s60, s60, 0x%x", L.HT)
    e("s_lshl_b32 s61, s%d, 12", S_W)
    ops = []
    for ch in range(4):
        for i in range(4):
            def f(ch=ch, i=i):
                if i == 0:
                    e("s_add_u32 s62, s%d, %d", S_W, 4 * ch)
                    e("s_add_u32 s62, s62, s%d", S_ROT)
                    e("s_and_b32 s62, s62, 15")
                    e("s_lshl_b32 s62, s62, 17")
                    e("s_add_u32 s62, s62, s60")
                e("s_add_u32 s%d, s62, 0x%x", S_T, 8 * i * 4096)
                c.dma(V, R_WS, S_T, 61, LDS_H + ch * 16384 + i * 1024, "h%d" % ch, "sc1")
            ops.append(f)
    return ops

def h_addr(c, dst, jrot):
    pass

def p3_setup(c):
    e = c.e
    T = 144
    e("v_lshrrev_b32 v%d, 2, v%d", T, V_L16)
    e("v_lshl_add_u32 v%d, v%d, 2, v%d", T + 1, V_G, T)
    e("v_lshlrev_b32 v%d, 7, v%d", T + 1, T + 1)
    e("v_and_b32 v%d, 1, v%d", T + 2, V_LANE)
    e("v_lshl_add_u32 v%d, v%d, 3, v%d", T + 1, T + 2, T + 1)
    e("v_bfe_u32 v%d, v%d, 1, 1", T + 2, V_LANE)
    e("v_lshl_add_u32 v%d, v%d, 4, v%d", T + 1, T + 2, T + 1)
    e("v_and_b32 v%d, 1, v%d", T + 2, V_G)
    e("v_lshlrev_b32 v%d, 2, v%d", T + 2, T + 2)
    e("v_lshrrev_b32 v%d, 1, v%d", T + 3, T)
    e("v_lshl_add_u32 v%d, v%d, 1, v%d", T + 2, T + 3, T + 2)
    for j in range(4):
        e("s_add_u32 s%d, s%d, %d", S_T, S_W, j)
        e("s_and_b32 s%d, s%d, 3", S_T, S_T)
        e("s_lshl_b32 s%d, s%d, 1", S_T, S_T)
        e("v_xor_b32 v%d, s%d, v%d", T + 3, S_T, T + 2)
        e("v_lshl_add_u32 v%d, v%d, 4, v%d", P3_RD + j, T + 3, T + 1)
    for r in range(4): e("v_mov_b32 v%d, 0x3f803f80", P3_ONE + r)

P3_SF = 164
def p3_main(c, hooks=None, inter=None, late_cs=16):
    e = c.e; hooks = hooks or {}; inter = inter or {}
    def reads(ks):
        f = P3_HF + 16 * (ks & 1); out = []
        for j in range(4):
            for hh in range(2):
                out.append("ds_read_b64_tr_b16 v[%d:%d], v%d offset:%d" % (f + 4 * j + 2 * hh, f + 4 * j + 2 * hh + 1, P3_RD + j, LDS_H + ks * 4096 + hh * 2048))
        return out
    def sreads(kk):
        f = P3_SF + 4 * (kk & 7)
        return ["ds_read_b64_tr_b16 v[%d:%d], v%d offset:%d" % (f + 2 * hh, f + 2 * hh + 1, P3_RD, LDS_H + kk * 4096 + hh * 2048) for hh in range(2)]
    def smfma(kk):
        f = P3_SF + 4 * (kk & 7)
        cs = "0" if kk == 0 else "v[%d:%d]" % (P3_AS, P3_AS + 3)
        cg = "0" if kk == 0 else "v[%d:%d]" % (P3_AG, P3_AG + 3)
        e("v_mfma_f32_16x16x32_bf16 v[%d:%d], v[%d:%d], v[%d:%d], %s", P3_AS, P3_AS + 3, P3_ONE, P3_ONE + 3, f, f + 3, cs)
        e("v_mfma_f32_16x16x32_bf16 v[%d:%d], v[%d:%d], v[%d:%d], %s", P3_AG, P3_AG + 3, f, f + 3, f, f + 3, cg)
    for ks in range(16):
        if ks == 0:
            c.vm.wait("h0")
            c.lg.wait_all()
            e("s_barrier")
            for r in reads(0): c.lg.issue(r, "hf0")
        if ks == 3:
            c.vm.wait("h3")
            e("s_barrier")
        c.vm.wait("W%d" % ks)
        c.lg.wait("hf%d" % ks)
        if 4 <= ks <= 7: c.lg.wait("sf%d" % ks)
        if ks in (1, 4, 10): c.fine("p3k%d" % ks)
        f = P3_HF + 16 * (ks & 1)
        nxt = [(r, "hf%d" % (ks + 1)) for r in reads(ks + 1)] if ks < 15 else []
        if 3 <= ks <= 6:
            i = ks - 3
            nxt = nxt + [(r, "sf%d" % (ks + 1)) for kk in range(4 * i, 4 * i + 4) for r in sreads(kk)]
        ops = list(inter.get(ks, []))
        m = 0
        for slot in range(4):
            for j in range(4):
                acc = P3_ACC + (slot * 4 + j) * 4
                cc = "0" if ks == 0 else "v[%d:%d]" % (acc, acc + 3)
                e("v_mfma_f32_16x16x32_bf16 v[%d:%d], %s, v[%d:%d], %s", acc, acc + 3, rr(A0 + (ks * 4 + slot) * 4, 4), f + 4 * j, f + 4 * j + 3, cc)
                if nxt:
                    r, t = nxt.pop(0); c.lg.issue(r, t)
                if m % 4 == 1 and ops: ops.pop(0)()
                m += 1
        while nxt:
            r, t = nxt.pop(0); c.lg.issue(r, t)
        while ops: ops.pop(0)()
        if 4 <= ks <= 7:
            i = ks - 4
            for kk in range(4 * i, 4 * i + 4): smfma(kk)
        if ks >= late_cs:
            for slot in range(4):
                e("v_mfma_f32_16x16x32_bf16 v[%d:%d], %s, v[244:247], v[%d:%d]", V_CS + 4 * slot, V_CS + 4 * slot + 3, rr(A0 + (ks * 4 + slot) * 4, 4), V_CS + 4 * slot, V_CS + 4 * slot + 3)
        if ks == 8: p3_hstats_a(c)
        if ks == 9: p3_hstats_b(c)
        if ks in hooks: hooks[ks]()
    e("s_lshr_b32 s%d, s%d, 1", S_T, S_NB)
    e("s_lshl_b32 s%d, s%d, 2", S_T, S_T)
    e("s_add_u32 s%d, s%d, s%d", S_T, S_T, S_W)
    e("s_sub_u32 s%d, s%d, s%d", S_T, S_T, S_ROT)
    e("s_and_b32 s%d, s%d, 15", S_T, S_T)
    e("s_lshl_b32 s%d, s%d, 12", S_T, S_T)
    for u in range(2):
        e("s_and_b32 s%d, s%d, 1", S_T + 1, S_NB)
        e("s_lshl_b32 s%d, s%d, 1", S_T + 1, S_T + 1)
        e("s_add_u32 s%d, s%d, %d", S_T + 1, S_T + 1, u)
        e("s_xor_b32 s%d, s%d, s%d", S_T + 1, S_T + 1, S_W)
        e("s_lshl_b32 s%d, s%d, 5", S_T + 1, S_T + 1)
        e("v_xor_b32 v%d, s%d, v%d", 144 + u, S_T + 1, P3_RD)
        e("v_add_u32 v%d, s%d, v%d", 144 + u, S_T, 144 + u)
    for u in range(2):
        for i in range(2):
            x = 2 * u + i
            c.lg.issue("ds_read_b64_tr_b16 v[%d:%d], v%d offset:%d" % (V_HRES + 2 * x, V_HRES + 2 * x + 1, 144 + u, LDS_H + i * 2048), "hres")

LDS_HST2 = 163840 - 512
def p3_hstats_a(c):
    e = c.e
    T = 144
    e("v_and_b32 v%d, 3, v%d", T, V_L16)
    e("v_cmp_eq_u32 vcc, 1, v%d", T)
    e("v_cmp_eq_u32 s[%d:%d], 2, v%d", S_T + 2, S_T + 3, T)
    e("v_cmp_eq_u32 s[%d:%d], 3, v%d", S_T + 4, S_T + 5, T)
    e("v_cndmask_b32 v%d, v%d, v%d, vcc", T + 1, P3_AG, P3_AG + 1)
    e("v_cndmask_b32 v%d, v%d, v%d, s[%d:%d]", T + 1, T + 1, P3_AG + 2, S_T + 2, S_T + 3)
    e("v_cndmask_b32 v%d, v%d, v%d, s[%d:%d]", T + 1, T + 1, P3_AG + 3, S_T + 4, S_T + 5)
    e("v_mul_f32 v%d, 0x3b000000, v%d", T + 2, P3_AS)
    e("v_mul_f32 v%d, 0x3b000000, v%d", T + 1, T + 1)
    e("v_fma_f32 v%d, -v%d, v%d, v%d", T + 1, T + 2, T + 2, T + 1)
    e("v_max_f32 v%d, 0, v%d", T + 1, T + 1)
    e("v_add_f32 v%d, 0x3727c5ac, v%d", T + 1, T + 1)
    e("v_rsq_f32 v%d, v%d", T + 4, T + 1)
    e("v_lshrrev_b32 v%d, 2, v%d", T + 3, V_L16)
    e("v_mul_f32 v%d, v%d, v%d", T + 5, T + 4, T + 2)
    e("v_cmp_eq_u32 vcc, v%d, v%d", T + 3, V_G)
    e("s_lshl_b32 s%d, s%d, 7", S_T, S_W)
    e("s_add_u32 s%d, s%d, 0x%x", S_T, S_T, LDS_HST2)
    e("v_lshlrev_b32 v%d, 3, v%d", T + 3, V_L16)
    e("v_add_u32 v%d, s%d, v%d", T + 3, S_T, T + 3)
    e("s_and_saveexec_b64 s[%d:%d], vcc", S_T + 2, S_T + 3)
    c.lg.issue("ds_write_b64 v%d, v[%d:%d]" % (T + 3, T + 4, T + 5), "hs")
    e("s_mov_b64 exec, s[%d:%d]", S_T + 2, S_T + 3)

def p3_hstats_b(c):
    e = c.e
    T = 144
    c.lg.wait("hs")
    e("s_barrier")
    e("v_lshlrev_b32 v%d, 3, v%d", T + 3, V_L16)
    for j in range(4):
        e("s_add_u32 s%d, s%d, %d", S_T, S_W, j)
        e("s_and_b32 s%d, s%d, 3", S_T, S_T)
        e("s_lshl_b32 s%d, s%d, 7", S_T, S_T)
        e("s_add_u32 s%d, s%d, 0x%x", S_T, S_T, LDS_HST2)
        e("v_add_u32 v%d, s%d, v%d", T + 4, S_T, T + 3)
        c.lg.issue("ds_read_b64 v[%d:%d], v%d" % (150 + 2 * j, 151 + 2 * j, T + 4), "hs2")

GC0, GC1 = 60, 62
def gelu_consts(c):
    import struct
    f2u = lambda x: struct.unpack("<I", struct.pack("<f", x))[0]
    k = -2.0 * 0.7978845608028654 * 1.4426950408889634
    c.e("s_mov_b32 s60, 0x%x", f2u(k)); c.e("s_mov_b32 s61, 0x%x", f2u(k))
    c.e("s_mov_b32 s62, 0x%x", f2u(k * 0.044715)); c.e("s_mov_b32 s63, 0x%x", f2u(k * 0.044715))

def gelu_tile(c, acc, slot, j, T, nbg=0):
    e = c.e
    R = 150 + 2 * j
    if nbg >= 1: c.bg(1)
    for q in range(2):
        x = acc + 2 * q; cs = V_CS + 4 * slot + 2 * q; t = T + 8 * q
        e("v_pk_mul_f32 %s, %s, %s op_sel:[0,1] op_sel_hi:[1,1]", pr(t), pr(cs), pr(R))
    for q in range(2):
        x = acc + 2 * q; t = T + 8 * q
        e("v_pk_fma_f32 %s, %s, %s, %s op_sel_hi:[1,0,1] neg_lo:[0,0,1] neg_hi:[0,0,1]", pr(x), pr(x), pr(R), pr(t))
    for q in range(2):
        x = acc + 2 * q; t = T + 8 * q
        e("v_pk_mul_f32 %s, %s, %s", pr(t), pr(x), pr(x))
    for q in range(2):
        x = acc + 2 * q; t = T + 8 * q
        e("v_pk_fma_f32 %s, %s, s[62:63], %s", pr(t), pr(t), pr(t + 2))
    for q in range(2):
        x = acc + 2 * q; t = T + 8 * q
        e("v_pk_mul_f32 %s, %s, %s", pr(t), pr(t), pr(x))
    for q in range(2):
        t = T + 8 * q
        e("v_exp_f32 v%d, v%d", t, t); e("v_exp_f32 v%d, v%d", t + 1, t + 1)
    if nbg >= 2: c.bg(1)
    else: e("s_nop 0")
    e("s_nop 0")
    for q in range(2):
        t = T + 8 * q
        e("v_pk_add_f32 %s, %s, %s", pr(t), pr(t), pr(t + 4))
    for q in range(2):
        t = T + 8 * q
        e("v_rcp_f32 v%d, v%d", t, t); e("v_rcp_f32 v%d, v%d", t + 1, t + 1)
    if nbg >= 3: c.bg(1)
    e("s_nop 0")
    for q in range(2):
        x = acc + 2 * q; t = T + 8 * q
        e("v_pk_mul_f32 %s, %s, %s", pr(x), pr(x), pr(t))

def gelu_tile_bg(c, acc, slot, j, T, nbg):
    gelu_tile(c, acc, slot, j, T, nbg)

def gelu_setup(c, T):
    e = c.e
    gelu_consts(c)
    for q in range(2):
        t = T + 8 * q
        e("v_mov_b32 v%d, s60", t + 2); e("v_mov_b32 v%d, s60", t + 3)
        e("v_mov_b32 v%d, 1.0", t + 4); e("v_mov_b32 v%d, 1.0", t + 5)

def p3_z2_gelu_publish(c):
    e = c.e
    T = 160
    gelu_setup(c, T)
    SUM = 176
    for j in range(4):
        for slot in range(2):
            acc = P3_ACC + (slot * 4 + j) * 4
            gelu_tile_bg(c, acc, slot, j, T, 3)
            s0, q0 = SUM + 4 * j, SUM + 4 * j + 2
            if slot == 0:
                e("v_pk_add_f32 %s, %s, %s", pr(s0), pr(acc), pr(acc + 2))
                e("v_pk_mul_f32 %s, %s, %s", pr(q0), pr(acc), pr(acc))
            else:
                e("v_pk_add_f32 %s, %s, %s", pr(s0), pr(s0), pr(acc))
                e("v_pk_add_f32 %s, %s, %s", pr(s0), pr(s0), pr(acc + 2))
                e("v_pk_fma_f32 %s, %s, %s, %s", pr(q0), pr(acc), pr(acc), pr(q0))
            e("v_pk_fma_f32 %s, %s, %s, %s", pr(q0), pr(acc + 2), pr(acc + 2), pr(q0))
    c.lg.wait_all()
    e("s_barrier")
    e("s_lshl_b32 s%d, s%d, 11", S_T + 1, S_W)
    e("s_add_u32 s%d, s%d, 0x%x", S_T + 1, S_T + 1, LDS_ZS)
    e("v_lshlrev_b32 v%d, 9, v%d", T, V_G)
    e("v_lshl_add_u32 v%d, v%d, 3, v%d", T, V_L16, T)
    e("v_add_u32 v%d, s%d, v%d", T, S_T + 1, T)
    for j in range(4):
        s0, q0 = SUM + 4 * j, SUM + 4 * j + 2
        e("v_add_f32 v%d, v%d, v%d", s0, s0, s0 + 1)
        e("v_add_f32 v%d, v%d, v%d", s0 + 1, q0, q0 + 1)
        e("s_add_u32 s%d, s%d, %d", S_T, S_W, j)
        e("s_and_b32 s%d, s%d, 3", S_T, S_T)
        e("s_lshl_b32 s%d, s%d, 7", S_T, S_T)
        e("v_add_u32 v%d, s%d, v%d", T + 1, S_T, T)
        c.lg.issue("ds_write_b64 v%d, v[%d:%d]" % (T + 1, s0, s0 + 1))
    c.lg.wait_all()
    e("s_barrier")
    e("s_lshl_b32 s%d, s%d, 7", S_T, S_W)
    e("s_add_u32 s%d, s%d, 0x%x", S_T, S_T, LDS_ZS)
    e("v_lshlrev_b32 v%d, 9, v%d", T, V_G)
    e("v_lshl_add_u32 v%d, v%d, 3, v%d", T, V_L16, T)
    e("v_add_u32 v%d, s%d, v%d", T, S_T, T)
    for w in range(4):
        c.lg.issue("ds_read_b64 v[%d:%d], v%d offset:%d" % (SUM + 2 * w, SUM + 2 * w + 1, T, w * 2048))
    c.lg.wait_all()
    e("v_pk_add_f32 %s, %s, %s", pr(SUM), pr(SUM), pr(SUM + 2))
    e("v_pk_add_f32 %s, %s, %s", pr(SUM + 4), pr(SUM + 4), pr(SUM + 6))
    e("v_pk_add_f32 %s, %s, %s", pr(SUM), pr(SUM), pr(SUM + 4))
    for swap in ("v_permlane16_swap_b32", "v_permlane32_swap_b32"):
        e("v_mov_b32 v%d, v%d", SUM + 2, SUM)
        e("v_mov_b32 v%d, v%d", SUM + 3, SUM + 1)
        c.nop(2)
        e("%s v%d, v%d", swap, SUM, SUM + 2)
        e("%s v%d, v%d", swap, SUM + 1, SUM + 3)
        c.nop(1)
        e("v_pk_add_f32 %s, %s, %s", pr(SUM), pr(SUM), pr(SUM + 2))
    e("s_lshl_b32 s%d, s%d, 3", S_T, S_MB)
    e("s_add_u32 s%d, s%d, s%d", S_T, S_T, S_NB)
    e("s_lshl_b32 s%d, s%d, 9", S_T, S_T)
    e("s_lshl_b32 s%d, s%d, 7", S_T + 1, S_W)
    e("s_add_u32 s%d, s%d, s%d", S_T, S_T, S_T + 1)
    e("s_add_u32 s%d, s%d, 0x%x", S_T, S_T, L.ZST)
    e("v_lshlrev_b32 v%d, 3, v%d", T, V_L16)
    e("s_mov_b64 s[%d:%d], exec", S_T + 2, S_T + 3)
    e("s_mov_b64 exec, 0xffff")
    c.bstore(SUM, 2, T, R_WS, S_T, 0, "zst", "sc1")
    e("s_mov_b64 exec, s[%d:%d]", S_T + 2, S_T + 3)

def p3_z1_gelu(c):
    e = c.e
    T = 160
    e("v_lshlrev_b32 v176, 3, v%d", V_LANE)
    e("s_lshl_b32 s%d, s%d, 10", S_T + 1, S_W)
    e("s_add_u32 s%d, s%d, 0x%x", S_T + 1, S_T + 1, LDS_Z1)
    e("v_add_u32 v176, s%d, v176", S_T + 1)
    for j in range(4):
        e("s_add_u32 s%d, s%d, %d", S_T, S_W, j)
        e("s_and_b32 s%d, s%d, 3", S_T, S_T)
        e("s_lshl_b32 s%d, s%d, 12", S_T, S_T)
        e("v_add_u32 v177, s%d, v176", S_T)
        for sl in range(2):
            slot = 2 + sl
            acc = P3_ACC + (slot * 4 + j) * 4
            gelu_tile_bg(c, acc, slot, j, T, 3)
            e("v_cvt_pk_bf16_f32 v%d, v%d, v%d", acc, acc, acc + 1)
            e("v_cvt_pk_bf16_f32 v%d, v%d, v%d", acc + 1, acc + 2, acc + 3)
            c.lg.issue("ds_write_b64 v177, v[%d:%d] offset:%d" % (acc, acc + 1, sl * 512))
            if c.opt.get("zearly", 1) and 2 * j + sl + 1 == c.opt.get("zat", 6): p3_zst_early(c)

def p3_zst_early(c):
    e = c.e
    G = 180
    e("v_lshlrev_b32 v198, 3, v%d", V_LANE)
    e("s_lshl_b32 s%d, s%d, 12", S_T, S_MB)
    e("s_add_u32 s%d, s%d, 0x%x", S_T, S_T, L.ZST)
    for n in range(8):
        c.bload(G + 2 * n, 2, 198, R_WS, S_T, 512 * n, "zq", "sc1")

def p3_z2_finish(c):
    e = c.e; a = c.a
    T = 160; G = 180
    if not c.opt.get("zearly", 1): e("v_lshlrev_b32 v198, 3, v%d", V_LANE)
    e("v_lshlrev_b32 v%d, 3, v%d", T, V_LANE)
    loop = a.newlabel("zp"); done = a.newlabel("zpd"); chk = a.newlabel("zpc")
    e("s_mov_b32 s%d, 0", S_T + 1)
    if c.opt.get("zearly", 1):
        c.vm.wait("zq")
        e("s_branch %s", chk)
    a.label(loop)
    e("s_lshl_b32 s%d, s%d, 12", S_T, S_MB)
    e("s_add_u32 s%d, s%d, 0x%x", S_T, S_T, L.ZST)
    for n in range(8):
        e("buffer_load_dwordx2 v[%d:%d], v%d, s[%d:%d], s%d offen offset:%d sc1", G + 2 * n, G + 2 * n + 1, 198, R_WS, R_WS + 3, S_T, 512 * n)
    e("s_waitcnt vmcnt(0)")
    a.label(chk)
    e("v_min_f32 v%d, v%d, v%d", T + 1, G + 1, G + 3)
    for n in range(2, 8):
        e("v_min_f32 v%d, v%d, v%d", T + 1, T + 1, G + 2 * n + 1)
    if "Z" in c.opt.get("nopoll", ()): e("v_cmp_gt_f32 vcc, v%d, v%d", T + 1, T + 1)
    else: e("v_cmp_gt_f32 vcc, 0, v%d", T + 1)
    e("s_nop 1")
    e("s_cmp_eq_u64 vcc, 0")
    e("s_cbranch_scc1 %s", done)
    e("s_add_u32 s%d, s%d, 1", S_T + 1, S_T + 1)
    e("s_cmp_lt_u32 s%d, 0x100000", S_T + 1)
    e("s_cbranch_scc1 %s", loop)
    a.label(done)
    c.fine("zpoll")
    for n in range(1, 8):
        e("v_pk_add_f32 %s, %s, %s", pr(G), pr(G), pr(G + 2 * n))
    import struct
    inv = struct.unpack("<I", struct.pack("<f", 1.0 / 896))[0]
    e("v_mul_f32 v%d, 0x%x, v%d", G, inv, G)
    e("v_mul_f32 v%d, 0x%x, v%d", G + 1, inv, G + 1)
    e("v_fma_f32 v%d, -v%d, v%d, v%d", G + 1, G, G, G + 1)
    e("v_max_f32 v%d, 0, v%d", G + 1, G + 1)
    e("v_add_f32 v%d, 0x3727c5ac, v%d", G + 1, G + 1)
    e("v_rsq_f32 v%d, v%d", G + 2, G + 1)
    e("s_nop 0")
    e("v_mul_f32 v%d, v%d, v%d", G + 3, G, G + 2)
    e("v_sub_f32 v%d, 0, v%d", G + 3, G + 3)
    e("s_lshl_b32 s%d, s%d, 9", S_T, S_W)
    e("s_add_u32 s%d, s%d, 0x%x", S_T, S_T, LDS_ZROW)
    e("v_add_u32 v%d, s%d, v%d", T + 1, S_T, T)
    c.lg.issue("ds_write_b64 v%d, v[%d:%d]" % (T + 1, G + 2, G + 3))
    c.lg.wait_all()
    e("v_lshlrev_b32 v%d, 3, v%d", T + 2, V_L16)
    e("v_add_u32 v%d, s%d, v%d", T + 2, S_T, T + 2)
    for j in range(4):
        e("s_add_u32 s%d, s%d, %d", S_T + 1, S_W, j)
        e("s_and_b32 s%d, s%d, 3", S_T + 1, S_T + 1)
        e("s_lshl_b32 s%d, s%d, 7", S_T + 1, S_T + 1)
        e("v_add_u32 v%d, s%d, v%d", T + 3, S_T + 1, T + 2)
        c.lg.issue("ds_read_b64 v[%d:%d], v%d" % (150 + 2 * j, 151 + 2 * j, T + 3))
    c.lg.wait_all()
    e("s_mul_i32 s%d, s%d, 5120", S_T, S_W)
    e("s_add_u32 s%d, s%d, 0x%x", S_T, S_T, LDS_ZT)
    e("v_mul_u32_u24 v%d, 40, v%d", T + 4, V_L16)
    e("v_lshl_add_u32 v%d, v%d, 3, v%d", T + 4, V_G, T + 4)
    e("v_add_u32 v%d, s%d, v%d", T + 4, S_T, T + 4)
    for j in range(4):
        R = 150 + 2 * j
        e("s_add_u32 s%d, s%d, %d", S_T + 1, S_W, j)
        e("s_and_b32 s%d, s%d, 3", S_T + 1, S_T + 1)
        e("s_mul_i32 s%d, s%d, 640", S_T + 1, S_T + 1)
        e("v_add_u32 v%d, s%d, v%d", T + 5, S_T + 1, T + 4)
        for slot in range(2):
            acc = P3_ACC + (slot * 4 + j) * 4
            for q in range(2):
                x = acc + 2 * q
                e("v_pk_fma_f32 %s, %s, %s, %s op_sel:[0,0,1] op_sel_hi:[1,0,1]", pr(x), pr(x), pr(R), pr(R))
            e("v_cvt_pk_bf16_f32 v%d, v%d, v%d", acc, acc, acc + 1)
            e("v_cvt_pk_bf16_f32 v%d, v%d, v%d", acc + 1, acc + 2, acc + 3)
            c.lg.issue("ds_write_b64 v%d, v[%d:%d] offset:%d" % (T + 5, acc, acc + 1, slot * 2560))
    c.lg.wait_all()
    e("v_lshrrev_b32 v%d, 2, v%d", T + 4, V_L16)
    e("v_lshl_add_u32 v%d, v%d, 2, v%d", T + 4, V_G, T + 4)
    e("v_mul_u32_u24 v%d, 40, v%d", T + 4, T + 4)
    e("v_and_b32 v%d, 3, v%d", T + 5, V_LANE)
    e("v_lshl_add_u32 v%d, v%d, 3, v%d", T + 4, T + 5, T + 4)
    e("v_add_u32 v%d, s%d, v%d", T + 4, S_T, T + 4)
    O = 96
    for slot in range(2):
        for pp in range(2):
            for hh in range(2):
                d = O + (slot * 2 + pp) * 4 + 2 * hh
                c.lg.issue("ds_read_b64_tr_b16 v[%d:%d], v%d offset:%d" % (d, d + 1, T + 4, slot * 2560 + (32 * pp + 16 * hh) * 40), "o%d%d" % (slot, pp))
    e("s_lshl_b32 s%d, s%d, 6", S_T, S_NB)
    e("s_lshl_b32 s%d, s%d, 1", S_T + 1, S_MB)
    e("s_add_u32 s%d, s%d, s%d", S_T, S_T, S_T + 1)
    e("s_mul_i32 s%d, s%d, 7", S_T, S_T)
    e("s_lshl_b32 s%d, s%d, 1", S_T + 1, S_W)
    e("s_add_u32 s%d, s%d, s%d", S_T, S_T, S_T + 1)
    e("s_lshl_b32 s%d, s%d, 10", S_T, S_T)
    e("s_add_u32 s%d, s%d, 0x%x", S_T, S_T, L.Z2N)
    e("v_lshlrev_b32 v%d, 4, v%d", T + 5, V_LANE)
    e("v_add_u32 v%d, 0x40000000, v%d", T + 6, T + 5)
    e("s_cmp_eq_u32 s%d, 3", S_W)
    e("s_cselect_b64 vcc, -1, 0")
    e("v_cndmask_b32 v%d, v%d, v%d, vcc", T + 6, T + 5, T + 6)
    for slot in range(2):
        for pp in range(2):
            e("s_add_u32 s%d, s%d, %d", S_T + 1, S_T, (pp * 7 + slot) * 1024)
            c.lg.wait("o%d%d" % (slot, pp))
            c.bstore(O + (slot * 2 + pp) * 4, 4, T + 5 + slot, R_WS, S_T + 1, 0, "st", "sc1")

class SpLoader:
    NST = 3
    base = 65536
    V_DMA = 200
    V_RD = 208
    S_LDS, S_K = 56, 57
    def __init__(self, c):
        self.c = c; self.issued = 0; self.read_ = 0
    def setup(self):
        c = self.c; e = c.e
        T = 212
        e("v_lshrrev_b32 v%d, 3, v%d", T, V_LANE)
        e("v_lshlrev_b32 v%d, 12, v%d", T, T)
        e("v_and_b32 v%d, 7, v%d", T + 1, V_LANE)
        e("v_xor_b32 v%d, v%d, v%d", T + 1, T + 1, V_G)
        e("v_xor_b32 v%d, 4, v%d", T + 2, T + 1)
        e("v_lshl_add_u32 v%d, v%d, 4, v%d", T + 1, T + 1, T)
        e("v_lshl_add_u32 v%d, v%d, 4, v%d", T + 2, T + 2, T)
        for i in range(8):
            jj = i // 2
            e("s_add_u32 s%d, s%d, %d", S_T, S_W, jj)
            e("s_and_b32 s%d, s%d, 3", S_T, S_T)
            e("s_lshl_b32 s%d, s%d, 16", S_T, S_T)
            e("s_add_u32 s%d, s%d, %d", S_T, S_T, (i % 2) * 8 * 4096)
            e("v_add_u32 v%d, s%d, v%d", self.V_DMA + i, S_T, T + 1 + (i % 2))
        e("s_mul_i32 s%d, s%d, %d", self.S_LDS, S_W, self.NST * 8192)
        e("s_add_u32 s%d, s%d, %d", self.S_LDS, self.S_LDS, self.base)
        e("v_lshrrev_b32 v%d, 1, v%d", T + 1, V_L16)
        e("v_lshrrev_b32 v%d, 1, v%d", T + 2, V_G)
        e("v_xor_b32 v%d, v%d, v%d", T + 1, T + 1, T + 2)
        e("v_and_b32 v%d, 1, v%d", T + 2, V_G)
        e("v_lshlrev_b32 v%d, 3, v%d", T + 2, T + 2)
        e("v_lshl_add_u32 v%d, v%d, 7, v%d", T + 2, V_L16, T + 2)
        e("v_add_u32 v%d, s%d, v%d", T + 2, self.S_LDS, T + 2)
        for kk in range(2):
            for hh in range(2):
                e("v_xor_b32 v%d, %d, v%d", T + 3, 4 * kk + 2 * hh, T + 1)
                e("v_lshl_add_u32 v%d, v%d, 4, v%d", self.V_RD + 2 * kk + hh, T + 3, T + 2)
        e("s_lshl_b32 s%d, s%d, 10", self.S_K, S_W)
    def rebase(self, newbase):
        c = self.c; e = c.e
        d = newbase - self.base
        e("s_add_u32 s%d, s%d, %d", self.S_LDS, self.S_LDS, d) if d >= 0 else e("s_sub_u32 s%d, s%d, %d", self.S_LDS, self.S_LDS, -d)
        for i in range(4):
            if d >= 0: e("v_add_u32 v%d, %d, v%d", self.V_RD + i, d, self.V_RD + i)
            else: e("v_subrev_u32 v%d, %d, v%d", self.V_RD + i, -d, self.V_RD + i)
        self.base = newbase
    def srd(self):
        c = self.c; e = c.e
        e("s_lshl_b32 s%d, s%d, 18", S_T, S_MB)
        c.srd(R_B, P_WSP, 0x40000, off_sreg=S_T)
    def ops(self, n):
        c = self.c; out = []
        for _ in range(n):
            dd = self.issued
            st = dd % self.NST
            for i in range(8):
                def f(dd=dd, st=st, i=i):
                    if i == 0:
                        c.e("s_lshr_b32 s%d, s%d, 1", S_X1, S_ROTZ)
                        c.e("s_add_u32 s%d, s%d, %d", S_X1, S_X1, dd)
                        c.e("s_and_b32 s%d, s%d, 7", S_X1, S_X1)
                        c.e("s_lshl_b32 s%d, s%d, 7", S_X1, S_X1)
                        c.e("s_add_u32 s%d, s%d, s%d", S_X1, S_X1, self.S_K)
                    c.dma(self.V_DMA + i, R_B, S_X1, self.S_LDS, st * 8192 + i * 1024, "S%d" % dd, c.opt.get("ntsp", ""))
                out.append(f)
            self.issued += 1
        return out
    def issue(self, n=1):
        for f in self.ops(n): f()
    def read(self, n):
        c = self.c
        for _ in range(n):
            dd = self.read_
            c.vm.wait("S%d" % dd)
            st = dd % self.NST
            for kk in range(2):
                for j in range(4):
                    for hh in range(2):
                        dst = A0 + ((dd * 2 + kk) * 4 + j) * 4 + 2 * hh
                        c.lg.issue("ds_read_b64 %s, v%d offset:%d" % (rr(dst, 2), self.V_RD + 2 * kk + hh, st * 8192 + j * 2048), "sl")
            self.read_ += 1
    def refill(self, n):
        self.c.lg.wait("sl")
        self.issue(n)

P4_ACC = 32
P4_ZB = 144
def p4_main(c, tail_ops, SL=None):
    e = c.e
    NZ = 4
    e("v_lshlrev_b32 v29, 4, v%d", V_LANE)
    e("v_add_u32 v30, 0x1000, v29")
    e("s_lshl_b32 s%d, s%d, 6", 56, S_NB)
    e("s_lshl_b32 s%d, s%d, 4", 57, S_W)
    e("s_add_u32 s56, s56, s57")
    e("s_mul_i32 s56, s56, 7168")
    e("s_add_u32 s56, s56, 0x%x", L.Z2N)
    def issue_z(ks, ft):
        d, v, imm = P4_ZB + (ks % NZ) * 28 + 4 * ft, 29 + ft // 4, (ft % 4) * 1024
        if ft == 0:
            e("s_add_u32 s57, s%d, %d", S_ROTZ, ks)
            e("s_and_b32 s57, s57, 15")
            e("s_mul_i32 s57, s57, 7168")
            e("s_add_u32 s57, s57, s56")
        c.bload(d, 4, v, R_WS, 57, imm, "z%d" % ks, c.opt.get("zflag", "sc1"))
    if SL is not None:
        for i in range(4): e("v_mov_b32 v%d, v%d", 6 + i, SL.V_RD + i)
        SL.V_RD = 6
    for ks in range(2):
        for ft in range(7): issue_z(ks, ft)
    if SL is not None:
        SL.read(2)
    T = 2
    e("s_mul_i32 s%d, s%d, 24576", S_T + 2, S_W)
    e("s_add_u32 s%d, s%d, %d", S_T + 2, S_T + 2, LDS_RED4)
    e("v_lshlrev_b32 v%d, 4, v%d", T + 1, V_LANE)
    e("v_add_u32 v%d, s%d, v%d", T, S_T + 2, T + 1)
    for ks in range(16):
        c.vm.wait("z%d" % ks)
        if ks == 12: c.lg.wait_all()
        if ks in (0, 4, 12): c.fine("p4k%d" % ks)
        nk = ks + NZ - 1
        m = 0; nf = 0
        order = [(ft, j) for ft in range(7) for j in range(4)]
        if ks == 15:
            order = [(ft, j) for j in (1, 2, 3, 0) for ft in range(7)]
        pend = []
        for (ft, j) in order:
            acc = P4_ACC + (ft * 4 + j) * 4
            cc = "0" if ks == 0 else "v[%d:%d]" % (acc, acc + 3)
            z = P4_ZB + (ks % NZ) * 28 + 4 * ft
            e("v_mfma_f32_16x16x32_bf16 v[%d:%d], v[%d:%d], %s, %s", acc, acc + 3, z, z + 3, rr(A0 + (ks * 4 + j) * 4, 4), cc)
            m += 1
            if ks == 0 and m % 2 == 0 and nf < 14:
                issue_z(2 + nf // 7, nf % 7); nf += 1
            elif ks > 0 and nk < 16 and m % 4 == 0 and nf < 7:
                issue_z(nk, nf); nf += 1
            if nk >= 16 and m % 4 == 0 and tail_ops:
                tail_ops.pop(0)()
            if ks == 15:
                if j != 0: pend.append((ft, j, m))
                while pend and m - pend[0][2] >= 8:
                    f2, j2, _ = pend.pop(0)
                    a2 = P4_ACC + (f2 * 4 + j2) * 4
                    c.lg.issue("ds_write_b128 v%d, v[%d:%d] offset:%d" % (T, a2, a2 + 3, (j2 - 1) * 7168 + f2 * 1024))
    c.p4_pend = pend
    c.bgq = tail_ops

def p4_reduce_epilogue(c):
    e = c.e
    T = 144
    e("s_lshl_b32 s%d, s%d, 2", S_T, S_MB)
    e("s_add_u32 s%d, s%d, s%d", S_T, S_T, S_W)
    e("s_lshl_b32 s%d, s%d, 5", S_T + 1, S_T)
    e("v_lshlrev_b32 v%d, 1, v%d", T, V_L16)
    e("v_add_u32 v%d, s%d, v%d", T, S_T + 1, T)
    c.vm.issue("global_load_ushort v%d, v%d, s[%d:%d]" % (V_BIAS, T, P_BSP, P_BSP + 1), "bias")
    c.nop(8)
    for (f2, j2, _) in c.p4_pend:
        a2 = P4_ACC + (f2 * 4 + j2) * 4
        c.lg.issue("ds_write_b128 v2, v[%d:%d] offset:%d" % (a2, a2 + 3, (j2 - 1) * 7168 + f2 * 1024))
    e("v_lshlrev_b32 v%d, 4, v%d", T + 1, V_LANE)
    for j in range(1, 4):
        e("s_sub_u32 s%d, s%d, %d", S_T + 2, S_W, j)
        e("s_and_b32 s%d, s%d, 3", S_T + 2, S_T + 2)
        e("s_mul_i32 s%d, s%d, 24576", S_T + 2, S_T + 2)
        e("s_add_u32 s%d, s%d, %d", S_T + 2, S_T + 2, LDS_RED4)
        e("v_add_u32 v%d, s%d, v%d", T + 2 + j, S_T + 2, T + 1)
    c.bg(2)
    c.lg.wait_all()
    e("s_barrier")
    R = 152
    for j in range(1, 4):
        for ft in range(7):
            d = R + (j - 1) * 28 + 4 * ft
            c.lg.issue("ds_read_b128 v[%d:%d], v%d offset:%d" % (d, d + 3, T + 2 + j, (j - 1) * 7168 + ft * 1024), "r%d" % j)
        c.bg(1)
    Z1 = 236
    e("s_lshl_b32 s%d, s%d, 12", S_T + 2, S_W)
    e("s_add_u32 s%d, s%d, 0x%x", S_T + 2, S_T + 2, LDS_Z1)
    e("v_lshlrev_b32 v%d, 3, v%d", T + 6, V_LANE)
    e("v_add_u32 v%d, s%d, v%d", T + 6, S_T + 2, T + 6)
    for ft in range(7):
        c.lg.issue("ds_read_b64 v[%d:%d], v%d offset:%d" % (Z1 + 2 * ft, Z1 + 2 * ft + 1, T + 6, ft * 512), "z1")
    for j in range(1, 4):
        c.lg.wait("r%d" % j)
        for ft in range(7):
            acc = P4_ACC + (ft * 4) * 4
            d = R + (j - 1) * 28 + 4 * ft
            for q in range(2):
                e("v_pk_add_f32 %s, %s, %s", pr(acc + 2 * q), pr(acc + 2 * q), pr(d + 2 * q))
        c.bg(1)
    c.lg.wait_all()

def p4_finish(c):
    e = c.e; a = c.a
    T = 144; Z1 = 236
    c.vm.wait("bias")
    e("v_lshlrev_b32 v%d, 16, v%d", V_BIAS, V_BIAS)
    e("s_lshl_b32 s%d, s%d, 2", S_T, S_MB)
    e("s_add_u32 s%d, s%d, s%d", S_T, S_T, S_W)
    e("s_mul_i32 s%d, s%d, %d", S_T, S_T, 28 * 1024)
    e("s_add_u32 s%d, s%d, 0x%x", S_T, S_T, L.PF)
    e("s_mul_i32 s%d, s%d, 7", S_T + 1, S_NB)
    e("s_lshr_b32 s%d, s%d, 1", S_T + 2, S_T + 1)
    e("s_lshl_b32 s%d, s%d, 10", S_T + 2, S_T + 2)
    e("s_add_u32 s%d, s%d, s%d", S_T, S_T, S_T + 2)
    e("v_lshlrev_b32 v%d, 4, v%d", T + 1, V_LANE)
    O = 152
    for ft in range(7):
        x = P4_ACC + ft * 16
        z = Z1 + 2 * ft; t = T + 2
        e("v_lshlrev_b32 v%d, 16, v%d", t, z)
        e("v_and_b32 v%d, 0xffff0000, v%d", t + 1, z)
        e("v_lshlrev_b32 v%d, 16, v%d", t + 2, z + 1)
        e("v_and_b32 v%d, 0xffff0000, v%d", t + 3, z + 1)
        for r in range(4): e("v_add_f32 v%d, v%d, v%d", x + r, x + r, V_BIAS)
        for q in range(2): e("v_pk_mul_f32 %s, %s, %s", pr(x + 2 * q), pr(x + 2 * q), pr(t + 2 * q))
        e("v_cvt_pk_bf16_f32 v%d, v%d, v%d", O + 2 * ft, x, x + 1)
        e("v_cvt_pk_bf16_f32 v%d, v%d, v%d", O + 2 * ft + 1, x + 2, x + 3)
    odd = a.newlabel("podd"); done = a.newlabel("pdone")
    e("s_bitcmp1_b32 s%d, 0", S_NB)
    e("s_cbranch_scc1 %s", odd)
    txt = lambda src, n, imm: "buffer_store_%s %s, v%d, s[%d:%d], s%d offen offset:%d sc1" % ({2: "dwordx2", 4: "dwordx4"}[n], rr(src, n), T + 1, R_WS, R_WS + 3, S_T, imm)
    for p in range(3): e(txt(O + 4 * p, 4, 1024 * p))
    e(txt(O + 12, 2, 3072))
    e("s_branch %s", done)
    a.label(odd)
    e(txt(O, 2, 8))
    for p in range(3):
        e("v_mov_b32 v%d, v%d", T + 4, O + 2 + 4 * p); e("v_mov_b32 v%d, v%d", T + 5, O + 3 + 4 * p)
        e("v_mov_b32 v%d, v%d", T + 6, O + 4 + 4 * p); e("v_mov_b32 v%d, v%d", T + 7, O + 5 + 4 * p)
        e(txt(T + 4, 4, 1024 * (p + 1)))
        e("s_nop 1")
    a.label(done)
    for _ in range(4): c.vm.q.append("st")

LDS_WO = 0
def p5_wout_ops(c):
    e = c.e
    e("v_lshlrev_b32 v31, 4, v%d", V_LANE)
    e("s_lshr_b32 s58, s%d, 1", S_NB)
    e("s_lshl_b32 s58, s58, 2")
    e("s_add_u32 s58, s58, s%d", S_W)
    e("s_mul_i32 s58, s58, %d", 2 * 28 * 1024)
    e("s_add_u32 s58, s58, 0x%x", L.WOUTF)
    out = []
    for kf in range(28):
        for i in range(2):
            def f(kf=kf, i=i):
                c.e("s_add_u32 s%d, s58, %d", S_X0, (i * 28 + kf) * 1024)
                c.bload(A0 + (kf * 2 + i) * 4, 4, 31, R_WS, S_X0, 0, "wo%d" % (kf // 8), "sc1")
            out.append(f)
    return out

P5_ACC = 32
P5_PF = 48
LDS_P = 0
def p5_main(c):
    e = c.e
    T = 240
    e("v_lshlrev_b32 v%d, 4, v%d", T, V_LANE)
    e("s_lshl_b32 s52, s%d, 2", S_MB)
    e("s_and_b32 s%d, s%d, 1", S_T, S_NB)
    e("s_lshl_b32 s%d, s%d, 1", S_T, S_T)
    e("s_add_u32 s52, s52, s%d", S_T)
    e("s_and_b32 s%d, s%d, 1", S_T, S_W)
    e("s_add_u32 s52, s52, s%d", S_T)
    e("s_mul_i32 s52, s52, 28")
    e("s_mul_i32 s53, s%d, 28", S_T)
    e("s_lshr_b32 s%d, s%d, 1", S_T, S_W)
    e("s_add_u32 s52, s52, s%d", S_T)
    e("s_add_u32 s53, s53, s%d", S_T)
    e("s_lshl_b32 s52, s52, 10")
    e("s_add_u32 s52, s52, 0x%x", L.PF)
    e("s_lshl_b32 s53, s53, 10")
    def pdma(q):
        e("s_add_u32 s%d, s52, %d", S_T, q * 2048)
        c.dma(T, R_WS, S_T, 53, LDS_P + q * 2048, "p%d" % (q // 4), "sc1")
    for q in range(8): pdma(q)
    LA = 3
    def reads(kf):
        f = P5_PF + 8 * (kf & 3)
        return ["ds_read_b128 v[%d:%d], v%d offset:%d" % (f + 4 * u, f + 4 * u + 3, T, LDS_P + (u * 28 + kf) * 1024) for u in range(2)]
    later = list(range(8, 14))
    c.vm.wait("p0", "wo0")
    e("s_barrier")
    for k in range(LA):
        for r in reads(k): c.lg.issue(r, "pf%d" % k)
    for kf in range(28):
        nk = kf + LA
        if nk < 28 and nk % 8 == 0:
            c.vm.wait("p%d" % (nk // 8))
            e("s_barrier")
        if kf % 8 == 0: c.vm.wait("wo%d" % (kf // 8))
        c.lg.wait("pf%d" % kf)
        f = P5_PF + 8 * (kf & 3)
        nxt = reads(nk) if nk < 28 else []
        for u in range(2):
            for i in range(2):
                acc = P5_ACC + 4 * (2 * u + i)
                cc = "0" if kf == 0 else "v[%d:%d]" % (acc, acc + 3)
                e("v_mfma_f32_16x16x32_bf16 v[%d:%d], %s, v[%d:%d], %s", acc, acc + 3, rr(A0 + (kf * 2 + i) * 4, 4), f + 4 * u, f + 4 * u + 3, cc)
            if nxt: c.lg.issue(nxt.pop(0), "pf%d" % nk)
        if later and kf < 6: pdma(later.pop(0))

def p5_epilogue(c):
    e = c.e
    T = 240
    c.nop(8)
    O = 120
    for x in range(4):
        acc = P5_ACC + 4 * x; h = V_HRES + 2 * x; t = 112
        e("v_lshlrev_b32 v%d, 16, v%d", t, h)
        e("v_and_b32 v%d, 0xffff0000, v%d", t + 1, h)
        e("v_lshlrev_b32 v%d, 16, v%d", t + 2, h + 1)
        e("v_and_b32 v%d, 0xffff0000, v%d", t + 3, h + 1)
        for q in range(2):
            e("v_pk_add_f32 %s, %s, %s", pr(acc + 2 * q), pr(acc + 2 * q), pr(t + 2 * q))
        e("v_cvt_pk_bf16_f32 v%d, v%d, v%d", O + 2 * x, acc, acc + 1)
        e("v_cvt_pk_bf16_f32 v%d, v%d, v%d", O + 2 * x + 1, acc + 2, acc + 3)
    c.srd(R_A, P_OUT, 2 << 20)
    e("s_lshl_b32 s%d, s%d, 16", S_T, S_MB)
    e("s_and_b32 s%d, s%d, 1", S_T + 1, S_NB)
    e("s_lshl_b32 s%d, s%d, 15", S_T + 1, S_T + 1)
    e("s_add_u32 s%d, s%d, s%d", S_T, S_T, S_T + 1)
    e("s_lshr_b32 s%d, s%d, 1", S_T + 1, S_NB)
    e("s_lshl_b32 s%d, s%d, 8", S_T + 1, S_T + 1)
    e("s_add_u32 s%d, s%d, s%d", S_T, S_T, S_T + 1)
    e("s_lshl_b32 s%d, s%d, 6", S_T + 1, S_W)
    e("s_add_u32 s%d, s%d, s%d", S_T, S_T, S_T + 1)
    e("v_lshlrev_b32 v%d, 10, v%d", T, V_L16)
    e("v_and_b32 v%d, 1, v%d", T + 1, V_G)
    e("v_lshl_add_u32 v%d, v%d, 5, v%d", T, T + 1, T)
    e("v_lshrrev_b32 v%d, 1, v%d", T + 1, V_G)
    e("v_lshl_add_u32 v%d, v%d, 4, v%d", T, T + 1, T)
    for u in range(2):
        o = O + 4 * u
        if u: e("s_add_u32 s%d, s%d, 16384", S_T, S_T)
        c.nop(2)
        e("v_permlane16_swap_b32 v%d, v%d", o, o + 2)
        e("v_permlane16_swap_b32 v%d, v%d", o + 1, o + 3)
        c.bstore(o, 4, T, R_A, S_T, 0, "out", c.opt.get("outflag", ""))

def touch_wsp(c, dd0, ndd, wq=S_W, tracked=True, V=145):
    e = c.e
    e("s_lshl_b32 s%d, s%d, 18", S_T, S_MB)
    e("s_and_b32 s%d, s%d, 3", S_T + 1, S_NB)
    e("s_lshl_b32 s%d, s%d, 16", S_T + 1, S_T + 1)
    e("s_add_u32 s%d, s%d, s%d", S_T, S_T, S_T + 1)
    e("s_lshl_b32 s%d, s%d, 10", S_T + 1, wq)
    e("s_add_u32 s%d, s%d, s%d", S_T, S_T, S_T + 1)
    c.srd(R_C, P_WSP, 8 << 20)
    e("s_lshr_b32 s%d, s%d, 1", S_T + 1, S_ROTZ)
    e("s_add_u32 s%d, s%d, %d", S_T + 1, S_T + 1, dd0)
    e("v_add_u32 v%d, s%d, v%d", V + 1, S_T + 1, V_G)
    e("v_and_b32 v%d, 7, v%d", V + 1, V + 1)
    e("v_lshlrev_b32 v%d, 12, v%d", V, V_L16)
    e("v_lshl_add_u32 v%d, v%d, 7, v%d", V, V + 1, V)
    e("v_cmp_gt_u32 vcc, %d, v%d", ndd, V_G)
    e("v_mov_b32 v%d, 0x40000000", V + 1)
    e("s_nop 0")
    e("v_cndmask_b32 v%d, v%d, v%d, vcc", V, V + 1, V)
    if tracked: c.bload(V_BIAS, 1, V, R_C, S_T, 0, "touch", c.opt.get("nttouch", ""))
    else: e("buffer_load_dword v%d, v%d, s[%d:%d], s%d offen", V_BIAS, V, R_C, R_C + 3, S_T)

def touch_z2n(c):
    e = c.e
    e("s_lshl_b32 s%d, s%d, 6", S_T, S_NB)
    e("s_lshl_b32 s%d, s%d, 4", S_T + 1, S_W)
    e("s_add_u32 s%d, s%d, s%d", S_T, S_T, S_T + 1)
    e("s_and_b32 s%d, s%d, 7", S_T + 1, S_MB)
    e("s_lshl_b32 s%d, s%d, 1", S_T + 1, S_T + 1)
    e("s_add_u32 s%d, s%d, s%d", S_T, S_T, S_T + 1)
    e("s_mul_i32 s%d, s%d, 7168", S_T, S_T)
    e("s_add_u32 s%d, s%d, 0x%x", S_T, S_T, L.Z2N)
    e("v_lshlrev_b32 v2, 7, v%d", V_LANE)
    c.bload(31, 1, 2, R_WS, S_T, 0, "touch", c.opt.get("zflag", "sc1"))
    e("v_add_u32 v2, 0x2000, v2")
    e("v_cmp_gt_u32 vcc, 48, v%d", V_LANE)
    e("v_mov_b32 v3, 0x40000000")
    e("s_nop 0")
    e("v_cndmask_b32 v2, v3, v2, vcc")
    c.bload(31, 1, 2, R_WS, S_T, 0, "touch", c.opt.get("zflag", "sc1"))
```

```python
import sys
from core import *
import ph12, ph345
KNAME = "sequential_preLN__ssm_conv_h3__mixer_gmlp__prompt_kernel"

def drain_arrive(c, line_sreg, line_imm, boot=False):
    c.vm.wait_all()
    c.lg.wait_all()
    c.e("s_barrier")
    if boot: ph12.wait_boot(c)
    c.arrive(line_sreg, line_imm)

def build(stop=99, stamps=False, fine=False, finer=False, skip=(), **opt):
    body = Asm()
    c = Ctx(body, stamps)
    c.finestamps = fine
    c.finerstamps = finer
    c.st.skip = set(skip)
    c.opt = opt
    e = c.e
    kernel_begin(body, KNAME)
    ph12.setup(c)
    ph12.load_D_issue(c)
    ph12.bootstrap_a(c)
    WL = ph345.WLoader(c); SL = ph345.SpLoader(c)
    c.st.stamp("setup")
    flowB = opt.get("flowB", 2)
    early_toep = opt.get("etoep", 0)
    ph12.p1_issue(c)
    if flowB == 1: ph345.wpre_issue(c)
    ph12.p1_issue_x(c)
    if flowB == 2: ph345.wpre_issue(c)
    if early_toep: ph12.p1_issue_raw(c)
    ph12.bootstrap_b(c)
    ph12.p1_kv(c)
    ph12.load_D_finish(c)
    ph12.boot_flag_issue(c)
    c.finer("ust")
    ph12.p1_x(c)
    if flowB: c.vm.wait("wp")
    if early_toep: c.vm.wait("raw")
    c.lg.wait_all()
    e("s_barrier")
    c.finer("xwork")
    ph12.p1_x_store3(c)
    if flowB: ph345.wpre_store3(c)
    if early_toep:
        ph12.toeplitz(c)
        c.finer("toep")
    else:
        ph12.p1_issue_raw(c)
    if not flowB: ph345.wpre_issue(c)
    c.vm.wait("wst" if flowB else "xst")
    c.finer("acks")
    ph12.boot_flag_check(c)
    c.lg.wait_all()
    e("s_barrier")
    c.garrive(L.C1_LINE)
    c.st.stamp("arr1")
    if not early_toep:
        c.vm.wait("raw")
        c.lg.wait_all()
        e("s_barrier")
        c.finer("raw")
        ph12.toeplitz(c)
        c.finer("toep")
    if not flowB:
        c.vm.wait("wp")
        c.lg.wait_all()
        e("s_barrier")
        ph345.wpre_store3(c)
    WL.setup()
    c.lg.wait_all()
    c.gpoll(L.C1_LINE)
    if not flowB: c.vm.wait("wst")
    e("s_barrier")
    if not flowB: c.garrive(L.C1B_LINE)
    c.st.stamp("B1")
    ph12.p2_issue_u(c)
    sops = ph12.p2_stats_ops(c)
    c.vm.wait("ub")
    e("s_barrier")
    c.finer("ub")
    wl = WL.loads(0, 16)
    take = lambda n: [wl.pop(0) for _ in range(n)]
    def touch_block(dd0, n):
        l0 = body.newlabel("tb"); lt = body.newlabel("t0")
        e("s_cmp_eq_u32 s%d, 0", S_W)
        e("s_cbranch_scc1 %s", l0)
        ph345.touch_wsp(c, dd0, n, tracked=False, V=248)
        e("s_cmp_eq_u32 s%d, 1", S_W)
        e("s_cbranch_scc0 %s", lt)
        e("s_mov_b32 s%d, 0", S_X0)
        ph345.touch_wsp(c, dd0, n, wq=S_X0, tracked=False, V=248)
        body.label(lt)
        body.label(l0)
    ck = opt.get("ck", 2)
    def hke(): c.gpoll(L.C1B_LINE, 242, 243, early=True)
    def hkl():
        c.gpoll(L.C1B_LINE, 242, 243, late=True)
        e("s_barrier")
        if opt.get('touch1', 0): touch_block(0, 4)
    if flowB:
        nw = opt.get("nw", 8)
        def hkt():
            if opt.get('touch1', 0): touch_block(0, 4)
        ph12.p2_main(c, {opt.get("tk", 2): hkt}, {0: sops, 1: take(nw), 2: take(nw), 3: take(nw)})
    else:
        ph12.p2_main(c, {ck - 1: hke, ck: hkl}, dict([(0, sops)] + [(r, take(9)) for r in range(ck + 1, 4)]))
    c.st.stamp("p2main")
    c.bgq = take(min(8, max(0, len(wl) - 4 * (16 - opt.get('late', 16)))))
    ph12.p2_epilogue(c)
    c.finer("p2epi")
    c.bg_flush()
    for f in take(min(opt.get('nack', 14), max(0, len(wl) - 4 * (16 - opt.get('late', 16))))): f()
    c.vm.wait("st")
    c.lg.wait_all()
    e("s_barrier")
    c.garrive(L.C2_LINE)
    c.st.stamp("arr2")
    ph345.p3_setup(c)
    WL.colsum_prep()
    late = opt.get("late", 16)
    nlate = 4 * (16 - late)
    cs_late = opt.get("cslate", 8)
    k = 0
    while len(wl) > nlate:
        for f in take(min(4, len(wl) - nlate)): f()
        if k < 16 - cs_late:
            WL.colsum(k, k + 1); k += 1
    if k < 16 - cs_late:
        WL.colsum(k, 16 - cs_late); k = 16 - cs_late
    cs_done = k
    c.finer("wdone")
    SL.setup(); SL.srd()
    c.gpoll(L.C2_LINE)
    e("s_barrier")
    c.st.stamp("B2")
    hops = ph345.p3_issue_h(c)
    for f in hops[:8]: f()
    if cs_done < late: WL.colsum(cs_done, late)
    s0 = SL.ops(3)
    sl0 = opt.get("sl0", 12)
    inter = {}
    nper = -(-24 // (16 - sl0))
    for i in range(16 - sl0): inter[sl0 + i] = s0[nper * i:nper * (i + 1)]
    inter[0] = hops[8:12]; inter[1] = hops[12:16]
    for i in range(16 - late):
        inter[2 + i] = inter.get(2 + i, []) + take(4)
    hk3m = {}
    if opt.get('t2both', 1):
        hk3m[opt.get('t2k', 1)] = lambda: (ph345.touch_wsp(c, 0, 4), ph345.touch_wsp(c, 4, 4))
    elif opt.get('touch2', 1):
        hk3m[opt.get('t2k', 8)] = lambda: ph345.touch_wsp(c, 4, 4)
    ph345.p3_main(c, hk3m, inter, late_cs=late)
    c.st.stamp("p3main")
    c.lg.wait("hs2")
    c.fine("hstats")
    ph345.p3_z2_gelu_publish(c)
    c.st.stamp("z2pub")
    SL.read(3)
    c.lg.wait("sl")
    c.fine("slr1")
    c.bgq = SL.ops(3)
    ph345.p3_z1_gelu(c)
    c.bg_flush()
    c.fine("z1")
    ph345.p3_z2_finish(c)
    c.st.stamp("p3done")
    SL.read(3)
    c.lg.wait("sl")
    c.fine("slr2")
    s2 = SL.ops(2)
    for _ in range(8): s2.pop(0)()
    c.vm.wait("st")
    c.lg.wait_all()
    e("s_barrier")
    c.arrive(S_NB, L.C3_LINE)
    c.fine("arr3")
    for f in s2: f()
    if not opt.get("sllate", 0):
        SL.read(2)
        c.lg.wait_all()
    c.fine("slr3")
    c.poll(S_NB, L.C3_LINE, 1, 32)
    e("s_barrier")
    c.st.stamp("B3")
    tail = ph345.p5_wout_ops(c)
    ph345.p4_main(c, tail, SL if opt.get('sllate', 0) else None)
    c.st.stamp("p4main")
    ph345.p4_reduce_epilogue(c)
    c.fine("p4red")
    ph345.p4_finish(c)
    c.st.stamp("p4done")
    c.bg(opt.get("nwo1", 14))
    c.vm.wait("st")
    e("s_barrier")
    c.arrive(S_MB, L.C4_LINE)
    c.fine("arr4")
    c.bg_flush()
    c.poll(S_MB, L.C4_LINE, 1, 8)
    e("s_barrier")
    c.st.stamp("C4")
    ph345.p5_main(c)
    c.fine("p5main")
    ph345.p5_epilogue(c)
    if stamps or opt.get("endwait", 0): c.vm.wait_all()
    c.st.stamp("end")
    c.st.stamp("real1", real=True)
    if opt.get('dbgout') is not None: flush_dbg(c.st, P_DBG, 2, S_W, opt['dbgout'], 32)
    else: c.st.flush(P_WS, L.STAMPS, 2, 32, S_T)
    body.label("KEND")
    e("s_endpgm")
    a = Asm()
    hdr = open("cdna_kernels/%s.s.ref" % KNAME.replace("_kernel", "")).read().split("\n")
    for ln in hdr:
        if ln.startswith("; @launch") or ln.startswith("; Override") or ln.startswith("; grid="): continue
        if not ln.startswith(";"): break
        a(ln)
    a("; @launch grid=(256,1,1) block=(256,1,1) lds=163840")
    a('.amdgcn_target "amdgcn-amd-amdhsa--gfx950"')
    a(".text")
    a(body.text())
    a('.section .rodata,"a"')
    a(".p2align 6")
    kernel_desc(a, KNAME, 512, sgprs=102, accum=256)
    return a.text(), c.st.names

if __name__ == "__main__":
    kw = eval("dict(%s)" % (sys.argv[2] if len(sys.argv) > 2 else ""))
    t, names = build(**kw)
    open(sys.argv[1], "w").write(t)
    open(sys.argv[1] + ".stamps", "w").write(",".join(names))
```

```python
from asmb import *
import layout as L

class VM:
    def __init__(self, a):
        self.a = a; self.q = []
    def issue(self, text, tag):
        self.a.e(text); self.q.append(tag)
        assert len(self.q) <= 63, "too many vmem in flight: %d" % len(self.q)
    def wait(self, *tags):
        idx = -1
        for i, t in enumerate(self.q):
            if t in tags: idx = i
        if idx < 0: return
        n = len(self.q) - 1 - idx
        self.a.e("s_waitcnt vmcnt(%d)", n)
        self.q = self.q[idx + 1:]
    def wait_all(self):
        self.a.e("s_waitcnt vmcnt(0)"); self.q = []
    def pending(self, tag):
        return tag in self.q

class LG:
    def __init__(self, a):
        self.a = a; self.q = []
    def issue(self, text, tag="x"):
        if len(self.q) >= 15:
            self.a.e("s_waitcnt lgkmcnt(14)"); self.q = self.q[len(self.q) - 14:]
        self.a.e(text); self.q.append(tag)
    def wait(self, *tags):
        idx = -1
        for i, t in enumerate(self.q):
            if t in tags: idx = i
        if idx < 0: return
        n = len(self.q) - 1 - idx
        self.a.e("s_waitcnt lgkmcnt(%d)", n)
        self.q = self.q[idx + 1:]
    def wait_all(self):
        self.a.e("s_waitcnt lgkmcnt(0)"); self.q = []

S_B = 2; S_W = 3
P_Q, P_K, P_V, P_SHK = 4, 6, 8, 10
P_SSM, P_D = 12, 14
P_WIN, P_WSP, P_BSP, P_WOUT = 16, 18, 20, 22
P_OUT, P_DBG = 24, 26
P_WS = 28
S_CG, S_J = 30, 31
R_WS = 32
R_A, R_B, R_C = 36, 40, 44
S_MB, S_NB = 48, 49
S_T = 50
S_ROT = 64
S_ROT5 = 65
S_X0, S_X1 = 66, 67
S_ROTZ = 68
S_STAMP = 70
V_TID, V_LANE = 0, 1
V_CS = 2
V_HRES = 18
V_BIAS = 26
V_L16 = 27
V_G = 28
V_P = 32

class Ctx:
    def __init__(self, a, stamps=False):
        self.a = a
        self.vm = VM(a); self.lg = LG(a)
        self.st = Stamps(a, S_STAMP, stamps, maxn=30)
        self.finestamps = False
        self.finerstamps = False
        self.opt = {}
        self.bgq = []
    def finer(self, name):
        if self.finerstamps: self.st.stamp(name)
    def fine(self, name):
        if self.finestamps: self.st.stamp(name)
    def e(self, fmt, *x): self.a.e(fmt, *x)
    def srd(self, r, ptr, nbytes, off_sreg=None, off_imm=0):
        e = self.e
        if off_sreg is None and off_imm == 0:
            e("s_mov_b32 s%d, s%d", r, ptr); e("s_mov_b32 s%d, s%d", r + 1, ptr + 1)
        else:
            if off_sreg is not None:
                e("s_add_u32 s%d, s%d, s%d", r, ptr, off_sreg)
            else:
                e("s_add_u32 s%d, s%d, 0x%x", r, ptr, off_imm)
            e("s_addc_u32 s%d, s%d, 0", r + 1, ptr + 1)
        e("s_mov_b32 s%d, 0x%x", r + 2, nbytes)
        e("s_mov_b32 s%d, 0x20000", r + 3)
    def dma(self, voff, srd, soff, lds_sreg, lds_imm, tag, flags=""):
        e = self.e
        if lds_sreg is None: e("s_mov_b32 m0, 0x%x", lds_imm)
        else: e("s_add_u32 m0, s%d, 0x%x", lds_sreg, lds_imm)
        e("s_nop 0")
        so = "s%d" % soff if soff is not None else "0"
        self.vm.issue("buffer_load_dwordx4 v%d, s[%d:%d], %s offen%s lds" % (voff, srd, srd + 3, so, (" " + flags) if flags else ""), tag)
    def bload(self, dst, n, voff, srd, soff, imm, tag, flags=""):
        assert 0 <= imm < 4096, imm
        op = {1: "dword", 2: "dwordx2", 4: "dwordx4"}[n]
        so = "s%d" % soff if soff is not None else "0"
        self.vm.issue("buffer_load_%s %s, v%d, s[%d:%d], %s offen offset:%d%s" % (op, rr(dst, n), voff, srd, srd + 3, so, imm, (" " + flags) if flags else ""), tag)
    def bstore(self, src, n, voff, srd, soff, imm, tag, flags=""):
        assert 0 <= imm < 4096, imm
        op = {1: "dword", 2: "dwordx2", 4: "dwordx4"}[n]
        so = "s%d" % soff if soff is not None else "0"
        self.vm.issue("buffer_store_%s %s, v%d, s[%d:%d], %s offen offset:%d%s" % (op, rr(src, n), voff, srd, srd + 3, so, imm, (" " + flags) if flags else ""), tag)
    def bg(self, n=1):
        for _ in range(n):
            if self.bgq: self.bgq.pop(0)()
    def bg_flush(self):
        while self.bgq: self.bgq.pop(0)()
    def nop(self, n):
        while n > 0:
            k = min(n, 16); self.e("s_nop %d", k - 1); n -= k

    def arrive(self, line_sreg, line_imm):
        e = self.e; a = self.a
        skip = a.newlabel("arr")
        e("s_cmp_eq_u32 s%d, 0", S_W)
        e("s_cbranch_scc0 %s", skip)
        if line_sreg is not None:
            e("s_lshl_b32 s%d, s%d, 8", S_T, line_sreg)
            e("s_add_u32 s%d, s%d, 0x%x", S_T, S_T, L.FLAGS + line_imm * 256)
        else:
            e("s_mov_b32 s%d, 0x%x", S_T, L.FLAGS + line_imm * 256)
        e("s_mov_b64 s[%d:%d], exec", S_T + 2, S_T + 3)
        e("s_mov_b64 exec, 1")
        e("v_mov_b32 v29, s%d", S_T)
        e("v_mov_b32 v30, 1")
        e("global_atomic_add v29, v30, s[%d:%d] sc1", P_WS, P_WS + 1)
        e("s_mov_b64 exec, s[%d:%d]", S_T + 2, S_T + 3)
        a.label(skip)
    def poll(self, line_sreg, line_imm, nlines, target, all_waves=False):
        e = self.e; a = self.a
        if line_imm in self.opt.get("nopoll", ()): return
        skip = a.newlabel("pskip"); loop = a.newlabel("ploop"); done = a.newlabel("pdone")
        if not all_waves:
            e("s_cmp_eq_u32 s%d, 0", S_W)
            e("s_cbranch_scc0 %s", skip)
        if line_sreg is not None:
            e("s_lshl_b32 s%d, s%d, 8", S_T, line_sreg)
            e("s_add_u32 s%d, s%d, 0x%x", S_T, S_T, L.FLAGS + line_imm * 256)
        else:
            e("s_mov_b32 s%d, 0x%x", S_T, L.FLAGS + line_imm * 256)
        e("s_mov_b64 s[%d:%d], exec", S_T + 2, S_T + 3)
        e("v_lshlrev_b32 v29, 8, v%d", V_LANE)
        e("v_add_u32 v29, s%d, v29", S_T)
        e("s_mov_b64 exec, 0x%x", (1 << nlines) - 1)
        e("s_mov_b32 s%d, 0", S_T + 1)
        a.label(loop)
        e("global_load_dword v30, v29, s[%d:%d] sc1", P_WS, P_WS + 1)
        e("s_waitcnt vmcnt(0)")
        e("v_cmp_gt_u32 vcc, %d, v30", target)
        e("s_nop 1")
        e("s_cmp_eq_u64 vcc, 0")
        e("s_cbranch_scc1 %s", done)
        if self.opt.get("backoff", 0): e("s_sleep %d", self.opt["backoff"])
        e("s_add_u32 s%d, s%d, 1", S_T + 1, S_T + 1)
        e("s_cmp_lt_u32 s%d, 0x200000", S_T + 1)
        e("s_cbranch_scc1 %s", loop)
        a.label(done)
        e("s_mov_b64 exec, s[%d:%d]", S_T + 2, S_T + 3)
        a.label(skip)

    def poll_early(self, vreg, vadr, line_imm, nlines):
        e = self.e; a = self.a
        skip = a.newlabel("pe")
        e("s_cmp_eq_u32 s%d, 0", S_W)
        e("s_cbranch_scc0 %s", skip)
        e("v_lshlrev_b32 v%d, 8, v%d", vadr, V_LANE)
        e("v_add_u32 v%d, 0x%x, v%d", vadr, L.FLAGS + line_imm * 256, vadr)
        e("s_mov_b64 s[%d:%d], exec", S_T + 2, S_T + 3)
        e("s_mov_b64 exec, 0x%x", (1 << nlines) - 1)
        e("global_load_dword v%d, v%d, s[%d:%d] sc1", vreg, vadr, P_WS, P_WS + 1)
        e("s_mov_b64 exec, s[%d:%d]", S_T + 2, S_T + 3)
        a.label(skip)
    def poll_late(self, vreg, vadr, nlines, target):
        e = self.e; a = self.a
        skip = a.newlabel("pl"); loop = a.newlabel("cl"); done = a.newlabel("cd")
        e("s_cmp_eq_u32 s%d, 0", S_W)
        e("s_cbranch_scc0 %s", skip)
        e("s_mov_b64 s[%d:%d], exec", S_T + 2, S_T + 3)
        e("s_mov_b64 exec, 0x%x", (1 << nlines) - 1)
        e("s_mov_b32 s%d, 0", S_T + 1)
        e("s_waitcnt vmcnt(0)")
        a.label(loop)
        e("v_cmp_gt_u32 vcc, %d, v%d", target, vreg)
        e("s_nop 1")
        e("s_cmp_eq_u64 vcc, 0")
        e("s_cbranch_scc1 %s", done)
        e("global_load_dword v%d, v%d, s[%d:%d] sc1", vreg, vadr, P_WS, P_WS + 1)
        e("s_waitcnt vmcnt(0)")
        e("s_add_u32 s%d, s%d, 1", S_T + 1, S_T + 1)
        e("s_cmp_lt_u32 s%d, 0x200000", S_T + 1)
        e("s_cbranch_scc1 %s", loop)
        a.label(done)
        e("s_mov_b64 exec, s[%d:%d]", S_T + 2, S_T + 3)
        a.label(skip)

    def garrive(self, line0):
        e = self.e; a = self.a
        skip = a.newlabel("ga")
        e("s_cmp_eq_u32 s%d, 0", S_W)
        e("s_cbranch_scc0 %s", skip)
        e("s_and_b32 s%d, s2, 15", S_T)
        e("v_lshlrev_b32 v29, 4, v%d", V_LANE)
        e("v_add_u32 v29, s%d, v29", S_T)
        e("v_lshlrev_b32 v29, 8, v29")
        e("v_add_u32 v29, 0x%x, v29", L.FLAGS + line0 * 256)
        e("v_mov_b32 v30, 1")
        e("s_mov_b64 s[%d:%d], exec", S_T + 2, S_T + 3)
        e("s_mov_b64 exec, 15")
        e("global_atomic_add v29, v30, s[%d:%d] sc1", P_WS, P_WS + 1)
        e("s_mov_b64 exec, s[%d:%d]", S_T + 2, S_T + 3)
        a.label(skip)
    def gpoll_addr(self, vadr, line0):
        e = self.e
        e("s_lshr_b32 s%d, s2, 4", S_T)
        e("s_and_b32 s%d, s%d, 3", S_T, S_T)
        e("s_lshl_b32 s%d, s%d, 4", S_T, S_T)
        e("v_add_u32 v%d, s%d, v%d", vadr, S_T, V_LANE)
        e("v_lshlrev_b32 v%d, 8, v%d", vadr, vadr)
        e("v_add_u32 v%d, 0x%x, v%d", vadr, L.FLAGS + line0 * 256, vadr)
    def gpoll(self, line0, vreg=30, vadr=29, early=False, late=False):
        e = self.e; a = self.a
        if line0 in self.opt.get("nopoll", ()): return
        skip = a.newlabel("gp"); loop = a.newlabel("gl"); done = a.newlabel("gd")
        e("s_cmp_eq_u32 s%d, 0", S_W)
        e("s_cbranch_scc0 %s", skip)
        if not late: self.gpoll_addr(vadr, line0)
        e("s_mov_b64 s[%d:%d], exec", S_T + 2, S_T + 3)
        e("s_mov_b64 exec, 0xffff")
        if not late:
            e("global_load_dword v%d, v%d, s[%d:%d] sc1", vreg, vadr, P_WS, P_WS + 1)
        if not early:
            e("s_mov_b32 s%d, 0", S_T + 1)
            a.label(loop)
            e("s_waitcnt vmcnt(0)")
            e("v_cmp_gt_u32 vcc, 16, v%d", vreg)
            e("s_nop 1")
            e("s_cmp_eq_u64 vcc, 0")
            e("s_cbranch_scc1 %s", done)
            if self.opt.get("backoff", 0): e("s_sleep %d", self.opt["backoff"])
            e("global_load_dword v%d, v%d, s[%d:%d] sc1", vreg, vadr, P_WS, P_WS + 1)
            e("s_add_u32 s%d, s%d, 1", S_T + 1, S_T + 1)
            e("s_cmp_lt_u32 s%d, 0x200000", S_T + 1)
            e("s_cbranch_scc1 %s", loop)
            e("s_waitcnt vmcnt(0)")
            a.label(done)
        e("s_mov_b64 exec, s[%d:%d]", S_T + 2, S_T + 3)
        a.label(skip)

    def poll1(self, line_sreg, line_imm, target, vreg, vadr, early=False, late=False):
        e = self.e; a = self.a
        if line_imm in self.opt.get("nopoll", ()): return
        skip = a.newlabel("p1s"); loop = a.newlabel("p1l"); done = a.newlabel("p1d")
        e("s_cmp_eq_u32 s%d, 0", S_W)
        e("s_cbranch_scc0 %s", skip)
        e("s_mov_b64 s[%d:%d], exec", S_T + 2, S_T + 3)
        e("s_mov_b64 exec, 1")
        if not late:
            e("s_lshl_b32 s%d, s%d, 8", S_T, line_sreg)
            e("s_add_u32 s%d, s%d, 0x%x", S_T, S_T, L.FLAGS + line_imm * 256)
            e("v_mov_b32 v%d, s%d", vadr, S_T)
            e("global_load_dword v%d, v%d, s[%d:%d] sc1", vreg, vadr, P_WS, P_WS + 1)
        if not early:
            e("s_mov_b32 s%d, 0", S_T + 1)
            a.label(loop)
            e("s_waitcnt vmcnt(0)")
            e("v_cmp_gt_u32 vcc, %d, v%d", target, vreg)
            e("s_nop 1")
            e("s_cmp_eq_u64 vcc, 0")
            e("s_cbranch_scc1 %s", done)
            e("global_load_dword v%d, v%d, s[%d:%d] sc1", vreg, vadr, P_WS, P_WS + 1)
            e("s_add_u32 s%d, s%d, 1", S_T + 1, S_T + 1)
            e("s_cmp_lt_u32 s%d, 0x200000", S_T + 1)
            e("s_cbranch_scc1 %s", loop)
            e("s_waitcnt vmcnt(0)")
            a.label(done)
        e("s_mov_b64 exec, s[%d:%d]", S_T + 2, S_T + 3)
        a.label(skip)
```

```python
from core import *
pr = lambda r: "v[%d:%d]" % (r, r + 1)

LDS_COPY = 0
COPY_STRIDE = 4160
COPY_CH = 8 * COPY_STRIDE
LDS_T1, LDS_T2 = 0, 149504
LDS_UB = 66560
UB_CH = 4576
LDS_RAW = 75712
RAW_CH = 4128
LDS_WST = 83968

def setup(c):
    e = c.e; a = c.a
    e("s_cmp_ge_u32 s2, 256")
    e("s_cbranch_scc1 KEND")
    c.st.stamp("real0", real=True)
    c.st.stamp("start")
    e("s_load_dwordx8 s[4:11], s[0:1], 0")
    e("s_load_dwordx4 s[12:15], s[0:1], 32")
    e("s_load_dwordx8 s[16:23], s[0:1], 56")
    e("s_load_dwordx4 s[24:27], s[0:1], 88")
    e("s_load_dwordx2 s[28:29], s[0:1], 104")
    e("v_and_b32 v%d, 63, v0", V_LANE)
    e("v_lshrrev_b32 v29, 6, v0")
    e("v_and_b32 v%d, 15, v%d", V_L16, V_LANE)
    e("v_readfirstlane_b32 s%d, v29", S_W)
    e("v_lshrrev_b32 v%d, 4, v%d", V_G, V_LANE)
    e("s_and_b32 s%d, s2, 7", S_CG)
    e("s_lshr_b32 s%d, s2, 3", S_J)
    if c.opt.get("map", 0) == 0:
        e("s_lshr_b32 s%d, s%d, 1", S_MB, S_CG)
        e("s_lshl_b32 s%d, s%d, 3", S_MB, S_MB)
        e("s_and_b32 s%d, s%d, 7", S_T, S_J)
        e("s_add_u32 s%d, s%d, s%d", S_MB, S_MB, S_T)
        e("s_and_b32 s%d, s%d, 1", S_NB, S_CG)
        e("s_lshl_b32 s%d, s%d, 2", S_NB, S_NB)
        e("s_lshr_b32 s%d, s%d, 3", S_T, S_J)
        e("s_add_u32 s%d, s%d, s%d", S_NB, S_NB, S_T)
    else:
        e("s_lshl_b32 s%d, s%d, 2", S_MB, S_CG)
        e("s_and_b32 s%d, s%d, 3", S_T, S_J)
        e("s_add_u32 s%d, s%d, s%d", S_MB, S_MB, S_T)
        e("s_lshr_b32 s%d, s%d, 2", S_NB, S_J)
    e("s_and_b32 s%d, s%d, 7", S_ROT, S_MB)
    e("s_lshl_b32 s%d, s%d, 1", S_ROT, S_ROT)
    e("s_lshl_b32 s%d, s%d, 1", S_ROT5, S_NB)
    e("s_add_u32 s%d, s%d, s%d", S_ROT5, S_ROT5, S_MB)
    e("s_mul_i32 s%d, s%d, 9363", S_T, S_ROT5)
    e("s_lshr_b32 s%d, s%d, 16", S_T, S_T)
    e("s_mul_i32 s%d, s%d, 7", S_T, S_T)
    e("s_sub_u32 s%d, s%d, s%d", S_ROT5, S_ROT5, S_T)
    rz = c.opt.get("rotz", 0)
    if rz == 0: e("s_mov_b32 s%d, 0", S_ROTZ)
    elif rz == 8: e("s_mov_b32 s%d, s%d", S_ROTZ, S_ROT)
    else:
        e("s_and_b32 s%d, s%d, %d", S_ROTZ, S_MB, rz - 1)
        e("s_lshl_b32 s%d, s%d, %d", S_ROTZ, S_ROTZ, {2: 3, 4: 2}[rz])
    if not c.opt.get("rot", 0): e("s_mov_b32 s%d, 0", S_ROT)
    if not c.opt.get("rot5", 0): e("s_mov_b32 s%d, 0", S_ROT5)
    e("s_waitcnt lgkmcnt(0)")
    c.srd(R_WS, P_WS, L.WS_USED)

def bootstrap_a(c):
    e = c.e; a = c.a
    skip = a.newlabel("boot")
    e("s_cmp_eq_u32 s2, 0")
    e("s_cbranch_scc0 %s", skip)
    e("s_cmp_eq_u32 s%d, 3", S_W)
    e("s_cbranch_scc0 %s", skip)
    e("v_lshlrev_b32 v29, 8, v%d", V_LANE)
    e("v_add_u32 v29, 0x%x, v29", L.FLAGS)
    e("v_mov_b32 v30, 0")
    for i in range(4):
        e("global_store_dword v29, v30, s[%d:%d] sc1", P_WS, P_WS + 1)
        if i < 3: e("v_add_u32 v29, 0x4000, v29")
    a.label(skip)

def bootstrap_b(c):
    e = c.e; a = c.a
    skip = a.newlabel("boot")
    e("s_cmp_eq_u32 s2, 0")
    e("s_cbranch_scc0 %s", skip)
    e("s_cmp_eq_u32 s%d, 3", S_W)
    e("s_cbranch_scc0 %s", skip)
    e("s_waitcnt vmcnt(%d)", len(c.vm.q))
    e("v_mov_b32 v29, 0")
    e("v_mov_b32 v30, 1")
    e("s_mov_b64 s[%d:%d], exec", S_T + 2, S_T + 3)
    e("s_mov_b64 exec, 1")
    e("global_store_dword v29, v30, s[%d:%d] sc1", P_DBG, P_DBG + 1)
    e("s_mov_b64 exec, s[%d:%d]", S_T + 2, S_T + 3)
    a.label(skip)

V_BOOT = 31
def boot_flag_issue(c):
    c.e("v_mov_b32 v%d, 0", V_BOOT)
    c.vm.issue("global_load_dword v%d, v%d, s[%d:%d] sc1" % (V_BOOT, V_BOOT, P_DBG, P_DBG + 1), "boot")

def boot_flag_check(c):
    e = c.e; a = c.a
    skip = a.newlabel("wb"); loop = a.newlabel("wbl"); done = a.newlabel("wbd")
    c.vm.wait("boot")
    e("s_cmp_eq_u32 s%d, 0", S_W)
    e("s_cbranch_scc0 %s", skip)
    e("v_readfirstlane_b32 s%d, v%d", S_T, V_BOOT)
    e("s_mov_b32 s%d, 0", S_T + 1)
    e("s_nop 3")
    e("s_cmp_lg_u32 s%d, 0", S_T)
    e("s_cbranch_scc1 %s", done)
    e("v_mov_b32 v29, 0")
    a.label(loop)
    e("global_load_dword v30, v29, s[%d:%d] sc1", P_DBG, P_DBG + 1)
    e("s_waitcnt vmcnt(0)")
    e("v_readfirstlane_b32 s%d, v30", S_T)
    e("s_nop 3")
    e("s_cmp_lg_u32 s%d, 0", S_T)
    e("s_cbranch_scc1 %s", done)
    e("s_add_u32 s%d, s%d, 1", S_T + 1, S_T + 1)
    e("s_cmp_lt_u32 s%d, 0x200000", S_T + 1)
    e("s_cbranch_scc1 %s", loop)
    a.label(done)
    a.label(skip)

def p1_issue(c):
    e = c.e
    VK, VV, VX, VW, VS = 32, 52, 60, 68, 84
    VO = 92
    e("v_and_b32 v%d, 7, v0", VO)
    e("v_lshrrev_b32 v%d, 3, v0", VO + 1)
    e("s_lshl_b32 s%d, s%d, 16", S_T, S_J)
    e("s_lshl_b32 s%d, s%d, 7", S_T + 1, S_CG)
    e("s_add_u32 s%d, s%d, s%d", S_T, S_T, S_T + 1)
    e("v_lshlrev_b32 v%d, 11, v%d", VO + 2, VO + 1)
    e("v_lshl_add_u32 v%d, v%d, 4, v%d", VO + 2, VO, VO + 2)
    e("v_add_u32 v%d, s%d, v%d", VO + 2, S_T, VO + 2)
    c.srd(R_A, P_SHK, 4096)
    e("s_lshl_b32 s%d, s%d, 9", S_T, S_CG)
    e("v_lshlrev_b32 v%d, 6, v%d", VO + 6, VO)
    e("v_add_u32 v%d, s%d, v%d", VO + 6, S_T, VO + 6)
    c.srd(R_B, P_K, 2 << 20)
    c.srd(R_C, P_V, 2 << 20)
    for i in range(3):
        e("v_subrev_u32 v%d, %d, v%d", VO + 3 + i, (3 - i) * 1024, VO + 2)
    c.bload(VK + 12, 4, VO + 2, R_B, None, 0, "p1k", c.opt.get("nt", ""))
    c.bload(VK + 16, 4, VO + 2, R_B, None, 1024, "p1k", c.opt.get("nt", ""))
    c.bload(VV, 4, VO + 2, R_C, None, 0, "p1v", c.opt.get("nt", ""))
    c.bload(VV + 4, 4, VO + 2, R_C, None, 1024, "p1v", c.opt.get("nt", ""))
    for i in range(3):
        c.bload(VK + 4 * i, 4, VO + 3 + i, R_B, None, 0, "p1k", c.opt.get("nt", ""))
    for i in range(4):
        c.bload(VW + 4 * i, 4, VO + 6, R_A, None, 16 * i, "p1w")

def p1_issue_x(c):
    e = c.e
    VX, VS = 60, 84
    VO = 92
    e("v_lshlrev_b32 v%d, 4, v%d", VO + 7, V_LANE)
    c.srd(R_C, P_Q, 2 << 20)
    c.bload(VX, 4, VO + 2, R_C, None, 0, "p1x", c.opt.get("nt", ""))
    c.bload(VX + 4, 4, VO + 2, R_C, None, 1024, "p1x", c.opt.get("nt", ""))
    e("s_lshl_b32 s%d, s2, 3", S_T)
    e("s_lshl_b32 s%d, s%d, 1", S_T + 1, S_W)
    e("s_add_u32 s%d, s%d, s%d", S_T, S_T, S_T + 1)
    e("s_lshl_b32 s%d, s%d, 10", S_T, S_T)
    c.bload(VS, 4, VO + 7, R_C, S_T, 0, "p1s", c.opt.get("nt", ""))
    c.bload(VS + 4, 4, VO + 7, R_C, S_T, 1024, "p1s", c.opt.get("nt", ""))

def p1_issue_raw(c):
    e = c.e
    VO = 92
    e("v_lshlrev_b32 v%d, 4, v%d", VO + 7, V_LANE)
    c.srd(R_B, P_SSM, 2 << 20)
    e("s_lshl_b32 s%d, s%d, 6", S_T, S_CG)
    e("s_lshl_b32 s%d, s%d, 1", S_T + 1, S_J)
    e("s_add_u32 s%d, s%d, s%d", S_T, S_T, S_T + 1)
    e("s_lshr_b32 s%d, s%d, 1", S_T + 1, S_W)
    e("s_add_u32 s%d, s%d, s%d", S_T, S_T, S_T + 1)
    e("s_lshl_b32 s%d, s%d, 12", S_T, S_T)
    e("s_and_b32 s%d, s%d, 1", S_T + 2, S_W)
    e("s_lshl_b32 s%d, s%d, 11", S_T + 2, S_T + 2)
    e("s_add_u32 s%d, s%d, s%d", S_T, S_T, S_T + 2)
    e("s_mul_i32 s%d, s%d, %d", S_T + 1, S_T + 1, RAW_CH)
    e("s_add_u32 s%d, s%d, s%d", S_T + 1, S_T + 1, S_T + 2)
    c.dma(VO + 7, R_B, S_T, S_T + 1, LDS_RAW + 32, "raw", c.opt.get("nt", ""))
    e("s_add_u32 s%d, s%d, 1024", S_T, S_T)
    c.dma(VO + 7, R_B, S_T, S_T + 1, LDS_RAW + 32 + 1024, "raw", c.opt.get("nt", ""))
    e("v_mov_b32 v%d, 0", VO + 8)
    e("v_mov_b32 v%d, 0", VO + 9)
    e("v_lshrrev_b32 v%d, 2, v0", VO + 10)
    e("v_mul_u32_u24 v%d, %d, v%d", VO + 10, RAW_CH, VO + 10)
    e("v_and_b32 v%d, 3, v0", VO + 11)
    e("v_lshl_add_u32 v%d, v%d, 3, v%d", VO + 10, VO + 11, VO + 10)
    e("v_add_u32 v%d, 0x%x, v%d", VO + 10, LDS_RAW, VO + 10)
    e("v_cmp_gt_u32 vcc, 8, v0")
    e("s_and_saveexec_b64 s[%d:%d], vcc", S_T + 2, S_T + 3)
    c.lg.issue("ds_write_b64 v%d, v[%d:%d]" % (VO + 10, VO + 8, VO + 9))
    e("s_mov_b64 exec, s[%d:%d]", S_T + 2, S_T + 3)
    skip = c.a.newlabel("ubz")
    e("s_cmp_lt_u32 s%d, 2", S_W)
    e("s_cbranch_scc0 %s", skip)
    e("s_mul_i32 s%d, s%d, %d", S_T, S_W, UB_CH)
    e("s_add_u32 s%d, s%d, 0x%x", S_T, S_T, LDS_UB + 4096)
    e("v_lshlrev_b32 v%d, 3, v%d", VO + 10, V_LANE)
    e("v_add_u32 v%d, s%d, v%d", VO + 10, S_T, VO + 10)
    e("v_cmp_gt_u32 vcc, 60, v%d", V_LANE)
    e("s_and_saveexec_b64 s[%d:%d], vcc", S_T + 2, S_T + 3)
    e("ds_write_b64 v%d, v[%d:%d]", VO + 10, VO + 8, VO + 9)
    e("s_mov_b64 exec, s[%d:%d]", S_T + 2, S_T + 3)
    c.a.label(skip)

def p1_kv(c, mid=None):
    e = c.e
    VK, VV, VX, VW, VS = 32, 52, 60, 68, 84
    VO = 92
    KF = 104
    WF = 144
    KS = 176
    VF = 192
    PK = 208
    AD = 224
    c.vm.wait("p1w")
    c.fine("d_loaded")
    if mid: mid()
    for i in range(5):
        for d in range(4):
            e("v_lshlrev_b32 v%d, 16, v%d", KF + 8 * i + 2 * d, VK + 4 * i + d)
            e("v_and_b32 v%d, 0xffff0000, v%d", KF + 8 * i + 2 * d + 1, VK + 4 * i + d)
    for ch in range(8):
        for jj in range(2):
            e("v_lshlrev_b32 v%d, 16, v%d", WF + 8 * (2 * jj) + ch, VW + 2 * ch + jj)
            e("v_and_b32 v%d, 0xffff0000, v%d", WF + 8 * (2 * jj + 1) + ch, VW + 2 * ch + jj)
    for i in range(2):
        for d in range(4):
            e("v_lshlrev_b32 v%d, 16, v%d", VF + 8 * i + 2 * d, VV + 4 * i + d)
            e("v_and_b32 v%d, 0xffff0000, v%d", VF + 8 * i + 2 * d + 1, VV + 4 * i + d)
    for i in range(2):
        for j in range(4):
            for q in range(4):
                dst = KS + 8 * i + 2 * q
                ksrc = KF + 8 * (i + 3 - j) + 2 * q
                wsrc = WF + 8 * j + 2 * q
                if j == 0: e("v_pk_mul_f32 %s, %s, %s", pr(dst), pr(ksrc), pr(wsrc))
                else: e("v_pk_fma_f32 %s, %s, %s, %s", pr(dst), pr(ksrc), pr(wsrc), pr(dst))
    for i in range(2):
        for q in range(4):
            dst = KS + 8 * i + 2 * q
            e("v_pk_mul_f32 %s, %s, %s", pr(dst), pr(dst), pr(VF + 8 * i + 2 * q))
    for ch in range(8):
        e("v_cvt_pk_bf16_f32 v%d, v%d, v%d", PK + ch, KS + 8 + ch, KS + ch)
    e("v_lshlrev_b32 v%d, 2, v%d", AD + 2, VO)
    e("v_xor_b32 v%d, v%d, v%d", AD + 1, VO + 1, AD + 2)
    e("v_sub_u32 v%d, 31, v%d", AD, VO + 1)
    e("v_xor_b32 v%d, v%d, v%d", AD, AD, AD + 2)
    e("v_lshlrev_b32 v%d, 10, v%d", AD + 2, VO)
    e("v_lshl_add_u32 v%d, v%d, 2, v%d", AD, AD, AD + 2)
    e("v_lshl_add_u32 v%d, v%d, 2, v%d", AD + 1, AD + 1, AD + 2)
    for ch in range(8):
        c.lg.issue("ds_write_b32 v%d, v%d offset:%d" % (AD, PK + ch, LDS_T1 + ch * 128))
    c.lg.wait_all()
    e("s_barrier")
    c.fine("d_kv")
    RD = 128
    T = 232
    e("v_lshrrev_b32 v%d, 3, v0", T)
    e("v_lshrrev_b32 v%d, 3, v%d", T + 1, T)
    e("v_and_b32 v%d, 7, v0", T + 2)
    e("v_xor_b32 v%d, v%d, v%d", T + 3, T + 2, T + 1)
    e("v_xor_b32 v%d, 4, v%d", T + 4, T + 3)
    e("v_lshlrev_b32 v%d, 7, v%d", T + 5, T)
    e("v_lshl_add_u32 v%d, v%d, 4, v%d", T + 3, T + 3, T + 5)
    e("v_lshl_add_u32 v%d, v%d, 4, v%d", T + 4, T + 4, T + 5)
    c.lg.issue("ds_read_b128 v[%d:%d], v%d offset:%d" % (RD, RD + 3, T + 3, LDS_T1), "a")
    c.lg.issue("ds_read_b128 v[%d:%d], v%d offset:%d" % (RD + 4, RD + 7, T + 4, LDS_T1 + 4096), "b")
    e("v_lshlrev_b32 v%d, 12, v%d", T + 6, T)
    e("v_lshl_add_u32 v%d, v%d, 4, v%d", T + 6, T + 2, T + 6)
    e("v_add_u32 v%d, 0x20000, v%d", T + 7, T + 6)
    e("s_lshl_b32 s%d, s%d, 18", S_T, S_CG)
    e("s_lshl_b32 s%d, s%d, 7", S_T + 1, S_J)
    e("s_sub_u32 s%d, %d, s%d", S_T + 2, 1984 * 2, S_T + 1)
    e("s_add_u32 s%d, s%d, s%d", S_T + 2, S_T + 2, S_T)
    e("s_add_u32 s%d, s%d, 0x%x", S_T + 2, S_T + 2, L.UREV)
    c.lg.wait("a"); c.bstore(RD, 4, T + 6, R_WS, S_T + 2, 0, "ust", "sc1")
    c.lg.wait("b"); c.bstore(RD + 4, 4, T + 7, R_WS, S_T + 2, 0, "ust", "sc1")

def p1_x(c):
    e = c.e
    VK, VV, VX, VW, VS = 32, 52, 60, 68, 84
    VO = 92
    KF = 104
    WF = 144
    KS = 176
    VF = 192
    PK = 208
    AD = 224
    c.vm.wait("p1x", c.opt.get("nt", ""))
    e("s_mov_b32 s%d, 0x05040100", S_T)
    e("s_mov_b32 s%d, 0x07060302", S_T + 1)
    for ch in range(8):
        e("v_perm_b32 v%d, v%d, v%d, s%d", PK + 8 + ch, VX + 4 + ch // 2, VX + ch // 2, S_T + (ch & 1))
    e("v_lshlrev_b32 v%d, 2, v%d", AD + 2, VO)
    e("v_xor_b32 v%d, v%d, v%d", AD + 1, VO + 1, AD + 2)
    e("v_lshlrev_b32 v%d, 10, v%d", AD + 2, VO)
    e("v_lshl_add_u32 v%d, v%d, 2, v%d", AD + 1, AD + 1, AD + 2)
    e("v_add_u32 v%d, 0x%x, v%d", AD + 1, LDS_T2, AD + 1)
    for ch in range(8):
        c.lg.issue("ds_write_b32 v%d, v%d offset:%d" % (AD + 1, PK + 8 + ch, ch * 128))
    c.vm.wait("p1s", c.opt.get("nt", ""))
    SF = 104
    SA = 120
    for i in range(2):
        for d in range(4):
            e("v_lshlrev_b32 v%d, 16, v%d", SF + 8 * i + 2 * d, VS + 4 * i + d)
            e("v_and_b32 v%d, 0xffff0000, v%d", SF + 8 * i + 2 * d + 1, VS + 4 * i + d)
    for i in range(2):
        e("v_pk_add_f32 %s, %s, %s", pr(SA + 4 * i), pr(SF + 8 * i), pr(SF + 8 * i + 2))
        e("v_pk_add_f32 %s, %s, %s", pr(SA + 4 * i + 2), pr(SF + 8 * i + 4), pr(SF + 8 * i + 6))
    for i in range(2):
        e("v_pk_add_f32 %s, %s, %s", pr(SA + 4 * i), pr(SA + 4 * i), pr(SA + 4 * i + 2))
    for i in range(2):
        e("v_add_f32 v%d, v%d, v%d", SA + 4 * i, SA + 4 * i, SA + 4 * i + 1)
    def wave_sum2(r0, r1, s0, s1):
        for dpp in ("row_shr:1", "row_shr:2", "row_shr:4", "row_shr:8"):
            c.nop(1)
            e("v_add_f32_dpp v%d, v%d, v%d %s row_mask:0xf bank_mask:0xf bound_ctrl:0", r0, r0, r0, dpp)
            e("v_add_f32_dpp v%d, v%d, v%d %s row_mask:0xf bank_mask:0xf bound_ctrl:0", r1, r1, r1, dpp)
        for dpp, m in (("row_bcast:15", "0xa"), ("row_bcast:31", "0xc")):
            c.nop(1)
            e("v_add_f32_dpp v%d, v%d, v%d %s row_mask:%s bank_mask:0xf", r0, r0, r0, dpp, m)
            e("v_add_f32_dpp v%d, v%d, v%d %s row_mask:%s bank_mask:0xf", r1, r1, r1, dpp, m)
        c.nop(1)
        e("v_readlane_b32 s%d, v%d, 63", s0, r0)
        e("v_readlane_b32 s%d, v%d, 63", s1, r1)
    wave_sum2(SA, SA + 4, S_T + 4, S_T + 5)
    c.nop(2)
    e("v_mov_b32 v%d, 0x3b000000", SA + 8)
    e("v_mul_f32 v%d, s%d, v%d", SA + 9, S_T + 4, SA + 8)
    e("v_mul_f32 v%d, s%d, v%d", SA + 10, S_T + 5, SA + 8)
    for i in range(2):
        for q in range(8):
            e("v_sub_f32 v%d, v%d, v%d", SF + 8 * i + q, SF + 8 * i + q, SA + 9 + i)
    for i in range(2):
        e("v_pk_mul_f32 %s, %s, %s", pr(SA + 4 * i), pr(SF + 8 * i), pr(SF + 8 * i))
        for q in range(1, 4):
            e("v_pk_fma_f32 %s, %s, %s, %s", pr(SA + 4 * i), pr(SF + 8 * i + 2 * q), pr(SF + 8 * i + 2 * q), pr(SA + 4 * i))
    for i in range(2):
        e("v_add_f32 v%d, v%d, v%d", SA + 4 * i, SA + 4 * i, SA + 4 * i + 1)
    wave_sum2(SA, SA + 4, S_T + 4, S_T + 5)
    c.nop(2)
    e("v_mov_b32 v%d, 0x3727c5ac", SA + 11)
    e("v_fma_f32 v%d, s%d, v%d, v%d", SA, S_T + 4, SA + 8, SA + 11)
    e("v_fma_f32 v%d, s%d, v%d, v%d", SA + 2, S_T + 5, SA + 8, SA + 11)
    e("v_rsq_f32 v%d, v%d", SA, SA)
    e("v_rsq_f32 v%d, v%d", SA + 2, SA + 2)
    c.nop(1)
    e("v_mul_f32 v%d, v%d, v%d", SA + 1, SA + 9, SA)
    e("v_mul_f32 v%d, v%d, v%d", SA + 3, SA + 10, SA + 2)
    e("v_sub_f32 v%d, 0, v%d", SA + 1, SA + 1)
    e("v_sub_f32 v%d, 0, v%d", SA + 3, SA + 3)
    e("s_lshl_b32 s%d, s%d, 4", S_T, S_W)
    e("s_add_u32 s%d, s%d, 0x%x", S_T, S_T, LDS_T2 + 8192)
    e("v_mov_b32 v%d, s%d", SA + 12, S_T)
    e("s_mov_b64 s[%d:%d], exec", S_T + 2, S_T + 3)
    e("s_mov_b64 exec, 1")
    c.lg.issue("ds_write_b128 v%d, v[%d:%d]" % (SA + 12, SA, SA + 3))
    e("s_mov_b64 exec, s[%d:%d]", S_T + 2, S_T + 3)

def p1_x_store3(c):
    e = c.e
    RD = 128; T = 232
    OOB = 0x40000000
    e("s_sub_u32 s%d, s%d, 1", S_T, S_W)
    e("s_lshl_b32 s%d, s%d, 6", S_T, S_T)
    e("s_cmp_eq_u32 s%d, 0", S_W)
    e("s_cselect_b32 s%d, 0x1000, s%d", S_T, S_T)
    e("s_lshl_b32 s%d, s%d, 18", S_T + 1, S_CG)
    e("s_lshl_b32 s%d, s%d, 7", S_T + 2, S_J)
    e("s_add_u32 s%d, s%d, s%d", S_T + 3, S_T + 1, S_T + 2)
    e("s_add_u32 s%d, s%d, 0x%x", S_T + 3, S_T + 3, L.XT)
    for r in range(3):
        P, D, Q, LA, GO = T, T + 1, T + 2, T + 3, T + 4 + r
        e("v_add_u32 v%d, s%d, v%d", P, S_T, V_LANE)
        if r: e("v_add_u32 v%d, %d, v%d", P, 192 * r, P)
        e("v_lshrrev_b32 v%d, 3, v%d", D, P)
        e("v_and_b32 v%d, 63, v%d", D, D)
        e("v_and_b32 v%d, 7, v%d", Q, P)
        e("v_lshrrev_b32 v%d, 3, v%d", LA, D)
        e("v_xor_b32 v%d, v%d, v%d", LA, LA, Q)
        e("v_lshlrev_b32 v%d, 4, v%d", LA, LA)
        e("v_lshl_add_u32 v%d, v%d, 7, v%d", LA, D, LA)
        e("v_add_u32 v%d, 0x%x, v%d", LA, LDS_T2, LA)
        c.lg.issue("ds_read_b128 v[%d:%d], v%d" % (RD + 4 * r, RD + 4 * r + 3, LA), "x%d" % r)
        e("v_lshlrev_b32 v%d, 12, v%d", GO, D)
        e("v_lshl_add_u32 v%d, v%d, 4, v%d", GO, Q, GO)
        e("v_cmp_gt_u32 vcc, 512, v%d", P)
        e("v_mov_b32 v%d, 0x%x", Q, OOB)
        e("s_nop 0")
        e("v_cndmask_b32 v%d, v%d, v%d, vcc", GO, Q, GO)
    e("v_lshlrev_b32 v%d, 4, v%d", T, V_LANE)
    e("v_and_b32 v%d, 0x70, v%d", T + 1, T)
    e("v_add_u32 v%d, 0x%x, v%d", T + 1, LDS_T2 + 8192, T + 1)
    c.lg.issue("ds_read_b128 v[%d:%d], v%d" % (RD + 12, RD + 15, T + 1), "s")
    for r in range(3):
        c.lg.wait("x%d" % r); c.bstore(RD + 4 * r, 4, T + 4 + r, R_WS, S_T + 3, 0, "xst", "sc1")
    c.lg.wait("s")
    e("v_cmp_gt_u32 vcc, 4, v%d", V_LANE)
    e("s_cmp_eq_u32 s%d, 2", S_W)
    e("s_cselect_b32 s%d, 8, 0", S_T + 1)
    for r in range(4): e("v_cndmask_b32 v%d, 0, v%d, vcc", RD + 12 + r, RD + 12 + r)
    e("v_cmp_gt_u32 vcc, s%d, v%d", S_T + 1, V_LANE)
    e("v_mov_b32 v%d, 0x%x", T + 1, OOB)
    e("s_lshl_b32 s%d, s2, 7", S_T)
    e("v_cndmask_b32 v%d, v%d, v%d, vcc", T, T + 1, T)
    e("s_add_u32 s%d, s%d, 0x%x", S_T, S_T, L.STAT1)
    c.bstore(RD + 12, 4, T, R_WS, S_T, 0, "xst", "sc1")
    e("s_lshl_b32 s%d, s%d, 3", S_T, S_MB)
    e("s_add_u32 s%d, s%d, s%d", S_T, S_T, S_NB)
    e("s_lshl_b32 s%d, s%d, 9", S_T, S_T)
    e("s_add_u32 s%d, s%d, 0x%x", S_T, S_T, L.ZST)
    e("s_cmp_eq_u32 s%d, 1", S_W)
    e("s_cselect_b32 s%d, s%d, 0x%x", S_T, S_T, OOB)
    e("v_lshlrev_b32 v%d, 3, v%d", T + 2, V_LANE)
    e("v_mov_b32 v%d, 0", RD)
    e("v_mov_b32 v%d, -1.0", RD + 1)
    c.bstore(RD, 2, T + 2, R_WS, S_T, 0, "xst", "sc1")

def toeplitz(c):
    e = c.e
    AD = 104
    e("v_lshrrev_b32 v%d, 7, v0", AD)
    e("v_and_b32 v%d, 127, v0", AD + 1)
    e("v_mul_u32_u24 v%d, %d, v%d", AD + 2, RAW_CH, AD)
    e("v_lshl_add_u32 v%d, v%d, 4, v%d", AD + 2, AD + 1, AD + 2)
    e("v_add_u32 v%d, 0x%x, v%d", AD + 2, LDS_RAW, AD + 2)
    e("v_mul_u32_u24 v%d, %d, v%d", AD + 3, COPY_CH, AD)
    e("v_lshl_add_u32 v%d, v%d, 4, v%d", AD + 3, AD + 1, AD + 3)
    sets = [(112, 120, 128, 136), (144, 152, 160, 168), (176, 184, 192, 200)]
    def rd(k, roff):
        R = sets[k][0]
        c.lg.issue("ds_read_b128 v[%d:%d], v%d offset:%d" % (R, R + 3, AD + 2, roff), "r%d" % k)
        c.lg.issue("ds_read_b128 v[%d:%d], v%d offset:%d" % (R + 4, R + 7, AD + 2, roff + 16), "r%d" % k)
    def build(k, woff):
        R, O, AB, AO = sets[k]
        c.lg.wait("r%d" % k)
        for i in range(7):
            e("v_alignbit_b32 v%d, v%d, v%d, 16", AB + i, R + i + 1, R + i)
        for i in range(6):
            e("v_alignbit_b32 v%d, v%d, v%d, 16", AO + i, R + i + 2, R + i + 1)
        for i in range(6):
            e("v_mov_b32 v%d, v%d", O + i, R + i + 1)
        src = {0: AB, 1: O, 2: AO, 3: R + 2, 4: AB + 2, 5: O + 2, 6: AO + 2, 7: R + 4}
        for sft in (3, 7, 0, 4, 1, 5, 2, 6):
            c.lg.issue("ds_write_b128 v%d, v[%d:%d] offset:%d" % (AD + 3, src[sft], src[sft] + 3, LDS_COPY + sft * COPY_STRIDE + woff), "w")
    rd(0, 0); rd(1, 2048); rd(2, 4096)
    build(0, 0)
    build(1, 2048)
    e("v_cmp_eq_u32 vcc, 0, v%d", AD + 1)
    e("s_and_saveexec_b64 s[%d:%d], vcc", S_T + 2, S_T + 3)
    build(2, 4096)
    e("s_mov_b64 exec, s[%d:%d]", S_T + 2, S_T + 3)

P2_X, P2_ST = 200, 208
S_D = 56
def p2_issue_u(c):
    e = c.e
    VO = 32
    e("s_lshl_b32 s%d, s%d, 6", S_T, S_CG)
    e("s_lshl_b32 s%d, s%d, 1", S_T + 1, S_J)
    e("s_add_u32 s%d, s%d, s%d", S_T, S_T, S_T + 1)
    e("s_lshr_b32 s%d, s%d, 1", S_T + 1, S_W)
    e("s_add_u32 s%d, s%d, s%d", S_T, S_T, S_T + 1)
    e("s_lshl_b32 s57, s%d, 12", S_T)
    e("s_and_b32 s%d, s%d, 1", S_T + 2, S_W)
    e("s_lshl_b32 s%d, s%d, 11", S_T + 2, S_T + 2)
    e("s_add_u32 s%d, s57, s%d", S_T + 3, S_T + 2)
    e("s_add_u32 s%d, s%d, 0x%x", S_T + 3, S_T + 3, L.UREV)
    e("s_mul_i32 s%d, s%d, %d", S_T + 1, S_T + 1, UB_CH)
    e("s_add_u32 s%d, s%d, s%d", S_T + 1, S_T + 1, S_T + 2)
    e("v_lshlrev_b32 v%d, 4, v%d", VO, V_LANE)
    c.dma(VO, R_WS, S_T + 3, S_T + 1, LDS_UB, "ub", "sc1")
    e("s_add_u32 s%d, s%d, 1024", S_T + 3, S_T + 3)
    c.dma(VO, R_WS, S_T + 3, S_T + 1, LDS_UB + 1024, "ub", "sc1")

def load_D_issue(c):
    e = c.e
    e("s_lshl_b32 s%d, s%d, 6", S_T, S_CG)
    e("s_lshl_b32 s%d, s%d, 1", S_T + 1, S_J)
    e("s_add_u32 s%d, s%d, s%d", S_T, S_T, S_T + 1)
    e("s_lshl_b32 s%d, s%d, 1", S_T, S_T)
    e("s_load_dword s%d, s[%d:%d], s%d", S_D, P_D, P_D + 1, S_T)

def load_D_finish(c):
    e = c.e
    c.lg.wait_all()
    e("s_lshl_b32 s%d, s%d, 16", S_T, S_D)
    e("s_and_b32 s%d, s%d, 0xffff0000", S_T + 1, S_D)
    e("s_cmp_lt_u32 s%d, 2", S_W)
    e("s_cselect_b32 s%d, s%d, s%d", S_D, S_T, S_T + 1)

LDS_ST = 98304
LDS_RED2 = 114688
def p2_stats_ops(c):
    e = c.e
    e("v_lshlrev_b32 v33, 5, v%d", V_L16)
    e("v_lshl_add_u32 v33, v%d, 3, v33", V_G)
    e("s_and_b32 s%d, s%d, 1", S_T, S_W)
    e("s_lshl_b32 s60, s%d, 11", S_T)
    e("s_add_u32 s60, s60, s57")
    e("s_add_u32 s60, s60, 0x%x", L.XT)
    e("v_and_b32 v39, 7, v%d", V_LANE)
    e("v_lshlrev_b32 v39, 8, v39")
    e("v_bfe_u32 v38, v%d, 4, 1", V_LANE)
    e("v_lshl_add_u32 v39, v38, 7, v39")
    e("v_bfe_u32 v38, v%d, 3, 1", V_LANE)
    e("v_lshl_add_u32 v39, v38, 5, v39")
    e("v_lshrrev_b32 v38, 5, v%d", V_LANE)
    e("v_lshl_add_u32 v39, v38, 4, v39")
    e("s_lshl_b32 s61, s%d, 12", S_W)
    e("s_lshl_b32 s62, s%d, 13", S_W)
    e("s_add_u32 s62, s62, 0x%x", L.STAT1)
    out = []
    for i in range(4):
        def f(i=i):
            c.e("s_add_u32 s%d, s62, %d", S_T, 2048 * i)
            c.dma(39, R_WS, S_T, 61, LDS_ST + 1024 * i, "stat", "sc1")
        out.append(f)
    for b in range(4):
        out.append(lambda b=b: c.bload(P2_X + 2 * b, 2, 33, R_WS, 60, 512 * b, "x", "sc1"))
    return out

def p2_stats_read(c):
    e = c.e
    e("v_and_b32 v32, 7, v%d", V_L16)
    e("v_lshlrev_b32 v32, 4, v32")
    e("v_lshl_add_u32 v32, v%d, 7, v32", V_G)
    e("v_lshrrev_b32 v33, 3, v%d", V_L16)
    e("v_lshl_add_u32 v32, v33, 10, v32")
    e("s_and_b32 s%d, s%d, 1", S_T, S_W)
    e("s_lshl_b32 s%d, s%d, 13", S_T, S_T)
    e("s_add_u32 s%d, s%d, 0x%x", S_T, S_T, LDS_ST)
    e("v_add_u32 v32, s%d, v32", S_T)
    for b in range(4):
        c.lg.issue("ds_read_b128 v[%d:%d], v32 offset:%d" % (P2_ST + 8 * b, P2_ST + 8 * b + 3, 2048 * b), "st2")
        c.lg.issue("ds_read_b128 v[%d:%d], v32 offset:%d" % (P2_ST + 8 * b + 4, P2_ST + 8 * b + 7, 2048 * b + 512), "st2")

def p2_main(c, hooks=None, inter=None):
    e = c.e; hooks = hooks or {}; inter = inter or {}
    FR = [40, 104]
    ACC = 168
    VA, VB = 34, 35
    e("v_and_b32 v%d, 7, v%d", VA, V_LANE)
    e("v_mul_u32_u24 v%d, %d, v%d", VA, COPY_STRIDE, VA)
    e("v_bfe_u32 v%d, v%d, 3, 1", VB, V_LANE)
    e("v_add_u32 v%d, v%d, v%d", VB, VB, V_G)
    e("v_lshl_add_u32 v%d, v%d, 4, v%d", VA, VB, VA)
    e("s_lshr_b32 s%d, s%d, 1", S_T, S_W)
    e("s_and_b32 s%d, s%d, 1", S_T + 1, S_W)
    e("s_mul_i32 s%d, s%d, %d", S_T + 2, S_T, COPY_CH)
    e("s_lshl_b32 s%d, s%d, 8", S_T + 3, S_T + 1)
    e("s_add_u32 s%d, s%d, s%d", S_T + 2, S_T + 2, S_T + 3)
    e("v_add_u32 v%d, s%d, v%d", VA, S_T + 2, VA)
    e("s_mul_i32 s%d, s%d, %d", S_T + 2, S_T, UB_CH)
    e("s_add_u32 s%d, s%d, s%d", S_T + 2, S_T + 2, S_T + 3)
    e("s_add_u32 s%d, s%d, %d", S_T + 2, S_T + 2, LDS_UB + 480)
    e("v_lshlrev_b32 v%d, 4, v%d", VB, V_G)
    e("v_lshlrev_b32 v36, 5, v%d", V_L16)
    e("v_sub_u32 v%d, v%d, v36", VB, VB)
    e("v_add_u32 v%d, s%d, v%d", VB, S_T + 2, VB)
    def reads(i):
        f = FR[i & 1]; out = []
        for x in range(8):
            out.append("ds_read_b128 v[%d:%d], v%d offset:%d" % (f + 4 * x, f + 4 * x + 3, VA, LDS_COPY + 64 * (i + 8 * x)))
            out.append("ds_read_b128 v[%d:%d], v%d offset:%d" % (f + 32 + 4 * x, f + 32 + 4 * x + 3, VB, 64 * i + 512 * (7 - x)))
        return out
    for r in reads(0): c.lg.issue(r)
    for i in range(4):
        c.lg.wait_all()
        f = FR[i & 1]
        nxt = reads(i + 1) if i < 3 else []
        m = 0
        for aa in range(8):
            for b in range(aa, 8):
                cc = "0" if (i == 0 and aa == 0) else "v[%d:%d]" % (ACC + 4 * b, ACC + 4 * b + 3)
                e("v_mfma_f32_16x16x32_bf16 v[%d:%d], v[%d:%d], v[%d:%d], %s", ACC + 4 * b, ACC + 4 * b + 3,
                  f + 4 * aa, f + 4 * aa + 3, f + 32 + 4 * (b - aa), f + 32 + 4 * (b - aa) + 3, cc)
                if m % 2 == 1 and nxt: c.lg.issue(nxt.pop(0))
                if m % (3 if i == 0 else 4) == 0 and inter.get(i): inter[i].pop(0)()
                m += 1
        while nxt: c.lg.issue(nxt.pop(0))
        while inter.get(i): inter[i].pop(0)()
        if i in hooks: hooks[i]()

def p2_epilogue(c):
    e = c.e; a = c.a
    ACC = 168; FIN = 40; TMP = 56; VO = 36
    LDS_RED = 0
    c.lg.wait_all()
    e("v_lshlrev_b32 v%d, 4, v%d", VO, V_LANE)
    e("s_lshl_b32 s%d, s%d, 12", S_T, S_W)
    e("s_add_u32 s%d, s%d, %d", S_T, S_T, LDS_RED2)
    e("v_add_u32 v%d, s%d, v%d", VO + 1, S_T, VO)
    e("s_xor_b32 s%d, s%d, 1", S_T + 1, S_W)
    e("s_lshl_b32 s%d, s%d, 12", S_T + 1, S_T + 1)
    e("s_add_u32 s%d, s%d, %d", S_T + 1, S_T + 1, LDS_RED2)
    e("v_add_u32 v%d, s%d, v%d", VO + 2, S_T + 1, VO)
    c.nop(3)
    l1 = a.newlabel("hf1"); l2 = a.newlabel("hfd")
    e("s_and_b32 s%d, s%d, 1", S_T, S_W)
    e("s_cmp_eq_u32 s%d, 1", S_T)
    e("s_cbranch_scc1 %s", l1)
    for hf, lab in ((0, None), (1, l1)):
        if lab: a.label(lab)
        own = range(4 * hf, 4 * hf + 4); exp = range(4 * (1 - hf), 4 * (1 - hf) + 4)
        for x, b in enumerate(exp):
            e("ds_write_b128 v%d, v[%d:%d] offset:%d", VO + 1, ACC + 4 * b, ACC + 4 * b + 3, LDS_RED + 1024 * x)
        for x, b in enumerate(own):
            for r in range(4):
                e("v_mov_b32 v%d, v%d", FIN + 4 * x + r, ACC + 4 * b + r)
        if hf == 0: e("s_branch %s", l2)
    a.label(l2)
    c.bg(2)
    c.vm.wait("stat")
    e("s_waitcnt lgkmcnt(0)")
    e("s_barrier")
    p2_stats_read(c)
    c.bg(2)
    for x in range(4):
        c.lg.issue("ds_read_b128 v[%d:%d], v%d offset:%d" % (TMP + 4 * x, TMP + 4 * x + 3, VO + 2, LDS_RED + 1024 * x), "red")
    e("s_lshr_b32 s%d, s%d, 1", S_T, S_W)
    e("s_mul_i32 s%d, s%d, %d", S_T, S_T, UB_CH)
    e("s_and_b32 s%d, s%d, 1", S_T + 1, S_W)
    e("s_lshl_b32 s%d, s%d, 11", S_T + 1, S_T + 1)
    e("s_sub_u32 s%d, s%d, s%d", S_T, S_T, S_T + 1)
    e("s_add_u32 s%d, s%d, %d", S_T, S_T, LDS_UB + 4088 - 1536)
    e("v_lshlrev_b32 v%d, 5, v%d", VO + 3, V_L16)
    e("v_lshl_add_u32 v%d, v%d, 3, v%d", VO + 3, V_G, VO + 3)
    e("v_sub_u32 v%d, s%d, v%d", VO + 3, S_T, VO + 3)
    U = 72
    for b in range(4):
        c.lg.issue("ds_read_b64 v[%d:%d], v%d offset:%d" % (U + 2 * b, U + 2 * b + 1, VO + 3, 512 * (3 - b)), "u")
    c.lg.wait("red")
    for x in range(4):
        for q in range(2):
            e("v_pk_add_f32 %s, %s, %s", pr(FIN + 4 * x + 2 * q), pr(FIN + 4 * x + 2 * q), pr(TMP + 4 * x + 2 * q))
    c.lg.wait("u")
    c.vm.wait("x")
    UF = 80; XF = 84; XN = 88; OUT = 96
    for b in range(4):
        e("v_and_b32 v%d, 0xffff0000, v%d", UF + 0, U + 2 * b + 1)
        e("v_lshlrev_b32 v%d, 16, v%d", UF + 1, U + 2 * b + 1)
        e("v_and_b32 v%d, 0xffff0000, v%d", UF + 2, U + 2 * b)
        e("v_lshlrev_b32 v%d, 16, v%d", UF + 3, U + 2 * b)
        c.bg(1)
        e("v_lshlrev_b32 v%d, 16, v%d", XF + 0, P2_X + 2 * b)
        e("v_and_b32 v%d, 0xffff0000, v%d", XF + 1, P2_X + 2 * b)
        e("v_lshlrev_b32 v%d, 16, v%d", XF + 2, P2_X + 2 * b + 1)
        e("v_and_b32 v%d, 0xffff0000, v%d", XF + 3, P2_X + 2 * b + 1)
        for r in range(4):
            e("v_fma_f32 v%d, s%d, v%d, v%d", FIN + 4 * b + r, S_D, UF + r, FIN + 4 * b + r)
        c.bg(1)
        for r in range(4):
            e("v_fma_f32 v%d, v%d, v%d, v%d", XN + r, P2_ST + 8 * b + 2 * r, XF + r, P2_ST + 8 * b + 2 * r + 1)
        for r in range(4):
            e("v_fma_f32 v%d, v%d, v%d, v%d", XN + r, XN + r, FIN + 4 * b + r, XF + r)
        e("v_cvt_pk_bf16_f32 v%d, v%d, v%d", OUT + 2 * b, XN, XN + 1)
        e("v_cvt_pk_bf16_f32 v%d, v%d, v%d", OUT + 2 * b + 1, XN + 2, XN + 3)
        c.bg(1)
    e("v_and_b32 v%d, 1, v%d", VO, V_G)
    e("v_lshlrev_b32 v%d, 9, v%d", VO, VO)
    e("v_lshl_add_u32 v%d, v%d, 5, v%d", VO, V_L16, VO)
    e("v_lshrrev_b32 v%d, 1, v%d", VO + 1, V_G)
    e("v_lshl_add_u32 v%d, v%d, 4, v%d", VO, VO + 1, VO)
    e("s_and_b32 s%d, s%d, 1", S_T, S_W)
    e("s_lshl_b32 s%d, s%d, 11", S_T, S_T)
    e("s_add_u32 s%d, s%d, s57", S_T, S_T)
    e("s_add_u32 s%d, s%d, 0x%x", S_T, S_T, L.HT)
    for p in range(2):
        o = OUT + 4 * p
        c.nop(2)
        e("v_permlane16_swap_b32 v%d, v%d", o, o + 2)
        e("v_permlane16_swap_b32 v%d, v%d", o + 1, o + 3)
        c.bstore(o, 4, VO, R_WS, S_T, 1024 * p, "st", "sc1")
```

```python
from core import *
import ph12

pr = lambda r: "v[%d:%d]" % (r, r + 1)
A0 = 256

LDS_WP = 83968
LDS_WOP = 83968 + 7168
def wpre_issue(c):
    e = c.e
    V = 240
    c.srd(R_A, P_WIN, 512 * 3584)
    e("s_and_b32 s%d, s2, 15", S_T)
    e("s_mul_i32 s%d, s%d, %d", S_T, S_T, 32 * 3584)
    e("s_lshr_b32 s%d, s2, 4", S_T + 1)
    e("s_mul_i32 s%d, s%d, 224", S_T + 1, S_T + 1)
    e("s_add_u32 s%d, s%d, s%d", S_T + 4, S_T, S_T + 1)
    for it in range(2):
        e("s_add_u32 s%d, s%d, %d", S_T, S_W, 4 * it)
        e("s_lshl_b32 s%d, s%d, 6", S_T + 1, S_T)
        e("v_add_u32 v%d, s%d, v%d", V, S_T + 1, V_LANE)
        e("v_mul_u32_u24 v%d, 4682, v%d", V + 1, V)
        e("v_lshrrev_b32 v%d, 16, v%d", V + 1, V + 1)
        e("v_mul_u32_u24 v%d, 14, v%d", V + 2, V + 1)
        e("v_sub_u32 v%d, v%d, v%d", V + 2, V, V + 2)
        e("v_mul_u32_u24 v%d, 3584, v%d", V + 1, V + 1)
        e("v_lshl_add_u32 v%d, v%d, 4, v%d", V + 1, V + 2, V + 1)
        e("v_cmp_gt_u32 vcc, 448, v%d", V)
        e("v_mov_b32 v%d, 0x40000000", V + 2)
        e("s_lshl_b32 s%d, s%d, 10", S_T + 1, S_T)
        e("v_cndmask_b32 v%d, v%d, v%d, vcc", V + 3 + it, V + 2, V + 1)
        e("s_cmp_eq_u32 s%d, 7", S_T)
        e("s_cselect_b32 s%d, 0x3000, s%d", S_T + 1, S_T + 1)
        c.dma(V + 3 + it, R_A, S_T + 4, S_T + 1, LDS_WP, "wp", c.opt.get("nt", ""))
    c.srd(R_B, P_WOUT, 896 * 1024)
    e("s_mul_i32 s%d, s2, 2341", S_T)
    e("s_lshr_b32 s%d, s%d, 16", S_T, S_T)
    e("s_mul_i32 s%d, s%d, 28", S_T + 1, S_T)
    e("s_sub_u32 s%d, s2, s%d", S_T + 1, S_T + 1)
    e("s_lshl_b32 s%d, s%d, 15", S_T + 2, S_T + 1)
    e("s_lshl_b32 s%d, s%d, 7", S_T + 3, S_T)
    e("s_add_u32 s%d, s%d, s%d", S_T + 2, S_T + 2, S_T + 3)
    e("s_lshl_b32 s%d, s%d, 13", S_T + 3, S_W)
    e("s_add_u32 s%d, s%d, s%d", S_T + 2, S_T + 2, S_T + 3)
    e("s_cmp_ge_u32 s2, 224")
    e("s_cselect_b32 s%d, 0x40000000, s%d", S_T + 2, S_T + 2)
    e("v_lshrrev_b32 v%d, 3, v%d", V, V_LANE)
    e("v_lshlrev_b32 v%d, 10, v%d", V, V)
    e("v_and_b32 v%d, 7, v%d", V + 1, V_LANE)
    e("v_lshlrev_b32 v%d, 1, v%d", V + 2, V_G)
    e("v_xor_b32 v%d, v%d, v%d", V + 1, V + 1, V + 2)
    e("v_lshl_add_u32 v%d, v%d, 4, v%d", V, V + 1, V)
    e("s_lshl_b32 s%d, s%d, 10", S_T + 3, S_W)
    c.dma(V, R_B, S_T + 2, S_T + 3, LDS_WOP, "wp", c.opt.get("nt", ""))

def wpre_store3(c):
    e = c.e; a = c.a
    V = 240; F = 176
    e("v_lshrrev_b32 v%d, 2, v%d", V, V_L16)
    e("v_lshl_add_u32 v%d, v%d, 2, v%d", V, V_G, V)
    e("v_mul_u32_u24 v%d, 224, v%d", V + 1, V)
    e("v_and_b32 v%d, 3, v%d", V + 2, V_LANE)
    e("v_lshl_add_u32 v%d, v%d, 3, v%d", V + 1, V + 2, V + 1)
    e("v_add_u32 v%d, 0x%x, v%d", V + 1, LDS_WP, V + 1)
    e("v_lshlrev_b32 v%d, 7, v%d", V + 2, V)
    e("v_and_b32 v%d, 1, v%d", V + 3, V_LANE)
    e("v_lshl_add_u32 v%d, v%d, 3, v%d", V + 2, V + 3, V + 2)
    e("v_bfe_u32 v%d, v%d, 1, 1", V + 3, V_LANE)
    e("v_lshl_add_u32 v%d, v%d, 4, v%d", V + 2, V + 3, V + 2)
    e("v_add_u32 v%d, 0x%x, v%d", V + 2, LDS_WOP, V + 2)
    e("v_and_b32 v%d, 1, v%d", V + 3, V_G)
    e("v_lshlrev_b32 v%d, 2, v%d", V + 3, V + 3)
    e("v_bfe_u32 v%d, v%d, 3, 1", V, V_LANE)
    e("v_lshl_add_u32 v%d, v%d, 1, v%d", V + 3, V, V + 3)
    e("v_lshlrev_b32 v%d, 4, v%d", V, V_LANE)
    e("s_lshr_b32 s52, s2, 4")
    e("s_mul_i32 s52, s52, 112")
    e("s_and_b32 s%d, s2, 15", S_T)
    e("s_add_u32 s52, s52, s%d", S_T)
    e("s_lshl_b32 s52, s52, 10")
    e("s_add_u32 s52, s52, 0x%x", L.WINF)
    e("s_mul_i32 s%d, s2, 2341", S_T)
    e("s_lshr_b32 s%d, s%d, 16", S_T, S_T)
    e("s_mul_i32 s%d, s%d, 28", S_T + 1, S_T)
    e("s_sub_u32 s%d, s2, s%d", S_T + 1, S_T + 1)
    e("s_mul_i32 s53, s%d, 112", S_T)
    e("s_add_u32 s53, s53, s%d", S_T + 1)
    e("s_lshl_b32 s53, s53, 10")
    e("s_add_u32 s53, s53, 0x%x", L.WOUTF)
    e("s_cmp_ge_u32 s2, 224")
    e("s_cselect_b32 s53, 0x40000000, s53")
    e("s_sub_u32 s54, s%d, 1", S_W)
    e("s_lshl_b32 s54, s54, 2")
    e("s_cmp_eq_u32 s%d, 0", S_W)
    e("s_cselect_b32 s54, 11, s54")
    for sl in range(4):
        isw = a.newlabel("wq"); done = a.newlabel("wqd")
        f = F + 4 * sl
        e("s_add_u32 s55, s54, %d", sl)
        e("s_cmp_lt_u32 s55, 7")
        e("s_cbranch_scc1 %s", isw)
        e("s_sub_u32 s55, s55, 7")
        e("s_lshl_b32 s%d, s55, 1", S_T)
        e("s_and_b32 s%d, s%d, 7", S_T, S_T)
        e("v_xor_b32 v%d, s%d, v%d", V + 4, S_T, V + 3)
        e("v_lshl_add_u32 v%d, v%d, 4, v%d", V + 4, V + 4, V + 2)
        e("ds_read_b64_tr_b16 v[%d:%d], v%d", f, f + 1, V + 4)
        e("ds_read_b64_tr_b16 v[%d:%d], v%d offset:2048", f + 2, f + 3, V + 4)
        e("s_mul_i32 s%d, s55, %d", 60 + sl, 28 * 1024)
        e("s_add_u32 s%d, s%d, s53", 60 + sl, 60 + sl)
        e("s_cmp_ge_u32 s55, 4")
        e("s_cselect_b32 s%d, 0x40000000, s%d", 60 + sl, 60 + sl)
        e("s_branch %s", done)
        a.label(isw)
        e("s_lshl_b32 s%d, s55, 5", S_T)
        e("v_add_u32 v%d, s%d, v%d", V + 4, S_T, V + 1)
        e("ds_read_b64_tr_b16 v[%d:%d], v%d", f, f + 1, V + 4)
        e("ds_read_b64_tr_b16 v[%d:%d], v%d offset:%d", f + 2, f + 3, V + 4, 16 * 224)
        e("s_lshl_b32 s%d, s55, 14", 60 + sl)
        e("s_add_u32 s%d, s%d, s52", 60 + sl, 60 + sl)
        a.label(done)
    c.lg.wait_all()
    for sl in range(4):
        c.bstore(F + 4 * sl, 4, V, R_WS, 60 + sl, 0, "wst", "sc1")

class WLoader:
    V0, V1 = 240, 241
    S0 = 58
    def __init__(self, c):
        self.c = c; self.issued = 0
    def setup(self):
        c = self.c; e = c.e
        e("v_lshlrev_b32 v%d, 4, v%d", self.V0, V_LANE)
        e("v_add_u32 v%d, 0x40000000, v%d", self.V1, self.V0)
        e("s_cmp_eq_u32 s%d, 3", S_W)
        e("s_cselect_b64 vcc, -1, 0")
        e("v_cndmask_b32 v%d, v%d, v%d, vcc", self.V1, self.V0, self.V1)
        e("s_mul_i32 s59, s%d, 7", S_NB)
        e("s_lshl_b32 s%d, s%d, 1", S_T, S_W)
        e("s_add_u32 s59, s59, s%d", S_T)
        e("s_lshl_b32 s59, s59, 14")
        e("s_add_u32 s59, s59, 0x%x", L.WINF)
        e("s_add_u32 s58, s59, %d", 56 * 16384)
    def loads(self, k0, k1):
        c = self.c; out = []
        for ks in range(k0, k1):
            for slot in range(4):
                def f(ks=ks, slot=slot):
                    base = 58 if slot < 2 else 59
                    if slot == 0:
                        c.e("s_add_u32 s%d, s%d, %d", S_X0, S_ROT, ks)
                        c.e("s_and_b32 s%d, s%d, 15", S_X0, S_X0)
                        c.e("s_lshl_b32 s%d, s%d, 10", S_X0, S_X0)
                    c.e("s_add_u32 s%d, s%d, s%d", S_T, base, S_X0)
                    if slot & 1: c.e("s_add_u32 s%d, s%d, 16384", S_T, S_T)
                    c.bload(A0 + (ks * 4 + slot) * 4, 4, self.V1 if (slot & 1) else self.V0, R_WS, S_T, 0, "W%d" % ks, "sc1")
                out.append(f)
        return out
    def colsum_prep(self):
        for r in range(4): self.c.e("v_mov_b32 v%d, 0x3f803f80", 244 + r)
        self.c.nop(2)
    def colsum(self, k0, k1):
        c = self.c; e = c.e
        c.vm.wait("W%d" % (k1 - 1))
        for ks in range(k0, k1):
            for slot in range(4):
                cc = "0" if ks == 0 else "v[%d:%d]" % (V_CS + 4 * slot, V_CS + 4 * slot + 3)
                e("v_mfma_f32_16x16x32_bf16 v[%d:%d], %s, v[244:247], %s", V_CS + 4 * slot, V_CS + 4 * slot + 3, rr(A0 + (ks * 4 + slot) * 4, 4), cc)

LDS_H = 0
LDS_WSPST = 0
LDS_ZT = 16384
LDS_ZS = 36864
LDS_HST = 126976
LDS_ZROW = 45056
LDS_Z1 = 0
LDS_RED4 = 65536

P3_ACC = 32
P3_HF = 96
P3_AS, P3_AG = 128, 132
P3_RD = 136
P3_ONE = 140

def p3_issue_h(c):
    e = c.e
    V = 148
    e("v_lshrrev_b32 v%d, 3, v%d", V, V_LANE)
    e("v_lshlrev_b32 v%d, 12, v%d", V, V)
    e("v_and_b32 v%d, 7, v%d", V + 1, V_LANE)
    e("v_lshlrev_b32 v%d, 1, v%d", V + 2, V_G)
    e("v_xor_b32 v%d, v%d, v%d", V + 1, V + 1, V + 2)
    e("v_lshl_add_u32 v%d, v%d, 4, v%d", V, V + 1, V)
    e("s_lshl_b32 s60, s%d, 7", S_MB)
    e("s_add_u32 s60, s60, 0x%x", L.HT)
    e("s_lshl_b32 s61, s%d, 12", S_W)
    ops = []
    for ch in range(4):
        for i in range(4):
            def f(ch=ch, i=i):
                if i == 0:
                    e("s_add_u32 s62, s%d, %d", S_W, 4 * ch)
                    e("s_add_u32 s62, s62, s%d", S_ROT)
                    e("s_and_b32 s62, s62, 15")
                    e("s_lshl_b32 s62, s62, 17")
                    e("s_add_u32 s62, s62, s60")
                e("s_add_u32 s%d, s62, 0x%x", S_T, 8 * i * 4096)
                c.dma(V, R_WS, S_T, 61, LDS_H + ch * 16384 + i * 1024, "h%d" % ch, "sc1")
            ops.append(f)
    return ops

def h_addr(c, dst, jrot):
    pass

def p3_setup(c):
    e = c.e
    T = 144
    e("v_lshrrev_b32 v%d, 2, v%d", T, V_L16)
    e("v_lshl_add_u32 v%d, v%d, 2, v%d", T + 1, V_G, T)
    e("v_lshlrev_b32 v%d, 7, v%d", T + 1, T + 1)
    e("v_and_b32 v%d, 1, v%d", T + 2, V_LANE)
    e("v_lshl_add_u32 v%d, v%d, 3, v%d", T + 1, T + 2, T + 1)
    e("v_bfe_u32 v%d, v%d, 1, 1", T + 2, V_LANE)
    e("v_lshl_add_u32 v%d, v%d, 4, v%d", T + 1, T + 2, T + 1)
    e("v_and_b32 v%d, 1, v%d", T + 2, V_G)
    e("v_lshlrev_b32 v%d, 2, v%d", T + 2, T + 2)
    e("v_lshrrev_b32 v%d, 1, v%d", T + 3, T)
    e("v_lshl_add_u32 v%d, v%d, 1, v%d", T + 2, T + 3, T + 2)
    for j in range(4):
        e("s_add_u32 s%d, s%d, %d", S_T, S_W, j)
        e("s_and_b32 s%d, s%d, 3", S_T, S_T)
        e("s_lshl_b32 s%d, s%d, 1", S_T, S_T)
        e("v_xor_b32 v%d, s%d, v%d", T + 3, S_T, T + 2)
        e("v_lshl_add_u32 v%d, v%d, 4, v%d", P3_RD + j, T + 3, T + 1)
    for r in range(4): e("v_mov_b32 v%d, 0x3f803f80", P3_ONE + r)

P3_SF = 164
def p3_main(c, hooks=None, inter=None, late_cs=16, tailops=None):
    e = c.e; hooks = hooks or {}; inter = inter or {}
    def reads(ks):
        f = P3_HF + 16 * (ks & 1); out = []
        for j in range(4):
            for hh in range(2):
                out.append("ds_read_b64_tr_b16 v[%d:%d], v%d offset:%d" % (f + 4 * j + 2 * hh, f + 4 * j + 2 * hh + 1, P3_RD + j, LDS_H + ks * 4096 + hh * 2048))
        return out
    def sreads(kk):
        f = P3_SF + 4 * (kk & 7)
        return ["ds_read_b64_tr_b16 v[%d:%d], v%d offset:%d" % (f + 2 * hh, f + 2 * hh + 1, P3_RD, LDS_H + kk * 4096 + hh * 2048) for hh in range(2)]
    def smfma(kk):
        f = P3_SF + 4 * (kk & 7)
        cs = "0" if kk == 0 else "v[%d:%d]" % (P3_AS, P3_AS + 3)
        cg = "0" if kk == 0 else "v[%d:%d]" % (P3_AG, P3_AG + 3)
        e("v_mfma_f32_16x16x32_bf16 v[%d:%d], v[%d:%d], v[%d:%d], %s", P3_AS, P3_AS + 3, P3_ONE, P3_ONE + 3, f, f + 3, cs)
        e("v_mfma_f32_16x16x32_bf16 v[%d:%d], v[%d:%d], v[%d:%d], %s", P3_AG, P3_AG + 3, f, f + 3, f, f + 3, cg)
    for ks in range(16):
        if ks == 0:
            c.vm.wait("h0")
            c.lg.wait_all()
            e("s_barrier")
            for r in reads(0): c.lg.issue(r, "hf0")
        if ks == 3:
            c.vm.wait("h1" if c.opt.get("hsplit", 0) else "h3")
            e("s_barrier")
        if ks == 5 and c.opt.get("hsplit", 0):
            c.vm.wait("h3")
            e("s_barrier")
        c.vm.wait("W%d" % ks)
        c.lg.wait("hf%d" % ks)
        if 4 <= ks <= 7: c.lg.wait("sf%d" % ks)
        if ks in (1, 4, 10): c.fine("p3k%d" % ks)
        f = P3_HF + 16 * (ks & 1)
        nxt = [(r, "hf%d" % (ks + 1)) for r in reads(ks + 1)] if ks < 15 else []
        if 3 <= ks <= 6:
            i = ks - 3
            nxt = nxt + [(r, "sf%d" % (ks + 1)) for kk in range(4 * i, 4 * i + 4) for r in sreads(kk)]
        ops = list(inter.get(ks, []))
        m = 0
        for slot in range(4):
            for j in range(4):
                acc = P3_ACC + (slot * 4 + j) * 4
                cc = "0" if ks == 0 else "v[%d:%d]" % (acc, acc + 3)
                e("v_mfma_f32_16x16x32_bf16 v[%d:%d], %s, v[%d:%d], %s", acc, acc + 3, rr(A0 + (ks * 4 + slot) * 4, 4), f + 4 * j, f + 4 * j + 3, cc)
                if nxt:
                    r, t = nxt.pop(0); c.lg.issue(r, t)
                if m % 4 == 1 and ops: ops.pop(0)()
                m += 1
        while nxt:
            r, t = nxt.pop(0); c.lg.issue(r, t)
        while ops: ops.pop(0)()
        if 4 <= ks <= 7:
            i = ks - 4
            for kk in range(4 * i, 4 * i + 4): smfma(kk)
        if ks >= late_cs:
            for slot in range(4):
                e("v_mfma_f32_16x16x32_bf16 v[%d:%d], %s, v[244:247], v[%d:%d]", V_CS + 4 * slot, V_CS + 4 * slot + 3, rr(A0 + (ks * 4 + slot) * 4, 4), V_CS + 4 * slot, V_CS + 4 * slot + 3)
        for f_ in (tailops or {}).get(ks, []): f_()
        if ks == 8: p3_hstats_a(c)
        if ks == 9: p3_hstats_b(c)
        if ks in hooks: hooks[ks]()
    e("s_lshr_b32 s%d, s%d, 1", S_T, S_NB)
    e("s_lshl_b32 s%d, s%d, 2", S_T, S_T)
    e("s_add_u32 s%d, s%d, s%d", S_T, S_T, S_W)
    e("s_sub_u32 s%d, s%d, s%d", S_T, S_T, S_ROT)
    e("s_and_b32 s%d, s%d, 15", S_T, S_T)
    e("s_lshl_b32 s%d, s%d, 12", S_T, S_T)
    for u in range(2):
        e("s_and_b32 s%d, s%d, 1", S_T + 1, S_NB)
        e("s_lshl_b32 s%d, s%d, 1", S_T + 1, S_T + 1)
        e("s_add_u32 s%d, s%d, %d", S_T + 1, S_T + 1, u)
        e("s_xor_b32 s%d, s%d, s%d", S_T + 1, S_T + 1, S_W)
        e("s_lshl_b32 s%d, s%d, 5", S_T + 1, S_T + 1)
        e("v_xor_b32 v%d, s%d, v%d", 144 + u, S_T + 1, P3_RD)
        e("v_add_u32 v%d, s%d, v%d", 144 + u, S_T, 144 + u)
    for u in range(2):
        for i in range(2):
            x = 2 * u + i
            c.lg.issue("ds_read_b64_tr_b16 v[%d:%d], v%d offset:%d" % (V_HRES + 2 * x, V_HRES + 2 * x + 1, 144 + u, LDS_H + i * 2048), "hres")

LDS_HST2 = 163840 - 512
def hst(c): return 65536 + 7168 if c.opt.get('trail', 0) else LDS_HST2
def p3_hstats_a(c):
    e = c.e
    T = 144
    e("v_and_b32 v%d, 3, v%d", T, V_L16)
    e("v_cmp_eq_u32 vcc, 1, v%d", T)
    e("v_cmp_eq_u32 s[%d:%d], 2, v%d", S_T + 2, S_T + 3, T)
    e("v_cmp_eq_u32 s[%d:%d], 3, v%d", S_T + 4, S_T + 5, T)
    e("v_cndmask_b32 v%d, v%d, v%d, vcc", T + 1, P3_AG, P3_AG + 1)
    e("v_cndmask_b32 v%d, v%d, v%d, s[%d:%d]", T + 1, T + 1, P3_AG + 2, S_T + 2, S_T + 3)
    e("v_cndmask_b32 v%d, v%d, v%d, s[%d:%d]", T + 1, T + 1, P3_AG + 3, S_T + 4, S_T + 5)
    e("v_mul_f32 v%d, 0x3b000000, v%d", T + 2, P3_AS)
    e("v_mul_f32 v%d, 0x3b000000, v%d", T + 1, T + 1)
    e("v_fma_f32 v%d, -v%d, v%d, v%d", T + 1, T + 2, T + 2, T + 1)
    e("v_max_f32 v%d, 0, v%d", T + 1, T + 1)
    e("v_add_f32 v%d, 0x3727c5ac, v%d", T + 1, T + 1)
    e("v_rsq_f32 v%d, v%d", T + 4, T + 1)
    e("v_lshrrev_b32 v%d, 2, v%d", T + 3, V_L16)
    e("v_mul_f32 v%d, v%d, v%d", T + 5, T + 4, T + 2)
    e("v_cmp_eq_u32 vcc, v%d, v%d", T + 3, V_G)
    e("s_lshl_b32 s%d, s%d, 7", S_T, S_W)
    e("s_add_u32 s%d, s%d, 0x%x", S_T, S_T, hst(c))
    e("v_lshlrev_b32 v%d, 3, v%d", T + 3, V_L16)
    e("v_add_u32 v%d, s%d, v%d", T + 3, S_T, T + 3)
    e("s_and_saveexec_b64 s[%d:%d], vcc", S_T + 2, S_T + 3)
    c.lg.issue("ds_write_b64 v%d, v[%d:%d]" % (T + 3, T + 4, T + 5), "hs")
    e("s_mov_b64 exec, s[%d:%d]", S_T + 2, S_T + 3)

def p3_hstats_b(c):
    e = c.e
    T = 144
    c.lg.wait("hs")
    e("s_barrier")
    e("v_lshlrev_b32 v%d, 3, v%d", T + 3, V_L16)
    for j in range(4):
        e("s_add_u32 s%d, s%d, %d", S_T, S_W, j)
        e("s_and_b32 s%d, s%d, 3", S_T, S_T)
        e("s_lshl_b32 s%d, s%d, 7", S_T, S_T)
        e("s_add_u32 s%d, s%d, 0x%x", S_T, S_T, hst(c))
        e("v_add_u32 v%d, s%d, v%d", T + 4, S_T, T + 3)
        c.lg.issue("ds_read_b64 v[%d:%d], v%d" % (150 + 2 * j, 151 + 2 * j, T + 4), "hs2")

GC0, GC1 = 60, 62
def gelu_consts(c):
    import struct
    f2u = lambda x: struct.unpack("<I", struct.pack("<f", x))[0]
    k = -2.0 * 0.7978845608028654 * 1.4426950408889634
    c.e("s_mov_b32 s60, 0x%x", f2u(k)); c.e("s_mov_b32 s61, 0x%x", f2u(k))
    c.e("s_mov_b32 s62, 0x%x", f2u(k * 0.044715)); c.e("s_mov_b32 s63, 0x%x", f2u(k * 0.044715))

def gelu_tile(c, acc, slot, j, T, nbg=0):
    e = c.e
    R = 150 + 2 * j
    if nbg >= 1: c.bg(1)
    for q in range(2):
        x = acc + 2 * q; cs = V_CS + 4 * slot + 2 * q; t = T + 8 * q
        e("v_pk_mul_f32 %s, %s, %s op_sel:[0,1] op_sel_hi:[1,1]", pr(t), pr(cs), pr(R))
    for q in range(2):
        x = acc + 2 * q; t = T + 8 * q
        e("v_pk_fma_f32 %s, %s, %s, %s op_sel_hi:[1,0,1] neg_lo:[0,0,1] neg_hi:[0,0,1]", pr(x), pr(x), pr(R), pr(t))
    for q in range(2):
        x = acc + 2 * q; t = T + 8 * q
        e("v_pk_mul_f32 %s, %s, %s", pr(t), pr(x), pr(x))
    for q in range(2):
        x = acc + 2 * q; t = T + 8 * q
        e("v_pk_fma_f32 %s, %s, s[62:63], %s", pr(t), pr(t), pr(t + 2))
    for q in range(2):
        x = acc + 2 * q; t = T + 8 * q
        e("v_pk_mul_f32 %s, %s, %s", pr(t), pr(t), pr(x))
    for q in range(2):
        t = T + 8 * q
        e("v_exp_f32 v%d, v%d", t, t); e("v_exp_f32 v%d, v%d", t + 1, t + 1)
    if nbg >= 2: c.bg(1)
    else: e("s_nop 0")
    e("s_nop 0")
    for q in range(2):
        t = T + 8 * q
        e("v_pk_add_f32 %s, %s, %s", pr(t), pr(t), pr(t + 4))
    for q in range(2):
        t = T + 8 * q
        e("v_rcp_f32 v%d, v%d", t, t); e("v_rcp_f32 v%d, v%d", t + 1, t + 1)
    if nbg >= 3: c.bg(1)
    e("s_nop 0")
    for q in range(2):
        x = acc + 2 * q; t = T + 8 * q
        e("v_pk_mul_f32 %s, %s, %s", pr(x), pr(x), pr(t))

def gelu_tile_bg(c, acc, slot, j, T, nbg):
    gelu_tile(c, acc, slot, j, T, nbg)

def gelu_setup(c, T):
    e = c.e
    gelu_consts(c)
    for q in range(2):
        t = T + 8 * q
        e("v_mov_b32 v%d, s60", t + 2); e("v_mov_b32 v%d, s60", t + 3)
        e("v_mov_b32 v%d, 1.0", t + 4); e("v_mov_b32 v%d, 1.0", t + 5)

def p3_z2_gelu_publish(c):
    e = c.e
    T = 160
    gelu_setup(c, T)
    SUM = 176
    for j in range(4):
        for slot in range(2):
            acc = P3_ACC + (slot * 4 + j) * 4
            gelu_tile_bg(c, acc, slot, j, T, 3)
            s0, q0 = SUM + 4 * j, SUM + 4 * j + 2
            if slot == 0:
                e("v_pk_add_f32 %s, %s, %s", pr(s0), pr(acc), pr(acc + 2))
                e("v_pk_mul_f32 %s, %s, %s", pr(q0), pr(acc), pr(acc))
            else:
                e("v_pk_add_f32 %s, %s, %s", pr(s0), pr(s0), pr(acc))
                e("v_pk_add_f32 %s, %s, %s", pr(s0), pr(s0), pr(acc + 2))
                e("v_pk_fma_f32 %s, %s, %s, %s", pr(q0), pr(acc), pr(acc), pr(q0))
            e("v_pk_fma_f32 %s, %s, %s, %s", pr(q0), pr(acc + 2), pr(acc + 2), pr(q0))
    c.lg.wait_all()
    e("s_barrier")
    e("s_lshl_b32 s%d, s%d, 11", S_T + 1, S_W)
    e("s_add_u32 s%d, s%d, 0x%x", S_T + 1, S_T + 1, LDS_ZS)
    e("v_lshlrev_b32 v%d, 9, v%d", T, V_G)
    e("v_lshl_add_u32 v%d, v%d, 3, v%d", T, V_L16, T)
    e("v_add_u32 v%d, s%d, v%d", T, S_T + 1, T)
    for j in range(4):
        s0, q0 = SUM + 4 * j, SUM + 4 * j + 2
        e("v_add_f32 v%d, v%d, v%d", s0, s0, s0 + 1)
        e("v_add_f32 v%d, v%d, v%d", s0 + 1, q0, q0 + 1)
        e("s_add_u32 s%d, s%d, %d", S_T, S_W, j)
        e("s_and_b32 s%d, s%d, 3", S_T, S_T)
        e("s_lshl_b32 s%d, s%d, 7", S_T, S_T)
        e("v_add_u32 v%d, s%d, v%d", T + 1, S_T, T)
        c.lg.issue("ds_write_b64 v%d, v[%d:%d]" % (T + 1, s0, s0 + 1))
    c.lg.wait_all()
    e("s_barrier")
    e("s_lshl_b32 s%d, s%d, 7", S_T, S_W)
    e("s_add_u32 s%d, s%d, 0x%x", S_T, S_T, LDS_ZS)
    e("v_lshlrev_b32 v%d, 9, v%d", T, V_G)
    e("v_lshl_add_u32 v%d, v%d, 3, v%d", T, V_L16, T)
    e("v_add_u32 v%d, s%d, v%d", T, S_T, T)
    for w in range(4):
        c.lg.issue("ds_read_b64 v[%d:%d], v%d offset:%d" % (SUM + 2 * w, SUM + 2 * w + 1, T, w * 2048))
    c.lg.wait_all()
    e("v_pk_add_f32 %s, %s, %s", pr(SUM), pr(SUM), pr(SUM + 2))
    e("v_pk_add_f32 %s, %s, %s", pr(SUM + 4), pr(SUM + 4), pr(SUM + 6))
    e("v_pk_add_f32 %s, %s, %s", pr(SUM), pr(SUM), pr(SUM + 4))
    for swap in ("v_permlane16_swap_b32", "v_permlane32_swap_b32"):
        e("v_mov_b32 v%d, v%d", SUM + 2, SUM)
        e("v_mov_b32 v%d, v%d", SUM + 3, SUM + 1)
        c.nop(2)
        e("%s v%d, v%d", swap, SUM, SUM + 2)
        e("%s v%d, v%d", swap, SUM + 1, SUM + 3)
        c.nop(1)
        e("v_pk_add_f32 %s, %s, %s", pr(SUM), pr(SUM), pr(SUM + 2))
    e("s_lshl_b32 s%d, s%d, 3", S_T, S_MB)
    e("s_add_u32 s%d, s%d, s%d", S_T, S_T, S_NB)
    e("s_lshl_b32 s%d, s%d, 9", S_T, S_T)
    e("s_lshl_b32 s%d, s%d, 7", S_T + 1, S_W)
    e("s_add_u32 s%d, s%d, s%d", S_T, S_T, S_T + 1)
    e("s_add_u32 s%d, s%d, 0x%x", S_T, S_T, L.ZST)
    e("v_lshlrev_b32 v%d, 3, v%d", T, V_L16)
    e("s_mov_b64 s[%d:%d], exec", S_T + 2, S_T + 3)
    e("s_mov_b64 exec, 0xffff")
    c.bstore(SUM, 2, T, R_WS, S_T, 0, "zst", "sc1")
    e("s_mov_b64 exec, s[%d:%d]", S_T + 2, S_T + 3)

def p3_z1_gelu(c):
    e = c.e
    T = 160
    e("v_lshlrev_b32 v176, 3, v%d", V_LANE)
    e("s_lshl_b32 s%d, s%d, 10", S_T + 1, S_W)
    e("s_add_u32 s%d, s%d, 0x%x", S_T + 1, S_T + 1, LDS_Z1)
    e("v_add_u32 v176, s%d, v176", S_T + 1)
    for j in range(4):
        e("s_add_u32 s%d, s%d, %d", S_T, S_W, j)
        e("s_and_b32 s%d, s%d, 3", S_T, S_T)
        e("s_lshl_b32 s%d, s%d, 12", S_T, S_T)
        e("v_add_u32 v177, s%d, v176", S_T)
        for sl in range(2):
            slot = 2 + sl
            acc = P3_ACC + (slot * 4 + j) * 4
            gelu_tile_bg(c, acc, slot, j, T, 3)
            e("v_cvt_pk_bf16_f32 v%d, v%d, v%d", acc, acc, acc + 1)
            e("v_cvt_pk_bf16_f32 v%d, v%d, v%d", acc + 1, acc + 2, acc + 3)
            c.lg.issue("ds_write_b64 v177, v[%d:%d] offset:%d" % (acc, acc + 1, sl * 512))
            if c.opt.get("zearly", 1) and 2 * j + sl + 1 == c.opt.get("zat", 6): p3_zst_early(c)

def p3_zst_early(c):
    e = c.e
    G = 180
    e("v_lshlrev_b32 v198, 3, v%d", V_LANE)
    e("s_lshl_b32 s%d, s%d, 12", S_T, S_MB)
    e("s_add_u32 s%d, s%d, 0x%x", S_T, S_T, L.ZST)
    for n in range(8):
        c.bload(G + 2 * n, 2, 198, R_WS, S_T, 512 * n, "zq", "sc1")

def p3_z2_finish(c):
    e = c.e; a = c.a
    T = 160; G = 180
    if not c.opt.get("zearly", 1): e("v_lshlrev_b32 v198, 3, v%d", V_LANE)
    e("v_lshlrev_b32 v%d, 3, v%d", T, V_LANE)
    loop = a.newlabel("zp"); done = a.newlabel("zpd"); chk = a.newlabel("zpc")
    e("s_mov_b32 s%d, 0", S_T + 1)
    if c.opt.get("zearly", 1):
        c.vm.wait("zq")
        e("s_branch %s", chk)
    a.label(loop)
    e("s_lshl_b32 s%d, s%d, 12", S_T, S_MB)
    e("s_add_u32 s%d, s%d, 0x%x", S_T, S_T, L.ZST)
    for n in range(8):
        e("buffer_load_dwordx2 v[%d:%d], v%d, s[%d:%d], s%d offen offset:%d sc1", G + 2 * n, G + 2 * n + 1, 198, R_WS, R_WS + 3, S_T, 512 * n)
    e("s_waitcnt vmcnt(0)")
    a.label(chk)
    e("v_min_f32 v%d, v%d, v%d", T + 1, G + 1, G + 3)
    for n in range(2, 8):
        e("v_min_f32 v%d, v%d, v%d", T + 1, T + 1, G + 2 * n + 1)
    if "Z" in c.opt.get("nopoll", ()): e("v_cmp_gt_f32 vcc, v%d, v%d", T + 1, T + 1)
    else: e("v_cmp_gt_f32 vcc, 0, v%d", T + 1)
    e("s_nop 1")
    e("s_cmp_eq_u64 vcc, 0")
    e("s_cbranch_scc1 %s", done)
    e("s_add_u32 s%d, s%d, 1", S_T + 1, S_T + 1)
    e("s_cmp_lt_u32 s%d, 0x100000", S_T + 1)
    e("s_cbranch_scc1 %s", loop)
    a.label(done)
    c.fine("zpoll")
    for n in range(1, 8):
        e("v_pk_add_f32 %s, %s, %s", pr(G), pr(G), pr(G + 2 * n))
    import struct
    inv = struct.unpack("<I", struct.pack("<f", 1.0 / 896))[0]
    e("v_mul_f32 v%d, 0x%x, v%d", G, inv, G)
    e("v_mul_f32 v%d, 0x%x, v%d", G + 1, inv, G + 1)
    e("v_fma_f32 v%d, -v%d, v%d, v%d", G + 1, G, G, G + 1)
    e("v_max_f32 v%d, 0, v%d", G + 1, G + 1)
    e("v_add_f32 v%d, 0x3727c5ac, v%d", G + 1, G + 1)
    e("v_rsq_f32 v%d, v%d", G + 2, G + 1)
    e("s_nop 0")
    e("v_mul_f32 v%d, v%d, v%d", G + 3, G, G + 2)
    e("v_sub_f32 v%d, 0, v%d", G + 3, G + 3)
    e("s_lshl_b32 s%d, s%d, 9", S_T, S_W)
    e("s_add_u32 s%d, s%d, 0x%x", S_T, S_T, LDS_ZROW)
    e("v_add_u32 v%d, s%d, v%d", T + 1, S_T, T)
    c.lg.issue("ds_write_b64 v%d, v[%d:%d]" % (T + 1, G + 2, G + 3))
    c.lg.wait_all()
    e("v_lshlrev_b32 v%d, 3, v%d", T + 2, V_L16)
    e("v_add_u32 v%d, s%d, v%d", T + 2, S_T, T + 2)
    for j in range(4):
        e("s_add_u32 s%d, s%d, %d", S_T + 1, S_W, j)
        e("s_and_b32 s%d, s%d, 3", S_T + 1, S_T + 1)
        e("s_lshl_b32 s%d, s%d, 7", S_T + 1, S_T + 1)
        e("v_add_u32 v%d, s%d, v%d", T + 3, S_T + 1, T + 2)
        c.lg.issue("ds_read_b64 v[%d:%d], v%d" % (150 + 2 * j, 151 + 2 * j, T + 3))
    c.lg.wait_all()
    e("s_mul_i32 s%d, s%d, 5120", S_T, S_W)
    e("s_add_u32 s%d, s%d, 0x%x", S_T, S_T, LDS_ZT)
    e("v_mul_u32_u24 v%d, 40, v%d", T + 4, V_L16)
    e("v_lshl_add_u32 v%d, v%d, 3, v%d", T + 4, V_G, T + 4)
    e("v_add_u32 v%d, s%d, v%d", T + 4, S_T, T + 4)
    for j in range(4):
        R = 150 + 2 * j
        e("s_add_u32 s%d, s%d, %d", S_T + 1, S_W, j)
        e("s_and_b32 s%d, s%d, 3", S_T + 1, S_T + 1)
        e("s_mul_i32 s%d, s%d, 640", S_T + 1, S_T + 1)
        e("v_add_u32 v%d, s%d, v%d", T + 5, S_T + 1, T + 4)
        for slot in range(2):
            acc = P3_ACC + (slot * 4 + j) * 4
            for q in range(2):
                x = acc + 2 * q
                e("v_pk_fma_f32 %s, %s, %s, %s op_sel:[0,0,1] op_sel_hi:[1,0,1]", pr(x), pr(x), pr(R), pr(R))
            e("v_cvt_pk_bf16_f32 v%d, v%d, v%d", acc, acc, acc + 1)
            e("v_cvt_pk_bf16_f32 v%d, v%d, v%d", acc + 1, acc + 2, acc + 3)
            c.lg.issue("ds_write_b64 v%d, v[%d:%d] offset:%d" % (T + 5, acc, acc + 1, slot * 2560))
    c.lg.wait_all()
    e("v_lshrrev_b32 v%d, 2, v%d", T + 4, V_L16)
    e("v_lshl_add_u32 v%d, v%d, 2, v%d", T + 4, V_G, T + 4)
    e("v_mul_u32_u24 v%d, 40, v%d", T + 4, T + 4)
    e("v_and_b32 v%d, 3, v%d", T + 5, V_LANE)
    e("v_lshl_add_u32 v%d, v%d, 3, v%d", T + 4, T + 5, T + 4)
    e("v_add_u32 v%d, s%d, v%d", T + 4, S_T, T + 4)
    O = 96
    for slot in range(2):
        for pp in range(2):
            for hh in range(2):
                d = O + (slot * 2 + pp) * 4 + 2 * hh
                c.lg.issue("ds_read_b64_tr_b16 v[%d:%d], v%d offset:%d" % (d, d + 1, T + 4, slot * 2560 + (32 * pp + 16 * hh) * 40), "o%d%d" % (slot, pp))
    e("s_lshl_b32 s%d, s%d, 6", S_T, S_NB)
    e("s_lshl_b32 s%d, s%d, 1", S_T + 1, S_MB)
    e("s_add_u32 s%d, s%d, s%d", S_T, S_T, S_T + 1)
    e("s_mul_i32 s%d, s%d, 7", S_T, S_T)
    e("s_lshl_b32 s%d, s%d, 1", S_T + 1, S_W)
    e("s_add_u32 s%d, s%d, s%d", S_T, S_T, S_T + 1)
    e("s_lshl_b32 s%d, s%d, 10", S_T, S_T)
    e("s_add_u32 s%d, s%d, 0x%x", S_T, S_T, L.Z2N)
    e("v_lshlrev_b32 v%d, 4, v%d", T + 5, V_LANE)
    e("v_add_u32 v%d, 0x40000000, v%d", T + 6, T + 5)
    e("s_cmp_eq_u32 s%d, 3", S_W)
    e("s_cselect_b64 vcc, -1, 0")
    e("v_cndmask_b32 v%d, v%d, v%d, vcc", T + 6, T + 5, T + 6)
    for slot in range(2):
        for pp in range(2):
            e("s_add_u32 s%d, s%d, %d", S_T + 1, S_T, (pp * 7 + slot) * 1024)
            c.lg.wait("o%d%d" % (slot, pp))
            c.bstore(O + (slot * 2 + pp) * 4, 4, T + 5 + slot, R_WS, S_T + 1, 0, "st", "sc1")

class SpLoader:
    NST = 3
    base = 65536
    V_DMA = 200
    V_RD = 208
    S_LDS, S_K = 56, 57
    def __init__(self, c):
        self.c = c; self.issued = 0; self.read_ = 0
    def setup(self):
        c = self.c; e = c.e
        T = 212
        e("v_lshrrev_b32 v%d, 3, v%d", T, V_LANE)
        e("v_lshlrev_b32 v%d, 12, v%d", T, T)
        e("v_and_b32 v%d, 7, v%d", T + 1, V_LANE)
        e("v_xor_b32 v%d, v%d, v%d", T + 1, T + 1, V_G)
        e("v_xor_b32 v%d, 4, v%d", T + 2, T + 1)
        e("v_lshl_add_u32 v%d, v%d, 4, v%d", T + 1, T + 1, T)
        e("v_lshl_add_u32 v%d, v%d, 4, v%d", T + 2, T + 2, T)
        for i in range(8):
            jj = i // 2
            e("s_add_u32 s%d, s%d, %d", S_T, S_W, jj)
            e("s_and_b32 s%d, s%d, 3", S_T, S_T)
            e("s_lshl_b32 s%d, s%d, 16", S_T, S_T)
            e("s_add_u32 s%d, s%d, %d", S_T, S_T, (i % 2) * 8 * 4096)
            e("v_add_u32 v%d, s%d, v%d", self.V_DMA + i, S_T, T + 1 + (i % 2))
        e("s_mul_i32 s%d, s%d, %d", self.S_LDS, S_W, self.NST * 8192)
        e("s_add_u32 s%d, s%d, %d", self.S_LDS, self.S_LDS, self.base)
        e("v_lshrrev_b32 v%d, 1, v%d", T + 1, V_L16)
        e("v_lshrrev_b32 v%d, 1, v%d", T + 2, V_G)
        e("v_xor_b32 v%d, v%d, v%d", T + 1, T + 1, T + 2)
        e("v_and_b32 v%d, 1, v%d", T + 2, V_G)
        e("v_lshlrev_b32 v%d, 3, v%d", T + 2, T + 2)
        e("v_lshl_add_u32 v%d, v%d, 7, v%d", T + 2, V_L16, T + 2)
        e("v_add_u32 v%d, s%d, v%d", T + 2, self.S_LDS, T + 2)
        for kk in range(2):
            for hh in range(2):
                e("v_xor_b32 v%d, %d, v%d", T + 3, 4 * kk + 2 * hh, T + 1)
                e("v_lshl_add_u32 v%d, v%d, 4, v%d", self.V_RD + 2 * kk + hh, T + 3, T + 2)
        e("s_lshl_b32 s%d, s%d, 10", self.S_K, S_W)
    def rebase(self, newbase):
        c = self.c; e = c.e
        d = newbase - self.base
        e("s_add_u32 s%d, s%d, %d", self.S_LDS, self.S_LDS, d) if d >= 0 else e("s_sub_u32 s%d, s%d, %d", self.S_LDS, self.S_LDS, -d)
        for i in range(4):
            if d >= 0: e("v_add_u32 v%d, %d, v%d", self.V_RD + i, d, self.V_RD + i)
            else: e("v_subrev_u32 v%d, %d, v%d", self.V_RD + i, -d, self.V_RD + i)
        self.base = newbase
    def srd(self):
        c = self.c; e = c.e
        e("s_lshl_b32 s%d, s%d, 18", S_T, S_MB)
        c.srd(R_B, P_WSP, 0x40000, off_sreg=S_T)
    def ops(self, n):
        c = self.c; out = []
        for _ in range(n):
            dd = self.issued
            st = dd % self.NST
            for i in range(8):
                def f(dd=dd, st=st, i=i):
                    if i == 0:
                        c.e("s_lshr_b32 s%d, s%d, 1", S_X1, S_ROTZ)
                        c.e("s_add_u32 s%d, s%d, %d", S_X1, S_X1, dd)
                        c.e("s_and_b32 s%d, s%d, 7", S_X1, S_X1)
                        c.e("s_lshl_b32 s%d, s%d, 7", S_X1, S_X1)
                        c.e("s_add_u32 s%d, s%d, s%d", S_X1, S_X1, self.S_K)
                    c.dma(self.V_DMA + i, R_B, S_X1, self.S_LDS, st * 8192 + i * 1024, "S%d" % dd, c.opt.get("ntsp", ""))
                out.append(f)
            self.issued += 1
        return out
    def issue(self, n=1):
        for f in self.ops(n): f()
    def read(self, n):
        c = self.c
        for _ in range(n):
            dd = self.read_
            c.vm.wait("S%d" % dd)
            st = dd % self.NST
            for kk in range(2):
                for j in range(4):
                    for hh in range(2):
                        dst = A0 + ((dd * 2 + kk) * 4 + j) * 4 + 2 * hh
                        c.lg.issue("ds_read_b64 %s, v%d offset:%d" % (rr(dst, 2), self.V_RD + 2 * kk + hh, st * 8192 + j * 2048), "sl")
            self.read_ += 1
    def read_ops(self):
        c = self.c; dd = self.read_; st = dd % self.NST
        out = [lambda dd=dd: c.vm.wait("S%d" % dd)]
        for kk in range(2):
            for j in range(4):
                for hh in range(2):
                    dst = A0 + ((dd * 2 + kk) * 4 + j) * 4 + 2 * hh
                    out.append(lambda dst=dst, kk=kk, hh=hh, j=j, st=st, dd=dd: c.lg.issue("ds_read_b64 %s, v%d offset:%d" % (rr(dst, 2), self.V_RD + 2 * kk + hh, st * 8192 + j * 2048), "sl%d" % dd))
        self.read_ += 1
        return out
    def refill(self, n):
        self.c.lg.wait("sl")
        self.issue(n)

P4_ACC = 32
P4_ZB = 144
def p4_main(c, tail_ops, SL=None):
    e = c.e
    NZ = 4
    e("v_lshlrev_b32 v29, 4, v%d", V_LANE)
    e("v_add_u32 v30, 0x1000, v29")
    e("s_lshl_b32 s%d, s%d, 6", 56, S_NB)
    e("s_lshl_b32 s%d, s%d, 4", 57, S_W)
    e("s_add_u32 s56, s56, s57")
    e("s_mul_i32 s56, s56, 7168")
    e("s_add_u32 s56, s56, 0x%x", L.Z2N)
    def issue_z(ks, ft):
        d, v, imm = P4_ZB + (ks % NZ) * 28 + 4 * ft, 29 + ft // 4, (ft % 4) * 1024
        if ft == 0:
            e("s_add_u32 s57, s%d, %d", S_ROTZ, ks)
            e("s_and_b32 s57, s57, 15")
            e("s_mul_i32 s57, s57, 7168")
            e("s_add_u32 s57, s57, s56")
        c.bload(d, 4, v, R_WS, 57, imm, "z%d" % ks, c.opt.get("zflag", "sc1"))
    if SL is not None:
        for i in range(4): e("v_mov_b32 v%d, v%d", 6 + i, SL.V_RD + i)
        SL.V_RD = 6
    for ks in range(2):
        for ft in range(7): issue_z(ks, ft)
    if SL is not None:
        SL.read(2)
    T = 2
    e("s_mul_i32 s%d, s%d, 24576", S_T + 2, S_W)
    e("s_add_u32 s%d, s%d, %d", S_T + 2, S_T + 2, LDS_RED4)
    e("v_lshlrev_b32 v%d, 4, v%d", T + 1, V_LANE)
    e("v_add_u32 v%d, s%d, v%d", T, S_T + 2, T + 1)
    for ks in range(16):
        c.vm.wait("z%d" % ks)
        if ks == 12: c.lg.wait_all()
        if ks in (0, 4, 12): c.fine("p4k%d" % ks)
        nk = ks + NZ - 1
        m = 0; nf = 0
        order = [(ft, j) for ft in range(7) for j in range(4)]
        if ks == 15:
            order = [(ft, j) for j in (1, 2, 3, 0) for ft in range(7)]
        pend = []
        for (ft, j) in order:
            acc = P4_ACC + (ft * 4 + j) * 4
            cc = "0" if ks == 0 else "v[%d:%d]" % (acc, acc + 3)
            z = P4_ZB + (ks % NZ) * 28 + 4 * ft
            e("v_mfma_f32_16x16x32_bf16 v[%d:%d], v[%d:%d], %s, %s", acc, acc + 3, z, z + 3, rr(A0 + (ks * 4 + j) * 4, 4), cc)
            m += 1
            if ks == 0 and m % 2 == 0 and nf < 14:
                issue_z(2 + nf // 7, nf % 7); nf += 1
            elif ks > 0 and nk < 16 and m % 4 == 0 and nf < 7:
                issue_z(nk, nf); nf += 1
            if nk >= 16 and m % 4 == 0 and tail_ops:
                tail_ops.pop(0)()
            if ks == 15:
                if j != 0: pend.append((ft, j, m))
                while pend and m - pend[0][2] >= 8:
                    f2, j2, _ = pend.pop(0)
                    a2 = P4_ACC + (f2 * 4 + j2) * 4
                    c.lg.issue("ds_write_b128 v%d, v[%d:%d] offset:%d" % (T, a2, a2 + 3, (j2 - 1) * 7168 + f2 * 1024))
    c.p4_pend = pend
    c.bgq = tail_ops

def p4_reduce_epilogue(c):
    e = c.e
    T = 144
    e("s_lshl_b32 s%d, s%d, 2", S_T, S_MB)
    e("s_add_u32 s%d, s%d, s%d", S_T, S_T, S_W)
    e("s_lshl_b32 s%d, s%d, 5", S_T + 1, S_T)
    e("v_lshlrev_b32 v%d, 1, v%d", T, V_L16)
    e("v_add_u32 v%d, s%d, v%d", T, S_T + 1, T)
    c.vm.issue("global_load_ushort v%d, v%d, s[%d:%d]" % (V_BIAS, T, P_BSP, P_BSP + 1), "bias")
    c.nop(8)
    for (f2, j2, _) in c.p4_pend:
        a2 = P4_ACC + (f2 * 4 + j2) * 4
        c.lg.issue("ds_write_b128 v2, v[%d:%d] offset:%d" % (a2, a2 + 3, (j2 - 1) * 7168 + f2 * 1024))
    e("v_lshlrev_b32 v%d, 4, v%d", T + 1, V_LANE)
    for j in range(1, 4):
        e("s_sub_u32 s%d, s%d, %d", S_T + 2, S_W, j)
        e("s_and_b32 s%d, s%d, 3", S_T + 2, S_T + 2)
        e("s_mul_i32 s%d, s%d, 24576", S_T + 2, S_T + 2)
        e("s_add_u32 s%d, s%d, %d", S_T + 2, S_T + 2, LDS_RED4)
        e("v_add_u32 v%d, s%d, v%d", T + 2 + j, S_T + 2, T + 1)
    c.bg(2)
    c.lg.wait_all()
    e("s_barrier")
    R = 152
    for j in range(1, 4):
        for ft in range(7):
            d = R + (j - 1) * 28 + 4 * ft
            c.lg.issue("ds_read_b128 v[%d:%d], v%d offset:%d" % (d, d + 3, T + 2 + j, (j - 1) * 7168 + ft * 1024), "r%d" % j)
        c.bg(1)
    Z1 = 236
    e("s_lshl_b32 s%d, s%d, 12", S_T + 2, S_W)
    e("s_add_u32 s%d, s%d, 0x%x", S_T + 2, S_T + 2, LDS_Z1)
    e("v_lshlrev_b32 v%d, 3, v%d", T + 6, V_LANE)
    e("v_add_u32 v%d, s%d, v%d", T + 6, S_T + 2, T + 6)
    for ft in range(7):
        c.lg.issue("ds_read_b64 v[%d:%d], v%d offset:%d" % (Z1 + 2 * ft, Z1 + 2 * ft + 1, T + 6, ft * 512), "z1")
    for j in range(1, 4):
        c.lg.wait("r%d" % j)
        for ft in range(7):
            acc = P4_ACC + (ft * 4) * 4
            d = R + (j - 1) * 28 + 4 * ft
            for q in range(2):
                e("v_pk_add_f32 %s, %s, %s", pr(acc + 2 * q), pr(acc + 2 * q), pr(d + 2 * q))
        c.bg(1)
    c.lg.wait_all()

def p4_finish(c):
    e = c.e; a = c.a
    T = 144; Z1 = 236
    c.vm.wait("bias")
    e("v_lshlrev_b32 v%d, 16, v%d", V_BIAS, V_BIAS)
    e("s_lshl_b32 s%d, s%d, 2", S_T, S_MB)
    e("s_add_u32 s%d, s%d, s%d", S_T, S_T, S_W)
    e("s_mul_i32 s%d, s%d, %d", S_T, S_T, 28 * 1024)
    e("s_add_u32 s%d, s%d, 0x%x", S_T, S_T, L.PF)
    e("s_mul_i32 s%d, s%d, 7", S_T + 1, S_NB)
    e("s_lshr_b32 s%d, s%d, 1", S_T + 2, S_T + 1)
    e("s_lshl_b32 s%d, s%d, 10", S_T + 2, S_T + 2)
    e("s_add_u32 s%d, s%d, s%d", S_T, S_T, S_T + 2)
    e("v_lshlrev_b32 v%d, 4, v%d", T + 1, V_LANE)
    O = 152
    for ft in range(7):
        x = P4_ACC + ft * 16
        z = Z1 + 2 * ft; t = T + 2
        e("v_lshlrev_b32 v%d, 16, v%d", t, z)
        e("v_and_b32 v%d, 0xffff0000, v%d", t + 1, z)
        e("v_lshlrev_b32 v%d, 16, v%d", t + 2, z + 1)
        e("v_and_b32 v%d, 0xffff0000, v%d", t + 3, z + 1)
        for r in range(4): e("v_add_f32 v%d, v%d, v%d", x + r, x + r, V_BIAS)
        for q in range(2): e("v_pk_mul_f32 %s, %s, %s", pr(x + 2 * q), pr(x + 2 * q), pr(t + 2 * q))
        e("v_cvt_pk_bf16_f32 v%d, v%d, v%d", O + 2 * ft, x, x + 1)
        e("v_cvt_pk_bf16_f32 v%d, v%d, v%d", O + 2 * ft + 1, x + 2, x + 3)
    odd = a.newlabel("podd"); done = a.newlabel("pdone")
    e("s_bitcmp1_b32 s%d, 0", S_NB)
    e("s_cbranch_scc1 %s", odd)
    txt = lambda src, n, imm: "buffer_store_%s %s, v%d, s[%d:%d], s%d offen offset:%d sc1" % ({2: "dwordx2", 4: "dwordx4"}[n], rr(src, n), T + 1, R_WS, R_WS + 3, S_T, imm)
    for p in range(3): e(txt(O + 4 * p, 4, 1024 * p))
    e(txt(O + 12, 2, 3072))
    e("s_branch %s", done)
    a.label(odd)
    e(txt(O, 2, 8))
    for p in range(3):
        e("v_mov_b32 v%d, v%d", T + 4, O + 2 + 4 * p); e("v_mov_b32 v%d, v%d", T + 5, O + 3 + 4 * p)
        e("v_mov_b32 v%d, v%d", T + 6, O + 4 + 4 * p); e("v_mov_b32 v%d, v%d", T + 7, O + 5 + 4 * p)
        e(txt(T + 4, 4, 1024 * (p + 1)))
        e("s_nop 1")
    a.label(done)
    for _ in range(4): c.vm.q.append("st")

LDS_WO = 0
def p5_wout_ops(c):
    e = c.e
    e("v_lshlrev_b32 v31, 4, v%d", V_LANE)
    e("s_lshr_b32 s58, s%d, 1", S_NB)
    e("s_lshl_b32 s58, s58, 2")
    e("s_add_u32 s58, s58, s%d", S_W)
    e("s_mul_i32 s58, s58, %d", 2 * 28 * 1024)
    e("s_add_u32 s58, s58, 0x%x", L.WOUTF)
    out = []
    for kf in range(28):
        for i in range(2):
            def f(kf=kf, i=i):
                c.e("s_add_u32 s%d, s58, %d", S_X0, (i * 28 + kf) * 1024)
                c.bload(A0 + (kf * 2 + i) * 4, 4, 31, R_WS, S_X0, 0, "wo%d" % (kf // 8), "sc1")
            out.append(f)
    return out

P5_ACC = 32
P5_PF = 48
LDS_P = 0
def p5_main(c):
    e = c.e
    T = 240
    e("v_lshlrev_b32 v%d, 4, v%d", T, V_LANE)
    e("s_lshl_b32 s52, s%d, 2", S_MB)
    e("s_and_b32 s%d, s%d, 1", S_T, S_NB)
    e("s_lshl_b32 s%d, s%d, 1", S_T, S_T)
    e("s_add_u32 s52, s52, s%d", S_T)
    e("s_and_b32 s%d, s%d, 1", S_T, S_W)
    e("s_add_u32 s52, s52, s%d", S_T)
    e("s_mul_i32 s52, s52, 28")
    e("s_mul_i32 s53, s%d, 28", S_T)
    e("s_lshr_b32 s%d, s%d, 1", S_T, S_W)
    e("s_add_u32 s52, s52, s%d", S_T)
    e("s_add_u32 s53, s53, s%d", S_T)
    e("s_lshl_b32 s52, s52, 10")
    e("s_add_u32 s52, s52, 0x%x", L.PF)
    e("s_lshl_b32 s53, s53, 10")
    def pdma(q):
        e("s_add_u32 s%d, s52, %d", S_T, q * 2048)
        c.dma(T, R_WS, S_T, 53, LDS_P + q * 2048, "p%d" % (q // 4), "sc1")
    for q in range(8): pdma(q)
    LA = 3
    def reads(kf):
        f = P5_PF + 8 * (kf & 3)
        return ["ds_read_b128 v[%d:%d], v%d offset:%d" % (f + 4 * u, f + 4 * u + 3, T, LDS_P + (u * 28 + kf) * 1024) for u in range(2)]
    later = list(range(8, 14))
    c.vm.wait("p0", "wo0")
    e("s_barrier")
    for k in range(LA):
        for r in reads(k): c.lg.issue(r, "pf%d" % k)
    for kf in range(28):
        nk = kf + LA
        if nk < 28 and nk % 8 == 0:
            c.vm.wait("p%d" % (nk // 8))
            e("s_barrier")
        if kf % 8 == 0: c.vm.wait("wo%d" % (kf // 8))
        c.lg.wait("pf%d" % kf)
        f = P5_PF + 8 * (kf & 3)
        nxt = reads(nk) if nk < 28 else []
        for u in range(2):
            for i in range(2):
                acc = P5_ACC + 4 * (2 * u + i)
                cc = "0" if kf == 0 else "v[%d:%d]" % (acc, acc + 3)
                e("v_mfma_f32_16x16x32_bf16 v[%d:%d], %s, v[%d:%d], %s", acc, acc + 3, rr(A0 + (kf * 2 + i) * 4, 4), f + 4 * u, f + 4 * u + 3, cc)
            if nxt: c.lg.issue(nxt.pop(0), "pf%d" % nk)
        if later and kf < 6: pdma(later.pop(0))

def p5_epilogue(c):
    e = c.e
    T = 240
    c.nop(8)
    O = 120
    for x in range(4):
        acc = P5_ACC + 4 * x; h = V_HRES + 2 * x; t = 112
        e("v_lshlrev_b32 v%d, 16, v%d", t, h)
        e("v_and_b32 v%d, 0xffff0000, v%d", t + 1, h)
        e("v_lshlrev_b32 v%d, 16, v%d", t + 2, h + 1)
        e("v_and_b32 v%d, 0xffff0000, v%d", t + 3, h + 1)
        for q in range(2):
            e("v_pk_add_f32 %s, %s, %s", pr(acc + 2 * q), pr(acc + 2 * q), pr(t + 2 * q))
        e("v_cvt_pk_bf16_f32 v%d, v%d, v%d", O + 2 * x, acc, acc + 1)
        e("v_cvt_pk_bf16_f32 v%d, v%d, v%d", O + 2 * x + 1, acc + 2, acc + 3)
    c.srd(R_A, P_OUT, 2 << 20)
    e("s_lshl_b32 s%d, s%d, 16", S_T, S_MB)
    e("s_and_b32 s%d, s%d, 1", S_T + 1, S_NB)
    e("s_lshl_b32 s%d, s%d, 15", S_T + 1, S_T + 1)
    e("s_add_u32 s%d, s%d, s%d", S_T, S_T, S_T + 1)
    e("s_lshr_b32 s%d, s%d, 1", S_T + 1, S_NB)
    e("s_lshl_b32 s%d, s%d, 8", S_T + 1, S_T + 1)
    e("s_add_u32 s%d, s%d, s%d", S_T, S_T, S_T + 1)
    e("s_lshl_b32 s%d, s%d, 6", S_T + 1, S_W)
    e("s_add_u32 s%d, s%d, s%d", S_T, S_T, S_T + 1)
    e("v_lshlrev_b32 v%d, 10, v%d", T, V_L16)
    e("v_and_b32 v%d, 1, v%d", T + 1, V_G)
    e("v_lshl_add_u32 v%d, v%d, 5, v%d", T, T + 1, T)
    e("v_lshrrev_b32 v%d, 1, v%d", T + 1, V_G)
    e("v_lshl_add_u32 v%d, v%d, 4, v%d", T, T + 1, T)
    for u in range(2):
        o = O + 4 * u
        if u: e("s_add_u32 s%d, s%d, 16384", S_T, S_T)
        c.nop(2)
        e("v_permlane16_swap_b32 v%d, v%d", o, o + 2)
        e("v_permlane16_swap_b32 v%d, v%d", o + 1, o + 3)
        c.bstore(o, 4, T, R_A, S_T, 0, "out", c.opt.get("outflag", ""))

def touch_wsp(c, dd0, ndd, wq=S_W, tracked=True, V=145):
    e = c.e
    e("s_lshl_b32 s%d, s%d, 18", S_T, S_MB)
    e("s_and_b32 s%d, s%d, 3", S_T + 1, S_NB)
    e("s_lshl_b32 s%d, s%d, 16", S_T + 1, S_T + 1)
    e("s_add_u32 s%d, s%d, s%d", S_T, S_T, S_T + 1)
    e("s_lshl_b32 s%d, s%d, 10", S_T + 1, wq)
    e("s_add_u32 s%d, s%d, s%d", S_T, S_T, S_T + 1)
    c.srd(R_C, P_WSP, 8 << 20)
    e("s_lshr_b32 s%d, s%d, 1", S_T + 1, S_ROTZ)
    e("s_add_u32 s%d, s%d, %d", S_T + 1, S_T + 1, dd0)
    e("v_add_u32 v%d, s%d, v%d", V + 1, S_T + 1, V_G)
    e("v_and_b32 v%d, 7, v%d", V + 1, V + 1)
    e("v_lshlrev_b32 v%d, 12, v%d", V, V_L16)
    e("v_lshl_add_u32 v%d, v%d, 7, v%d", V, V + 1, V)
    e("v_cmp_gt_u32 vcc, %d, v%d", ndd, V_G)
    e("v_mov_b32 v%d, 0x40000000", V + 1)
    e("s_nop 0")
    e("v_cndmask_b32 v%d, v%d, v%d, vcc", V, V + 1, V)
    if tracked: c.bload(V_BIAS, 1, V, R_C, S_T, 0, "touch", c.opt.get("nttouch", ""))
    else: e("buffer_load_dword v%d, v%d, s[%d:%d], s%d offen", V_BIAS, V, R_C, R_C + 3, S_T)

def touch_wsp8(c, V=145):
    e = c.e
    e("s_lshl_b32 s%d, s%d, 18", S_T, S_MB)
    e("s_lshl_b32 s%d, s%d, 15", S_T + 1, S_NB)
    e("s_add_u32 s%d, s%d, s%d", S_T, S_T, S_T + 1)
    e("s_lshl_b32 s%d, s%d, 10", S_T + 1, S_W)
    e("s_add_u32 s%d, s%d, s%d", S_T, S_T, S_T + 1)
    c.srd(R_C, P_WSP, 8 << 20)
    e("v_and_b32 v%d, 7, v%d", V, V_LANE)
    e("v_lshlrev_b32 v%d, 12, v%d", V, V)
    e("v_lshrrev_b32 v%d, 3, v%d", V + 1, V_LANE)
    e("v_lshl_add_u32 v%d, v%d, 7, v%d", V, V + 1, V)
    c.bload(V_BIAS, 1, V, R_C, S_T, 0, "touch")

def touch_z2n(c):
    e = c.e
    e("s_lshl_b32 s%d, s%d, 6", S_T, S_NB)
    e("s_lshl_b32 s%d, s%d, 4", S_T + 1, S_W)
    e("s_add_u32 s%d, s%d, s%d", S_T, S_T, S_T + 1)
    e("s_and_b32 s%d, s%d, 7", S_T + 1, S_MB)
    e("s_lshl_b32 s%d, s%d, 1", S_T + 1, S_T + 1)
    e("s_add_u32 s%d, s%d, s%d", S_T, S_T, S_T + 1)
    e("s_mul_i32 s%d, s%d, 7168", S_T, S_T)
    e("s_add_u32 s%d, s%d, 0x%x", S_T, S_T, L.Z2N)
    e("v_lshlrev_b32 v2, 7, v%d", V_LANE)
    c.bload(31, 1, 2, R_WS, S_T, 0, "touch", c.opt.get("zflag", "sc1"))
    e("v_add_u32 v2, 0x2000, v2")
    e("v_cmp_gt_u32 vcc, 48, v%d", V_LANE)
    e("v_mov_b32 v3, 0x40000000")
    e("s_nop 0")
    e("v_cndmask_b32 v2, v3, v2, vcc")
    c.bload(31, 1, 2, R_WS, S_T, 0, "touch", c.opt.get("zflag", "sc1"))
```

```python
import sys
from core import *
import ph12, ph345
KNAME = "sequential_preLN__ssm_conv_h3__mixer_gmlp__prompt_kernel"

DESCRIPTION = """
One persistent launch, 256 workgroups (one per CU, 4 waves x 512 registers, 160 KB LDS), five phases joined by
device-scope counters in d_ws (zeroed by workgroup 0 at entry, published through d_debug[0]).  All hand-offs are
write-through (sc1) stores, acknowledged before the arrival, and read back with sc1 loads.
 P1  64x64 tile per WG: kv = shiftconv(k)*v and x transposed to [channel][time], LayerNorm statistics of 8 rows,
     W_in / W_out re-laid out as MFMA fragments.
 P2  two channels per WG: the causal long convolution as Toeplitz 16x16x32 MFMAs (8 shifted copies of the filter in
     LDS), h = x + LN(x) * (conv + kv*D) written transposed.
 P3  64 rows x (112 z2 + 112 z1) columns of gelu(LN(h) W_in): W_in slab in AGPRs, h tile in LDS, LayerNorm folded into
     the epilogue (row sums / Gram diagonal / column sums by MFMA); LN statistics of z2 exchanged inside the 8-WG cluster.
 P4  64 x 112 tile of W_sp LN(z2): W_sp slab in AGPRs (K split over the waves), z2 fragments streamed; p = z1*(g + b).
 P5  32 x 128 tile of h + p W_out.
Generated by the author's own Python emitter (straight-line code, counted vmcnt / lgkmcnt waits).
"""

def drain_arrive(c, line_sreg, line_imm, boot=False):
    c.vm.wait_all()
    c.lg.wait_all()
    c.e("s_barrier")
    if boot: ph12.wait_boot(c)
    c.arrive(line_sreg, line_imm)

def build(stop=99, stamps=False, fine=False, finer=False, skip=(), **opt):
    body = Asm()
    c = Ctx(body, stamps)
    c.finestamps = fine
    c.finerstamps = finer
    c.st.skip = set(skip)
    c.opt = opt
    e = c.e
    kernel_begin(body, KNAME)
    ph12.setup(c)
    ph12.load_D_issue(c)
    ph12.bootstrap_a(c)
    WL = ph345.WLoader(c); SL = ph345.SpLoader(c)
    c.st.stamp("setup")
    flowB = opt.get("flowB", 2)
    early_toep = opt.get("etoep", 0)
    ph12.p1_issue(c)
    if flowB == 1: ph345.wpre_issue(c)
    ph12.p1_issue_x(c)
    if flowB == 2: ph345.wpre_issue(c)
    if early_toep: ph12.p1_issue_raw(c)
    ph12.bootstrap_b(c)
    ph12.p1_kv(c)
    ph12.load_D_finish(c)
    ph12.boot_flag_issue(c)
    c.finer("ust")
    ph12.p1_x(c)
    if flowB: c.vm.wait("wp")
    if early_toep: c.vm.wait("raw")
    c.lg.wait_all()
    e("s_barrier")
    c.finer("xwork")
    ph12.p1_x_store3(c)
    if flowB: ph345.wpre_store3(c)
    if early_toep:
        ph12.toeplitz(c)
        c.finer("toep")
    else:
        ph12.p1_issue_raw(c)
    if not flowB: ph345.wpre_issue(c)
    c.vm.wait("wst" if flowB else "xst")
    c.finer("acks")
    ph12.boot_flag_check(c)
    c.lg.wait_all()
    e("s_barrier")
    c.garrive(L.C1_LINE)
    c.st.stamp("arr1")
    if not early_toep:
        c.vm.wait("raw")
        c.lg.wait_all()
        e("s_barrier")
        c.finer("raw")
        ph12.toeplitz(c)
        c.finer("toep")
    if not flowB:
        c.vm.wait("wp")
        c.lg.wait_all()
        e("s_barrier")
        ph345.wpre_store3(c)
    WL.setup()
    c.lg.wait_all()
    c.gpoll(L.C1_LINE)
    if not flowB: c.vm.wait("wst")
    e("s_barrier")
    if not flowB: c.garrive(L.C1B_LINE)
    c.st.stamp("B1")
    ph12.p2_issue_u(c)
    sops = ph12.p2_stats_ops(c)
    c.vm.wait("ub")
    e("s_barrier")
    c.finer("ub")
    wl = WL.loads(0, 16)
    take = lambda n: [wl.pop(0) for _ in range(n)]
    def touch_block(dd0, n):
        l0 = body.newlabel("tb"); lt = body.newlabel("t0")
        e("s_cmp_eq_u32 s%d, 0", S_W)
        e("s_cbranch_scc1 %s", l0)
        ph345.touch_wsp(c, dd0, n, tracked=False, V=248)
        e("s_cmp_eq_u32 s%d, 1", S_W)
        e("s_cbranch_scc0 %s", lt)
        e("s_mov_b32 s%d, 0", S_X0)
        ph345.touch_wsp(c, dd0, n, wq=S_X0, tracked=False, V=248)
        body.label(lt)
        body.label(l0)
    ck = opt.get("ck", 2)
    def hke(): c.gpoll(L.C1B_LINE, 242, 243, early=True)
    def hkl():
        c.gpoll(L.C1B_LINE, 242, 243, late=True)
        e("s_barrier")
        if opt.get('touch1', 0): touch_block(0, 4)
    if flowB:
        nw = opt.get("nw", 8)
        def hkt():
            if opt.get('touch1', 0): touch_block(0, 4)
        ph12.p2_main(c, {opt.get("tk", 2): hkt}, {0: sops, 1: take(nw), 2: take(nw), 3: take(nw)})
    else:
        ph12.p2_main(c, {ck - 1: hke, ck: hkl}, dict([(0, sops)] + [(r, take(9)) for r in range(ck + 1, 4)]))
    c.st.stamp("p2main")
    c.bgq = take(min(8, max(0, len(wl) - 4 * (16 - opt.get('late', 16)))))
    ph12.p2_epilogue(c)
    c.finer("p2epi")
    c.bg_flush()
    for f in take(min(opt.get('nack', 14), max(0, len(wl) - 4 * (16 - opt.get('late', 16))))): f()
    c.vm.wait("st")
    c.lg.wait_all()
    e("s_barrier")
    c.garrive(L.C2_LINE)
    c.st.stamp("arr2")
    ph345.p3_setup(c)
    WL.colsum_prep()
    late = opt.get("late", 16)
    nlate = 4 * (16 - late)
    cs_late = opt.get("cslate", 8)
    k = 0
    while len(wl) > nlate:
        for f in take(min(4, len(wl) - nlate)): f()
        if k < 16 - cs_late:
            WL.colsum(k, k + 1); k += 1
    if k < 16 - cs_late:
        WL.colsum(k, 16 - cs_late); k = 16 - cs_late
    cs_done = k
    c.finer("wdone")
    if opt.get("epoll", 0): c.gpoll(L.C2_LINE, 242, 243, early=True)
    SL.setup(); SL.srd()
    if opt.get("epoll", 0): c.gpoll(L.C2_LINE, 242, 243, late=True)
    else: c.gpoll(L.C2_LINE)
    e("s_barrier")
    c.st.stamp("B2")
    hops = ph345.p3_issue_h(c)
    hup = opt.get("hup", 8)
    for f in hops[:hup]: f()
    if cs_done < late: WL.colsum(cs_done, late)
    trail = opt.get("trail", 0)
    inter = {}; tailops = {}; hk3m = {}
    rest = hops[hup:]
    inter[0] = rest[:4]; inter[1] = rest[4:8]
    if not trail:
        s0 = SL.ops(3)
        sl0 = opt.get("sl0", 12)
        nper = -(-24 // (16 - sl0))
        for i in range(16 - sl0): inter[sl0 + i] = s0[nper * i:nper * (i + 1)]
        for i in range(16 - late):
            inter[2 + i] = inter.get(2 + i, []) + take(4)
        if opt.get('map', 0) == 1:
            hk3m[opt.get('t2k', 1)] = lambda: ph345.touch_wsp8(c)
        elif opt.get('t2both', 1):
            hk3m[opt.get('t2k', 1)] = lambda: (ph345.touch_wsp(c, 0, 4), ph345.touch_wsp(c, 4, 4))
        elif opt.get('touch2', 1):
            hk3m[opt.get('t2k', 8)] = lambda: ph345.touch_wsp(c, 4, 4)
    else:
        k0 = opt.get("tk0", 2)
        def put(ks, ops): inter[ks] = inter.get(ks, []) + ops
        def wait_sl(dd): return [lambda: c.lg.wait("sl%d" % dd)]
        c0, c1, c2 = SL.ops(1), SL.ops(1), SL.ops(1)
        put(k0, c0[:4]); put(k0 + 1, c0[4:]); put(k0 + 2, c1[:4]); put(k0 + 3, c1[4:]); put(k0 + 4, c2[:4]); put(k0 + 5, c2[4:])
        tailops[5] = SL.read_ops()
        tailops[7] = [lambda: c.lg.wait("sl0"), lambda: e("s_barrier")]
        tailops[8] = SL.read_ops()
        tailops[11] = SL.read_ops()
        c3, c4, c5 = SL.ops(1), SL.ops(1), SL.ops(1)
        put(10, wait_sl(0) + c3[:4]); put(11, c3[4:])
        put(12, wait_sl(1) + c4[:4]); put(13, c4[4:])
        put(14, wait_sl(2) + c5[:4]); put(15, c5[4:])
        hk3m[opt.get('t2k', 8)] = lambda: ph345.touch_wsp(c, 4, 4)
    ph345.p3_main(c, hk3m, inter, late_cs=late, tailops=tailops)
    c.st.stamp("p3main")
    c.lg.wait("hs2")
    c.fine("hstats")
    ph345.p3_z2_gelu_publish(c)
    c.st.stamp("z2pub")
    SL.read(3)
    c.lg.wait("sl")
    c.fine("slr1")
    c.bgq = SL.ops(2 if trail else 3)
    ph345.p3_z1_gelu(c)
    c.bg_flush()
    c.fine("z1")
    ph345.p3_z2_finish(c)
    c.st.stamp("p3done")
    if trail:
        SL.read(2)
        c.vm.wait("st")
        c.lg.wait_all()
        e("s_barrier")
        c.arrive(S_NB, L.C3_LINE)
        c.fine("arr3")
    else:
        SL.read(3)
        c.lg.wait("sl")
        c.fine("slr2")
        s2 = SL.ops(2)
        for _ in range(8): s2.pop(0)()
        c.vm.wait("st")
        c.lg.wait_all()
        e("s_barrier")
        c.arrive(S_NB, L.C3_LINE)
        c.fine("arr3")
        for f in s2: f()
        if opt.get("epoll", 0): c.poll1(S_NB, L.C3_LINE, 32, 30, 29, early=True)
        if not opt.get("sllate", 0):
            SL.read(2)
            c.lg.wait_all()
        c.fine("slr3")
    if opt.get("epoll", 0) and not trail: c.poll1(S_NB, L.C3_LINE, 32, 30, 29, late=True)
    else: c.poll(S_NB, L.C3_LINE, 1, 32)
    e("s_barrier")
    c.st.stamp("B3")
    tail = ph345.p5_wout_ops(c)
    ph345.p4_main(c, tail, SL if opt.get('sllate', 0) else None)
    c.st.stamp("p4main")
    ph345.p4_reduce_epilogue(c)
    c.fine("p4red")
    ph345.p4_finish(c)
    c.st.stamp("p4done")
    c.bg(opt.get("nwo1", 14))
    c.vm.wait("st")
    e("s_barrier")
    c.arrive(S_MB, L.C4_LINE)
    c.fine("arr4")
    c.bg_flush()
    c.poll(S_MB, L.C4_LINE, 1, 8)
    e("s_barrier")
    c.st.stamp("C4")
    ph345.p5_main(c)
    c.fine("p5main")
    ph345.p5_epilogue(c)
    if stamps or opt.get("endwait", 0): c.vm.wait_all()
    c.st.stamp("end")
    c.st.stamp("real1", real=True)
    if opt.get('dbgout') is not None: flush_dbg(c.st, P_DBG, 2, S_W, opt['dbgout'], 32)
    else: c.st.flush(P_WS, L.STAMPS, 2, 32, S_T)
    body.label("KEND")
    e("s_endpgm")
    a = Asm()
    hdr = open("cdna_kernels/%s.s.ref" % KNAME.replace("_kernel", "")).read().split("\n")
    for ln in hdr:
        if ln.startswith("; @launch") or ln.startswith("; Override") or ln.startswith("; grid="): continue
        if not ln.startswith(";"): break
        a(ln)
    a("; @launch grid=(256,1,1) block=(256,1,1) lds=163840")
    for ln in DESCRIPTION.strip("\n").split("\n"): a("; " + ln if ln else ";")
    a('.amdgcn_target "amdgcn-amd-amdhsa--gfx950"')
    a(".text")
    a(body.text())
    a('.section .rodata,"a"')
    a(".p2align 6")
    kernel_desc(a, KNAME, 512, sgprs=102, accum=256)
    return a.text(), c.st.names

if __name__ == "__main__":
    kw = eval("dict(%s)" % (sys.argv[2] if len(sys.argv) > 2 else ""))
    t, names = build(**kw)
    open(sys.argv[1], "w").write(t)
    open(sys.argv[1] + ".stamps", "w").write(",".join(names))
```
